```python
import torch

def _softmax(x, axis=-1):
    return torch.softmax(x, dim=axis)
def _gelu(x):
    return torch.nn.functional.gelu(x, approximate="tanh")
def _silu(x):
    return torch.nn.functional.silu(x)
def _sigmoid(x):
    return torch.sigmoid(x)
def _layernorm(x, axis=-1, eps=1e-5):
    m = x.mean(dim=axis, keepdim=True)
    v = x.var(dim=axis, keepdim=True, unbiased=False)
    return (x - m) / torch.sqrt(v + eps)
def _scatter_add(tgt, idx, src, axis=0):
    return tgt.clone().index_add_(axis, idx, src)
def _segment_sum(src, seg, n):
    out = torch.zeros((n,) + src.shape[1:], dtype=src.dtype)
    return out.index_add_(0, seg, src)
def _pad(x, pw):
    flat = tuple(v for pair in reversed(pw) for v in pair)
    return torch.nn.functional.pad(x, flat)

kernel_name = 'recurrent_scan__ssm_conv_s5__glu_gated_bilinear__prompt'

def setup_inputs():

    _w = (lambda a: (lambda t: t.to(torch.bfloat16) if t.is_floating_point() else t)(torch.as_tensor(a)))
    def _A_setup():
        B, S, D = 1, 2048, 576
        P = D
        Lambda_re = -0.5 * (lambda _x: torch.exp(torch.as_tensor(_x)))((lambda *s: torch.randn(*s, dtype=torch.bfloat16) * 0.8)(P))
        Lambda_im = (lambda *s: torch.randn(*s, dtype=torch.bfloat16) * 0.8)(P) * 1.0
        B_re = (lambda *s: torch.randn(*s, dtype=torch.bfloat16) * 1.6)(P, D) * (D ** -0.5)
        B_im = (lambda *s: torch.randn(*s, dtype=torch.bfloat16) * 1.6)(P, D) * (D ** -0.5)
        C_re = (lambda *s: torch.randn(*s, dtype=torch.bfloat16) * 1.6)(D, P) * (P ** -0.5)
        C_im = (lambda *s: torch.randn(*s, dtype=torch.bfloat16) * 1.6)(D, P) * (P ** -0.5)
        log_dt = (lambda *s: torch.randn(*s, dtype=torch.bfloat16) * 0.8)(P) * 0.3 - 2.0
        Dskip = (lambda *s: torch.randn(*s, dtype=torch.bfloat16) * 0.8)(D)
        return {
            "x": _w((lambda *s: torch.randn(*s, dtype=torch.bfloat16) * 0.05)(B, S, D)),
            "Lambda_re": _w(Lambda_re),
            "Lambda_im": _w(Lambda_im),
            "B_re": _w(B_re),
            "B_im": _w(B_im),
            "C_re": _w(C_re),
            "C_im": _w(C_im),
            "log_dt": _w(log_dt),
            "Dskip": _w(Dskip),
        }
    _A_in = _A_setup()

    def _B_setup():
        B, S, D, F = 1, 2048, 576, 4608
        return {
            "x": _w((lambda *s: torch.randn(*s, dtype=torch.bfloat16) * 0.05)(B, S, D)),
            "w_gate": _w((lambda *s: torch.randn(*s, dtype=torch.bfloat16) * 0.2)(D, F) * (D ** -0.5)),
            "w_up": _w((lambda *s: torch.randn(*s, dtype=torch.bfloat16) * 0.2)(D, F) * (D ** -0.5)),
            "w_down": _w((lambda *s: torch.randn(*s, dtype=torch.bfloat16) * 0.2)(F, D) * (F ** -0.5)),
        }
    _B_in = _B_setup()

    return {
        "A_x": _A_in["x"],
        "A_Lambda_re": _A_in["Lambda_re"],
        "A_Lambda_im": _A_in["Lambda_im"],
        "A_B_re": _A_in["B_re"],
        "A_B_im": _A_in["B_im"],
        "A_C_re": _A_in["C_re"],
        "A_C_im": _A_in["C_im"],
        "A_log_dt": _A_in["log_dt"],
        "A_Dskip": _A_in["Dskip"],
        "B_x": _B_in["x"],
        "B_w_gate": _B_in["w_gate"],
        "B_w_up": _B_in["w_up"],
        "B_w_down": _B_in["w_down"],
    }

def reference(A_x, A_Lambda_re, A_Lambda_im, A_B_re, A_B_im, A_C_re, A_C_im, A_log_dt, A_Dskip, B_x, B_w_gate, B_w_up, B_w_down):
    def _A_ref(x, Lambda_re, Lambda_im, B_re, B_im, C_re, C_im, log_dt, Dskip):
        Bsz, L, H = x.shape
        Lam = Lambda_re + 1j * Lambda_im
        Bmat = B_re + 1j * B_im
        Cmat = C_re + 1j * C_im
        dt = torch.exp(log_dt)
        Lam_bar = torch.exp(dt * Lam)
        B_bar = ((Lam_bar - 1.0) / Lam)[:, None] * Bmat
        Bu = torch.einsum("bld,pd->blp", x + 0j, B_bar)
        h = torch.zeros_like(Bu[:, 0, :])
        hs = []
        for t in range(L):
            h = Lam_bar[None, :] * h + Bu[:, t, :]
            hs.append(h)
        hseq = torch.stack(hs, 1)
        y = 2.0 * torch.einsum("blp,dp->bld", hseq, Cmat).real + x * Dskip[None, None, :]
        return y

    def _B_ref(x, w_gate, w_up, w_down):
        g = torch.einsum("bsd,df->bsf", x, w_gate)
        u = torch.einsum("bsd,df->bsf", x, w_up)
        h = g * u
        return torch.einsum("bsf,fd->bsd", h, w_down)

    x = A_x
    xn = _layernorm(x, axis=-1)
    s = _A_ref(xn, A_Lambda_re, A_Lambda_im, A_B_re, A_B_im, A_C_re, A_C_im, A_log_dt, A_Dskip)
    g = _silu(_B_ref(xn, B_w_gate, B_w_up, B_w_down))
    return x + s * g
```

```python
import re

class VR:
    cnt = 0
    def __init__(s, cls, n=1, name=None, phys=None):
        s.cls, s.n, s.phys = cls, n, phys
        VR.cnt += 1
        s.id = VR.cnt
        s.name = name or f"{cls}{s.id}"
        s.pinned = phys is not None
    def __getitem__(s, k):
        if isinstance(k, slice):
            lo = k.start or 0; hi = s.n if k.stop is None else k.stop
            assert 0 <= lo < hi <= s.n, (s.name, k)
            return Ref(s, lo, hi - lo)
        assert 0 <= k < s.n, (s.name, k)
        return Ref(s, k, 1)
class Ref:
    def __init__(s, vr, lo, n): s.vr, s.lo, s.n = vr, lo, n
    def __getitem__(s, k):
        if isinstance(k, slice):
            lo = k.start or 0; hi = s.n if k.stop is None else k.stop
            return Ref(s.vr, s.lo + lo, hi - lo)
        return Ref(s.vr, s.lo + k, 1)
def V(n=1, name=None): return VR('v', n, name)
def A(n=1, name=None): return VR('a', n, name)
def ref(x): return Ref(x, 0, x.n) if isinstance(x, VR) else x

TRANS = ('v_exp_f32', 'v_log_f32', 'v_rcp_f32', 'v_rsq_f32', 'v_sqrt_f32', 'v_sin_f32', 'v_cos_f32')

def sregs(tok):
    if not isinstance(tok, str): return set()
    t = tok.strip().lstrip('-').strip('|')
    m = re.fullmatch(r's(\d+)', t)
    if m: return {int(m.group(1))}
    m = re.fullmatch(r's\[(\d+):(\d+)\]', t)
    if m: return set(range(int(m.group(1)), int(m.group(2)) + 1))
    if t in ('vcc', 'vcc_lo', 'vcc_hi'): return {'vcc'}
    if t in ('exec', 'exec_lo', 'exec_hi'): return {'exec'}
    if t == 'm0': return {'m0'}
    return set()

class Neg:
    def __init__(s, r): s.r = ref(r)

class I:
    def __init__(s, op, *ops, mods='', tag=None, cost=1, note=None):
        s.op = op; s.ops = [ref(o) for o in ops]; s.mods = mods; s.tag = tag; s.cost = cost; s.note = note
        s.gap = None
        n = len(s.ops); allo = list(range(n))
        d, u = [0], allo[1:]
        k = 'S'
        if op.startswith('v_mfma'): k = 'M'
        elif op.startswith('ds_'):
            k = 'L'
            if op.startswith('ds_write'): d, u = [], allo
        elif op.startswith('buffer_') or op.startswith('global_'):
            k = 'X'
            if 'store' in op or ' lds' in (' ' + mods) or ('atomic' in op and 'sc0' not in mods): d, u = [], allo
            elif 'atomic' in op: d, u = [0], allo
        elif op.startswith('v_'):
            k = 'V'
            if op.startswith('v_fmac') or op.startswith('v_mac') or op.startswith('v_writelane'): u = allo
            if 'swap' in op: d, u = [0, 1], [0, 1]
            if op == 'v_nop': d, u = [], []
        elif op.startswith('s_load') or op in ('s_memtime', 's_memrealtime'): k = 'K'
        elif op.startswith('s_'):
            if op.startswith(('s_cmp', 's_cbranch', 's_branch', 's_barrier', 's_waitcnt', 's_nop', 's_setprio', 's_endpgm', 's_sleep', 's_bitcmp')):
                d, u = [], allo
        else: k = 'P'; d, u = [], []
        s.kind = k; s.d = d; s.u = u
    def refs(s, idx):
        out = []
        for i in idx:
            o = s.ops[i]
            if isinstance(o, Neg): o = o.r
            if isinstance(o, Ref): out.append(o)
        return out
    def phys(s, idx):
        out = set()
        for r in s.refs(idx):
            for j in range(r.n): out.add((r.vr.cls, r.vr.phys + r.lo + j))
        return out
    def sset(s, idx):
        out = set()
        for i in idx: out |= sregs(s.ops[i])
        return out
    def text(s):
        def f(o):
            if isinstance(o, Neg): return '-' + f(o.r)
            if isinstance(o, Ref):
                lo = o.vr.phys + o.lo
                return f"{o.vr.cls}{lo}" if o.n == 1 else f"{o.vr.cls}[{lo}:{lo+o.n-1}]"
            if isinstance(o, float): return repr(o)
            if isinstance(o, int): return str(o) if -16 <= o <= 64 else hex(o & 0xffffffff)
            return o
        t = "  " + s.op + (" " + ", ".join(f(o) for o in s.ops) if s.ops else "") + (" " + s.mods if s.mods else "")
        if s.note: t += "  ; " + s.note
        return t

def LABEL(n): i = I('LABEL'); i.name = n; i.cost = 0; return i
def WAIT(vm=None, lgkm=None):
    i = I('WAIT'); i.vm = vm; i.lgkm = lgkm; return i
def LOOPB(): i = I('LOOPB'); i.cost = 0; return i
def LOOPE(): i = I('LOOPE'); i.cost = 0; return i
def KEEP(*rs):
    i = I('KEEP', *rs); i.u = list(range(len(rs))); i.cost = 0; return i
def DEF(*rs):
    i = I('DEF', *rs); i.d = list(range(len(rs))); i.cost = 0; return i
def DRAINED():
    i = I('NOP0'); i.cost = 0; return i

def allocate(prog, limits={'v': 256, 'a': 256}, verbose=True):
    first, last = {}, {}
    loops = []; st = []
    vrs = {}
    for p, ins in enumerate(prog):
        if ins.op == 'LOOPB': st.append(p)
        if ins.op == 'LOOPE': loops.append((st.pop(), p))
        for r in ins.refs(ins.u):
            if r.vr.id not in first:
                assert r.vr.pinned, f"use before def: {r.vr.name} at {p} {ins.op}"
                first[r.vr.id] = -1
            last[r.vr.id] = p; vrs[r.vr.id] = r.vr
        for r in ins.refs(ins.d):
            first.setdefault(r.vr.id, p); last[r.vr.id] = max(last.get(r.vr.id, p), p); vrs[r.vr.id] = r.vr
    for (b, e) in loops:
        for k in vrs:
            if first[k] < b and last[k] > b: last[k] = max(last[k], e)
    busy = {c: [-2] * limits[c] for c in limits}
    peak = {c: 0 for c in limits}
    for k in vrs:
        if vrs[k].pinned:
            first[k] = -1
    for k in sorted(vrs, key=lambda k: (first[k], -vrs[k].n)):
        v = vrs[k]; b = busy[v.cls]
        if v.pinned:
            for j in range(v.n): b[v.phys + j] = last[k]
            continue
        al = 1 if v.n == 1 else (2 if v.n == 2 else 4)
        same_ok = prog[first[k]].kind == 'V' and v.n == 1 and 'dpp' not in prog[first[k]].op
        def free(j): return b[j] < first[k] or (same_ok and b[j] == first[k])
        cand = [lo for lo in range(0, limits[v.cls] - v.n + 1, al) if all(free(lo + j) for j in range(v.n))]
        if not cand:
            live = [(vrs[q].name, vrs[q].n) for q in vrs if vrs[q].cls == v.cls and vrs[q].phys is not None and last[q] >= first[k]]
            raise RuntimeError(f"out of {v.cls} regs for {v.name} n={v.n} at {first[k]}: live={sum(x[1] for x in live)} {live}")
        if v.n < 4:
            def score(lo):
                q = lo & ~3
                return -sum(0 if free(q + j) else 1 for j in range(4))
            cand.sort(key=lambda lo: (score(lo), lo))
        else:
            cand.sort(key=lambda lo: (max(b[lo + j] for j in range(v.n)) > first[k] - 12, lo))
        v.phys = cand[0]
        for j in range(v.n): b[v.phys + j] = last[k]
        peak[v.cls] = max(peak[v.cls], v.phys + v.n)
    if verbose: print("; alloc peak", peak)
    return peak

def expand(prog):
    seq = []; st = None
    for p, ins in enumerate(prog):
        seq.append(p)
        if ins.op == 'LOOPB': st = p
        if ins.op == 'LOOPE': seq += list(range(st + 1, p + 1))
    return seq

def insert_waits(prog):
    req = {}
    qv, ql = [], []
    def need(q, pred):
        for i in range(len(q) - 1, -1, -1):
            if pred(q[i]): return len(q) - 1 - i
        return None
    for p in expand(prog):
        ins = prog[p]
        nv = nl = None
        if ins.op == 'WAIT':
            if ins.vm is not None: nv = (0 if qv else None) if ins.vm == 0 else need(qv, lambda e: e[1] == ins.vm)
            if ins.lgkm is not None: nl = (0 if ql else None) if ins.lgkm == 0 else need(ql, lambda e: e[1] == ins.lgkm)
            if ins.vm == 0: nv = 0
            if ins.lgkm == 0: nl = 0
        elif ins.kind != 'P':
            touched = ins.phys(ins.u) | ins.phys(ins.d) | {('s', x) for x in ins.sset(ins.u) | ins.sset(ins.d)}
            if touched:
                nv = need(qv, lambda e: e[0] & touched)
                nl = need(ql, lambda e: e[0] & touched)
                if nl is not None and any(e[2] for e in ql): nl = 0
        if nv is not None or nl is not None:
            o = req.get(p, (None, None))
            mn = lambda a, b: b if a is None else (a if b is None else min(a, b))
            if nv is not None: nv = min(nv, 63)
            if nl is not None: nl = min(nl, 15)
            req[p] = (mn(o[0], nv), mn(o[1], nl))
            if nv is not None: qv[:] = qv[len(qv) - nv:] if nv else []
            if nl is not None: ql[:] = ql[len(ql) - nl:] if nl else []
        if ins.kind == 'X': qv.append((ins.phys(ins.d), ins.tag, False))
        if ins.kind == 'L': ql.append((ins.phys(ins.d), ins.tag, False))
        if ins.kind == 'K': ql.append(({('s', x) for x in ins.sset(ins.d)}, ins.tag, True))
    out = []
    for p, ins in enumerate(prog):
        if p in req:
            nv, nl = req[p]
            out.append(I('s_waitcnt', mods=" ".join(x for x in ((f"vmcnt({nv})" if nv is not None else ""), (f"lgkmcnt({nl})" if nl is not None else "")) if x)))
        if ins.op != 'WAIT': out.append(ins)
    return out

def hazard_need(pr, co):
    n = 0
    if pr.kind == 'M':
        D = pr.phys(pr.d)
        if co.kind == 'M':
            if D & co.phys([1, 2]): n = max(n, 8)
            C = co.phys([3])
            if D & C and D != C: n = max(n, 6)
            if D & co.phys([0]) and not (D & C): n = max(n, 0)
        elif co.kind in 'VLX':
            if D & (co.phys(co.u) | co.phys(co.d)): n = max(n, 8)
            if co.kind == 'V' and pr.phys([3]) & co.phys(co.d): n = max(n, 3)
    elif pr.kind == 'V':
        D = pr.phys(pr.d); SD = pr.sset(pr.d)
        if pr.op.startswith('v_cmpx'): SD = SD | {'exec'}
        if co.kind == 'M' and D & co.phys(co.u): n = max(n, 2)
        if co.kind == 'V':
            U = co.phys(co.u)
            if D & U:
                if 'dpp' in co.op and D & co.phys([1]): n = max(n, 2)
                if 'permlane' in co.op: n = max(n, 2)
                if co.op.startswith(('v_readfirstlane', 'v_readlane')): n = max(n, 1)
                if pr.op.replace('_e32', '').replace('_e64', '') in TRANS: n = max(n, 1)
                if 'sdwa' in pr.op or 'op_sel' in pr.mods: n = max(n, 1)
            if SD & co.sset(co.u): n = max(n, 4 if 'lane' in co.op else 2)
            if 'exec' in SD: n = max(n, 5)
        if co.kind == 'X' and SD & co.sset(co.u): n = max(n, 5)
        if co.kind == 'M' and 'exec' in SD: n = max(n, 4)
    elif pr.kind == 'S':
        if 'm0' in pr.sset(pr.d) and co.kind == 'X' and ' lds' in ' ' + co.mods: n = max(n, 1)
    elif pr.kind == 'X':
        if 'store' in pr.op and ('x4' in pr.op or 'x3' in pr.op):
            if pr.phys([0]) & co.phys(co.d): n = max(n, 2)
    return n

def pad_hazards(prog, verbose=True):
    add = {}
    seq = expand(prog)
    hist = []
    for p in seq:
        ins = prog[p]
        if ins.kind == 'P': continue
        dist = add.get(p, 0); needmax = 0
        d = 0
        for (h, w) in reversed(hist):
            if d >= 10: break
            if h is not None:
                nd = hazard_need(h, ins) - d
                needmax = max(needmax, nd)
            d += w
        if needmax > dist: add[p] = needmax
        if add.get(p, 0): hist.append((None, add[p]))
        hist.append((ins, int(ins.ops[0]) + 1 if ins.op == 's_nop' else 1))
        hist = hist[-12:]
    out = []
    for p, ins in enumerate(prog):
        if add.get(p, 0): out.append(I('s_nop', add[p] - 1, note='pad'))
        out.append(ins)
    if verbose: print("; hazard pads:", len(add), "states", sum(add.values()))
    return out

def finish(prog, limits={'v': 256, 'a': 256}, verbose=True):
    peak = allocate(prog, limits, verbose)
    prog = insert_waits(prog)
    prog = pad_hazards(prog, verbose)
    lines = []
    for ins in prog:
        if ins.op == 'LABEL': lines.append(ins.name + ":")
        elif ins.kind == 'P': continue
        else: lines.append(ins.text())
    return lines, peak, prog

class Weave:
    def __init__(s, cap=2):
        s.m = []; s.fixed = {}; s.queues = []; s.cap = cap; s.capov = {}; s.pre = {}
    def mfma(s, ins): s.m.append(ins); return len(s.m) - 1
    def at(s, g, *ins):
        for i in ins:
            s.fixed.setdefault(g, []).append(i); i.gap = g
    def reserve(s, g, n=1): s.capov[g] = s.capov.get(g, 0) + n
    def queue(s, items, prio=0, name=''):
        s.queues.append([prio, list(items), name])
    def build(s, verbose=True):
        out = []
        qs = sorted(s.queues, key=lambda q: -q[0])
        n = len(s.m); over = 0; load = []
        def ok(it, g):
            if getattr(it, 'ready', -1) > g: return False
            for (d, k) in getattr(it, 'deps', []):
                if d.gap is None or d.gap + k > g: return False
            return True
        for g in range(-1, n):
            if g >= 0: out.append(s.m[g]); s.m[g].gap = g
            fx = s.fixed.get(g, [])
            c = s.cap - s.capov.get(g, 0) - sum(i.cost for i in fx)
            if g < 0: c = 0
            mine = []
            for q in qs:
                lastdead = -1
                for k, it in enumerate(q[1]):
                    if getattr(it, 'dead', 1 << 30) <= g: lastdead = k
                for _ in range(lastdead + 1):
                    it = q[1].pop(0)
                    assert getattr(it, 'ready', -1) <= g and all(d.gap is not None for d, _ in getattr(it, 'deps', [])), ("deadline before ready", q[2], g, it.op)
                    it.gap = g; mine.append(it); c -= it.cost
            prog = True
            while prog:
                prog = False
                for q in qs:
                    if q[1] and ok(q[1][0], g) and q[1][0].cost <= c:
                        it = q[1].pop(0); it.gap = g; mine.append(it); c -= it.cost; prog = True
                        break
            out += mine + fx if any(getattr(i, 'last', False) for i in fx) else fx + mine
            if c < 0 and g >= 0: over += -c
            load.append(s.cap - c)
        rest = []
        for q in qs: rest += q[1]
        for it in rest: it.gap = n
        if verbose: print(f"; weave: {n} mfma, overflow {over}, leftover {len(rest)}")
        s.load = load
        return out + rest
```

```python
from asmlib import *
NAME = "recurrent_scan__ssm_conv_s5__glu_gated_bilinear__prompt"
XN_OFF = 0
AG_OFF = 0x280000
HF_OFF = 0x300000
PF_OFF = 0x800000
WS_BYTES = PF_OFF + 16 * 2 * 16 * 73728
KA = dict(x=0, lre=8, lim=16, bre=24, bim=32, cre=40, cim=48, ldt=56, dsk=64, wg=80, wu=88, wd=96, out=104, dbg=112, ws=120)
MF = 'v_mfma_f32_16x16x32_bf16'

class SG:
    def __init__(s, start): s.n = start; s.m = {}; s.fl = []
    def free(s, *names):
        for nm in names:
            b, k = s.m.pop(nm); s.fl += list(range(b, b + k))
    def __call__(s, name, n=1):
        if name not in s.m and n == 1 and s.fl:
            s.m[name] = (s.fl.pop(0), 1)
        if name not in s.m:
            al = 1 if n == 1 else (2 if n == 2 else 4)
            s.n = (s.n + al - 1) // al * al
            s.m[name] = (s.n, n); s.n += n
            assert s.n <= 100, "out of sgprs"
        b, k = s.m[name]
        return f"s{b}" if k == 1 else f"s[{b}:{b+k-1}]"
    def sub(s, name, i, n=1):
        b, k = s.m[name]
        return f"s{b+i}" if n == 1 else f"s[{b+i}:{b+i+n-1}]"

class P(list):
    def __call__(s, op, *ops, **k):
        i = I(op, *ops, **k); s.append(i); return i
    def v(s, op, *ops, name=None, **k):
        d = V(1, name); s.append(I(op, d, *ops, **k)); return d

def srd_tail(p, sg, name, nbytes):
    p('s_mov_b32', sg.sub(name, 2), nbytes)
    p('s_mov_b32', sg.sub(name, 3), 0x20000)

def kernel_text(label, lines):
    return f".globl {label}\n.p2align 8\n.type {label},@function\n{label}:\n" + "\n".join(lines) + "\n"

def kernel_desc(label, nv, na):
    acc = max(4, (nv + 3) // 4 * 4)
    tot = acc + na if na else nv
    return (f".p2align 6\n.amdhsa_kernel {label}\n  .amdhsa_next_free_vgpr {max(tot, acc)}\n  .amdhsa_next_free_sgpr 102\n"
            f"  .amdhsa_accum_offset {acc}\n  .amdhsa_group_segment_fixed_size 0\n  .amdhsa_kernarg_size 128\n"
            f"  .amdhsa_user_sgpr_count 2\n  .amdhsa_user_sgpr_kernarg_segment_ptr 1\n  .amdhsa_system_sgpr_workgroup_id_x 1\n.end_amdhsa_kernel\n")
```

```python
from common import *
import math
SLOT = 36864
def dtiles_expr():
    return [(4, t) for t in range(4)] + [(2, 16), (2, 17), (1, 32), (2, 24), (2, 25)]
def gen_fin(opt=None):
    p = P(); S = SG(4); v0 = VR('v', 1, 'tid', phys=0)
    p('s_cmp_ge_u32', 's2', 256); p('s_cbranch_scc1', 'L_fin_end')
    sC, sS, sX, sO, sK = S('C', 4), S('S', 4), S('X', 4), S('O', 4), S('K', 4)
    S('kc', 4)
    p('s_load_dwordx2', S.sub('kc', 0, 2), 's[0:1]', KA['cre']); p('s_load_dwordx2', S.sub('kc', 2, 2), 's[0:1]', KA['cim'])
    p('s_load_dwordx2', S.sub('S', 0, 2), 's[0:1]', KA['ws']); p('s_load_dwordx2', S.sub('X', 0, 2), 's[0:1]', KA['x'])
    p('s_load_dwordx2', S.sub('O', 0, 2), 's[0:1]', KA['out']); p('s_load_dwordx2', S.sub('K', 0, 2), 's[0:1]', KA['dsk'])
    def sa(op, name, *a): p(op, S(name), *a); return S(name)
    wv = p.v('v_lshrrev_b32', 6, v0); l = p.v('v_and_b32', 63, v0, name='lane')
    p('v_readfirstlane_b32', S('w'), wv); w = S('w')
    mat = sa('s_and_b32', 'mat', w, 1); hh = sa('s_lshr_b32', 'hh', w, 1)
    a1 = sa('s_bfe_u32', 'a1', 's2', (1 << 16) | 3); b = sa('s_bfe_u32', 'b', 's2', (2 << 16) | 1)
    sa('s_lshr_b32', 'blk', 's2', 4); sa('s_lshl_b32', 'blk', S('blk'), 1); sa('s_and_b32', 't0', 's2', 1); blk = sa('s_add_u32', 'blk', S('blk'), S('t0'))
    Dn = []
    for t, (m, c) in enumerate(dtiles_expr()):
        sa('s_mul_i32', f'D{t}', b, m); Dn.append(sa('s_add_u32', f'D{t}', S(f'D{t}'), c))
    r8 = p.v('v_lshrrev_b32', 3, l); sl = p.v('v_and_b32', 7, l)
    sa('s_lshl_b32', 't0', hh, 2); t = p.v('v_lshrrev_b32', 1, r8); t = p.v('v_add_u32', S('t0'), t)
    cx = p.v('v_xor_b32', sl, t); sa('s_lshl_b32', 't0', hh, 3); t = p.v('v_add_u32', S('t0'), r8); t = p.v('v_mul_u32_u24', 1152, t)
    vc = p.v('v_lshl_add_u32', cx, 4, t)
    vC = []
    for t in range(9):
        sa('s_mul_i32', 't0', Dn[t], 16 * 1152); sa('s_sub_u32', 't0', S('t0'), (t & 3) * 1024)
        vC.append(p.v('v_add_u32', S('t0'), vc, name=f'vC{t}'))
    sa('s_mul_i32', 't0', mat, 18432); sa('s_mul_i32', 't1', hh, 9216); sM = sa('s_add_u32', 'M', S('t0'), S('t1'))
    p.append(WAIT(lgkm=0))
    p('s_cmp_eq_u32', mat, 0)
    p('s_cselect_b32', S.sub('C', 0), S.sub('kc', 0), S.sub('kc', 2)); p('s_cselect_b32', S.sub('C', 1), S.sub('kc', 1), S.sub('kc', 3))
    srd_tail(p, S, 'C', 576 * 1152); srd_tail(p, S, 'S', WS_BYTES); srd_tail(p, S, 'X', 2048 * 1152); srd_tail(p, S, 'O', 2048 * 2304); srd_tail(p, S, 'K', 1152)
    def slab(s):
        sa('s_mov_b32', 'so', s * 128)
        for t in range(9):
            if t % 4 == 0: p('s_add_u32', 'm0', sM, (s % 4) * SLOT + t * 1024)
            p('buffer_load_dwordx4', vC[t], sC, S('so'), mods=f'offen offset:{(t&3)*1024} lds', tag=f'c{s}')
    l16 = p.v('v_lshlrev_b32', 4, l, name='l16')
    hfr = [[A(4) for _ in range(2)] for s in range(9)]
    sa('s_mul_i32', 'h0', blk, 36); sa('s_add_u32', 'h0', S('h0'), w); sa('s_lshl_b32', 'h0', S('h0'), 1); sa('s_add_u32', 'h0', S('h0'), a1)
    sa('s_lshl_b32', 'h0', S('h0'), 11); sa('s_add_u32', 'h0', S('h0'), HF_OFF)
    def hload(s):
        for k in range(2): p('buffer_load_dwordx4', hfr[s][k], l16, sS, S('h0'), mods=f'offen offset:{k*1024}')
        p('s_add_u32', S('h0'), S('h0'), 4 * 4096)
    for s in range(4): slab(s); hload(s)
    for s in range(4, 9): hload(s)
    for k in range(2):
        p('s_mov_b32', S(f'F{k}'), Dn[4 * k])
        for x in range(1, 4):
            p('s_cmp_eq_u32', w, x); p('s_cselect_b32', S(f'F{k}'), Dn[4 * k + x], S(f'F{k}'))
    F = [S('F0'), S('F1'), Dn[8]]
    sa('s_lshl_b32', 'p0', blk, 4); sa('s_mul_i32', 'p0', S('p0'), 73728); sa('s_mul_i32', 't0', a1, 36864); sa('s_add_u32', 'p0', S('p0'), S('t0')); sa('s_add_u32', 'p0', S('p0'), PF_OFF)
    vPp = []
    for k in range(3):
        sa('s_lshl_b32', 't0', F[k], 10); sa('s_add_u32', 't0', S('t0'), S('p0')); vPp.append(p.v('v_add_u32', S('t0'), l16))
    pj = [sa('s_mov_b32', f'j{x}', x * 73728) for x in range(16)]
    def pload(k, x):
        r = V(4); p('buffer_load_dwordx4', r, vPp[k], sS, pj[x], mods='offen'); return r
    dn = [V(8, f'dn{k}') for k in range(3)]
    def pacc(k, r, first):
        for e in range(4):
            if first:
                p('v_lshlrev_b32', dn[k][2*e], 16, r[e]); p('v_and_b32', dn[k][2*e+1], 0xffff0000, r[e])
            else:
                lo = p.v('v_lshlrev_b32', 16, r[e]); hi = p.v('v_and_b32', 0xffff0000, r[e])
                p('v_add_f32', dn[k][2*e], dn[k][2*e], lo); p('v_add_f32', dn[k][2*e+1], dn[k][2*e+1], hi)
    i = p.v('v_and_b32', 15, l); q = p.v('v_lshrrev_b32', 4, l)
    t = p.v('v_lshrrev_b32', 5, l); t = p.v('v_mul_u32_u24', 18432, t); t2 = p.v('v_bfe_u32', l, 3, 1); t2 = p.v('v_mul_u32_u24', 9216, t2)
    t = p.v('v_add_u32', t, t2); t = p.v('v_lshl_add_u32', sl, 7, t)
    sa('s_lshl_b32', 't0', w, 1); t2 = p.v('v_bfe_u32', l, 4, 1); t2 = p.v('v_add_u32', S('t0'), t2); i1 = p.v('v_bfe_u32', l, 1, 3); t2 = p.v('v_xor_b32', t2, i1)
    vR0 = p.v('v_lshl_add_u32', t2, 4, t)
    vR = [vR0] + [p.v('v_add_u32', s * SLOT, vR0) for s in (1, 2, 3)]
    acc = [[V(4) for _ in range(2)] for t in range(9)]
    plist = [(k, x) for x in range(16) for k in range(2)]
    pend = []
    for s in range(9):
        p.append(WAIT(vm=f'c{s}', lgkm=0)); p('s_barrier')
        fr = [A(4) for _ in range(9)]
        for t in range(9): p('ds_read_b128', fr[t], vR[s % 4], mods=f'offset:{t*1024}')
        if s >= 1 and s + 3 < 9: slab(s + 3)
        new = []
        for _ in range(6 if s < 5 else 2):
            if plist: k, x = plist.pop(0); new.append((k, x, pload(k, x)))
        for t in range(9):
            for k in range(2): p(MF, acc[t][k], fr[t], hfr[s][k], 0 if s == 0 else acc[t][k])
        pend.append(new)
        if s >= 2:
            for (k, x, r) in pend.pop(0): pacc(k, r, x == 0)
    t = p.v('v_lshrrev_b32', 2, i); t = p.v('v_lshlrev_b32', 4, t); t2 = p.v('v_and_b32', 3, l); t = p.v('v_add_u32', t, t2)
    sa('s_lshl_b32', 't0', blk, 6); sa('s_lshl_b32', 't1', a1, 3); sa('s_add_u32', 't0', S('t0'), S('t1')); tok = p.v('v_add_u32', S('t0'), t)
    q8 = p.v('v_lshlrev_b32', 3, q); t = p.v('v_mul_u32_u24', 1152, tok); vx = p.v('v_add_u32', t, q8); vo = p.v('v_lshlrev_b32', 1, vx)
    vx4 = p.v('v_add_u32', 4 * 1152, vx); vo4 = p.v('v_add_u32', 4 * 2304, vo)
    def small(k):
        sa('s_lshl_b32', f'x{k}', F[k], 5)
        r = dict(x=[V(2), V(2)], n=[V(2), V(2)], d=V(2))
        for h in range(2):
            p('buffer_load_dwordx2', r['x'][h], (vx, vx4)[h], sX, S(f'x{k}'), mods='offen')
            p('buffer_load_dwordx2', r['n'][h], (vx, vx4)[h], sS, S(f'x{k}'), mods='offen')
        p('buffer_load_dwordx2', r['d'], q8, sK, S(f'x{k}'), mods='offen')
        return r
    sm = [small(0), small(1)]
    p.append(WAIT(lgkm=0)); p('s_barrier')
    sa('s_mul_i32', 't0', w, 18432); vw = p.v('v_add_u32', S('t0'), l16)
    for t in range(9):
        for k in range(2): p('ds_write_b128', vw, acc[t][k], mods=f'offset:{t*2048 + k*1024}')
    for new in pend:
        for (k, x, r) in new: pacc(k, r, x == 0)
    p.append(WAIT(lgkm=0)); p('s_barrier')
    sa('s_lshl_b32', 't0', w, 11); vr = p.v('v_add_u32', S('t0'), l16)
    def final(k, adr, off, sm):
        sa('s_lshl_b32', f'o{k}', F[k], 6)
        dk = []
        for e in range(2): dk += [p.v('v_lshlrev_b32', 16, sm['d'][e]), p.v('v_and_b32', 0xffff0000, sm['d'][e])]
        for h in range(2):
            ys = [V(4) for _ in range(4)]
            for x in range(4): p('ds_read_b128', ys[x], adr, mods=f'offset:{off + x*18432 + h*1024}')
            o = V(4)
            for e in range(4):
                y = p.v('v_add_f32', ys[0][e], ys[1][e]); y2 = p.v('v_add_f32', ys[2][e], ys[3][e]); y = p.v('v_add_f32', y, y2)
                f = (lambda r: p.v('v_lshlrev_b32', 16, r[e >> 1])) if e % 2 == 0 else (lambda r: p.v('v_and_b32', 0xffff0000, r[e >> 1]))
                xv = f(sm['x'][h]); nv = f(sm['n'][h])
                p('v_fmac_f32', y, nv, dk[e])
                d = dn[k][4 * h + e]
                t = p.v('v_mul_f32', -math.log2(math.e), d); t = p.v('v_exp_f32', t); t = p.v('v_add_f32', 1.0, t); t = p.v('v_rcp_f32', t)
                t = p.v('v_mul_f32', t, d)
                p('v_fma_f32', o[e], y, t, xv)
            p('buffer_store_dwordx4', o, (vo, vo4)[h], sO, S(f'o{k}'), mods='offen')
    vr8 = p.v('v_add_u32', 8192, vr)
    final(0, vr, 0, sm[0]); final(1, vr8, 0, sm[1])
    p('s_cmp_lg_u32', w, 0); p('s_cbranch_scc1', 'L_fin_end')
    s2 = small(2)
    rs = [pload(2, x) for x in range(16)]
    for x in range(16): pacc(2, rs[x], x == 0)
    vr16 = p.v('v_add_u32', 16384, l16)
    final(2, vr16, 0, s2)
    p.append(LABEL('L_fin_end')); p('s_endpgm')
    lines, peak, _ = finish(p)
    return lines, peak
if __name__ == '__main__':
    l, pk = gen_fin(); print(len(l), pk)
```

```python
from common import *
def gen_ln():
    p = P(); sg = SG(4); v0 = VR('v', 1, 'tid', phys=0)
    p('s_cmp_ge_u32', 's2', 256); p('s_cbranch_scc1', 'L_ln_end')
    sX = sg('X', 4); sS = sg('S', 4)
    p('s_load_dwordx2', sg.sub('X', 0, 2), 's[0:1]', KA['x'])
    p('s_load_dwordx2', sg.sub('S', 0, 2), 's[0:1]', KA['ws'])
    srd_tail(p, sg, 'X', 2048 * 1152); srd_tail(p, sg, 'S', WS_BYTES)
    t = p.v('v_lshrrev_b32', 5, v0); t = p.v('v_mul_u32_u24', 1152, t)
    l = p.v('v_and_b32', 31, v0); adr = p.v('v_lshl_add_u32', l, 2, t)
    p('s_mul_i32', sg('base'), 's2', 8 * 1152)
    xs = [V(1) for _ in range(9)]
    for i in range(9): p('buffer_load_dword', xs[i], adr, sX, sg('base'), mods=f'offen offset:{128*i}')
    p('s_mul_i32', sg('t0'), 's2', 72)
    g = p.v('v_add_u32', sg('t0'), v0)
    z = p.v('v_bfe_i32', g, 3, 1)
    zz = V(4)
    for i in range(4): p('v_mov_b32', zz[i], z)
    ga = p.v('v_lshlrev_b32', 4, g)
    p('v_cmp_gt_u32', 'vcc', 72, v0)
    big = p.v('v_mov_b32', 0x7ff00000)
    ga = p.v('v_cndmask_b32', big, ga, 'vcc')
    p('s_mov_b32', sg('t1'), AG_OFF)
    p('buffer_store_dwordx4', zz, ga, sS, sg('t1'), mods='offen')
    e = []
    for i in range(9):
        e.append(p.v('v_lshlrev_b32', 16, xs[i])); e.append(p.v('v_and_b32', 0xffff0000, xs[i]))
    def allsum(vals):
        a = vals
        while len(a) > 1:
            a = [p.v('v_add_f32', a[i], a[i + 1]) if i + 1 < len(a) else a[i] for i in range(0, len(a), 2)]
        a = a[0]
        for k in (1, 2, 4, 8):
            a = p.v('v_add_f32_dpp', a, a, mods=f'row_ror:{k} row_mask:0xf bank_mask:0xf')
        o = V(1); p('ds_swizzle_b32', o, a, mods='offset:swizzle(SWAP,16)')
        return p.v('v_add_f32', a, o)
    def rbf(x):
        c = p.v('v_cvt_pk_bf16_f32', x, x); return p.v('v_and_b32', 0xffff0000, c)
    mean = p.v('v_mul_f32', 1.0 / 576, allsum(e))
    dev = [p.v('v_sub_f32', x, mean) for x in e]
    sq = [p.v('v_mul_f32', x, x) for x in dev]
    var = p.v('v_mul_f32', 1.0 / 576, allsum(sq))
    mb = rbf(mean); vb = rbf(var)
    ve = rbf(p.v('v_add_f32', 1e-5, vb))
    sd = rbf(p.v('v_sqrt_f32', ve))
    r = p.v('v_rcp_f32', sd)
    p('s_add_u32', sg('base'), sg('base'), XN_OFF)
    for i in range(9):
        a = p.v('v_sub_f32', e[2 * i], mb); b = p.v('v_sub_f32', e[2 * i + 1], mb)
        c = p.v('v_cvt_pk_bf16_f32', a, b)
        a = p.v('v_lshlrev_b32', 16, c); b = p.v('v_and_b32', 0xffff0000, c)
        a = p.v('v_mul_f32', a, r); b = p.v('v_mul_f32', b, r)
        c = p.v('v_cvt_pk_bf16_f32', a, b)
        p('buffer_store_dword', c, adr, sS, sg('base'), mods=f'offen offset:{128*i}')
    p.append(LABEL('L_ln_end')); p('s_endpgm')
    lines, peak, _ = finish(p, {'v': 128, 'a': 4})
    return lines, peak
```

```python
from common import *
import math
SLOT = 36864; XB0 = 3 * SLOT; XBS = 26624; HS = 13312
E0 = XB0 + XBS; E1 = XB0; E8 = XB0 + 16384; RG = E0 + 16384
HT = XB0
DWS = 18432
DPP8 = 'row_ror:8 row_mask:0xf bank_mask:0xf'

def gen_main(opt=None):
    o = dict(nAV=3, nUV=2, D=3, bar=66, stamp=False); o.update(opt or {})
    p = P(); sg = SG(4); v0 = VR('v', 1, 'tid', phys=0)
    S = sg
    p('s_cmp_ge_u32', 's2', 256); p('s_cbranch_scc1', 'L_main_end')
    sW, sB, sD, sS = S('W', 4), S('B', 4), S('D', 4), S('S', 4)
    sL1, sL2, sL3 = S('L1', 4), S('L2', 4), S('L3', 4)
    S('kw', 4); S('kb', 4)
    p('s_load_dwordx4', S('kw'), 's[0:1]', KA['wg'])
    p('s_load_dwordx2', S.sub('S', 0, 2), 's[0:1]', KA['ws'])
    p('s_load_dwordx2', S.sub('kb', 0, 2), 's[0:1]', KA['bre'])
    p('s_load_dwordx2', S.sub('kb', 2, 2), 's[0:1]', KA['bim'])
    p('s_load_dwordx2', S.sub('D', 0, 2), 's[0:1]', KA['wd'])
    p('s_load_dwordx2', S.sub('L1', 0, 2), 's[0:1]', KA['lre'])
    p('s_load_dwordx2', S.sub('L2', 0, 2), 's[0:1]', KA['lim'])
    p('s_load_dwordx2', S.sub('L3', 0, 2), 's[0:1]', KA['ldt'])
    def sa(op, name, *a): p(op, S(name), *a); return S(name)
    wv = p.v('v_lshrrev_b32', 6, v0); l = p.v('v_and_b32', 63, v0, name='lane')
    p('v_readfirstlane_b32', S('w'), wv)
    w = S('w')
    fw = sa('s_and_b32', 'fw', w, 1); tw = sa('s_lshr_b32', 'tw', w, 1)
    sa('s_and_b32', 't0', 's2', 7); sa('s_lshl_b32', 't0', S('t0'), 1)
    je = sa('s_bfe_u32', 'je', 's2', (1 << 16) | 3)
    j = sa('s_add_u32', 'j', S('t0'), je); mt = sa('s_lshr_b32', 'mt', 's2', 4)
    sa('s_mul_i32', 'fb', j, 576); sa('s_add_u32', 'hb', S('fb'), 512)
    sa('s_lshl_b32', 't0', je, 6); sa('s_add_u32', 'fb', S('fb'), S('t0'))
    sa('s_lshl_b32', 't0', je, 9); sa('s_sub_u32', 'hb', S('hb'), S('t0'))
    row = p.v('v_bfe_u32', l, 2, 3); hi = p.v('v_lshrrev_b32', 5, l); r2 = p.v('v_bfe_u32', l, 4, 1)
    b1 = p.v('v_bfe_u32', l, 1, 1); pp = p.v('v_xor_b32', b1, r2); b0 = p.v('v_and_b32', 1, l)
    c32 = p.v('v_lshlrev_b32', 5, pp); c32 = p.v('v_lshl_add_u32', b0, 4, c32, name='c32')
    c64 = p.v('v_lshl_add_u32', hi, 6, c32, name='c64')
    rm = p.v('v_lshl_add_u32', r2, 2, row)
    t = p.v('v_mul_u32_u24', 9216, rm); vW0 = p.v('v_add_u32', t, c64)
    vW = [vW0] + [p.v('v_add_u32', br * 9216 - b * 1024, vW0) for b, br in ((1, 16), (2, 4), (3, 20))]
    t = p.v('v_lshl_add_u32', hi, 4, rm); sa('s_lshl_b32', 't0', tw, 2); t = p.v('v_add_u32', S('t0'), t)
    t = p.v('v_mul_u32_u24', 9216, t); vWh = p.v('v_add_u32', t, c32)
    sa('s_lshl_b32', 't0', tw, 8); sW0 = sa('s_add_u32', 'W0', S('fb'), S('t0')); sW1 = sa('s_add_u32', 'W1', sW0, 128)
    sWh = sa('s_mov_b32', 'Wh', S('hb'))
    sa('s_lshl_b32', 't0', fw, 14); sa('s_lshl_b32', 't1', tw, 13); sWave = sa('s_add_u32', 'wave', S('t0'), S('t1'))
    sa('s_lshl_b32', 't0', fw, 11); sa('s_lshl_b32', 't1', tw, 10); sa('s_add_u32', 't0', S('t0'), S('t1'))
    sa('s_add_u32', 't0', S('t0'), 32768); sHd = sa('s_sub_u32', 'Hd', S('t0'), sWave)
    p.append(WAIT(lgkm=0))
    p('s_cmp_eq_u32', fw, 0)
    p('s_cselect_b32', S.sub('W', 0), S.sub('kw', 0), S.sub('kw', 2)); p('s_cselect_b32', S.sub('W', 1), S.sub('kw', 1), S.sub('kw', 3))
    p('s_cselect_b32', S.sub('B', 0), S.sub('kb', 0), S.sub('kb', 2)); p('s_cselect_b32', S.sub('B', 1), S.sub('kb', 1), S.sub('kb', 3))
    srd_tail(p, S, 'W', 576 * 9216); srd_tail(p, S, 'B', 576 * 1152); srd_tail(p, S, 'D', 4608 * 1152); srd_tail(p, S, 'S', WS_BYTES)
    for n in ('L1', 'L2', 'L3'): srd_tail(p, S, n, 1152)
    S.free('kw', 'kb')
    sWs = S('Ws')
    def dma(v, srd, so, off, tag): return I('buffer_load_dwordx4', v, srd, so, mods=f'offen offset:{off} lds', tag=tag, cost=2)
    def w_dma(tag):
        g = []
        g.append(([I('s_mov_b32', 'm0', sWs)], dma(vW[0], sW, sW0, 0, tag)))
        for b in (1, 2, 3): g.append(([], dma(vW[b], sW, sW0, b * 1024, tag)))
        g.append(([I('s_add_u32', 'm0', sWs, 4096), I('s_add_u32', sW0, sW0, 32 * 9216)], dma(vW[0], sW, sW1, 0, tag)))
        for b in (1, 2, 3): g.append(([], dma(vW[b], sW, sW1, b * 1024, tag)))
        g.append(([I('s_add_u32', 'm0', sWs, sHd), I('s_add_u32', sW1, sW1, 32 * 9216)], dma(vWh, sW, sWh, 0, tag)))
        g.append(([I('s_add_u32', sWh, sWh, 32 * 9216)], None))
        return g
    def flat(g):
        for a, d in g:
            p.extend(a)
            if d is not None: p.append(d)
    sa('s_lshr_b32', 'Gr', j, 2); sa('s_add_u32', 'Gr', S('Gr'), 32); sa('s_bfe_u32', 'Tr', j, (1 << 16) | 1)
    sa('s_lshl_b32', 't0', S('Gr'), 2); sa('s_add_u32', 't0', S('t0'), S('Tr')); chr_ = sa('s_lshl_b32', 'chr', S('t0'), 2)
    col = p.v('v_and_b32', 15, l, name='col'); q = p.v('v_lshrrev_b32', 4, l, name='q')
    t = p.v('v_and_b32', 4, l); t2 = p.v('v_and_b32', 7, l); cho = p.v('v_add_u32', t, t2)
    cho = p.v('v_lshlrev_b32', 1, cho)
    sa('s_lshl_b32', 'G', j, 1); sG = sa('s_add_u32', 'G', S('G'), fw)
    sa('s_lshl_b32', 'c0', sG, 5); sa('s_add_u32', 'c1', S('c0'), 8); sa('s_lshl_b32', 'c2', chr_, 1)
    raw = []
    for u in range(3):
        r = [V(1) for _ in range(3)]
        for x, srd in zip(r, (sL1, sL2, sL3)): p('buffer_load_ushort', x, cho, srd, S(f'c{u}'), mods='offen')
        raw.append(r)
    p('s_mov_b32', sWs, sWave); flat(w_dma('o'))
    r8 = p.v('v_lshrrev_b32', 3, l); sl = p.v('v_and_b32', 7, l)
    sa('s_lshl_b32', 't0', fw, 2); t = p.v('v_lshrrev_b32', 1, r8); t = p.v('v_add_u32', S('t0'), t)
    cx = p.v('v_xor_b32', sl, t); cx = p.v('v_lshlrev_b32', 4, cx)
    r83 = p.v('v_and_b32', 3, r8); r8h = p.v('v_lshrrev_b32', 2, r8)
    t = p.v('v_lshl_add_u32', r8h, 4, r83)
    sa('s_lshl_b32', 't0', mt, 7); sa('s_lshl_b32', 't1', tw, 6); sa('s_add_u32', 't0', S('t0'), S('t1'))
    sa('s_lshl_b32', 't1', fw, 5); sa('s_add_u32', 't0', S('t0'), S('t1'))
    t = p.v('v_add_u32', S('t0'), t); t = p.v('v_mul_u32_u24', 1152, t); vXd = p.v('v_add_u32', t, cx, name='vXd')
    assert XN_OFF == 0
    t = p.v('v_lshl_add_u32', r8h, 3, r83); t = p.v('v_mul_u32_u24', 1152, t); tb = p.v('v_add_u32', t, cx)
    sa('s_lshl_b32', 't0', j, 1); sa('s_add_u32', 't0', S('t0'), tw); sa('s_mul_i32', 't0', S('t0'), 16 * 1152)
    vBd = p.v('v_add_u32', S('t0'), tb, name='vBd')
    sa('s_mul_i32', 't0', chr_, 1152); vBm_d = p.v('v_add_u32', S('t0'), tb, name='vBmd')
    sK = [sa('s_mov_b32', f'K{t}', t * 3584) for t in range(4)]
    sa('s_mul_i32', 't0', fw, HS); sa('s_add_u32', 't0', S('t0'), XB0)
    sa('s_lshl_b32', 't1', tw, 12); sXm = sa('s_add_u32', 'Xm', S('t0'), S('t1'))
    sa('s_lshl_b32', 't1', tw, 11); sBdel = sa('s_sub_u32', 'Bdel', 8192, S('t1'))
    sa('s_lshl_b32', 't1', tw, 12); sRdel = sa('s_sub_u32', 'Rdel', 12288, S('t1'))
    sDX = sa('s_mov_b32', 'DX', XBS)
    def xb_dma(tag):
        g = [([I('s_mov_b32', 'm0', sXm)], dma(vXd, sS, sK[0], 0, tag))]
        for t in (1, 2, 3): g.append(([], dma(vXd, sS, sK[t], t * 1024, tag)))
        g.append(([I('s_add_u32', 'm0', sXm, sBdel), I('s_add_u32', sK[3], sK[3], 128)], dma(vBd, sB, sK[0], 0, tag)))
        g.append(([I('s_add_u32', sK[2], sK[2], 128)], dma(vBd, sB, sK[1], 1024, tag)))
        g.append(([I('s_add_u32', 'm0', sXm, sRdel), I('s_add_u32', sK[1], sK[1], 128)], dma(vBm_d, sB, sK[0], 0, tag)))
        g.append(([I('s_add_u32', sK[0], sK[0], 128)], None))
        return g
    flat(xb_dma('o2'))
    p('s_add_u32', sXm, sXm, XBS)
    p('s_add_u32', sWs, sWave, SLOT); flat(w_dma('o'))
    p('s_add_u32', sWs, sWave, 2 * SLOT)
    t = p.v('v_lshlrev_b32', 6, row); l3 = p.v('v_and_b32', 3, l); t = p.v('v_lshl_add_u32', l3, 3, t)
    tp0 = p.v('v_lshl_add_u32', r2, 5, t)
    pT0 = p.v('v_lshl_add_u32', hi, 10, tp0, name='pT0'); pH0 = p.v('v_lshl_add_u32', hi, 9, tp0, name='pH0')
    sa('s_lshl_b32', 't0', fw, 13)
    vTa = [p.v('v_add_u32', S('t0'), pT0, name='vTa0')]; vTa.append(p.v('v_xor_b32', 32, vTa[0], name='vTa1'))
    sa('s_lshl_b32', 't0', fw, 5); vTh = p.v('v_xor_b32', S('t0'), pH0, name='vTh')
    ih = p.v('v_bfe_u32', l, 3, 1); t = p.v('v_mul_u32_u24', HS, ih); t = p.v('v_lshl_add_u32', sl, 7, t)
    i1 = p.v('v_bfe_u32', l, 1, 3); t2 = p.v('v_xor_b32', q, i1); L0 = p.v('v_lshl_add_u32', t2, 4, t)
    L0 = p.v('v_add_u32', XB0, L0)
    def pair(sv, nm):
        a = p.v('v_add_u32', sv, L0, name=nm + '0'); return [a, p.v('v_xor_b32', 64, a, name=nm + '1')]
    sa('s_lshl_b32', 't0', tw, 12); vXr = pair(S('t0'), 'vXr')
    sa('s_lshl_b32', 't0', je, 2); sa('s_add_u32', 't0', S('t0'), w); sa('s_lshl_b32', 't0', S('t0'), 10); vXm = pair(S('t0'), 'vXm')
    sa('s_lshl_b32', 't0', fw, 11); sa('s_add_u32', 't0', S('t0'), 8192); vBr = pair(S('t0'), 'vBr')
    vBm = pair(12288, 'vBm')
    sR = sa('s_mov_b32', 'R', 0); sCp = sa('s_mov_b32', 'Cp', SLOT); sCm = sa('s_mov_b32', 'Cm', -2 * SLOT); sDW = S('DW')
    accg = [[V(4, f'g{t}_{tt}') for tt in range(4)] for t in range(9)]
    accu = [[(V if t < o['nUV'] else A)(4, f'u{t}_{tt}') for tt in range(4)] for t in range(9)]
    accb = [[V(4, f'b{u}_{tt}') for tt in range(4)] for u in range(2)]; accm = V(4, 'bm')
    sgn = p.v('v_lshlrev_b32', 28, l); sgn = p.v('v_and_b32', 0x80000000, sgn)
    cst = []
    for u in range(3):
        lre, lim, ldt = [p.v('v_lshlrev_b32', 16, x) for x in raw[u]]
        t = p.v('v_mul_f32', math.log2(math.e), ldt); dt = p.v('v_exp_f32', t)
        dt = p.v('v_cvt_pk_bf16_f32', dt, dt); dt = p.v('v_and_b32', 0xffff0000, dt)
        xr = p.v('v_mul_f32', dt, lre); xi = p.v('v_mul_f32', dt, lim)
        t = p.v('v_mul_f32', math.log2(math.e), xr); mag = p.v('v_exp_f32', t)
        t = p.v('v_mul_f32', 1 / (2 * math.pi), xi); t = p.v('v_fract_f32', t)
        cs = p.v('v_cos_f32', t); sn = p.v('v_sin_f32', t)
        a = p.v('v_mul_f32', mag, cs); b = p.v('v_mul_f32', mag, sn)
        am = p.v('v_add_f32', -1.0, a)
        den = p.v('v_mul_f32', lre, lre); p('v_fmac_f32', den, lim, lim); rd = p.v('v_rcp_f32', den)
        cr = p.v('v_mul_f32', am, lre); p('v_fmac_f32', cr, b, lim)
        ci = p.v('v_mul_f32', b, lre); ci = p.v('v_fma_f32', Neg(am), lim, ci)
        rd = p.v('v_add_f32', rd, rd)
        cr = p.v('v_mul_f32', cr, rd); ci = p.v('v_mul_f32', Neg(ci), rd) if False else p.v('v_mul_f32_e64', Neg(ci), rd)
        cr = p.v('v_xor_b32', sgn, cr)
        be = p.v('v_xor_b32', sgn, b)
        K = {}
        def park(nm, x, y):
            r = A(2, f'{nm}{u}'); p('v_accvgpr_write_b32', r[0], x); p('v_accvgpr_write_b32', r[1], y); K[nm] = r
        park('cf', cr, ci); park('l1', a, be)
        for n in range(1, 10):
            a2 = p.v('v_mul_f32', a, a); t = p.v('v_add_f32', a, a)
            a2 = p.v('v_fma_f32', Neg(be), be, a2); be = p.v('v_mul_f32', t, be); a = a2
            if n in (4, 6, 9): park(f'l{1<<n}', a, be)
        cst.append(K)
    for r in sum(accg, []) + sum(accu, []) + sum(accb, []) + [accm]:
        for e in range(4): p('v_mov_b32' if r.cls == 'v' else 'v_accvgpr_write_b32', r[e], 0)
    sa('s_mov_b32', 'rc', 100000)
    sa('s_lshr_b32', 't0', S('fb'), 1); sa('s_lshl_b32', 't1', fw, 7)
    sa('s_add_u32', 'ro', S('t0'), S('t1')); sa('s_sub_u32', 'rp', S('t0'), S('t1')); sa('s_add_u32', 'rp', S('rp'), 128)
    sa('s_lshr_b32', 'rm', S('hb'), 1)
    sa('s_lshl_b32', 't0', fw, 8); sa('s_lshl_b32', 't1', tw, 7); sa('s_add_u32', 'cA', S('t0'), S('t1'))
    sa('s_mul_i32', 't1', tw, 16 * 1152); sa('s_lshl_b32', 't0', fw, 7); sa('s_add_u32', 'cB', S('t0'), S('t1')); sa('s_add_u32', 'cB', S('cB'), 512)
    sa('s_lshl_b32', 't0', fw, 6); sa('s_add_u32', 'cH', S('t0'), S('t1')); sa('s_add_u32', 'cH', S('cH'), 1024)
    for r in ('ro', 'rp', 'rm'):
        sa('s_mul_i32', r, S(r), 1152)
        for c in ('cA', 'cB', 'cH'): sa('s_add_u32', r + c, S(r), S(c))
    sa('s_mul_i32', 'dws', fw, DWS)
    for nm, sh in (('mA', 12), ('mB', 11), ('mH', 10)):
        sa('s_lshl_b32', 't0', tw, sh); sa('s_add_u32', nm, S('dws'), S('t0'))
    for nm, sh in (('pA', 13), ('pB', 12), ('pH', 11)): sa('s_lshl_b32', nm, fw, sh)
    sa('s_lshl_b32', 'blk', mt, 1); sa('s_add_u32', 'blkr', S('blk'), je); sa('s_add_u32', 'blk', S('blk'), tw)
    S.free('ro', 'rp', 'rm', 'cA', 'cB', 'cH', 'fb', 'hb', 'c0', 'c1', 'c2', 'chr')
    D = o['D']; NB = D + 1
    assert 36 % NB == 0
    fa = [A(4, f'fa{i}') for i in range(NB)]
    fx = [[A(4, f'fx{k}_{t}') for t in range(4)] for k in range(2)]
    def a_reads(a, dst):
        t, mat = a >> 1, a & 1
        if t < 8: return [I('ds_read_b64_tr_b16', dst[2*h:2*h+2], vTa[t & 1], mods=f'offset:{mat*16384 + (t>>2)*4096 + h*2048 + ((t>>1)&1)*512}') for h in range(2)]
        return [I('ds_read_b64_tr_b16', dst[2*h:2*h+2], vTh, mods=f'offset:{32768 + mat*2048 + h*1024}') for h in range(2)]
    def x_reads(ks): return [I('ds_read_b128', fx[ks][t], vXr[ks], mods=f'offset:{t*1024}') for t in range(4)]
    p.append(WAIT(vm='o2')); p('s_barrier')
    hd = a_reads(0, fa[0]) + x_reads(0)
    for a in range(1, D): hd += a_reads(a, fa[a])
    p.extend(hd)
    BAR = o['bar']
    def place_dma(wv_, g0, groups, step=4):
        g = g0
        for a, d in groups:
            for k, x in enumerate(a): wv_.at(g - 1 - k, x)
            if d is not None: wv_.at(g, d)
            g += step
        return g
    def g1_kstep(W, ks, dmas, nxt, last=False):
        g0 = len(W.m)
        fb_ = [A(4, 'fb0'), A(4, 'fb1'), A(4, 'fbm'), A(4, 'fxm')]
        for a in range(18):
            acc = (accu if a & 1 else accg)[a >> 1]
            for tt in range(4): W.mfma(I(MF, acc[tt], fa[(18 * ks + a) % NB], fx[ks][tt], acc[tt]))
            if a: W.reserve(g0 + 4 * a - 1)
            if a + D < 18:
                r = a_reads(a + D, fa[(18 * ks + a + D) % NB]); W.at(g0 + 4 * a, r[0]); W.at(g0 + 4 * a + 2, r[1])
        for u in range(2):
            for tt in range(4): W.mfma(I(MF, accb[u][tt], fx[ks][tt], fb_[u], accb[u][tt]))
        W.mfma(I(MF, accm, fb_[3], fb_[2], accm))
        W.at(g0 + 40, I('ds_read_b128', fb_[0], vBr[ks])); W.at(g0 + 44, I('ds_read_b128', fb_[1], vBr[ks], mods='offset:1024'))
        W.at(g0 + 48, I('ds_read_b128', fb_[2], vBm[ks])); W.at(g0 + 52, I('ds_read_b128', fb_[3], vXm[ks]))
        place_dma(W, g0 + o.get('dma0', 1), dmas)
        if not last:
            W.at(g0 + 58, I('s_cmp_eq_u32', sR, 2 * SLOT), I('s_cselect_b32', sDW, sCm, sCp))
            W.at(g0 + 60, I('v_add_u32', vTa[0], sDW, vTa[0]), I('v_add_u32', vTa[1], sDW, vTa[1]))
            W.at(g0 + 62, I('v_add_u32', vTh, sDW, vTh))
        b = I('s_barrier'); b.last = True
        W.at(g0 + BAR, WAIT(vm='o' if ks == 0 else 'e', lgkm=0), b)
        for k, r in enumerate(nxt): W.at(g0 + BAR + 1 + k, r)
        W.reserve(g0 + 80)
        return g0
    def heads(ks):
        r = a_reads(0, fa[(18 * ks) % NB]) + x_reads(ks & 1)
        for a in range(1, D): r += a_reads(a, fa[(18 * ks + a) % NB])
        return r
    def slot_adv(W, g):
        W.at(g, I('s_add_u32', sWs, sR, sWave), I('s_add_u32', sR, sR, sDW))
    W = Weave()
    g0 = g1_kstep(W, 0, w_dma('e') + xb_dma('e'), heads(1)); slot_adv(W, g0 + 78)
    for k, r in enumerate((vBr[0], vBm[0], vXm[0], vXr[0])): W.at(g0 + 81 + 4 + 4 * k, I('v_add_u32', r, sDX, r))
    g1 = g1_kstep(W, 1, w_dma('o'), heads(2)); slot_adv(W, g1 + 78)
    W.at(g1 + 20, I('v_add_u32', vXr[1], sDX, vXr[1])); W.at(g1 + 24, I('s_sub_u32', sXm, sXm, sDX))
    for k, r in enumerate((vBr[1], vBm[1], vXm[1])): W.at(g1 + 55 + 2 * k, I('v_add_u32', r, sDX, r))
    W.at(g1 + 61, I('s_sub_u32', sDX, 0, sDX))
    W.at(g1 + 79, I('s_cmp_lt_u32', sK[0], 9 * 128))
    p.append(LOOPB()); p.append(LABEL('L_g1'))
    p.extend(W.build())
    p('s_cbranch_scc1', 'L_g1'); p.append(LOOPE())
    W = Weave(cap=o.get('cap', 3))
    pre = P()
    t = pre.v('v_mul_u32_u24', 1152, row); vD0 = pre.v('v_add_u32', t, c64, name='vD0')
    vD = [vD0] + [pre.v('v_add_u32', b * 8192, vD0, name=f'vD{b}') for b in (1, 2, 3)]
    p.extend(pre)
    korder = [('ro', 0), ('ro', 1), ('rp', 0), ('rp', 1), ('ro', 2), ('ro', 3), ('rp', 2), ('rp', 3), ('rm', 0)]
    SS = [['A0', 'A1'], ['A2', 'A3'], ['A4', 'A5'], ['A6', 'A7'], ['A8', 'B0'], ['B1', 'B2', 'B3'], ['B4', 'B5', 'B6'],
          ['B7', 'B8', 'C0'], ['C1', 'C2', 'C3', 'C4'], ['C5', 'C6', 'C7', 'C8']]
    ksz = dict(A=8192, B=6144, C=4096); ntile = dict(A=8, B=6, C=4)
    vDh = V(1, 'vDh')
    loc = {}
    for n, ss in enumerate(SS):
        off = (n % 3) * SLOT
        for k in ss: loc[k] = off; off += ksz[k[0]]
    tcnt = [0]
    def ss_dma(n):
        g = []; tag = f'S{n}'
        for k in SS[n]:
            r, idx = korder[int(k[1])]; ro = idx * 32 * 1152
            def so(base, add):
                tcnt[0] += 1; s = S(f'T{tcnt[0] % 2}'); return s, I('s_add_u32', s, S(r + base), add)
            if k[0] == 'A':
                s, i = so('cA', ro)
                g.append(([I('s_add_u32', 'm0', S('mA'), loc[k]), i], dma(vD[0], sD, s, 0, tag)))
                for b in (1, 2, 3): g.append(([], dma(vD[b], sD, s, b * 1024, tag)))
            else:
                s, i = so('cB', ro + (256 if k[0] == 'C' else 0))
                g.append(([I('s_add_u32', 'm0', S('mB'), loc[k]), i], dma(vD[0], sD, s, 0, tag)))
                g.append(([], dma(vD[1], sD, s, 1024, tag)))
                if k[0] == 'B':
                    s, i = so('cH', ro)
                    g.append(([I('s_add_u32', 'm0', S('mH'), loc[k] + 4096), i], dma(vDh, sD, s, 0, tag)))
        return g
    vG = [[V(1, f'vG{s}{k}') for k in range(4)] for s in range(2)]
    setup = P()
    setup('v_add_u32', vG[0][0], S('dws'), pT0); setup('v_xor_b32', vG[0][1], 32, vG[0][0])
    setup2 = P()
    setup2('v_add_u32', vG[1][0], 2 * SLOT, vG[0][0]); setup2('v_add_u32', vG[1][1], 2 * SLOT, vG[0][1])
    setup2('v_add_u32', vG[0][2], S('dws'), pH0); setup2('v_xor_b32', vG[0][3], 32, vG[0][2])
    setup2('v_add_u32', vG[1][2], 2 * SLOT, vG[0][2]); setup2('v_add_u32', vG[1][3], 2 * SLOT, vG[0][3])
    t = setup2.v('v_lshl_add_u32', hi, 3, row); t = setup2.v('v_mul_u32_u24', 1152, t); setup2('v_add_u32', vDh, t, c32)
    frags = [(k, t) for ss in SS for k in ss for t in range(ntile[k[0]])]
    fd = [A(4, f'fd{i}') for i in range(len(frags))]
    def d_reads(i):
        k, t = frags[i]; st = 1 if loc[k] >= 2 * SLOT else 0; b = loc[k] - st * 2 * SLOT
        if k[0] == 'B' and t >= 4:
            return [I('ds_read_b64_tr_b16', fd[i][2*h:2*h+2], vG[st][2 + (t & 1)], mods=f'offset:{b + 4096 + h*1024}') for h in range(2)]
        return [I('ds_read_b64_tr_b16', fd[i][2*h:2*h+2], vG[st][t & 1], mods=f'offset:{b + (t>>2)*4096 + h*2048 + ((t>>1)&1)*512}') for h in range(2)]
    g16 = g1_kstep(W, 0, ss_dma(0), heads(1))
    hd = []
    for i in range(D): hd += d_reads(i)
    g17 = g1_kstep(W, 1, ss_dma(1), hd, last=True)
    for i in W.fixed[g17 + BAR]:
        if i.op == 'WAIT': i.vm = 'S0'
    for k, i in enumerate(setup): W.at(g16 + 45 + 4 * k, i)
    Hv = [[V(4, f'Hv{g}_{tt}') for tt in range(4)] for g in range(4)]
    H8 = [V(2, f'H8_{tt}') for tt in range(4)]
    Ho = [[A(4, f'Ho{g}_{tt}') for tt in range(4)] for g in range(4)]
    Hp = [[A(4, f'Hp{g}_{tt}') for tt in range(4)] for g in range(4)]
    Hm = [V(4, f'Hm_{tt}') for tt in range(4)]
    accd = dict(A=[[(V if t < o['nAV'] else A)(4, f'dA{t}_{tt}') for tt in range(4)] for t in range(8)],
                B=[[V(4, f'dB{t}_{tt}') for tt in range(4)] for t in range(6)],
                C=[[(V if t < o.get('nCV', 1) else A)(4, f'dC{t}_{tt}') for tt in range(4)] for t in range(4)])
    kstart = {}; ssbar = {}; ssstart = {}; lastm = {}
    fi = 0
    for n, ss in enumerate(SS):
        gs = len(W.m); ssstart[n] = gs
        nf = sum(ntile[k[0]] for k in ss)
        for a in range(nf):
            k, t = frags[fi + a]; kn = int(k[1]); r, idx = korder[kn]
            if t == 0: kstart[k] = len(W.m)
            Hs_ = Hm if r == 'rm' else (Hp[idx] if r == 'rp' else (Hv[idx] if k[0] == 'A' else Ho[idx]))
            W.reserve(len(W.m) - 1)
            for tt in range(4):
                ac = accd[k[0]][t][tt]
                lastm[(k[0], t, tt)] = W.mfma(I(MF, ac, fd[fi + a], Hs_[tt], 0 if kn == 0 else ac))
        bar = gs + 4 * nf - 4 * D - 2
        ssbar[n] = bar
        rd = []
        for a in range(D, nf): rd += d_reads(fi + a)
        slots = [0, 0, 2, 2, 4, 4, 6, 6] + list(range(8, 200, 2))
        for k, r in enumerate(rd): W.at(gs + slots[k], r)
        if n + 1 < len(SS):
            b = I('s_barrier'); b.last = True
            W.at(bar, WAIT(vm=f'S{n+1}', lgkm=0), b)
            hd = []
            for a in range(D): hd += d_reads(fi + nf + a)
            for k, r in enumerate(hd): W.at(bar + 2 + 2 * k, r)
        fi += nf
    for n in range(len(SS) - 2):
        g = place_dma(W, ssstart[n] + 9, ss_dma(n + 2))
        assert g - 4 < ssbar[n], (n, g, ssbar[n])
    vEw = V(1, 'vEw'); vEp = V(1, 'vEp'); vE8 = V(1, 'vE8'); l16 = V(1, 'l16')
    q1 = P()
    q1('v_lshlrev_b32', l16, 4, l)
    q1('s_lshl_b32', S('t0'), w, 12); q1('s_add_u32', S('t0'), S('t0'), XB0); q1('v_add_u32', vEw, S('t0'), l16)
    q1('v_xor_b32', vEp, 4096, vEw) if (XB0 >> 12) % 2 == 0 else None
    if (XB0 >> 12) % 2:
        q1('s_xor_b32', S('t0'), w, 1); q1('s_lshl_b32', S('t0'), S('t0'), 12); q1('s_add_u32', S('t0'), S('t0'), XB0); q1('v_add_u32', vEp, S('t0'), l16)
    for i in q1: i.ready = g16 + 30
    def epi(t):
        r = P()
        for tt in range(4):
            g, u = accg[t][tt], accu[t][tt]
            if u.cls == 'a':
                tmp = [r.v('v_accvgpr_read_b32', u[e]) for e in range(4)]
            else: tmp = [u[e] for e in range(4)]
            for e in range(4): r('v_mul_f32', g[e], g[e], tmp[e])
            dst = H8[tt] if t == 8 else Hv[t >> 1][tt][2 * (t & 1):2 * (t & 1) + 2]
            for e in range(2): r('v_cvt_pk_bf16_f32', dst[e], g[2 * e], g[2 * e + 1])
        r[0].ready = g17 + 8 * t + 7 + 3
        return r
    eoff = [E0 - XB0, E1 - XB0, E0 - XB0, E1 - XB0]
    def hwr(g, ready, dead):
        r = [I('ds_write_b128', vEw, Hv[g][tt], mods=f'offset:{eoff[g] + tt*1024}', cost=2) for tt in range(4)]
        for i in r: i.ready = ready
        r[-1].dead = dead
        return r
    def hrd(g, ready, dead):
        r = [I('ds_read_b128', Hp[g][tt], vEp, mods=f'offset:{eoff[g] + tt*1024}') for tt in range(4)]
        for i in r: i.ready = ready; i.dead = dead
        return r
    def hro(g, ready, dead):
        r = [I('ds_read_b128', Ho[g][tt], vEw, mods=f'offset:{eoff[g] + tt*1024}') for tt in range(4)]
        for i in r: i.ready = ready; i.dead = dead
        return r
    def dl(r, dead): r[-1].dead = dead; return r
    q1 += epi(0) + dl(epi(1), kstart['A0'] - 2) + hwr(0, 0, ssbar[0] - 3) + epi(2) + dl(epi(3), kstart['A1'] - 2) + hwr(1, g17 + BAR + 1, ssbar[0] - 3)
    q1 += list(setup2)
    q1[-1].dead = ssbar[1] - 2
    q1 += epi(4) + dl(epi(5), kstart['A4'] - 2) + epi(6) + dl(epi(7), kstart['A5'] - 2)
    q1 += hwr(2, ssbar[1] + 1, ssbar[2] - 3) + hwr(3, ssbar[1] + 1, ssbar[2] - 3)
    r = P()
    r('s_lshl_b32', S('t0'), tw, 12); r('s_add_u32', S('t0'), S('t0'), E8); r('v_add_u32', vE8, S('t0'), l16)
    r('s_lshl_b32', S('t0'), fw, 3); vE8w = r.v('v_add_u32', S('t0'), vE8)
    r += epi(8)
    for tt in range(4): r('ds_write_b64', vE8w, H8[tt], mods=f'offset:{tt*1024}')
    r[-1].dead = ssbar[3] - 3
    q1 += r
    W.queue(q1, prio=10, name='epi')
    q2 = hrd(0, ssbar[0] + 1, kstart['A2'] - 5) + hrd(1, ssbar[0] + 1, kstart['A3'] - 8) + hro(0, ssbar[1] - 14, ssbar[1] - 4) + hro(1, ssbar[1] - 14, ssbar[1] - 4)
    q2 += hrd(2, ssbar[2] + 1, kstart['A6'] - 5) + hrd(3, ssbar[2] + 1, kstart['A7'] - 8) + hro(2, ssbar[3] - 14, ssbar[3] - 4) + hro(3, ssbar[3] - 14, ssbar[3] - 4)
    r = [I('ds_read_b128', Hm[tt], vE8, mods=f'offset:{tt*1024}') for tt in range(4)]
    for i in r: i.ready = ssbar[3] + 1; i.dead = kstart['A8'] - 5
    q2 += r
    W.queue(q2, prio=20, name='exch')
    q3 = P()
    vP = V(1, 'vP')
    q3('s_lshl_b32', S('t2'), S('blk'), 4); q3('s_add_u32', S('t2'), S('t2'), j); q3('s_mul_i32', S('t2'), S('t2'), 73728)
    q3('s_add_u32', S('t2'), S('t2'), PF_OFF); q3('v_add_u32', vP, S('t2'), l16)
    q3[0].ready = kstart['A8']
    for ps in 'ABC':
        grp = {'A': [('pA', 0, [0, 1, 2, 3]), ('pA', 4, [4, 5, 6, 7])], 'B': [('pB', 16, [0, 1, 2, 3]), ('pH', 32, [4, 5])], 'C': [('pB', 24, [0, 1, 2, 3])]}[ps]
        for (sb, d0, ts) in grp:
            q3('s_add_u32', S('P0'), S(sb), d0 * 1024); q3('s_add_u32', S('P1'), S(sb), d0 * 1024 + 36864)
            for k, t in enumerate(ts):
                for a1 in range(2):
                    st = V(4, 'st'); n0 = len(q3)
                    for h in range(2):
                        ac = accd[ps][t][2 * a1 + h]
                        src = [q3.v('v_accvgpr_read_b32', ac[e]) for e in range(4)] if ac.cls == 'a' else [ac[e] for e in range(4)]
                        for e in range(2): q3('v_cvt_pk_bf16_f32', st[2 * h + e], src[2 * e], src[2 * e + 1])
                    q3[n0].ready = lastm[(ps, t, 3)] + 4
                    q3('buffer_store_dwordx4', st, vP, sS, S(f'P{a1}'), mods=f'offen offset:{k*1024} sc1', cost=2)
        if ps == 'A': q3[-1].dead = kstart['C0'] - 4
    W.queue(q3, prio=5, name='part')
    q4 = P()
    vRg = V(1, 'vRg'); vBp = V(1, 'vBp')
    q4('v_add_u32', vRg, RG, l16); q4[0].ready = kstart['A0'] + 4
    q4('s_lshl_b32', S('t3'), w, 10); t = q4.v('v_add_u32', S('t3'), vRg)
    q4('ds_write_b128', t, accm, cost=2); q4[-1].dead = ssbar[0] - 3
    q4('v_lshlrev_b32', vBp, 2, col)
    um = [V(4, f'um{tt}') for tt in range(4)]
    n0 = len(q4)
    for tt in range(4): q4('ds_read_b128', um[tt], vRg, mods=f'offset:{tt*1024}')
    q4[n0].ready = ssbar[0] + 1
    U = [accb[0], accb[1], um]
    def getc(u, nm): return [q4.v('v_accvgpr_read_b32', cst[u][nm][e], name=f'{nm}{u}v') for e in range(2)]
    def inter(lists):
        out = []
        for k in range(max(len(x) for x in lists)):
            for x in lists:
                if k < len(x): out.append(x[k])
        return out
    def horner(z, c, u, dst=None):
        d = dst if dst is not None else V(1)
        return d, [I('v_fma_f32', d, c[0], z, u), I('v_fmac_f32_dpp', d, z, c[1], mods=DPP8)]
    Z = [[V(4, f'z{u}_{tt}') for tt in range(4)] for u in range(3)]
    for u in range(3):
        cf = getc(u, 'cf')
        for tt in range(4):
            for e in range(4):
                q4('v_mul_f32', Z[u][tt][e], cf[0], U[u][tt][e]); q4('v_fmac_f32_dpp', Z[u][tt][e], U[u][tt][e], cf[1], mods=DPP8)
    l1 = [getc(u, 'l1') for u in range(3)]; l16c = [getc(u, 'l16') for u in range(3)]
    zs = lambda u, k: Z[u][k >> 2][k & 3]
    ch = []; ee = []
    for u in range(3):
        z = zs(u, 0); c = []
        for k in range(1, 16):
            z, ins = horner(z, l1[u], zs(u, k)); c += ins
        ch.append(c); ee.append(z)
    q4 += inter(ch)
    eb = [V(4, f'eb{u}') for u in range(3)]
    for u in range(3):
        for k in range(4): q4('ds_bpermute_b32', eb[u][k], vBp, ee[u], mods=f'offset:{64*k}')
    lastbp = q4[-1]
    vAg = V(1, 'vAg'); vAs = V(1, 'vAs'); vAm = V(1, 'vAm')
    q4('v_lshlrev_b32', vAg, 8, col)
    q4('v_cmp_gt_u32', 'vcc', 16, l); t = q4.v('v_mov_b32', 0x7ff00000); q4('v_cndmask_b32', vAs, t, vAg, 'vcc')
    q4('v_cmp_gt_u32', 'vcc', 16, v0); q4('s_lshl_b32', S('t3'), sG, 13); q4('v_cndmask_b32', vAm, t, vAg, 'vcc')
    q4('s_lshl_b32', S('a0'), S('blk'), 2); q4('s_add_u32', S('a0'), S('a0'), S('t3')); q4('s_add_u32', S('a0'), S('a0'), AG_OFF)
    q4('s_add_u32', S('a1'), S('a0'), 4096)
    q4('s_lshl_b32', S('t3'), S('Gr'), 1); q4('s_add_u32', S('t3'), S('t3'), S('Tr')); q4('s_lshl_b32', S('t3'), S('t3'), 12)
    q4('s_lshl_b32', S('a2'), S('blkr'), 2); q4('s_add_u32', S('a2'), S('a2'), S('t3')); q4('s_add_u32', S('a2'), S('a2'), AG_OFF)
    ch = []
    for u in range(3):
        z = eb[u][0]; c = []
        for k in range(1, 4):
            z, ins = horner(z, l16c[u], eb[u][k]); c += ins
        z2 = V(1); c.append(I('v_min_u32', z2, -2, z))
        c.append(I('buffer_store_dword', z2, vAm if u == 2 else vAs, sS, S(f'a{u}'), mods='offen offset:128 sc1', cost=2))
        ch.append(c)
    c = inter(ch); c[0].deps = [(lastbp, 5)]
    q4 += c
    agst = q4[-1]
    vAl = V(1, 'vAl')
    t = q4.v('v_lshlrev_b32', 5, q); q4('v_sub_u32', vAl, vAg, t); q4('v_add_u32', vAl, 96, vAl)
    ag = [V(8, f'ag{u}') for u in range(3)]
    def agloads(): return [I('buffer_load_dwordx4', ag[u][4*h:4*h+4], vAl, sS, S(f'a{u}'), mods=f'offen offset:{16*h} sc1', cost=2) for u in range(3) for h in range(2)]
    ld = agloads(); ld[0].deps = [(agst, o.get('aggap', 100))]
    q4 += ld
    mx = V(1, 'mx')
    def agcheck():
        al = [ag[u][k] for u in range(3) for k in range(8)]
        r = [I('v_max3_u32', mx, al[0], al[1], al[2])]
        for k in range(3, 23, 2): r.append(I('v_max3_u32', mx, mx, al[k], al[k + 1]))
        r.append(I('v_max_u32', mx, mx, al[23]))
        r.append(I('v_cmp_eq_u32', 'vcc', -1, mx))
        return r
    l64 = [getc(u, 'l64') for u in range(3)]; l512 = [getc(u, 'l512') for u in range(3)]
    c = agcheck(); c[0].deps = [(ld[-1], o.get('aglat', 60))]
    q4 += c
    br = I('s_cbranch_vccnz', 'L_retry'); br.deps = [(c[-1], 1)]
    q4 += [br, LABEL('L_back'), KEEP(vAl, mx)]
    ch = []; sq_ = []
    for u in range(3):
        z = ag[u][0]; c = []
        for k in range(1, 8):
            z, ins = horner(z, l64[u], ag[u][k]); c += ins
        ch.append(c); sq_.append(z)
    q4 += inter(ch)
    sb = [V(4, f'sb{u}') for u in range(3)]
    for u in range(3):
        for k in range(4): q4('ds_bpermute_b32', sb[u][k], vBp, sq_[u], mods=f'offset:{64*k}')
    lastbp = q4[-1]
    for k in range(3): q4('v_cmp_lt_u32', S(f'm{k}', 2), k, q)
    vHw = V(1, 'vHw'); vHr = V(1, 'vHr'); vHm = V(1, 'vHm')
    q4('s_mul_i32', S('t3'), w, 3 * 2304); q4('s_add_u32', S('t3'), S('t3'), HT)
    t = q4.v('v_mul_u32_u24', 144, col); t = q4.v('v_lshl_add_u32', q, 5, t); q4('v_add_u32', vHw, S('t3'), t)
    t = q4.v('v_lshrrev_b32', 2, l); t = q4.v('v_mul_u32_u24', 144, t); t2 = q4.v('v_and_b32', 3, l); t = q4.v('v_lshl_add_u32', t2, 5, t)
    q4('v_add_u32', vHr, S('t3'), t); q4('s_lshl_b32', S('t3'), w, 3); q4('v_add_u32', vHm, S('t3'), vHr)
    ch = []
    for u in range(3):
        z = sb[u][3]; c = []
        for k in (2, 1, 0):
            z, ins = horner(z, l512[u], sb[u][k]); c += ins
        for k in range(3):
            z2, ins = horner(z, l16c[u], eb[u][k]); c += ins
            z3 = V(1); c.append(I('v_cndmask_b32', z3, z, z2, S(f'm{k}'))); z = z3
        for k in range(16):
            c += [I('v_fmac_f32', zs(u, k), l1[u][0], z), I('v_fmac_f32_dpp', zs(u, k), z, l1[u][1], mods=DPP8)]; z = zs(u, k)
        for h in range(2):
            pk = V(4)
            for e in range(4): c.append(I('v_cvt_pk_bf16_f32', pk[e], zs(u, 8*h + 2*e), zs(u, 8*h + 2*e + 1)))
            wr = I('ds_write_b128', vHw, pk, mods=f'offset:{u*2304 + 16*h}', cost=2); wr.ready = ssbar[4] + 1
            c.append(wr)
        ch.append(c)
    c = inter(ch); c[0].deps = [(lastbp, 5)]
    q4 += c
    hf = [V(4, f'hf{tt}') for tt in range(4)]; hm = V(2, 'hm')
    for tt in range(4):
        for u in range(2): q4('ds_read_b64_tr_b16', hf[tt][2*u:2*u+2], vHr, mods=f'offset:{u*2304 + 8*tt}')
    q4('ds_read_b64_tr_b16', hm, vHm, mods=f'offset:{2*2304}')
    lastrd = q4[-1]
    q4('s_mul_i32', S('t3'), S('blk'), 36); q4('s_add_u32', S('t3'), S('t3'), sG); q4('s_lshl_b32', S('t3'), S('t3'), 12); q4('s_add_u32', S('a0'), S('t3'), HF_OFF)
    q4('s_mul_i32', S('t3'), S('blkr'), 36); q4('s_add_u32', S('t3'), S('t3'), S('Gr')); q4('s_lshl_b32', S('t3'), S('t3'), 2); q4('s_add_u32', S('t3'), S('t3'), w)
    q4('s_lshl_b32', S('t3'), S('t3'), 7); q4('s_add_u32', S('t3'), S('t3'), S('Tr')); q4('s_lshl_b32', S('t3'), S('t3'), 3); q4('s_add_u32', S('a1'), S('t3'), HF_OFF)
    n0 = len(q4)
    for tt in range(4): q4('buffer_store_dwordx4', hf[tt], l16, sS, S('a0'), mods=f'offen offset:{tt*1024} sc1', cost=2)
    q4('buffer_store_dwordx2', hm, l16, sS, S('a1'), mods='offen sc1', cost=2)
    q4[n0].deps = [(lastrd, 5)]
    W.queue(q4, prio=7, name='scan')
    body = W.build()
    print("; gaps: ss", ssstart, "agst", agst.gap, "ld", ld[0].gap, "br", br.gap, "hf", q4[-1].gap, "end", len(W.m))
    p.extend(body)
    p.append(LABEL('L_main_end')); p('s_endpgm')
    lines, peak, prog = finish(p)
    rt = P(); rt.append(LABEL('L_retry')); rt += agloads(); rt('s_waitcnt', mods='vmcnt(0)'); rt += agcheck()
    rt('s_sub_u32', S('rc'), S('rc'), 1); rt('s_cbranch_scc1', 'L_back'); rt('s_cbranch_vccnz', 'L_retry'); rt('s_branch', 'L_back')
    for ins in rt: lines.append(ins.name + ':' if ins.op == 'LABEL' else ins.text())
    return lines, peak
if __name__ == '__main__':
    l, pk = gen_main(); print(len(l), pk)
```

```python
import sys, json
from common import *
from k_ln import gen_ln
from k_main import gen_main
from k_fin import gen_fin
def build(out, opt):
    ks = [('ln_kernel', gen_ln(), 0), ('main_kernel', gen_main(opt), 163840), ('fin_kernel', gen_fin(opt), 147456)]
    s = ''
    for n, _, lds in ks: s += f"; @launch kernel={n} grid=(256,1,1) block=(256,1,1) lds={lds}\n"
    s += '.amdgcn_target "amdgcn-amd-amdhsa--gfx950"\n.text\n'
    for n, (l, pk), _ in ks: s += kernel_text(n, l)
    s += '.section .rodata,"a"\n'
    for n, (l, pk), _ in ks: s += kernel_desc(n, pk['v'], pk['a'])
    open(out, 'w').write(s)
if __name__ == '__main__':
    build(sys.argv[1], json.loads(sys.argv[2]) if len(sys.argv) > 2 else {})
```

```python
import re

class VR:
    cnt = 0
    def __init__(s, cls, n=1, name=None, phys=None):
        s.cls, s.n, s.phys = cls, n, phys
        VR.cnt += 1
        s.id = VR.cnt
        s.name = name or f"{cls}{s.id}"
        s.pinned = phys is not None
    def __getitem__(s, k):
        if isinstance(k, slice):
            lo = k.start or 0; hi = s.n if k.stop is None else k.stop
            assert 0 <= lo < hi <= s.n, (s.name, k)
            return Ref(s, lo, hi - lo)
        assert 0 <= k < s.n, (s.name, k)
        return Ref(s, k, 1)
class Ref:
    def __init__(s, vr, lo, n): s.vr, s.lo, s.n = vr, lo, n
    def __getitem__(s, k):
        if isinstance(k, slice):
            lo = k.start or 0; hi = s.n if k.stop is None else k.stop
            return Ref(s.vr, s.lo + lo, hi - lo)
        return Ref(s.vr, s.lo + k, 1)
def V(n=1, name=None): return VR('v', n, name)
def A(n=1, name=None): return VR('a', n, name)
def ref(x): return Ref(x, 0, x.n) if isinstance(x, VR) else x

TRANS = ('v_exp_f32', 'v_log_f32', 'v_rcp_f32', 'v_rsq_f32', 'v_sqrt_f32', 'v_sin_f32', 'v_cos_f32')

def sregs(tok):
    if not isinstance(tok, str): return set()
    t = tok.strip().lstrip('-').strip('|')
    m = re.fullmatch(r's(\d+)', t)
    if m: return {int(m.group(1))}
    m = re.fullmatch(r's\[(\d+):(\d+)\]', t)
    if m: return set(range(int(m.group(1)), int(m.group(2)) + 1))
    if t in ('vcc', 'vcc_lo', 'vcc_hi'): return {'vcc'}
    if t in ('exec', 'exec_lo', 'exec_hi'): return {'exec'}
    if t == 'm0': return {'m0'}
    return set()

class Neg:
    def __init__(s, r): s.r = ref(r)

class I:
    def __init__(s, op, *ops, mods='', tag=None, cost=1, note=None):
        s.op = op; s.ops = [ref(o) for o in ops]; s.mods = mods; s.tag = tag; s.cost = cost; s.note = note
        s.gap = None
        n = len(s.ops); allo = list(range(n))
        d, u = [0], allo[1:]
        k = 'S'
        if op.startswith('v_mfma'): k = 'M'
        elif op.startswith('ds_'):
            k = 'L'
            if op.startswith('ds_write'): d, u = [], allo
        elif op.startswith('buffer_') or op.startswith('global_'):
            k = 'X'
            if 'store' in op or ' lds' in (' ' + mods) or ('atomic' in op and 'sc0' not in mods): d, u = [], allo
            elif 'atomic' in op: d, u = [0], allo
        elif op.startswith('v_'):
            k = 'V'
            if op.startswith('v_fmac') or op.startswith('v_mac') or op.startswith('v_writelane'): u = allo
            if 'swap' in op: d, u = [0, 1], [0, 1]
            if op == 'v_nop': d, u = [], []
        elif op.startswith('s_load') or op in ('s_memtime', 's_memrealtime'): k = 'K'
        elif op.startswith('s_'):
            if op.startswith(('s_cmp', 's_cbranch', 's_branch', 's_barrier', 's_waitcnt', 's_nop', 's_setprio', 's_endpgm', 's_sleep', 's_bitcmp')):
                d, u = [], allo
        else: k = 'P'; d, u = [], []
        s.kind = k; s.d = d; s.u = u
    def refs(s, idx):
        out = []
        for i in idx:
            o = s.ops[i]
            if isinstance(o, Neg): o = o.r
            if isinstance(o, Ref): out.append(o)
        return out
    def phys(s, idx):
        out = set()
        for r in s.refs(idx):
            for j in range(r.n): out.add((r.vr.cls, r.vr.phys + r.lo + j))
        return out
    def sset(s, idx):
        out = set()
        for i in idx: out |= sregs(s.ops[i])
        return out
    def text(s):
        def f(o):
            if isinstance(o, Neg): return '-' + f(o.r)
            if isinstance(o, Ref):
                lo = o.vr.phys + o.lo
                return f"{o.vr.cls}{lo}" if o.n == 1 else f"{o.vr.cls}[{lo}:{lo+o.n-1}]"
            if isinstance(o, float): return repr(o)
            if isinstance(o, int): return str(o) if -16 <= o <= 64 else hex(o & 0xffffffff)
            return o
        t = "  " + s.op + (" " + ", ".join(f(o) for o in s.ops) if s.ops else "") + (" " + s.mods if s.mods else "")
        if s.note: t += "  ; " + s.note
        return t

def LABEL(n): i = I('LABEL'); i.name = n; i.cost = 0; return i
def WAIT(vm=None, lgkm=None):
    i = I('WAIT'); i.vm = vm; i.lgkm = lgkm; return i
def LOOPB(): i = I('LOOPB'); i.cost = 0; return i
def LOOPE(): i = I('LOOPE'); i.cost = 0; return i
def KEEP(*rs):
    i = I('KEEP', *rs); i.u = list(range(len(rs))); i.cost = 0; return i
def DEF(*rs):
    i = I('DEF', *rs); i.d = list(range(len(rs))); i.cost = 0; return i
def DRAINED():
    i = I('NOP0'); i.cost = 0; return i

class Grp:
    def __init__(s, *ins):
        s.ins = list(ins); s.cost = sum(i.cost for i in ins); s.gap = None; s.op = 'GRP'
def flat(items):
    out = []
    for it in items:
        if isinstance(it, Grp):
            for i in it.ins: i.gap = it.gap
            out += it.ins
        else: out.append(it)
    return out

def allocate(prog, limits={'v': 256, 'a': 256}, verbose=True):
    first, last = {}, {}
    loops = []; st = []
    vrs = {}
    for p, ins in enumerate(prog):
        if ins.op == 'LOOPB': st.append(p)
        if ins.op == 'LOOPE': loops.append((st.pop(), p))
        for r in ins.refs(ins.u):
            if r.vr.id not in first:
                assert r.vr.pinned, f"use before def: {r.vr.name} at {p} {ins.op}"
                first[r.vr.id] = -1
            last[r.vr.id] = p; vrs[r.vr.id] = r.vr
        for r in ins.refs(ins.d):
            first.setdefault(r.vr.id, p); last[r.vr.id] = max(last.get(r.vr.id, p), p); vrs[r.vr.id] = r.vr
    for (b, e) in loops:
        for k in vrs:
            if first[k] < b and last[k] > b: last[k] = max(last[k], e)
    busy = {c: [-2] * limits[c] for c in limits}
    peak = {c: 0 for c in limits}
    for k in vrs:
        if vrs[k].pinned:
            first[k] = -1
    for k in sorted(vrs, key=lambda k: (first[k], -vrs[k].n)):
        v = vrs[k]; b = busy[v.cls]
        if v.pinned:
            for j in range(v.n): b[v.phys + j] = last[k]
            continue
        al = 1 if v.n == 1 else (2 if v.n == 2 else 4)
        same_ok = prog[first[k]].kind == 'V' and v.n == 1 and 'dpp' not in prog[first[k]].op
        def free(j): return b[j] < first[k] or (same_ok and b[j] == first[k])
        cand = [lo for lo in range(0, limits[v.cls] - v.n + 1, al) if all(free(lo + j) for j in range(v.n))]
        if not cand:
            live = [(vrs[q].name, vrs[q].n) for q in vrs if vrs[q].cls == v.cls and vrs[q].phys is not None and last[q] >= first[k]]
            raise RuntimeError(f"out of {v.cls} regs for {v.name} n={v.n} at {first[k]}: live={sum(x[1] for x in live)} {live}")
        if v.n < 4:
            def score(lo):
                q = lo & ~3
                return -sum(0 if free(q + j) else 1 for j in range(4))
            cand.sort(key=lambda lo: (score(lo), lo))
        else:
            cand.sort(key=lambda lo: (max(b[lo + j] for j in range(v.n)) > first[k] - 12, lo))
        v.phys = cand[0]
        for j in range(v.n): b[v.phys + j] = last[k]
        peak[v.cls] = max(peak[v.cls], v.phys + v.n)
    if verbose: print("; alloc peak", peak)
    return peak

def expand(prog):
    seq = []; st = None
    for p, ins in enumerate(prog):
        seq.append(p)
        if ins.op == 'LOOPB': st = p
        if ins.op == 'LOOPE': seq += list(range(st + 1, p + 1))
    return seq

def insert_waits(prog):
    req = {}
    qv, ql = [], []
    def need(q, pred):
        for i in range(len(q) - 1, -1, -1):
            if pred(q[i]): return len(q) - 1 - i
        return None
    for p in expand(prog):
        ins = prog[p]
        nv = nl = None
        if ins.op == 'WAIT':
            has = lambda t, x: (x in t) if isinstance(t, (list, tuple, set)) else x == t
            if ins.vm is not None: nv = (0 if qv else None) if ins.vm == 0 else need(qv, lambda e: has(ins.vm, e[1]))
            if ins.lgkm is not None: nl = (0 if ql else None) if ins.lgkm == 0 else need(ql, lambda e: has(ins.lgkm, e[1]))
            if nl is not None and any(e[2] for e in ql): nl = 0
            if ins.vm == 0: nv = 0
            if ins.lgkm == 0: nl = 0
        elif ins.kind != 'P':
            touched = ins.phys(ins.u) | ins.phys(ins.d) | {('s', x) for x in ins.sset(ins.u) | ins.sset(ins.d)}
            if touched:
                nv = need(qv, lambda e: e[0] & touched)
                nl = need(ql, lambda e: e[0] & touched)
                if nl is not None and any(e[2] for e in ql): nl = 0
        if nv is not None or nl is not None:
            o = req.get(p, (None, None))
            mn = lambda a, b: b if a is None else (a if b is None else min(a, b))
            if nv is not None: nv = min(nv, 63)
            if nl is not None: nl = min(nl, 15)
            req[p] = (mn(o[0], nv), mn(o[1], nl))
            if nv is not None: qv[:] = qv[len(qv) - nv:] if nv else []
            if nl is not None: ql[:] = ql[len(ql) - nl:] if nl else []
        if ins.kind == 'X': qv.append((ins.phys(ins.d), ins.tag, False))
        if ins.kind == 'L': ql.append((ins.phys(ins.d), ins.tag, False))
        if ins.kind == 'K': ql.append(({('s', x) for x in ins.sset(ins.d)}, ins.tag, True))
    out = []
    for p, ins in enumerate(prog):
        if p in req:
            nv, nl = req[p]
            out.append(I('s_waitcnt', mods=" ".join(x for x in ((f"vmcnt({nv})" if nv is not None else ""), (f"lgkmcnt({nl})" if nl is not None else "")) if x)))
        if ins.op != 'WAIT': out.append(ins)
    return out

def hazard_need(pr, co):
    n = 0
    if pr.kind == 'M':
        D = pr.phys(pr.d); far = 5 if '4x4x4' in pr.op else 8
        if co.kind == 'M':
            if D & co.phys([1, 2]): n = max(n, far)
            C = co.phys([3])
            if D & C and D != C: n = max(n, 6)
            if D & C and D == C and pr.op != co.op: n = max(n, 6)
            if D & C and '4x4x4' in pr.op: n = max(n, 2)
            if D & co.phys([0]) and not (D & C): n = max(n, 0)
        elif co.kind in 'VLX':
            if D & (co.phys(co.u) | co.phys(co.d)): n = max(n, far)
            if co.kind == 'V' and pr.phys([3]) & co.phys(co.d): n = max(n, 3)
    elif pr.kind == 'V':
        D = pr.phys(pr.d); SD = pr.sset(pr.d)
        if pr.op.startswith('v_cmpx'): SD = SD | {'exec'}
        if co.kind == 'M' and D & co.phys(co.u): n = max(n, 2)
        if co.kind == 'V':
            U = co.phys(co.u)
            if D & U:
                if 'dpp' in co.op: n = max(n, 2)
                if 'permlane' in co.op: n = max(n, 2)
                if co.op.startswith(('v_readfirstlane', 'v_readlane')): n = max(n, 1)
                if pr.op.replace('_e32', '').replace('_e64', '') in TRANS: n = max(n, 1)
                if 'sdwa' in pr.op or 'op_sel' in pr.mods: n = max(n, 1)
            if SD & co.sset(co.u): n = max(n, 4 if 'lane' in co.op else 2)
            if 'exec' in SD: n = max(n, 5)
        if co.kind == 'X' and SD & co.sset(co.u): n = max(n, 5)
        if co.kind == 'M' and 'exec' in SD: n = max(n, 4)
    elif pr.kind == 'S':
        if 'm0' in pr.sset(pr.d) and co.kind == 'X' and ' lds' in ' ' + co.mods: n = max(n, 1)
    elif pr.kind == 'X':
        if 'store' in pr.op and ('x4' in pr.op or 'x3' in pr.op):
            if pr.phys([0]) & co.phys(co.d): n = max(n, 2)
    return n

def pad_hazards(prog, verbose=True):
    add = {}
    seq = expand(prog)
    hist = []
    for p in seq:
        ins = prog[p]
        if ins.kind == 'P': continue
        dist = add.get(p, 0); needmax = 0
        d = 0
        for (h, w) in reversed(hist):
            if d >= 10: break
            if h is not None:
                nd = hazard_need(h, ins) - d
                needmax = max(needmax, nd)
            d += w
        if needmax > dist: add[p] = needmax
        if add.get(p, 0): hist.append((None, add[p]))
        hist.append((ins, int(ins.ops[0]) + 1 if ins.op == 's_nop' else 1))
        hist = hist[-12:]
    out = []
    for p, ins in enumerate(prog):
        if add.get(p, 0): out.append(I('s_nop', add[p] - 1, note='pad'))
        out.append(ins)
    if verbose: print("; hazard pads:", len(add), "states", sum(add.values()))
    return out

def finish(prog, limits={'v': 256, 'a': 256}, verbose=True):
    peak = allocate(prog, limits, verbose)
    prog = insert_waits(prog)
    prog = pad_hazards(prog, verbose)
    lines = []
    for ins in prog:
        if ins.op == 'LABEL': lines.append(ins.name + ":")
        elif ins.kind == 'P': continue
        else: lines.append(ins.text())
    return lines, peak, prog

class Weave:
    def __init__(s, cap=2):
        s.m = []; s.fixed = {}; s.queues = []; s.cap = cap; s.capov = {}; s.pre = {}
    def capat(s, g):
        for (a, b, c) in getattr(s, 'capr', []):
            if a <= g < b: return c
        return s.cap
    def mfma(s, ins): s.m.append(ins); return len(s.m) - 1
    def at(s, g, *ins):
        for i in ins:
            s.fixed.setdefault(g, []).append(i); i.gap = g
    def reserve(s, g, n=1): s.capov[g] = s.capov.get(g, 0) + n
    def queue(s, items, prio=0, name=''):
        s.queues.append([prio, list(items), name])
    def build(s, verbose=True):
        out = []
        qs = sorted(s.queues, key=lambda q: -q[0])
        n = len(s.m); over = 0; load = []
        lastx = [-99]
        isx = lambda it: getattr(it, 'kind', '') == 'X'
        def ok(it, g):
            if getattr(it, 'ready', -1) > g: return False
            if isx(it) and g - lastx[0] < getattr(s, 'vgap', 0): return False
            for (d, k) in getattr(it, 'deps', []):
                if d.gap is None or d.gap + k > g: return False
            return True
        for g in range(-1, n):
            if g >= 0: out.append(s.m[g]); s.m[g].gap = g
            fx = s.fixed.get(g, [])
            c = s.capat(g) - s.capov.get(g, 0) - sum(i.cost for i in fx)
            if g < 0: c = 0
            mine = []
            for q in qs:
                lastdead = -1
                for k, it in enumerate(q[1]):
                    if getattr(it, 'dead', 1 << 30) <= g: lastdead = k
                for _ in range(lastdead + 1):
                    it = q[1].pop(0)
                    assert getattr(it, 'ready', -1) <= g and all(d.gap is not None for d, _ in getattr(it, 'deps', [])), ("deadline before ready", q[2], g, it.op)
                    it.gap = g; mine.append(it); c -= it.cost
                    if isx(it): lastx[0] = g
            prog = True
            while prog:
                prog = False
                for q in qs:
                    if not (q[1] and ok(q[1][0], g)): continue
                    it = q[1][0]
                    if not hasattr(it, 'seen'): it.seen = g
                    if min(it.cost, s.cap) <= c or (c >= 1 and g - it.seen >= getattr(it, 'soft', 99)):
                        it = q[1].pop(0); it.gap = g; mine.append(it); c -= it.cost; prog = True
                        if isx(it): lastx[0] = g
                        break
            out += [i for i in fx if not getattr(i, 'last', False)] + mine + [i for i in fx if getattr(i, 'last', False)]
            if c < 0 and g >= 0: over += -c
            load.append(s.cap - c)
        rest = []
        for q in qs: rest += q[1]
        for it in rest: it.gap = n
        if verbose: print(f"; weave: {n} mfma, overflow {over}, leftover {len(rest)}")
        s.load = load
        s.nrest = len(flat(rest))
        return flat(out + rest)
```

```python
from asmlib import *
NAME = "recurrent_scan__ssm_conv_s5__glu_gated_bilinear__prompt"
XN_OFF = 0
AG_OFF = 0x280000
HF_OFF = 0x300000
PF_OFF = 0x800000
ST_OFF = 0x2D00000
WS_BYTES = ST_OFF + (1 << 20)
KA = dict(x=0, lre=8, lim=16, bre=24, bim=32, cre=40, cim=48, ldt=56, dsk=64, wg=80, wu=88, wd=96, out=104, dbg=112, ws=120)
MF = 'v_mfma_f32_16x16x32_bf16'

class SG:
    def __init__(s, start): s.n = start; s.m = {}; s.fl = []
    def free(s, *names):
        for nm in names:
            b, k = s.m.pop(nm); s.fl += list(range(b, b + k))
    def __call__(s, name, n=1):
        if name not in s.m and n == 1 and s.fl:
            s.m[name] = (s.fl.pop(0), 1)
        if name not in s.m:
            al = 1 if n == 1 else (2 if n == 2 else 4)
            s.n = (s.n + al - 1) // al * al
            s.m[name] = (s.n, n); s.n += n
            assert s.n <= 100, "out of sgprs"
        b, k = s.m[name]
        return f"s{b}" if k == 1 else f"s[{b}:{b+k-1}]"
    def sub(s, name, i, n=1):
        b, k = s.m[name]
        return f"s{b+i}" if n == 1 else f"s[{b+i}:{b+i+n-1}]"

class P(list):
    def __call__(s, op, *ops, **k):
        i = I(op, *ops, **k); s.append(i); return i
    def v(s, op, *ops, name=None, **k):
        d = V(1, name); s.append(I(op, d, *ops, **k)); return d

def srd_tail(p, sg, name, nbytes):
    p('s_mov_b32', sg.sub(name, 2), nbytes)
    p('s_mov_b32', sg.sub(name, 3), 0x20000)

def kernel_text(label, lines):
    return f".globl {label}\n.p2align 8\n.type {label},@function\n{label}:\n" + "\n".join(lines) + "\n"

def kernel_desc(label, nv, na):
    acc = max(4, (nv + 3) // 4 * 4)
    tot = acc + na if na else nv
    return (f".p2align 6\n.amdhsa_kernel {label}\n  .amdhsa_next_free_vgpr {max(tot, acc)}\n  .amdhsa_next_free_sgpr 102\n"
            f"  .amdhsa_accum_offset {acc}\n  .amdhsa_group_segment_fixed_size 0\n  .amdhsa_kernarg_size 128\n"
            f"  .amdhsa_user_sgpr_count 2\n  .amdhsa_user_sgpr_kernarg_segment_ptr 1\n  .amdhsa_system_sgpr_workgroup_id_x 1\n.end_amdhsa_kernel\n")

class ST:
    def __init__(s, on, kern, phys): s.on = on; s.kern = kern; s.v = VR('v', 1, 'st', phys=phys); s.phys = phys
    def t(s, k): return [I('s_memtime', 's[98:99]', cost=0), I('v_writelane_b32', s.v, 's98', k, cost=0)] if s.on else []
    def rt(s, k): return [I('s_memrealtime', 's[100:101]', cost=0), I('v_writelane_b32', s.v, 's100', k, cost=0)] if s.on else []
    def at(s, W, g, k, lag=14):
        if s.on:
            a = s.t(k); a[0].free = a[1].free = True; a[0].kind = 'S'; W.at(g, a[0]); W.at(g + lag, a[1])
    def flush(s, p, sS, v0):
        if not s.on: return
        p.extend(s.t(62)); p.extend(s.rt(63))
        a = p.v('v_lshlrev_b32', 2, v0)
        p('s_lshl_b32', 's98', 's2', 10); p('s_add_u32', 's98', 's98', ST_OFF + s.kern * 262144)
        p('buffer_store_dword', s.v, a, sS, 's98', mods='offen')
    def peak(s, pk):
        if s.on: pk['v'] = max(pk['v'], s.phys + 1)
        return pk
```

```python
from asmlib import *
NBLK = 36

class Unit:
    def __init__(s, name, nblk, dma=None, brk=None):
        s.name, s.nblk, s.dma, s.brk = name, nblk, dma, brk
        s.addr = None; s.epoch = None; s.fu = None; s.done = -9; s.at = None; s.pre = False; s.early = -9
class Frag:
    def __init__(s, dst, unit, n, fn, grp, rate=1, lat=6):
        s.dst, s.unit, s.n, s.fn, s.grp, s.rate, s.lat = dst, unit, n, fn, grp, rate, lat
        s.fu = None
class M:
    def __init__(s, ins, *frags, tiny=False): s.ins, s.frags, s.tiny = ins, frags, tiny

class Sched:
    def __init__(s, cap=2):
        s.W = Weave(cap); s.frags = []; s.units = []; s.tiny = set()
    def feed(s, ml):
        for m in ml:
            g = s.W.mfma(m.ins); m.ins.gap = g
            if m.tiny: s.tiny.add(g); s.W.reserve(g, 2)
            for f in m.frags:
                if f.fu is None:
                    f.fu = g; s.frags.append(f)
                    if f.unit.fu is None: f.unit.fu = g; s.units.append(f.unit)
    def plan(s, target, maxblk):
        e = -1; start = 0; blk = 0
        for u in s.units:
            new = e < 0 or u.brk is True or (u.brk is None and (u.fu - start >= target(u.fu) or blk + u.nblk > maxblk(u.fu)))
            if new: e += 1; start = u.fu; blk = 0
            u.epoch = e; blk += u.nblk
        s.ne = e + 1
        gi = -1; prev = object(); s.gfu = []
        for f in s.frags:
            if f.grp != prev: gi += 1; prev = f.grp; s.gfu.append(f.fu)
            f.gi = gi
        first = {}
        for k, f in enumerate(s.frags): first.setdefault(f.unit.epoch, k)
        used = {}; nrd = {}
        for g in s.gfu: used[g - 1] = used.get(g - 1, 0) + 1
        s.bar = [None] * s.ne
        nxt = 1 << 30
        for k in range(len(s.frags) - 1, -1, -1):
            f = s.frags[k]; f.pos = [None] * f.n
            for r in range(f.n - 1, -1, -1):
                p = min(s.gfu[f.gi] - 1 - f.lat, nxt)
                while p >= 0 and (p in s.tiny or nrd.get(p, 0) >= f.rate or used.get(p, 0) >= s.W.capat(p)): p -= 1
                p = max(p, -1)
                f.pos[r] = p; nxt = p; nrd[p] = nrd.get(p, 0) + 1; used[p] = used.get(p, 0) + 1
            f.unit.done = max(f.unit.done, s.gfu[f.gi] - 1)
            if first[f.unit.epoch] == k:
                b = nxt - 1
                while b >= 0 and (b in s.tiny or used.get(b, 0) > 0) and nxt - b < 3: b -= 1
                b = max(b, -2)
                s.bar[f.unit.epoch] = b; used[b] = 9; nxt = max(b - 1, -1)
        assert all(s.bar[i] < s.bar[i + 1] for i in range(s.ne - 1)), s.bar
        assert s.bar[0] == -2 and s.bar[1] >= 0, s.bar[:3]
        s.xvm = [[] for _ in range(s.ne)]; s.xlg = [[] for _ in range(s.ne)]
    def _alloc(s, u):
        al = 4 if u.nblk >= 3 else u.nblk
        c = [a for a in range(0, NBLK - u.nblk + 1, al) if all(s.free[a:a + u.nblk])]
        if not c: return False
        c.sort(key=lambda a: (sum(s.free[a & ~3:(a & ~3) + 4]), a))
        a = c[0]
        for k in range(u.nblk): s.free[a + k] = False
        u.addr = a * 1024; s.live.append(u); return True
    def allocate(s, p0max, spacing):
        s.free = [True] * NBLK; s.live = []
        pend = [u for u in s.units if u.dma]; ds = [u for u in s.units if not u.dma]
        for u in ds:
            if u.pre: assert s._alloc(u); u.at = -1
        s.p0 = []
        while pend and p0max >= pend[0].nblk and s._alloc(pend[0]):
            u = pend.pop(0); u.at = -1; s.p0.append(u); p0max -= u.nblk
        for e in range(s.ne):
            for u in list(s.live):
                if u.done < s.bar[e] and u.epoch < e:
                    s.live.remove(u)
                    for k in range(u.nblk): s.free[u.addr // 1024 + k] = True
            for u in ds:
                if u.epoch == e + 1 and not u.pre: assert s._alloc(u), ("no room for", u.name); u.at = e
            room = ((s.bar[e + 1] if e + 1 < s.ne else len(s.W.m)) - max(s.bar[e], 0)) // spacing(max(s.bar[e], 0))
            while pend and room > 0 and pend[0].early <= s.bar[e] and s._alloc(pend[0]):
                u = pend.pop(0); u.at = e; room -= u.nblk
                assert u.epoch > e, ("late unit", u.name, u.epoch, e)
        assert not pend, [u.name for u in pend]
    def barafter(s, g):
        for e in range(s.ne):
            if s.bar[e] >= g: return e
        raise RuntimeError(f"no barrier after {g}")
    def emit(s, spacing, soft, minlat=20):
        W = s.W
        for k, f in enumerate(s.frags):
            r = f.fn(f.unit.addr); assert len(r) == f.n
            for x, p in zip(r, f.pos): x.tag = f'g{f.gi}'; W.at(p, x)
        for gi, g in enumerate(s.gfu):
            w = WAIT(lgkm=f'g{gi}'); w.last = True; W.at(g - 1, w)
        s.bar0 = None
        for e in range(s.ne):
            w = WAIT(vm=[f'E{e}'] + s.xvm[e], lgkm=s.xlg[e] or None); b = I('s_barrier'); w.last = b.last = True
            if e == 0: s.bar0 = [w, b]
            else: W.at(s.bar[e], w, b)
        q = []; prev = None; s.dmas = []
        for u in s.units:
            if not u.dma or u.at < 0: continue
            its = u.dma(u.addr, f'E{u.epoch}'); sal = None
            for x in its:
                x.ready = s.bar[u.at] + 1
                if x.kind == 'X':
                    x.deps = ([(prev, spacing(x.ready))] if prev else []) + ([(sal, 1)] if sal else [])
                    x.dead = max(s.bar[u.epoch] - minlat, x.ready); prev = x; sal = None; s.dmas.append((x, u)); x.soft = soft(x.ready)
                else: sal = x
            q += its
        W.queue(q, prio=50, name='dma')
    def report(s):
        sl = {}
        for x, u in s.dmas: sl[u.epoch] = min(sl.get(u.epoch, 1 << 30), s.bar[u.epoch] - x.gap)
        print("; bars", s.bar)
        print("; dma slack per epoch", [sl.get(e) for e in range(s.ne)])
        ld = s.W.load[1:]
        seg = [sum(max(0, x - 2) for x in ld[a:b]) for a, b in zip([0] + s.bar[1:], s.bar[1:] + [len(ld)])]
        print("; overflow per epoch", seg)
        fr = [sum(max(0, 2 - x) for x in ld[a:b]) for a, b in zip([0] + s.bar[1:], s.bar[1:] + [len(ld)])]
        print("; free per epoch", fr)
```

```python
from common import *
from sched import *
import math
QS = 40960; MISC = 36864
CST = MISC; RGO = MISC + 2560; STR = MISC + 3584; STM = QS + MISC + 3584
AG_OFF = 0; FL_OFF = 0x50000; HF_OFF = 0x100000; PX_OFF = 0x600000; H_OFF = 0x1B00000
SRC = 21504; FIN = 4 * SRC
TINY = 'v_mfma_f32_4x4x4_16b_bf16'
DM = ' row_mask:0xf bank_mask:0xf'
DPP8 = 'row_ror:8' + DM
BIG = 0x7ff00000
LOG2E = math.log2(math.e)

def inter(lists):
    out = []
    for k in range(max(len(x) for x in lists)):
        for x in lists:
            if k < len(x): out.append(x[k])
    return out

def gen_x(label, opt=None):
    o = dict(S=3, rot=0, stamp=False, p0max=24, xa=56, ep=64, sp=3, vgap=2, edge=3, lat=6, npf=2, aggap=90, aglat=90,
             pub1=250, chk1=60, lat1=70, pub2=200, chk2=60, cntlat=80, d0=40, d1=4, rc=20000, softA=1, soft=4)
    o.update(opt or {})
    p = P(); S = SG(36); v0 = VR('v', 1, 'tid', phys=0)
    st = ST(o['stamp'], 0, 255)
    p('s_cmp_ge_u32', 's2', 256); p('s_cbranch_scc1', 'L_end')
    p.extend(st.rt(0) + st.t(1))
    p('s_load_dwordx16', 's[4:19]', 's[0:1]', 0); p('s_load_dwordx16', 's[20:35]', 's[0:1]', 64)
    for n, b in zip('XBCOKWDG', range(4, 36, 4)): S.m[n] = (b, 4)
    sX, sB, sW, sD, sC, sS, sO, sK, sG, sI = [S(n, 4) for n in 'XBWDCSOKGI']
    for k in range(3): S(f'k{k}', 2)
    S.fl.append(3); S.m['Pl1'] = (0, 1); S.m['Pl2'] = (1, 1)
    for a, b in zip('t0 t1 t2 xb chr tk0 Bb Rb Rc hb u0 u1 u2 u3 Ca Cb Cc Hs fb'.split(), 'Hp0 Hp1 Hp2 Hp3 Pf0 Pf1 Pf2 Pf3 L8 L8h c1 c2 c3 c4 c5 kc k8 xc x8'.split()):
        S(a); S.m[b] = S.m[a]
    def sa(op, name, *a, q=None): (p if q is None else q)(op, S(name), *a); return S(name)
    p('s_getpc_b64', S.sub('I', 0, 2)); p.append(LABEL('L_pc')); p('s_mov_b32', S.sub('I', 2), 'L_fin-L_pc'); p('s_mov_b32', S.sub('I', 3), 0x20000)
    t = p.v('v_lshlrev_b32', 7, v0); pfd = V(4, 'pfd')
    for k in range(o['npf']):
        if k: t = p.v('v_add_u32', 32768, t)
        p('buffer_load_dword', pfd[k], t, sI, 0, mods='offen')
    wv = p.v('v_lshrrev_b32', 6, v0); l = p.v('v_and_b32', 63, v0, name='lane')
    p('v_readfirstlane_b32', S('w'), wv); w = S('w')
    jg = sa('s_and_b32', 'jg', 's2', 3); jq = sa('s_bfe_u32', 'jq', 's2', (2 << 16) | 3)
    sa('s_bfe_u32', 't0', 's2', (1 << 16) | 2); sa('s_lshr_b32', 'mt', 's2', 5); mt = sa('s_lshl3_add_u32', 'mt', S('t0'), S('mt'))
    fw = sa('s_and_b32', 'fw', w, 1); tw = sa('s_lshr_b32', 'tw', w, 1)
    j = sa('s_lshl2_add_u32', 'j', jg, jq); je = sa('s_and_b32', 'je', jq, 1); Tr = sa('s_lshr_b32', 'Tr', jq, 1)
    sl = p.v('v_and_b32', 7, l); hi = p.v('v_lshrrev_b32', 5, l); q = p.v('v_lshrrev_b32', 4, l, name='q')
    r83 = p.v('v_bfe_u32', l, 3, 2)
    cx = p.v('v_xor_b32', sl, q); cx = p.v('v_lshlrev_b32', 4, cx, name='cx')
    tokl = p.v('v_lshl_add_u32', hi, 4, r83, name='tokl')
    sa('s_lshl_b32', 't0', tw, 6); sa('s_lshl3_add_u32', 'tk0', fw, S('t0'))
    sa('s_lshl_b32', 't0', mt, 7); sa('s_add_u32', 't0', S('t0'), S('tk0')); xb = sa('s_mul_i32', 'xb', S('t0'), 1152)
    t = p.v('v_mul_u32_u24', 1152, tokl); vX0 = p.v('v_add_u32', t, cx)
    vX = []
    if not o['rot']:
        vX1 = p.v('v_xor_b32', 64, vX0); vX1 = p.v('v_add_u32', 36864, vX1)
        vX = [vX0, vX1, p.v('v_add_u32', 4608, vX0), p.v('v_add_u32', 4608, vX1)]
    else:
        sa('s_lshl_b32', 't0', je, 6); sa('s_mul_i32', 't1', je, 36864); sa('s_mul_i32', 't2', Tr, 4608)
        a = p.v('v_xor_b32', S('t0'), vX0); b = p.v('v_xor_b32', 64, a)
        a = p.v('v_add_u32', S('t1'), a); sa('s_sub_u32', 't1', 36864, S('t1')); b = p.v('v_add_u32', S('t1'), b)
        vX = [p.v('v_add_u32', S('t2'), a), p.v('v_add_u32', S('t2'), b)]
        sa('s_sub_u32', 't2', 4608, S('t2')); vX += [p.v('v_add_u32', S('t2'), a), p.v('v_add_u32', S('t2'), b)]
    sG_ = sa('s_lshl1_add_u32', 'Gn', j, fw)
    sa('s_lshl2_add_u32', 't0', jg, Tr); sa('s_lshl_b32', 't0', S('t0'), 2); chr_ = sa('s_add_u32', 'chr', S('t0'), 512)
    t = p.v('v_and_b32', 4, l); cho = p.v('v_add_u32', t, sl)
    sa('s_lshl_b32', 't0', sG_, 4); t = p.v('v_lshl_add_u32', q, 2, S('t0'))
    t2 = p.v('v_mul_u32_u24', chr_, hi); t = p.v('v_max_u32', t, t2)
    vL = p.v('v_add_lshl_u32', t, cho, 1)
    p.append(WAIT(lgkm=0))
    p.extend(st.t(2))
    raw = [V(1) for _ in range(3)]
    for x, s_ in zip(raw, ('s[6:7]', 's[8:9]', 's[18:19]')): p('global_load_ushort', x, vL, s_)
    srd_tail(p, S, 'X', 2048 * 1152)
    xr = [[V(4, f'xr{g}_{s}') for s in range(9)] for g in range(4)]
    for g in range(4):
        for s in range(9): p('buffer_load_dwordx4', xr[g][s], vX[g], sX, xb, mods=f'offen offset:{128*s}')
    p.extend(st.t(3))
    p('s_cmp_eq_u32', fw, 0)
    p('s_cselect_b64', S.sub('B', 0, 2), 's[10:11]', 's[12:13]'); p('s_cselect_b64', S.sub('C', 0, 2), 's[14:15]', 's[16:17]')
    p('s_cselect_b64', S.sub('W', 0, 2), 's[24:25]', 's[26:27]')
    p('s_mov_b64', S.sub('O', 0, 2), 's[30:31]'); p('s_mov_b64', S.sub('S', 0, 2), 's[34:35]')
    for n, sz in (('B', 576 * 1152), ('W', 576 * 9216), ('S', WS_BYTES), ('C', 576 * 1152), ('K', 1152), ('D', 4608 * 1152), ('O', 2048 * 2304), ('G', 256)):
        srd_tail(p, S, n, sz)
    row = p.v('v_bfe_u32', l, 2, 3, name='row'); r2 = p.v('v_bfe_u32', l, 4, 1)
    b1 = p.v('v_bfe_u32', l, 1, 1); pp = p.v('v_xor_b32', b1, r2); b0 = p.v('v_and_b32', 1, l)
    c32 = p.v('v_lshlrev_b32', 5, pp); c32 = p.v('v_lshl_add_u32', b0, 4, c32)
    c64 = p.v('v_lshl_add_u32', hi, 6, c32, name='c64')
    rm = p.v('v_lshl_add_u32', r2, 2, row); sa('s_lshl_b32', 't0', tw, 2); rm = p.v('v_add_u32', S('t0'), rm)
    t = p.v('v_lshl_add_u32', hi, 4, rm); t = p.v('v_mul_u32_u24', 9216, t); vH0 = p.v('v_add_u32', t, c32, name='vH0')
    vH = [vH0, p.v('v_add_u32', 32 * 9216 - 1024, vH0, name='vH1')]
    t = p.v('v_lshl_add_u32', hi, 3, r83); t = p.v('v_mul_u32_u24', 1152, t)
    sa('s_lshl_b32', 't0', fw, 6); vB0 = p.v('v_xad_u32', cx, S('t0'), t, name='vB0')
    vB = [vB0, p.v('v_add_u32', 4608 - 1024, vB0, name='vB1')]
    sQ = sa('s_mul_i32', 'Q', w, QS)
    sa('s_mul_i32', 'fb', j, 576); sa('s_add_u32', 'hb', S('fb'), 512)
    sa('s_lshl_b32', 't0', je, 6); fb = sa('s_add_u32', 'fb', S('fb'), S('t0'))
    sa('s_lshl_b32', 't0', je, 9); hb = sa('s_sub_u32', 'hb', S('hb'), S('t0'))
    sa('s_lshl1_add_u32', 't0', j, tw); sBb = sa('s_mul_i32', 'Bb', S('t0'), 18432)
    sa('s_mul_i32', 'Rc', chr_, 1152); sa('s_lshl_b32', 't1', tw, 7); sRb = sa('s_add_u32', 'Rb', S('Rc'), S('t1'))
    def dma(v, srd, so, off, tag): return I('buffer_load_dwordx4', v, srd, so, mods=f'offen offset:{off} lds', tag=tag, cost=2)
    def mkdma(vs, srd, base, add):
        def f(addr, tag):
            so = S('T')
            return [I('s_add_u32', 'm0', sQ, addr), I('s_add_u32', so, S(base), add)] + [dma(v, srd, so, 1024 * b, tag) for b, v in enumerate(vs)]
        return f
    vW = [V(1, f'vW{b}') for b in range(4)]; vC = [V(1, f'vC{b}') for b in range(4)]; vD = [V(1, f'vD{b}') for b in range(4)]
    vT = [[V(1, f'vT{a}{k}') for k in range(3)] for a in range(2)]; vU = [[V(1, f'vU{a}{k}') for k in range(3)] for a in range(2)]
    vTh = [V(1, f'vTh{k}') for k in range(3)]
    vXr = [[V(1, f'vXr{a}{k}') for k in range(2)] for a in range(2)]; vXm = [V(1, f'vXm{a}') for a in range(2)]
    vBq = [[V(1, f'vBq{a}{k}') for k in range(2)] for a in range(2)]; vBr = [V(1, f'vBr{a}') for a in range(2)]
    vCr = [V(1, f'vCr{c}') for c in range(5)]
    def trd(bases, qa, qb, extra):
        def mk(dst):
            def f(addr):
                r = []
                for h, qq in enumerate((qa, qb)):
                    A_ = qq * QS + addr + extra
                    r.append(I('ds_read_b64_tr_b16', dst[2*h:2*h+2], bases[A_ >> 16], mods=f'offset:{A_ & 0xffff}'))
                return r
            return f
        return mk
    def tfrag(unit, bases, sel, extra, grp, rate=1, lat=None):
        d = A(4, 'f' + unit.name); return Frag(d, unit, 2, trd(bases, sel, sel + 2, extra)(d), grp, rate, lat or o['lat'])
    def bfrag(d, unit, base, extra, grp, lat=None):
        return Frag(d, unit, 1, lambda addr: [I('ds_read_b128', d, base, mods=f'offset:{addr + extra}')], grp, 1, lat or o['lat'])
    sc = Sched(); W = sc.W; W.vgap = o['vgap']
    NS = o['S']
    Xf = [[(A if 4 * k + tt < o['xa'] else V)(4, f'X{k}_{tt}') for tt in range(4)] for k in range(18)]
    uX = [Unit(f'X{s}', 4, None, True) for s in range(9)]
    for s in range(NS): uX[s].pre = True
    uB = [Unit(f'B{s}', 2, mkdma(vB, sB, 'Bb', 128 * s), False) for s in range(9)]
    uH = [Unit(f'H{s}', 2, mkdma(vH, sW, 'hb', 64 * 9216 * s), False) for s in range(9)]
    uR = [Unit(f'R{n}', 1, mkdma(vB[:1], sB, 'Rb' if n < 4 else 'Rc', 256 * n), False) for n in range(5)]
    accb = [[V(4, f'b{u}_{tt}') for tt in range(4)] for u in range(2)]; accm = V(4, 'bm')
    acch = [[V(4, f'h{m}_{tt}') for tt in range(4)] for m in range(2)]
    idn = V(2, 'idn'); Cm = [V(4, f'Cm{g}') for g in range(4)]
    def center(g, s):
        T = [V(4, 'T0'), V(4, 'T1')]
        ti = [I(TINY, T[h], idn, xr[g][s][2*h:2*h+2], Cm[g]) for h in range(2)]
        cv = [I('v_cvt_pk_bf16_f32', xr[g][s][e], T[e >> 1][2*(e&1)], T[e >> 1][2*(e&1)+1]) for e in range(4)]
        return ti, cv
    vXw = [V(1, f'vXw{g}') for g in range(4 if o['rot'] else 1)]
    def xwrite(g, s):
        return I('ds_write_b128', vXw[g] if o['rot'] else vXw[0], xr[g][s], mods=f'offset:{uX[s].addr + (0 if o["rot"] else 1024 * g)}', cost=2, tag=f'xw{s}')
    ctr = {}
    for s in range(9):
        ml = []
        for kp in range(2):
            k = 2 * s + kp; z = lambda a: 0 if k == 0 else a
            fx = [bfrag(Xf[k][tt], uX[s], vXr[kp][tt >> 1], (tt & 1) * 2048, ('a', k)) for tt in range(4)]
            fbs = [bfrag(A(4, 'fb'), uB[s], vBr[kp], u * 1024, ('a', k)) for u in range(2)]
            for u in range(2):
                for tt in range(4): ml.append(M(I(MF, accb[u][tt], Xf[k][tt], fbs[u].dst, z(accb[u][tt])), fx[tt], fbs[u]))
            fm = bfrag(A(4, 'fxm'), uX[s], vXm[kp], 0, ('b', k)); fr = bfrag(A(4, 'fbm'), uR[s >> 1], vBq[kp][s & 1], 0, ('b', k))
            ml.append(M(I(MF, accm, fm.dst, fr.dst, z(accm)), fm, fr))
            for m in range(2):
                f = tfrag(uH[s], vTh, m, kp * 1024, ('b', k))
                for tt in range(4): ml.append(M(I(MF, acch[m][tt], f.dst, Xf[k][tt], z(acch[m][tt])), f))
        if NS <= s + 2 < 9:
            for g in range(3, -1, -1):
                ti, cv = center(g, s + 2); ctr[(g, s + 2)] = (ti, cv)
                ml[5 + 8 * g:5 + 8 * g] = [M(x, tiny=True) for x in ti]
        sc.feed(ml)
    gA = len(W.m)
    E = o['edge']
    order = [(0, k) for k in range(E)] + [(1, k) for k in range(E)] + [(t, k) for k in range(E, 18 - E) for t in range(2)] + \
            [(0, k) for k in range(18 - E, 18)] + [(1, k) for k in range(18 - E, 18)]
    acc1 = []; gI = []; last1 = {}; first1 = {}
    for it in range(4):
        gI.append(len(W.m))
        uW = [Unit(f'W{it}_{s}', 4, mkdma(vW, sW, 'fb', 128 * it + 64 * 9216 * s), True if (it, s) == (0, 0) else None) for s in range(9)]
        ac = [[[V(4, f'g{it}{m}{t}{tt}') for tt in range(4)] for t in range(2)] for m in range(2)]; acc1.append(ac)
        for n, (t, k) in enumerate(order):
            ml = []
            for m in range(2):
                f = tfrag(uW[k >> 1], vT[t], m, (k & 1) * 2048, ('w', it, n >> 1))
                for tt in range(4): ml.append(M(I(MF, ac[m][t][tt], f.dst, Xf[k][tt], 0 if k == 0 else ac[m][t][tt]), f))
            if k == 0: first1[(it, t)] = len(W.m)
            sc.feed(ml)
            if k == 17: last1[(it, t)] = len(W.m) - 1
    gC = len(W.m)
    hq = [[A(4, f'hq{k}_{t}') for t in range(2)] for k in range(9)]
    uC = [[Unit(f'C{g}{L}', 4 if g < 2 else 1, mkdma(vC if g < 2 else vC[:1], sC, 'Cc' if g == 2 else 'Ca',
                (4 * 18432 if g == 1 else 0) + 128 * L), (True if L == 0 and g < 2 else False)) for L in range(2)] for g in range(3)]
    vCl = [V(1, f'vCl{b}') for b in range(3)]; vE = [V(1, f'vE{b}') for b in range(2)]
    uCl = Unit('Cl', 3, mkdma(vCl, sC, 'Cb', 0), False)
    accs = [[V(4, f's{t}_{a}') for a in range(2)] for t in range(9)]; lastS = {}
    for t in range(9):
        ml = []
        for k in range(9):
            if k < 8: f = bfrag(A(4, 'fc'), uC[t >> 2][k >> 2], vCr[k & 3], (t & 3) * 1024, ('c', t, k // 3))
            else: f = bfrag(A(4, 'fc'), uCl, vCr[4], t * 256, ('c', t, k // 3))
            for a in range(2): ml.append(M(I(MF, accs[t][a], f.dst, hq[k][a], 0 if k == 0 else accs[t][a]), f))
        sc.feed(ml); lastS[t] = len(W.m) - 1
    g2 = len(W.m)
    Hh = [V(8, f'Hh{x}') for x in range(4)]
    Hq = [[[A(4, f'Hq{x}{kl}{a}') for a in range(2)] for kl in range(8)] + [[Hh[x][0:4], Hh[x][4:8]]] for x in range(4)]
    accd = [[V(4, f'd{t}_{a}') for a in range(2)] for t in range(12)]; seen = set(); lastD = {}; useH = {}
    uD = [[Unit(f'D{x}{it}', 4, mkdma(vD, sD, f'Pf{x}', it * 64 * 1152)) for it in range(4)] + [Unit(f'D{x}h', 2, mkdma(vD[:2], sD, f'Ph{x}', 0))] for x in range(4)]
    uL = [Unit(f'L{it}', 2, mkdma(vD[:2], sD, 'L8', it * 64 * 1152)) for it in range(4)] + [Unit('Lh', 2, mkdma(vD[:2], sD, 'L8h', 0))]
    uD[0][4].brk = True
    uE = [[Unit(f'E{x}{L}', 4, mkdma(vD[:2] + vE, sD, f'Pl{x}', 128 * 1152 + 128 * L), x == 1) for L in range(2)] for x in range(4)]
    gcnt = [0]
    def dstep(x, kl, t):
        it, kk = kl >> 1, kl & 1
        if x and it in (2, 3): f = tfrag(uE[x][t >> 2], vU[t & 1], kk, (it - 2) * 2048 + ((t >> 1) & 1) * 512, ('d', gcnt[0] >> 2), 2)
        elif t < 8: f = tfrag(uD[x][it], vU[t & 1], t >> 2, kk * 2048 + ((t >> 1) & 1) * 512, ('d', gcnt[0] >> 2), 2)
        else: f = tfrag(uL[it], vU[t & 1], kk, ((t >> 1) & 1) * 512, ('d', gcnt[0] >> 2), 2)
        gcnt[0] += 1
        useH.setdefault((x, kl), len(W.m))
        sc.feed([M(I(MF, accd[t][a], f.dst, Hq[x][kl][a], accd[t][a] if t in seen else 0), f) for a in range(2)])
        seen.add(t); lastD[t] = len(W.m) - 1
    seqH = [(x, 8) for x in range(4)] + [(x, 2 * it + kk) for it in range(2) for x in range(4) for kk in range(2)] + [(0, kl) for kl in range(4, 8)]
    for x, kl in seqH:
        for t in range(12 if x == 0 else 8): dstep(x, kl, t)
    g3 = len(W.m)
    lateH = [(x, kl) for x in (1, 2, 3) for kl in range(4, 8)]
    for t in range(8):
        for x, kl in lateH: dstep(x, kl, t)
    gE = len(W.m)
    gSetC = gI[3] + 40; gSetD = gI[3] + 170
    for u in sum(uC, []) + [uCl]: u.early = gSetC
    for u in sum(uD, []) + uL: u.early = gSetD
    sc.plan(lambda g: o['ep'], lambda g: 99)
    spacing = lambda g: o['sp']
    sc.allocate(o['p0max'], spacing)
    bar = sc.bar
    col = p.v('v_and_b32', 15, l, name='col'); l16 = p.v('v_lshlrev_b32', 4, l, name='l16')
    vAg = p.v('v_lshlrev_b32', 8, col, name='vAg'); big = p.v('v_mov_b32', BIG)
    p('v_cmp_gt_u32', 'vcc', 16, l); vAs = p.v('v_cndmask_b32', big, vAg, 'vcc', name='vAs')
    p('v_cmp_gt_u32', 'vcc', 16, v0); vAm = p.v('v_cndmask_b32', big, vAg, 'vcc', name='vAm')
    p('v_cmp_ne_u32', 'vcc', 0, v0); vM0 = p.v('v_cndmask_b32', 0, big, 'vcc', name='vM0')
    sa('s_lshl1_add_u32', 't0', mt, tw); sa('s_lshl_b32', 't1', sG_, 13); sa('s_lshl2_add_u32', 'a0', S('t0'), S('t1')); sa('s_add_u32', 'a1', S('a0'), 4096)
    sa('s_lshl1_add_u32', 't0', jg, Tr); sa('s_add_u32', 't0', S('t0'), 64); sa('s_lshl_b32', 't1', S('t0'), 12)
    sa('s_lshl1_add_u32', 't0', mt, je); sa('s_lshl2_add_u32', 'a2', S('t0'), S('t1'))
    assert AG_OFF == 0
    sa('s_lshl_b32', 't0', mt, 7); sFr = sa('s_add_u32', 'Fr', S('t0'), FL_OFF); sFl = sa('s_lshl2_add_u32', 'Fl', j, sFr)
    m1 = p.v('v_mov_b32', -1); zz = V(4)
    for e in range(4): p('v_mov_b32', zz[e], 0)
    sa('s_mul_i32', 't0', 's2', 36); t = p.v('v_add_u32', S('t0'), v0); t2 = p.v('v_and_b32', -8, t); t = p.v('v_add_lshl_u32', t, t2, 4)
    p('v_cmp_gt_u32', 'vcc', 36, v0); t = p.v('v_cndmask_b32', big, t, 'vcc')
    for u in range(3): p('buffer_store_dword', m1, vAm if u == 2 else vAs, sS, S(f'a{u}'), mods='offen offset:128 sc1', tag='init')
    p('buffer_store_dwordx4', zz, t, sS, 0, mods='offen sc1', tag='init')
    p('buffer_store_dword', zz[0], vM0, sS, sFl, mods='offen sc1', tag='init')
    t = p.v('v_mul_u32_u24', 9216, rm); p('v_add_u32', vW[0], t, c64)
    for b in (1, 2, 3): p('v_add_u32', vW[b], b * (16 * 9216 - 1024), vW[0])
    for u in sc.p0: p.extend(u.dma(u.addr, f'E{u.epoch}'))
    p.extend(st.t(4))
    t = p.v('v_lshlrev_b32', 6, row); l3 = p.v('v_and_b32', 3, l); t = p.v('v_lshl_add_u32', l3, 3, t); tp0 = p.v('v_lshl_add_u32', r2, 5, t)
    sa('s_lshl_b32', 'f9', fw, 9); t = p.v('v_lshl_add_u32', hi, 10, tp0); p('v_add_u32', vT[0][0], S('f9'), t); p('v_xor_b32', vT[1][0], 32, vT[0][0])
    sa('s_lshl_b32', 't0', fw, 5); t = p.v('v_lshl_add_u32', hi, 9, tp0); p('v_xor_b32', vTh[0], S('t0'), t)
    for r in (vT[0], vT[1], vTh):
        for k in (1, 2): p('v_add_u32', r[k], 65536 * k, r[0])
    ih = p.v('v_bfe_u32', l, 3, 1); i1 = p.v('v_bfe_u32', l, 1, 3); t = p.v('v_xor_b32', q, i1); t = p.v('v_lshlrev_b32', 4, t); L0 = p.v('v_lshl_add_u32', sl, 7, t)
    LX = p.v('v_lshl_add_u32', ih, 10, L0)
    sa('s_mul_i32', 't0', tw, 2 * QS); p('v_add_u32', vXr[0][0], S('t0'), LX); p('v_add_u32', vXr[0][1], QS, vXr[0][0])
    sa('s_lshl1_add_u32', 't0', je, tw); sa('s_mul_i32', 't0', S('t0'), QS); sa('s_lshl2_add_u32', 't0', S('f9'), S('t0')); p('v_add_u32', vXm[0], S('t0'), LX)
    t = p.v('v_mul_u32_u24', QS, ih); p('v_add_u32', vBq[0][0], t, L0); p('v_add_u32', vBq[0][1], 2 * QS, vBq[0][0])
    sa('s_mul_i32', 't0', fw, 2 * QS); p('v_add_u32', vBr[0], S('t0'), vBq[0][0])
    for a, b in ((vXr[1][0], vXr[0][0]), (vXr[1][1], vXr[0][1]), (vXm[1], vXm[0]), (vBq[1][0], vBq[0][0]), (vBq[1][1], vBq[0][1]), (vBr[1], vBr[0])): p('v_xor_b32', a, 64, b)
    vQ = p.v('v_add_u32', sQ, l16, name='vQ')
    if o['rot']:
        sa('s_lshl_b32', 't0', jq, 10); p('v_add_u32', vXw[0], S('t0'), vQ)
        for g in (1, 2, 3): p('v_xor_b32', vXw[g], g * 1024, vXw[0])
    else: vXw[0] = vQ
    t = p.v('v_lshlrev_b32', 4, b0); c_ = p.v('v_mov_b32', 0x3f80); one = p.v('v_lshlrev_b32', t, c_)
    p('v_cmp_eq_u32', 'vcc', 0, b1); p('v_cndmask_b32', idn[0], 0, one, 'vcc'); p('v_xor_b32', idn[1], idn[0], one)
    asum = V(4, 'asum'); t = p.v('v_bfe_u32', l, 2, 2); c_ = p.v('v_mov_b32', 0x3f803f80); p('v_cmp_eq_u32', 'vcc', t, q)
    for e in range(4): p('v_cndmask_b32', asum[e], 0, c_, 'vcc')
    p('v_cmp_ne_u32', S('k1', 2), 0, b0); p('v_cmp_ne_u32', S('k2', 2), 0, b1)
    sa('s_mov_b32', 'rc', o['rc'])
    p.append(KEEP(pfd))
    c = P()
    sgn = c.v('v_lshlrev_b32', 31, ih)
    vKw = c.v('v_lshl_add_u32', l, 3, sQ)
    lre, lim, ldt = [c.v('v_lshlrev_b32', 16, x) for x in raw]
    t = c.v('v_mul_f32', LOG2E, ldt); dt = c.v('v_exp_f32', t)
    den = c.v('v_mul_f32', lre, lre); c('v_fmac_f32', den, lim, lim); rd = c.v('v_rcp_f32', den)
    dt = c.v('v_cvt_pk_bf16_f32', dt, dt); dt = c.v('v_and_b32', 0xffff0000, dt)
    xr_ = c.v('v_mul_f32', dt, lre); xi = c.v('v_mul_f32', dt, lim)
    t = c.v('v_mul_f32', LOG2E, xr_); mag = c.v('v_exp_f32', t)
    t = c.v('v_mul_f32', 1 / (2 * math.pi), xi); t = c.v('v_fract_f32', t)
    cs = c.v('v_cos_f32', t); sn = c.v('v_sin_f32', t)
    rd = c.v('v_add_f32', rd, rd)
    k1 = V(2); c('v_mul_f32', k1[0], mag, cs); b = c.v('v_mul_f32', mag, sn)
    am = c.v('v_add_f32', -1.0, k1[0])
    cr = c.v('v_mul_f32', am, lre); c('v_fmac_f32', cr, b, lim)
    ci = c.v('v_mul_f32', b, lre); ci = c.v('v_fma_f32', Neg(am), lim, ci)
    k0 = V(2); cr = c.v('v_mul_f32', cr, rd); c('v_mul_f32_e64', k0[1], Neg(ci), rd); c('v_xor_b32', k0[0], sgn, cr)
    c('v_xor_b32', k1[1], sgn, b)
    CI = {'cf': 0, 'l1': 1, 'l16': 2, 'l64': 3, 'l512': 4}
    def kput(nm, r): c('ds_write_b64', vKw, r, mods=f'offset:{CST + 512 * CI[nm]}')
    kput('cf', k0); kput('l1', k1); cur = k1
    for n in range(1, 10):
        nx = V(2); a2 = c.v('v_mul_f32', cur[0], cur[0]); t = c.v('v_add_f32', cur[0], cur[0])
        c('v_fma_f32', nx[0], Neg(cur[1]), cur[1], a2); c('v_mul_f32', nx[1], t, cur[1]); cur = nx
        if n in (4, 6, 9): kput(f'l{1<<n}', cur)
    pend = list(c)
    sS_ = [V(4, f'sum{g}') for g in range(4)]; sQ_ = [V(4, f'sq{g}') for g in range(4)]; nmean = []; qsum = []
    def post(g):
        r = P(); a = sS_[g][0]
        for m in ('quad_perm:[1,0,3,2]', 'quad_perm:[2,3,0,1]', 'row_half_mirror'): a = r.v('v_add_f32_dpp', a, a, mods=m + DM)
        a = r.v('v_mul_f32', -1.0 / 576, a); nmean.append(a); t = r.v('v_cvt_pk_bf16_f32', a, a)
        for e in range(4): r('v_and_b32', Cm[g][e], 0xffff0000, t)
        r2_ = P(); b = r2_.v('v_mov_b32_dpp', sQ_[g][0], mods='quad_perm:[0,0,0,0]' + DM)
        for e in (1, 2, 3): b = r2_.v('v_add_f32_dpp', sQ_[g][e], b, mods=f'quad_perm:[{e},{e},{e},{e}]' + DM)
        b = r2_.v('v_add_f32_dpp', b, b, mods='row_half_mirror' + DM); qsum.append(b)
        out = inter([r, r2_]); prev = None
        for s in range(NS):
            ti, cv = center(g, s); out += ti
            if prev: out += prev
            prev = cv + [xwrite(g, s)]
        return out + prev
    for g in range(4):
        per = -(-len(pend) // 9)
        for s in range(9):
            x = xr[g][s]; f = pend[:per]; pend = pend[per:]
            p(TINY, sQ_[g], x[0:2], x[0:2], 0 if s == 0 else sQ_[g]); p(MF, sS_[g], asum, x, 0 if s == 0 else sS_[g])
            p.extend(f[:2]); p(TINY, sQ_[g], x[2:4], x[2:4], sQ_[g]); p.extend(f[2:])
        p.extend(st.t(5 + g))
        pend = post(g)
    p.extend(pend)
    sc.xvm[0].append('init'); sc.xlg[0].append(f'xw{NS-1}')
    def R(items, g):
        items[0].ready = g; return items
    def Dl(items, g):
        items[-1].dead = g; return items
    qc = []; qw = []
    for s in range(NS, 9):
        e = uX[s].epoch
        for g in range(4):
            ti, cv = ctr[(g, s)]; cv[0].deps = [(ti[1], 2)]; cv[-1].dead = ti[1].gap + 7; qc += cv
            x = xwrite(g, s); x.ready = bar[uX[s].at] + 1; x.deps = [(cv[-1], 0)]; x.dead = bar[e] - 9 + 2 * g; qw.append(x)
        sc.xlg[e].append(f'xw{s}')
    W.queue(qc, 45, 'ctr'); W.queue(qw, 46, 'xw')
    qe = P()
    sa('s_lshl1_add_u32', 'e0', mt, tw, q=qe); sa('s_mul_i32', 'e0', S('e0'), 288, q=qe); sa('s_mul_i32', 'e1', j, 9, q=qe); sa('s_add_u32', 'e0', S('e0'), S('e1'), q=qe)
    sa('s_lshl1_add_u32', 'e0', S('e0'), fw, q=qe); sa('s_lshl_b32', 'e0', S('e0'), 10, q=qe); sa('s_add_u32', 'e0', S('e0'), H_OFF + 16384, q=qe)
    sa('s_lshl1_add_u32', 'Hs', S('f9'), S('e0'), q=qe)
    sa('s_add_u32', 'e1', S('e0'), 144 * 2048, q=qe)
    qe[0].ready = gA - 60
    def epi(g, u, dst, ready):
        n0 = len(qe)
        for e in range(4): qe('v_mul_f32', g[e], g[e], u[e])
        for e in range(2): qe('v_cvt_pk_bf16_f32', dst[e], g[2 * e], g[2 * e + 1])
        qe[n0].ready = ready
    def hst(r, so, off, tag): return qe('buffer_store_dwordx4', r, l16, sS, so, mods=f'offen offset:{off} sc1', cost=2, tag=tag)
    for a in range(2):
        r = V(4, 'Hh')
        for k in range(2): epi(acch[0][2*a+k], acch[1][2*a+k], r[2*k:2*k+2], gA - 4 + 2*a + k + 3)
        hst(r, S(f'e{a}'), 0, 'H0')
    qe[-1].dead = first1[(0, 1)] + 8
    hlast = {}
    for it in range(4):
        Hf = [V(4, f'Hf{tt}') for tt in range(4)]; ac = acc1[it]
        sa('s_add_u32', 'e0', S('Hs'), it * 4096 - 16384, q=qe); sa('s_add_u32', 'e1', S('Hs'), it * 4096 - 16384 + 144 * 2048, q=qe)
        for t in range(2):
            for tt in range(4):
                epi(ac[0][t][tt], ac[1][t][tt], Hf[tt][2*t:2*t+2], last1[(it, t)] + tt)
                if it < 3: qe[-1].dead = first1[(it + 1, t)] + tt - 1 + o.get('eslack', 0)
                if t == 1: hlast[it] = hst(Hf[tt], S(f'e{tt >> 1}'), (tt & 1) * 1024, f'H{it}')
    def part(ac, so, off, ready, tag):
        r = V(4, 'pk'); n0 = len(qe)
        for e in range(4): qe('v_cvt_pk_bf16_f32', r[e], ac[e >> 1][2*(e&1)], ac[e >> 1][2*(e&1)+1])
        qe[n0].ready = ready + 3
        return hst(r, so, off, tag)
    for t in range(9):
        if t % 4 == 0: sa('s_add_u32', 'e0', S('Pb'), (8 + t) * 1024, q=qe)
        slast = part(accs[t], S('e0'), (t & 3) * 1024, lastS[t], 'sp')
    for u in range(4):
        sa('s_add_u32', 'e0', S('P8'), u * 4 * FIN, q=qe); part(accd[8 + u], S('e0'), 0, lastD[8 + u], 'dp')
    sa('s_add_u32', 'e0', S('Pb'), 4096, q=qe)
    dst_ = []
    for t in range(8): dst_.append(part(accd[t], S('Pb') if t < 4 else S('e0'), (t & 3) * 1024, lastD[t], 'dp'))
    W.queue(qe, 40, 'epi')
    qs = P()
    def sb(op, name, *a): return sa(op, name, *a, q=qs)
    sb('s_lshl2_add_u32', 'u0', mt, jq); sb('s_lshl2_add_u32', 'u1', S('u0'), w); sb('s_lshl2_add_u32', 'u1', S('u1'), jg); sb('s_mul_i32', 'u1', S('u1'), SRC); sb('s_add_u32', 'Pb', S('u1'), PX_OFF)
    sb('s_lshl2_add_u32', 'u0', S('u0'), jg); sb('s_mul_i32', 'u0', S('u0'), FIN); sb('s_lshl_b32', 'u1', w, 8); sb('s_add_u32', 'u0', S('u0'), S('u1')); sb('s_add_u32', 'Pc', S('u0'), PX_OFF)
    sb('s_mul_i32', 'u0', jq, 4 * FIN - 1024); sb('s_sub_u32', 'u0', S('Pb'), S('u0')); sb('s_add_u32', 'P8', S('u0'), 17 * 1024)
    qs[0].ready = gI[0] + 20
    sb('s_mul_i32', 'u0', jq, 8 * 18432); sb('s_lshl_b32', 'u1', jg, 8); sb('s_add_u32', 'Ca', S('u0'), S('u1'))
    sb('s_lshl_b32', 'u2', jg, 5); sb('s_add_u32', 'u0', S('u0'), S('u2')); sb('s_add_u32', 'Cb', S('u0'), 1024)
    sb('s_mul_i32', 'u0', jq, 18432); sb('s_add_u32', 'u0', S('u0'), 32 * 18432); sb('s_add_u32', 'Cc', S('u0'), S('u1'))
    sb('s_lshl2_add_u32', 'u3', mt, w); sb('s_mul_i32', 'u3', S('u3'), 144 * 2048); sb('s_add_u32', 'u3', S('u3'), H_OFF)
    sb('s_mul_i32', 'u2', fw, 36864 - 128)
    for x in range(4):
        sb('s_add_u32', 'u0', jq, x); sb('s_and_b32', 'u0', S('u0'), 3); sb('s_and_b32', 'u1', S('u0'), 1); sb('s_lshl2_add_u32', 'u0', jg, S('u0'))
        sb('s_mul_i32', f'Hp{x}', S('u0'), 18432); sb('s_add_u32', f'Hp{x}', S(f'Hp{x}'), S('u3'))
        sb('s_mul_i32', 'u0', S('u0'), 9); sb('s_add_u32', f'Pf{x}', S('u0'), S('u1')); sb('s_mul_i32', f'Pf{x}', S(f'Pf{x}'), 36864)
        sb('s_xor_b32', 'u1', S('u1'), 1); sb('s_lshl3_add_u32', 'u0', S('u1'), S('u0')); sb('s_mul_i32', f'Ph{x}', S('u0'), 36864)
        if x: sb('s_add_u32', f'Pl{x}', S(f'Pf{x}'), S('u2'))
    sb('s_lshl_b32', 'u0', jq, 8); sb('s_sub_u32', 'u0', 1024, S('u0')); sb('s_add_u32', 'u0', S('u0'), S('u2'))
    sb('s_add_u32', 'L8', S('Pf0'), S('u0')); sb('s_add_u32', 'L8h', S('Ph0'), S('u0'))
    n0 = len(qs)
    t = qs.v('v_and_b32', 7, col); t = qs.v('v_xor_b32', t, q); t2 = qs.v('v_lshlrev_b32', 4, t)
    sb('s_lshl_b32', 'u0', tw, 6); sb('s_mul_i32', 'u1', tw, 8 * 1152)
    t = qs.v('v_lshrrev_b32', 7, l16); t = qs.v('v_mul_u32_u24', 1152, t); t = qs.v('v_xad_u32', t2, S('u0'), t); qs('v_add_u32', vC[0], S('u1'), t)
    for b in (1, 2, 3): qs('v_add_u32', vC[b], b * (18432 - 1024), vC[0])
    t = qs.v('v_lshrrev_b32', 1, col); t = qs.v('v_mul_u32_u24', 1152, t); t2 = qs.v('v_and_b32', 16, l16); t = qs.v('v_add3_u32', t, t2, S('u1'))
    t2 = qs.v('v_mul_u32_u24', 18432, q); qs('v_add_u32', vCl[0], t, t2); qs('v_add_u32', vCl[1], 4 * 18432 - 1024, vCl[0])
    sb('s_mul_i32', 'u0', jq, 7 * 18432); sb('s_sub_u32', 'u0', 32 * 18432 - 2048, S('u0')); qs('v_add_u32', vCl[2], S('u0'), t)
    qs[n0].ready = gI[3] - 60; qs[-1].dead = gSetC - 1
    sb('s_lshl1_add_u32', 'u0', jq, fw); sb('s_lshl_b32', 'u0', S('u0'), 7); sb('s_mul_i32', 'u1', tw, 16 * 1152); sb('s_add_u32', 'u0', S('u0'), S('u1'))
    t = qs.v('v_bfe_u32', l16, 6, 3); t = qs.v('v_mul_u32_u24', 1152, t); t2 = qs.v('v_and_b32', 127, vW[0]); qs('v_add3_u32', vD[0], t, t2, S('u0'))
    for b, k in ((1, 8192), (2, 36864 - 2048), (3, 46080 - 3072)): qs('v_add_u32', vD[b], k, vD[0])
    qs[-1].dead = gSetD - 1
    t = qs.v('v_bfe_u32', col, 1, 3); t4 = qs.v('v_and_b32', 1, q); t = qs.v('v_xor_b32', t, t4); t = qs.v('v_lshlrev_b32', 4, t)
    t5 = qs.v('v_and_b32', 7, col); t = qs.v('v_lshl_add_u32', t5, 7, t)
    t2 = qs.v('v_lshrrev_b32', 3, col); t3 = qs.v('v_lshrrev_b32', 1, q); t2 = qs.v('v_lshl_add_u32', t2, 1, t3); t2 = qs.v('v_mul_u32_u24', QS, t2)
    qs('v_add_u32', vCr[0], t, t2)
    for k in (1, 2, 3): qs('v_xor_b32', vCr[k], 32 * k, vCr[0])
    t = qs.v('v_lshl_add_u32', t5, 1, t4); qs('v_lshl_add_u32', vCr[4], t, 4, t2)
    qs[-1].dead = gC - 40
    mm = V(4, 'mm')
    for e in range(4): qs('v_mov_b32', mm[e], -1)
    prev = None
    for n in range(12):
        if n == 4: sb('s_add_u32', 'u0', S('Pb'), 4096)
        if n >= 8: sb('s_add_u32', 'u0', S('P8'), (n - 8) * 4 * FIN)
        x = qs('buffer_store_dwordx4', mm, l16, sS, S('Pb') if n < 4 else S('u0'), mods=f'offen offset:{(n & 3) * 1024 if n < 8 else 0} sc1', cost=2, tag='sent')
        if prev: x.deps = [(prev, o.get('sentgap', 12))]
        x.soft = 3; prev = x
    n0 = len(qs)
    for a in range(2):
        for k in range(3): qs('v_subrev_u32', vU[a][k], S('f9'), vT[a][k])
    qs('v_add_u32', vE[0], 73728 - 2048, vD[0]); qs('v_add_u32', vE[1], 73728 + 9216 - 3072, vD[0])
    qs[n0].ready = gC; qs[-1].dead = g2 - 40
    W.queue(qs, 5, 'setup')
    m = P(); stubs = []
    def sm(op, name, *a): return sa(op, name, *a, q=m)
    def poll(name, loads, check, keep, lat, gap=None):
        ld = loads()
        if gap: ld[0].deps = [gap]
        m.extend(ld); return ld
    def verify(name, loads, check, keep, dep, q=None):
        q = m if q is None else q
        c = check()
        if dep: c[0].deps = [dep]
        br = I('s_cbranch_vccnz', f'L_r{name}'); br.deps = [(c[-1], 1)]
        q.extend(c); q.extend([br, LABEL(f'L_b{name}'), KEEP(*keep)])
        stubs.append((name, loads, check)); return br
    o1 = m.v('v_mov_b32', 1); sm('s_and_b32', 'm0_', 's2', 1); sm('s_lshl_b32', 'm0_', S('m0_'), 7)
    m('buffer_atomic_add', o1, vM0, sG, S('m0_'), mods='offen sc1', cost=2)
    def pick(x):
        a = m.v('v_cndmask_b32', x[0], x[1], S('k1')); b = m.v('v_cndmask_b32', x[2], x[3], S('k1')); return m.v('v_cndmask_b32', a, b, S('k2'))
    def rbf(x): t = m.v('v_cvt_pk_bf16_f32', x, x); return m.v('v_and_b32', 0xffff0000, t)
    nm = pick(nmean); qq = pick(qsum)
    t = m.v('v_mul_f32', nm, nm); c_ = m.v('v_mov_b32', 1.0 / 576); var = m.v('v_fma_f32', qq, c_, Neg(t)); var = m.v('v_max_f32', 0, var)
    nm = rbf(nm); var = rbf(var); var = rbf(m.v('v_add_f32', 1e-5, var)); t = m.v('v_sqrt_f32', var)
    g_ = m.v('v_bfe_u32', l16, 4, 2)
    if o['rot']: g_ = m.v('v_xor_b32', jq, g_)
    sd = rbf(t); rr = m.v('v_rcp_f32', sd)
    t = m.v('v_and_b32', 1, g_); t = m.v('v_lshl_add_u32', t, 5, tokl); t2 = m.v('v_and_b32', 2, g_); t = m.v('v_lshl_add_u32', t2, 1, t)
    t = m.v('v_add_lshl_u32', S('tk0'), t, 2); t2 = m.v('v_add_u32', STM - STR, t)
    m('ds_write_b32', t, rr, mods=f'offset:{STR}', tag='stat'); m('ds_write_b32', t2, nm, mods=f'offset:{STR}', tag='stat')
    eS = 4; m[-1].dead = bar[eS] - 4; sc.xlg[eS].append('stat')
    n0 = len(m)
    sm('s_lshl_b32', 'm0_', tw, 8); vRr = m.v('v_lshl_add_u32', q, 6, S('m0_'))
    sm('s_lshl4_add_u32', 'm0_', je, w); sm('s_lshl_b32', 'm0_', S('m0_'), 4); vRm = m.v('v_lshl_add_u32', q, 6, S('m0_'))
    vK = m.v('v_lshl_add_u32', col, 3, sQ, name='vK'); vBp = m.v('v_lshlrev_b32', 2, col, name='vBp')
    vRg = [m.v('v_add_u32', RGO + 2 * QS * k, l16) for k in range(2)]
    m[n0].ready = gA - 40
    rq = [V(4, f'rq{k}') for k in range(5)]
    for k in range(4): m('ds_read_b128', rq[k], vRr, mods=f'offset:{STR + 16 * k}')
    m('ds_read_b128', rq[4], vRm, mods=f'offset:{STR}')
    def getc(u, nm_):
        r = V(2, f'{nm_}{u}'); m('ds_read_b64', r, vK, mods=f'offset:{CST + 512 * CI[nm_] + 128 * u}'); return r
    l1 = [getc(u, 'l1') for u in range(3)]
    n0 = len(m)
    for e in range(4): m('v_mul_f32', accm[e], accm[e], rq[4][e])
    m[n0].ready = gA - 5
    eR = sc.barafter(gA + 10)
    m('ds_write_b128', vQ, accm, mods=f'offset:{RGO}', cost=2, tag='rg'); m[-1].dead = bar[eR] - 4; sc.xlg[eR].append('rg')
    for u in range(2):
        for tt in range(4):
            for e in range(4): m('v_mul_f32', accb[u][tt][e], accb[u][tt][e], rq[tt][e])
    um = [V(4, f'um{tt}') for tt in range(4)]
    n0 = len(m)
    for tt in range(4): m('ds_read_b128', um[tt], vRg[tt >> 1], mods=f'offset:{(tt & 1) * QS}')
    m[n0].ready = bar[eR] + 1; lr = m[-1]
    U = [accb[0], accb[1], um]
    cf = [getc(u, 'cf') for u in range(3)]; l16c = [getc(u, 'l16') for u in range(3)]
    def horner(z, c, u, neg=False):
        d = V(1); return d, [I('v_fma_f32', d, c[0], z, u), I('v_fmac_f32_dpp', d, z, Neg(c[1]) if neg else c[1], mods=DPP8)]
    def coef(d, u, x): return [I('v_mul_f32', d, cf[u][0], x), I('v_fmac_f32_dpp', d, x, cf[u][1], mods=DPP8)]
    ch = []; ee = []
    for u in range(3):
        z = U[u][0][0]; c = []
        for k in range(1, 16):
            z, ins = horner(z, l1[u], U[u][k >> 2][k & 3], True); c += ins
        d = V(1); c += coef(d, u, z)
        ch.append(c); ee.append(d)
    c = inter(ch); c[0].deps = [(lr, 5)]; m.extend(c)
    eb = [V(4, f'eb{u}') for u in range(3)]
    for u in range(3):
        for k in range(4): m('ds_bpermute_b32', eb[u][k], vBp, ee[u], mods=f'offset:{64*k}')
    lastbp = m[-1]
    vCn = m.v('v_lshlrev_b32', 3, l16); vCn = m.v('v_and_b32', 128, vCn, name='vCn'); cn = V(1, 'cn')
    cnl = lambda: [I('buffer_load_dword', cn, vCn, sG, 0, mods='offen sc1', cost=2)]
    cnc = lambda: [I('v_cmp_ne_u32', 'vcc', 128, cn)]
    ldc = cnl(); m.extend(ldc)
    ch = []
    for u in range(3):
        z = eb[u][0]; c = []
        for k in range(1, 4):
            z, ins = horner(z, l16c[u], eb[u][k]); c += ins
        z2 = V(1); c.append(I('v_min_u32', z2, -2, z))
        c.append(I('buffer_store_dword', z2, vAm if u == 2 else vAs, sS, S(f'a{u}'), mods='offen offset:128 sc1', cost=2))
        ch.append(c)
    c = inter(ch); c[0].deps = [(lastbp, 5)]; m.extend(c); agst = m[-1]
    Z = [[V(4, f'z{u}_{tt}') for tt in range(4)] for u in range(3)]
    def coefs(u):
        for tt in range(4): m.extend(inter([coef(Z[u][tt][e], u, U[u][tt][e]) for e in range(4)]))
    coefs(0); coefs(1); coefs(2)
    t = m.v('v_lshlrev_b32', 5, q); vAl = m.v('v_sub_u32', vAg, t); vAl = m.v('v_add_u32', 96, vAl, name='vAl')
    brc = verify('c', cnl, cnc, [vCn, cn], (ldc[0], o['cntlat']))
    ag4 = [[V(4, f'ag{u}{h}') for h in range(2)] for u in range(3)]; mx = V(1, 'mx')
    ag = [[ag4[u][k >> 2][k & 3] for k in range(8)] for u in range(3)]
    agl = lambda: [I('buffer_load_dwordx4', ag4[u][h], vAl, sS, S(f'a{u}'), mods=f'offen offset:{16*h} sc1', cost=2) for u in range(3) for h in range(2)]
    def agc():
        al = [ag[u][k] for u in range(3) for k in range(8)]
        r = [I('v_max3_u32', mx, al[0], al[1], al[2])]
        for k in range(3, 23, 2): r.append(I('v_max3_u32', mx, mx, al[k], al[k + 1]))
        return r + [I('v_max_u32', mx, mx, al[23]), I('v_cmp_eq_u32', 'vcc', -1, mx)]
    lda = agl(); lda[0].deps = [(agst, o['aggap'])]; m.extend(lda)
    l64 = [getc(u, 'l64') for u in range(3)]
    bra = verify('a', agl, agc, [vAl, mx], (lda[-1], o['aglat']))
    ch = []; sq_ = []
    for u in range(3):
        z = ag[u][0]; c = []
        for k in range(1, 8):
            z, ins = horner(z, l64[u], ag[u][k]); c += ins
        ch.append(c); sq_.append(z)
    m.extend(inter(ch))
    l512 = [getc(u, 'l512') for u in range(3)]; l16c = [getc(u, 'l16') for u in range(3)]; l1 = [getc(u, 'l1') for u in range(3)]
    sb_ = [V(4, f'sb{u}') for u in range(3)]
    for u in range(3):
        for k in range(4): m('ds_bpermute_b32', sb_[u][k], vBp, sq_[u], mods=f'offset:{64*k}')
    lastbp = m[-1]
    for k in range(3): m('v_cmp_lt_u32', S(f'k{k}', 2), k, q)
    t = m.v('v_mul_u32_u24', 144, col); t = m.v('v_lshl_add_u32', q, 5, t); vHw = m.v('v_add_u32', sQ, t)
    t = m.v('v_lshrrev_b32', 6, l16); t = m.v('v_mul_u32_u24', 144, t); t2 = m.v('v_and_b32', 3, col); t = m.v('v_lshl_add_u32', t2, 5, t)
    vHr = m.v('v_add_u32', sQ, t); sm('s_lshl_b32', 'm0_', w, 3); vHm = m.v('v_add_u32', S('m0_'), vHr)
    zs = lambda u, k: Z[u][k >> 2][k & 3]
    ch = []; pk = [[V(4), V(4)] for u in range(3)]
    for u in range(3):
        z = sb_[u][3]; c = []
        for k in (2, 1, 0):
            z, ins = horner(z, l512[u], sb_[u][k]); c += ins
        for k in range(3):
            z2, ins = horner(z, l16c[u], eb[u][k]); c += ins
            z3 = V(1); c.append(I('v_cndmask_b32', z3, z, z2, S(f'k{k}'))); z = z3
        for k in range(16):
            c += [I('v_fmac_f32', zs(u, k), l1[u][0], z), I('v_fmac_f32_dpp', zs(u, k), z, l1[u][1], mods=DPP8)]; z = zs(u, k)
            if k == 9 or k == 15:
                h = k // 10
                for e in range(4): c.append(I('v_cvt_pk_bf16_f32', pk[u][h][e], zs(u, 8*h + 2*e), zs(u, 8*h + 2*e + 1)))
        ch.append(c)
    c = inter(ch); c[0].deps = [(lastbp, 5)]; m.extend(c)
    hf = [V(4, f'hf{tt}') for tt in range(4)]; hm = V(2, 'hm')
    for u in range(3):
        for h in range(2): m('ds_write_b128', vHw, pk[u][h], mods=f'offset:{MISC + 16*h}', cost=2)
        if u < 2:
            for tt in range(4): m('ds_read_b64_tr_b16', hf[tt][2*u:2*u+2], vHr, mods=f'offset:{MISC + 8*tt}')
        else: m('ds_read_b64_tr_b16', hm, vHm, mods=f'offset:{MISC}')
    lastrd = m[-1]
    sm('s_lshl1_add_u32', 'a0', mt, tw); sm('s_mul_i32', 'a0', S('a0'), 72); sm('s_add_u32', 'a0', S('a0'), sG_); sm('s_lshl_b32', 'a0', S('a0'), 11); sm('s_add_u32', 'a0', S('a0'), HF_OFF)
    sm('s_add_u32', 'a1', S('a0'), 36 * 2048)
    sm('s_lshl1_add_u32', 'a2', mt, je); sm('s_lshl1_add_u32', 'a2', S('a2'), tw); sm('s_mul_i32', 'a2', S('a2'), 36); sm('s_add_u32', 'a2', S('a2'), jg)
    sm('s_lshl1_add_u32', 'a2', S('a2'), fw); sm('s_lshl_b32', 'a2', S('a2'), 10); sm('s_lshl3_add_u32', 'a2', Tr, S('a2')); sm('s_add_u32', 'a2', S('a2'), HF_OFF + 32 * 2048)
    n0 = len(m)
    for tt in range(4): m('buffer_store_dwordx4', hf[tt], l16, sS, S(f'a{tt >> 1}'), mods=f'offen offset:{(tt & 1) * 1024} sc1', cost=2, tag='hs')
    m('buffer_store_dwordx2', hm, l16, sS, S('a2'), mods='offen sc1', cost=2, tag='hs')
    m[n0].deps = [(lastrd, 5)]; hsl = m[-1]
    e1 = sc.barafter(gI[2] + o['pub1']); sc.xvm[e1] += ['hs', 'H0', 'H1']; hsl.dead = bar[e1] - 30
    fl = V(1, 'fl')
    fll = lambda: [I('buffer_load_dword', fl, vBp, sS, sFr, mods='offen sc1', cost=2)]
    def publish(val, e):
        t = m.v('v_mov_b32', val); x = m('buffer_store_dword', t, vM0, sS, sFl, mods='offen sc1', cost=2); x.ready = bar[e] + 1; return x
    sm('s_lshl_b32', 'm0_', jg, 2); m('s_lshl_b32', S.sub('k0', 0), 15, S('m0_')); m('s_mov_b32', S.sub('k0', 1), 0)
    sm('s_lshl2_add_u32', 'a0', mt, w); sm('s_mul_i32', 'a0', S('a0'), 36); sm('s_add_u32', 'a1', S('a0'), jg); sm('s_lshl3_add_u32', 'a0', jg, S('a0'))
    sm('s_lshl_b32', 'a0', S('a0'), 11); sm('s_lshl_b32', 'a1', S('a1'), 11); sm('s_add_u32', 'a1', S('a1'), HF_OFF + 32 * 2048)
    pb1 = publish(1, e1)
    ld = fll(); ld[0].deps = [(pb1, o['chk1'])]; m.extend(ld)
    br1 = verify('f', fll, lambda: [I('v_cmp_gt_u32', 'vcc', 1, fl), I('s_nop', 3), I('s_and_b64', 'vcc', 'vcc', S('k0'))], [vBp, fl], (ld[0], o['lat1']))
    nld = [0]
    def gld(d, so, off, dead):
        x = m('buffer_load_dwordx4', d, l16, sS, so, mods=f'offen offset:{off} sc1', cost=2); x.dead = dead; x.soft = 1
        if ref(d).vr.cls == 'a' and nld[0] < o['xa']:
            x.ready = gI[3] + 16 * max(nld[0] // 4 + 1, E) + 2; nld[0] += 1
        return x
    for k in range(9):
        if k % 2 == 0 and k < 8: sm('s_add_u32', 'a2', S('a0'), HF_OFF + k * 2048)
        for a in range(2): hl = gld(hq[k][a], S('a2') if k < 8 else S('a1'), (k & 1) * 2048 + a * 1024, gC - 30)
    def Hld(x, kl):
        if kl & 1 == 0: sm('s_add_u32', 'a2', S(f'Hp{x}'), kl * 2048)
        return [gld(Hq[x][kl][a], S('a2'), (kl & 1) * 2048 + a * 1024, useH[(x, kl)] - 40) for a in range(2)]
    qx = P()
    for x, kl in seqH[:20]:
        r = Hld(x, kl)
        if kl == 8:
            r[0].ready = gC + 2
            for e in range(2): qx('v_swap_b32', Hh[x][2 + e], Hh[x][4 + e])
            qx[-2].deps = [(r[1], 60)]; qx[-1].dead = useH[(x, kl)] - 3
    W.queue(qx, 20, 'swap')
    eo = sc.barafter(hlast[3].ready if False else gC + 130); sc.xvm[eo] += ['H2', 'H3']; hlast[3].dead = bar[eo] - 40
    n0 = len(m)
    for x, kl in seqH[20:]: Hld(x, kl)
    m[n0].ready = bar[eo] + 1
    e2 = sc.barafter(g2 + o['pub2']); sc.xvm[e2] += ['sp', 'sent']; slast.dead = bar[e2] - 40; assert e2 >= eo
    pb2 = publish(2, e2)
    ld = fll(); ld[0].deps = [(pb2, o['chk2'])]; m.extend(ld)
    br2 = verify('g', fll, lambda: [I('v_cmp_gt_u32', 'vcc', 2, fl)], [vBp, fl], (ld[0], o['lat1']))
    for x, kl in lateH: Hld(x, kl)
    t = m.v('v_mul_u32_u24', SRC, q); vPl = m.v('v_lshl_add_u32', col, 4, t, name='vPl')
    for k in range(1, 6): sm('s_add_u32', f'c{k}', S('Pc'), 4096 * k)
    pr = [A(4, f'pr{b}') for b in range(21)]
    def pld(bs): return [I('buffer_load_dwordx4', pr[b], vPl, sS, S(f'c{b >> 2}') if b >= 4 else S('Pc'), mods=f'offen offset:{(b & 3) * 1024} sc1', cost=2) for b in bs]
    m.extend(pld(range(8, 17)))
    t = m.v('v_and_b32', 12, col); t2 = m.v('v_and_b32', 3, col); t = m.v('v_lshl_add_u32', t, 2, t2); t2 = m.v('v_and_b32', 1, q); t = m.v('v_lshl_add_u32', t2, 2, t)
    sm('s_lshr_b32', 'a0', jg, 1); sm('s_lshl_b32', 'a0', S('a0'), 6); sm('s_and_b32', 'a1', jg, 1); sm('s_lshl3_add_u32', 'a0', S('a1'), S('a0'))
    tok = m.v('v_add_u32', S('a0'), t, name='tok'); th = m.v('v_lshrrev_b32', 1, q); vk = m.v('v_lshlrev_b32', 5, th)
    vx8 = m.v('v_mul_u32_u24', 1152, tok); vx = m.v('v_add_u32', vx8, vk, name='vx')
    sm('s_lshl_b32', 'a0', jq, 8); sm('s_lshl3_add_u32', 'kc', w, S('a0')); sm('s_lshl2_add_u32', 'a0', jq, w); sm('s_lshl_b32', 'a0', S('a0'), 3); sm('s_add_u32', 'k8', S('a0'), 1024)
    sm('s_mul_i32', 'a0', mt, 128 * 1152); sm('s_add_u32', 'xc', S('a0'), S('kc')); sm('s_add_u32', 'x8', S('a0'), S('k8'))
    xv = [V(2, f'xv{n}') for n in range(5)]; kv = [V(2, f'kv{n}') for n in range(5)]
    for n in range(5):
        m('buffer_load_dwordx2', xv[n], vx if n < 4 else vx8, sX, S('xc') if n < 4 else S('x8'), mods=f'offen offset:{64 * (n & 3)}', cost=2)
        if n < 4: m('buffer_load_dwordx2', kv[n], vk, sK, S('kc'), mods=f'offen offset:{64 * n}', cost=2)
        else: m('buffer_load_dwordx2', kv[n], 'off', sK, S('k8'), cost=2)
    DB = [[0, 1], [2, 3], [4, 5], [6, 7], [17, 18, 19, 20]]
    r = pld(DB[4]); r[0].ready = gE - o['d0'] - 20; m.extend(r)
    r = pld(DB[0]); r[0].ready = gE - o['d0']; m.extend(r)
    r = pld(DB[1]); r[0].ready = gE - o['d1']; r[-1].dead = gE - 1; m.extend(r)
    W.queue(m, 10, 'main')
    for k, g in enumerate([gA] + gI[1:] + [gC, g2, g3]): st.at(W, g, 10 + k)
    sc.emit(spacing, lambda g: o['softA'] if g < gA else o['soft'])
    p.extend(sc.bar0); p.extend(st.t(9))
    body = W.build()
    sc.report()
    print(f"; gaps A {gA} I {gI} C {gC} 2 {g2} 3 {g3} E {gE} | cnt {ldc[0].gap} agst {agst.gap} agld {lda[0].gap} agbr {bra.gap} hs {hsl.gap} pub1 {pb1.gap} chk1 {br1.gap} hld {hl.gap} "
          f"H3 {hlast[3].gap} eo {bar[eo]} sp {slast.gap} pub2 {pb2.gap} chk2 {br2.gap} dp {[x.gap for x in dst_]} sent {prev.gap}")
    p.extend(body)
    p.extend(st.t(17))
    t = p.v('v_lshlrev_b32', 2, tok); t2 = p.v('v_add_u32', STM - STR, t); rr = V(1); nm = V(1)
    p('ds_read_b32', rr, t, mods=f'offset:{STR}'); p('ds_read_b32', nm, t2, mods=f'offset:{STR}')
    t = p.v('v_and_b32', 16, l16); c_ = p.v('v_mov_b32', 0x3f80); one = p.v('v_lshlrev_b32', t, c_); t = p.v('v_lshrrev_b32', 1, col)
    sel = [V(4, 'sel0'), V(4, 'sel1')]
    for k in range(8):
        p('v_cmp_eq_u32', S(f'k{k % 3}'), k, t)
        if k >= 2: p('v_cndmask_b32', sel[(k - 2) >> 2][(k - 2) & 3], 0, one, S(f'k{(k - 2) % 3}'))
    for k in (6, 7): p('v_cndmask_b32', sel[1][k & 3], 0, one, S(f'k{k % 3}'))
    def red(d, bs): return [I(MF, d, sel[k & 1 if len(bs) == 2 else 0], pr[b], d if k else 0) for k, b in enumerate(bs)]
    Y = [V(4, f'Y{n}') for n in range(5)]
    for n in range(5): p.extend(red(Y[n], [8 + 2 * n, 9 + 2 * n] if n < 4 else [16]))
    vo = p.v('v_lshlrev_b32', 1, vx); p('v_cmp_gt_u32', 'vcc', 2, q); big = p.v('v_mov_b32', BIG); vo8 = p.v('v_cndmask_b32', big, vo, 'vcc')
    sa('s_lshl_b32', 'xc', S('xc'), 1); sa('s_lshl_b32', 'x8', S('x8'), 1)
    nmr = p.v('v_mul_f32', nm, rr); r2_ = p.v('v_mul_f32', rr, rr); ce = p.v('v_mul_f32', -LOG2E, r2_)
    xf = [V(4, f'xf{n}') for n in range(5)]
    def ypre(n):
        un = lambda d, r, e: I('v_lshlrev_b32', d, 16, r[e >> 1]) if e % 2 == 0 else I('v_and_b32', d, 0xffff0000, r[e >> 1])
        ch = []
        for e in range(4):
            k = V(1); t = V(1)
            ch.append([un(xf[n][e], xv[n], e), un(k, kv[n], e), I('v_fma_f32', t, xf[n][e], rr, nmr), I('v_fmac_f32', Y[n][e], t, k), I('v_mul_f32', Y[n][e], Y[n][e], r2_)])
        p.extend(inter(ch))
    def fin(n):
        d = V(4, f'D{n}')
        verify(f'd{n}', lambda: pld(DB[n]), lambda: red(d, DB[n]) + [I('s_nop', 7), I('v_cmp_u_f32', 'vcc', d[0], d[0]), I('s_nop', 0)], [vPl, sel[0], sel[1]] + [pr[b] for b in DB[n]], None, q=p)
        ch = []
        for e in range(4):
            t = V(1)
            ch.append([I('v_mul_f32', t, ce, d[e]), I('v_exp_f32', t, t), I('v_mul_f32', d[e], d[e], Y[n][e]), I('v_add_f32', t, 1.0, t), I('v_rcp_f32', t, t), I('v_fmac_f32', xf[n][e], d[e], t)])
        p.extend(inter(ch))
        p('buffer_store_dwordx4', xf[n], vo if n < 4 else vo8, sO, S('xc') if n < 4 else S('x8'), mods=f'offen offset:{128 * (n & 3)}')
    for n in (4, 0, 1, 2, 3): ypre(n)
    p.extend(st.t(18))
    p.extend(pld(DB[2])); fin(4); fin(0); p.extend(st.t(19)); fin(1); p.extend(pld(DB[3])); p.extend(st.t(20)); fin(2); p.extend(st.t(21)); fin(3)
    if st.on: p('v_writelane_b32', st.v, S('rc'), 40)
    st.flush(p, sS, v0)
    p.append(LABEL('L_end')); p('s_endpgm')
    lines, peak, prog = finish(p)
    for name, loads, check in stubs:
        rt = [LABEL(f'L_r{name}')] + loads() + [I('s_waitcnt', mods='vmcnt(0)')] + check() + \
             [I('s_sub_u32', S('rc'), S('rc'), 1), I('s_cbranch_scc1', f'L_x{name}'), I('s_cbranch_vccnz', f'L_r{name}'), I('s_branch', f'L_b{name}'),
              LABEL(f'L_x{name}'), I('s_mov_b32', S('rc'), 0), I('s_branch', f'L_b{name}')]
        for ins in rt: lines.append(ins.name + ':' if ins.op == 'LABEL' else ins.text())
    lines += ['  s_endpgm', 'L_fin:']
    print("; sgprs", S.n, "instr", len(lines))
    return lines, st.peak(peak)

if __name__ == '__main__':
    import sys, json
    opt = json.loads(sys.argv[2]) if len(sys.argv) > 2 else {}
    lst = opt.pop('list', 1)
    label = 'x_kernel' if lst else NAME + '_kernel'
    l, pk = gen_x(label, opt)
    s = f"; @launch {'kernel=' + label + ' ' if lst else ''}grid=(256,1,1) block=(256,1,1) lds=163840\n"
    s += '.amdgcn_target "amdgcn-amd-amdhsa--gfx950"\n.text\n' + kernel_text(label, l) + '.section .rodata,"a"\n' + kernel_desc(label, pk['v'], pk['a'])
    open(sys.argv[1], 'w').write(s)
```

```python
from common import *
from sched import *
import math
QS = 40960; MISC = 36864
CST = MISC; RGO = MISC + 2560; STR = MISC + 3584; STM = QS + MISC + 3584
AG_OFF = 0; FL_OFF = 0x50000; HF_OFF = 0x100000; PX_OFF = 0x600000; H_OFF = 0x1B00000
SRC = 21504; FIN = 4 * SRC
TINY = 'v_mfma_f32_4x4x4_16b_bf16'
DM = ' row_mask:0xf bank_mask:0xf'
DPP8 = 'row_ror:8' + DM
BIG = 0x7ff00000
LOG2E = math.log2(math.e)

def inter(lists):
    out = []
    for k in range(max(len(x) for x in lists)):
        for x in lists:
            if k < len(x): out.append(x[k])
    return out

def gen_x(label, opt=None):
    o = dict(S=3, rot=0, stamp=False, p0max=24, xa=56, ep=64, sp=3, vgap=2, edge=3, lat=6, npf=2, aggap=90, aglat=90,
             pub1=250, chk1=60, lat1=70, pub2=200, chk2=60, cntlat=80, d0=40, d1=4, rc=20000, pf=15, x0=18, pw0=1, pwg=[0, 200, 500, 800], pcg=1000, pdg=1100, eI=4, softA=1, soft=4)
    o.update(opt or {})
    p = P(); S = SG(36); v0 = VR('v', 1, 'tid', phys=0)
    st = ST(o['stamp'], 0, 255)
    p('s_cmp_ge_u32', 's2', 256); p('s_cbranch_scc1', 'L_end')
    p.extend(st.rt(0) + st.t(1))
    p('s_load_dwordx16', 's[4:19]', 's[0:1]', 0); p('s_load_dwordx16', 's[20:35]', 's[0:1]', 64)
    for n, b in zip('XBCOKWDG', range(4, 36, 4)): S.m[n] = (b, 4)
    sX, sB, sW, sD, sC, sS, sO, sK, sG, sI = [S(n, 4) for n in 'XBWDCSOKGI']
    for k in range(3): S(f'k{k}', 2)
    S.fl.append(3); S.m['Pl1'] = (0, 1); S.m['Pl2'] = (1, 1); S.m['p0'] = (42, 1); S.m['n2'] = (43, 1)
    for a, b in zip('t0 t1 t2 xb chr tk0 Bb Rb Rc hb u0 u1 u2 u3 Ca Cb Cc Hs fb'.split(), 'Hp0 Hp1 Hp2 Hp3 Pf0 Pf1 Pf2 Pf3 L8 L8h c1 c2 c3 c4 c5 kc k8 xc x8'.split()):
        S(a); S.m[b] = S.m[a]
    def sa(op, name, *a, q=None): (p if q is None else q)(op, S(name), *a); return S(name)
    p('s_getpc_b64', S.sub('I', 0, 2)); p.append(LABEL('L_pc')); p('s_mov_b32', S.sub('I', 2), 'L_fin-L_pc'); p('s_mov_b32', S.sub('I', 3), 0x20000)
    t = p.v('v_lshlrev_b32', 7, v0); pfd = V(4, 'pfd')
    for k in range(o['npf']):
        if k: t = p.v('v_add_u32', 32768, t)
        p('buffer_load_dword', pfd[k], t, sI, 0, mods='offen')
    wv = p.v('v_lshrrev_b32', 6, v0); l = p.v('v_and_b32', 63, v0, name='lane')
    p('v_readfirstlane_b32', S('w'), wv); w = S('w')
    jg = sa('s_and_b32', 'jg', 's2', 3); jq = sa('s_bfe_u32', 'jq', 's2', (2 << 16) | 3)
    sa('s_bfe_u32', 't0', 's2', (1 << 16) | 2); sa('s_lshr_b32', 'mt', 's2', 5); mt = sa('s_lshl3_add_u32', 'mt', S('t0'), S('mt'))
    fw = sa('s_and_b32', 'fw', w, 1); tw = sa('s_lshr_b32', 'tw', w, 1)
    j = sa('s_lshl2_add_u32', 'j', jg, jq); je = sa('s_and_b32', 'je', jq, 1); Tr = sa('s_lshr_b32', 'Tr', jq, 1)
    sl = p.v('v_and_b32', 7, l); hi = p.v('v_lshrrev_b32', 5, l); q = p.v('v_lshrrev_b32', 4, l, name='q')
    r83 = p.v('v_bfe_u32', l, 3, 2)
    cx = p.v('v_xor_b32', sl, q); cx = p.v('v_lshlrev_b32', 4, cx, name='cx')
    tokl = p.v('v_lshl_add_u32', hi, 4, r83, name='tokl')
    sa('s_lshl_b32', 't0', tw, 6); sa('s_lshl3_add_u32', 'tk0', fw, S('t0'))
    sa('s_lshl_b32', 't0', mt, 7); sa('s_add_u32', 't0', S('t0'), S('tk0')); xb = sa('s_mul_i32', 'xb', S('t0'), 1152)
    t = p.v('v_mul_u32_u24', 1152, tokl); vX0 = p.v('v_add_u32', t, cx)
    vX = []
    if not o['rot']:
        vX1 = p.v('v_xor_b32', 64, vX0); vX1 = p.v('v_add_u32', 36864, vX1)
        vX = [vX0, vX1, p.v('v_add_u32', 4608, vX0), p.v('v_add_u32', 4608, vX1)]
    else:
        sa('s_lshl_b32', 't0', je, 6); sa('s_mul_i32', 't1', je, 36864); sa('s_mul_i32', 't2', Tr, 4608)
        a = p.v('v_xor_b32', S('t0'), vX0); b = p.v('v_xor_b32', 64, a)
        a = p.v('v_add_u32', S('t1'), a); sa('s_sub_u32', 't1', 36864, S('t1')); b = p.v('v_add_u32', S('t1'), b)
        vX = [p.v('v_add_u32', S('t2'), a), p.v('v_add_u32', S('t2'), b)]
        sa('s_sub_u32', 't2', 4608, S('t2')); vX += [p.v('v_add_u32', S('t2'), a), p.v('v_add_u32', S('t2'), b)]
    if o['pf'] & 1:
        t = p.v('v_min_u32', 35, l); t = p.v('v_lshlrev_b32', 7, t); vPx = [t, p.v('v_add_u32', 4608, t)]
        sa('s_mul_i32', 't1', jq, 18432); sa('s_add_u32', 't1', S('t1'), xb)
    sG_ = sa('s_lshl1_add_u32', 'Gn', j, fw)
    sa('s_lshl2_add_u32', 't0', jg, Tr); sa('s_lshl_b32', 't0', S('t0'), 2); chr_ = sa('s_add_u32', 'chr', S('t0'), 512)
    t = p.v('v_and_b32', 4, l); cho = p.v('v_add_u32', t, sl)
    sa('s_lshl_b32', 't0', sG_, 4); t = p.v('v_lshl_add_u32', q, 2, S('t0'))
    t2 = p.v('v_mul_u32_u24', chr_, hi); t = p.v('v_max_u32', t, t2)
    vL = p.v('v_add_lshl_u32', t, cho, 1)
    p.append(WAIT(lgkm=0))
    p.extend(st.t(2))
    raw = [V(1) for _ in range(3)]
    for x, s_ in zip(raw, ('s[6:7]', 's[8:9]', 's[18:19]')): p('global_load_ushort', x, vL, s_)
    srd_tail(p, S, 'X', 2048 * 1152)
    xr = [[V(4, f'xr{g}_{s}') for s in range(9)] for g in range(4)]
    pfx = V(4, 'pfx')
    if o['pf'] & 1:
        for k in range(2): p('buffer_load_dword', pfx[k], vPx[k], sX, S('t1'), mods='offen')
    xld = [I('buffer_load_dwordx4', xr[g][s], vX[g], sX, xb, mods=f'offen offset:{128*s}') for g in range(4) for s in range(9)]
    p.extend(xld[:o['x0']]); vm = xld[o['x0']:]
    p.extend(st.t(3))
    p('s_cmp_eq_u32', fw, 0)
    p('s_cselect_b64', S.sub('B', 0, 2), 's[10:11]', 's[12:13]'); p('s_cselect_b64', S.sub('C', 0, 2), 's[14:15]', 's[16:17]')
    p('s_cselect_b64', S.sub('W', 0, 2), 's[24:25]', 's[26:27]')
    p('s_mov_b64', S.sub('O', 0, 2), 's[30:31]'); p('s_mov_b64', S.sub('S', 0, 2), 's[34:35]')
    for n, sz in (('B', 576 * 1152), ('W', 576 * 9216), ('S', WS_BYTES), ('C', 576 * 1152), ('K', 1152), ('D', 4608 * 1152), ('O', 2048 * 2304), ('G', 256)):
        srd_tail(p, S, n, sz)
    sa('s_lshr_b32', 't0', 's2', 3); n2 = sa('s_lshl1_add_u32', 'n2', S('t0'), tw)
    if o['pf'] & 2:
        sa('s_lshl_b32', 't0', jg, 6); sa('s_add_u32', 't0', S('t0'), n2); sa('s_mul_i32', 't0', S('t0'), 2304)
        t = p.v('v_min_u32', 17, l); t = p.v('v_lshlrev_b32', 7, t); t = p.v('v_add_u32', S('t0'), t)
        sa('s_mul_i32', 't0', n2, 3); sa('s_sub_u32', 't0', S('t0'), 32); t2 = p.v('v_min_u32', 34, l); t2 = p.v('v_add_u32', S('t0'), t2); t2 = p.v('v_min_u32', 143, t2)
        sa('s_mul_i32', 't0', jg, 18432); sa('s_add_u32', 't0', S('t0'), 512 * 1152); t2 = p.v('v_lshl_add_u32', t2, 7, S('t0'))
        p('v_cmp_gt_u32', 'vcc', 32, l); t = p.v('v_cndmask_b32', t2, t, 'vcc')
        p('buffer_load_dword', pfx[2], t, sB, 0, mods='offen')
    t = p.v('v_min_u32', 53, l); t2 = p.v('v_mul_u32_u24', 43, t); t2 = p.v('v_lshrrev_b32', 8, t2)
    t3 = p.v('v_mul_u32_u24', 6, t2); t = p.v('v_sub_u32', t, t3); t = p.v('v_lshlrev_b32', 2, t); c_ = p.v('v_mov_b32', 0xE950D4); t = p.v('v_bfe_u32', c_, t, 4)
    t2 = p.v('v_mul_u32_u24', 72, t2); sa('s_mul_i32', 't0', n2, 9 * 72); sa('s_mul_i32', 't1', jg, 18); sa('s_add_u32', 't0', S('t0'), S('t1'))
    t = p.v('v_add3_u32', t, t2, S('t0')); vPW = p.v('v_lshlrev_b32', 7, t, name='vPW')
    pfw = V(1, 'pfw')
    pw = [I('buffer_load_dword', pfw, vPW, sW, 0, mods=f'offen offset:{128 * it}', cost=2) for it in range(4)]
    for x in pw: x.d = []
    p.append(DEF(pfw))
    if o['pf'] & 4: p.extend(pw[:o['pw0']])
    row = p.v('v_bfe_u32', l, 2, 3, name='row'); r2 = p.v('v_bfe_u32', l, 4, 1)
    b1 = p.v('v_bfe_u32', l, 1, 1); pp = p.v('v_xor_b32', b1, r2); b0 = p.v('v_and_b32', 1, l)
    c32 = p.v('v_lshlrev_b32', 5, pp); c32 = p.v('v_lshl_add_u32', b0, 4, c32)
    c64 = p.v('v_lshl_add_u32', hi, 6, c32, name='c64')
    rm = p.v('v_lshl_add_u32', r2, 2, row); sa('s_lshl_b32', 't0', tw, 2); rm = p.v('v_add_u32', S('t0'), rm)
    t = p.v('v_lshl_add_u32', hi, 4, rm); t = p.v('v_mul_u32_u24', 9216, t); vH0 = p.v('v_add_u32', t, c32, name='vH0')
    vH = [vH0, p.v('v_add_u32', 32 * 9216 - 1024, vH0, name='vH1')]
    t = p.v('v_lshl_add_u32', hi, 3, r83); t = p.v('v_mul_u32_u24', 1152, t)
    sa('s_lshl_b32', 't0', fw, 6); vB0 = p.v('v_xad_u32', cx, S('t0'), t, name='vB0')
    vB = [vB0, p.v('v_add_u32', 4608 - 1024, vB0, name='vB1')]
    sQ = sa('s_mul_i32', 'Q', w, QS)
    sa('s_mul_i32', 'fb', j, 576); sa('s_add_u32', 'hb', S('fb'), 512)
    sa('s_lshl_b32', 't0', je, 6); fb = sa('s_add_u32', 'fb', S('fb'), S('t0'))
    sa('s_lshl_b32', 't0', je, 9); hb = sa('s_sub_u32', 'hb', S('hb'), S('t0'))
    sa('s_lshl1_add_u32', 't0', j, tw); sBb = sa('s_mul_i32', 'Bb', S('t0'), 18432)
    sa('s_mul_i32', 'Rc', chr_, 1152); sa('s_lshl_b32', 't1', tw, 7); sRb = sa('s_add_u32', 'Rb', S('Rc'), S('t1'))
    def dma(v, srd, so, off, tag): return I('buffer_load_dwordx4', v, srd, so, mods=f'offen offset:{off} lds', tag=tag, cost=2)
    def mkdma(vs, srd, base, add):
        def f(addr, tag):
            so = S('T')
            return [I('s_add_u32', 'm0', sQ, addr), I('s_add_u32', so, S(base), add)] + [dma(v, srd, so, 1024 * b, tag) for b, v in enumerate(vs)]
        return f
    vW = [V(1, f'vW{b}') for b in range(4)]; vC = [V(1, f'vC{b}') for b in range(4)]; vD = [V(1, f'vD{b}') for b in range(4)]
    vT = [[V(1, f'vT{a}{k}') for k in range(3)] for a in range(2)]; vU = [[V(1, f'vU{a}{k}') for k in range(3)] for a in range(2)]
    vTh = [V(1, f'vTh{k}') for k in range(3)]
    vXr = [[V(1, f'vXr{a}{k}') for k in range(2)] for a in range(2)]; vXm = [V(1, f'vXm{a}') for a in range(2)]
    vBq = [[V(1, f'vBq{a}{k}') for k in range(2)] for a in range(2)]; vBr = [V(1, f'vBr{a}') for a in range(2)]
    vCr = [V(1, f'vCr{c}') for c in range(5)]
    def trd(bases, qa, qb, extra):
        def mk(dst):
            def f(addr):
                r = []
                for h, qq in enumerate((qa, qb)):
                    A_ = qq * QS + addr + extra
                    r.append(I('ds_read_b64_tr_b16', dst[2*h:2*h+2], bases[A_ >> 16], mods=f'offset:{A_ & 0xffff}'))
                return r
            return f
        return mk
    def tfrag(unit, bases, sel, extra, grp, rate=1, lat=None):
        d = A(4, 'f' + unit.name); return Frag(d, unit, 2, trd(bases, sel, sel + 2, extra)(d), grp, rate, lat or o['lat'])
    def bfrag(d, unit, base, extra, grp, lat=None):
        return Frag(d, unit, 1, lambda addr: [I('ds_read_b128', d, base, mods=f'offset:{addr + extra}')], grp, 1, lat or o['lat'])
    sc = Sched(); W = sc.W; W.vgap = o['vgap']
    NS = o['S']
    Xf = [[(A if 4 * k + tt < o['xa'] else V)(4, f'X{k}_{tt}') for tt in range(4)] for k in range(18)]
    uX = [Unit(f'X{s}', 4, None, True) for s in range(9)]
    for s in range(NS): uX[s].pre = True
    uB = [Unit(f'B{s}', 2, mkdma(vB, sB, 'Bb', 128 * s), False) for s in range(9)]
    uH = [Unit(f'H{s}', 2, mkdma(vH, sW, 'hb', 64 * 9216 * s), False) for s in range(9)]
    uR = [Unit(f'R{n}', 1, mkdma(vB[:1], sB, 'Rb' if n < 4 else 'Rc', 256 * n), False) for n in range(5)]
    accb = [[V(4, f'b{u}_{tt}') for tt in range(4)] for u in range(2)]; accm = V(4, 'bm')
    acch = [[V(4, f'h{m}_{tt}') for tt in range(4)] for m in range(2)]
    idn = V(2, 'idn'); Cm = [V(4, f'Cm{g}') for g in range(4)]
    def center(g, s):
        T = [V(4, 'T0'), V(4, 'T1')]
        ti = [I(TINY, T[h], idn, xr[g][s][2*h:2*h+2], Cm[g]) for h in range(2)]
        cv = [I('v_cvt_pk_bf16_f32', xr[g][s][e], T[e >> 1][2*(e&1)], T[e >> 1][2*(e&1)+1]) for e in range(4)]
        return ti, cv
    vXw = [V(1, f'vXw{g}') for g in range(4 if o['rot'] else 1)]
    def xwrite(g, s):
        return I('ds_write_b128', vXw[g] if o['rot'] else vXw[0], xr[g][s], mods=f'offset:{uX[s].addr + (0 if o["rot"] else 1024 * g)}', cost=2, tag=f'xw{s}')
    ctr = {}
    for s in range(9):
        ml = []
        for kp in range(2):
            k = 2 * s + kp; z = lambda a: 0 if k == 0 else a
            fx = [bfrag(Xf[k][tt], uX[s], vXr[kp][tt >> 1], (tt & 1) * 2048, ('a', k)) for tt in range(4)]
            fbs = [bfrag(A(4, 'fb'), uB[s], vBr[kp], u * 1024, ('a', k)) for u in range(2)]
            for u in range(2):
                for tt in range(4): ml.append(M(I(MF, accb[u][tt], Xf[k][tt], fbs[u].dst, z(accb[u][tt])), fx[tt], fbs[u]))
            fm = bfrag(A(4, 'fxm'), uX[s], vXm[kp], 0, ('b', k)); fr = bfrag(A(4, 'fbm'), uR[s >> 1], vBq[kp][s & 1], 0, ('b', k))
            ml.append(M(I(MF, accm, fm.dst, fr.dst, z(accm)), fm, fr))
            for m in range(2):
                f = tfrag(uH[s], vTh, m, kp * 1024, ('b', k))
                for tt in range(4): ml.append(M(I(MF, acch[m][tt], f.dst, Xf[k][tt], z(acch[m][tt])), f))
        if NS <= s + 2 < 9:
            for g in range(3, -1, -1):
                ti, cv = center(g, s + 2); ctr[(g, s + 2)] = (ti, cv)
                ml[5 + 8 * g:5 + 8 * g] = [M(x, tiny=True) for x in ti]
        sc.feed(ml)
    gA = len(W.m)
    E = o['edge']
    order = [(0, k) for k in range(E)] + [(1, k) for k in range(E)] + [(t, k) for k in range(E, 18 - E) for t in range(2)] + \
            [(0, k) for k in range(18 - E, 18)] + [(1, k) for k in range(18 - E, 18)]
    acc1 = []; gI = []; last1 = {}; first1 = {}
    for it in range(4):
        gI.append(len(W.m))
        uW = [Unit(f'W{it}_{s}', 4, mkdma(vW, sW, 'fb', 128 * it + 64 * 9216 * s), True if (it, s) == (0, 0) else None) for s in range(9)]
        ac = [[[V(4, f'g{it}{m}{t}{tt}') for tt in range(4)] for t in range(2)] for m in range(2)]; acc1.append(ac)
        for n, (t, k) in enumerate(order):
            ml = []
            for m in range(2):
                f = tfrag(uW[k >> 1], vT[t], m, (k & 1) * 2048, ('w', it, n >> 1))
                for tt in range(4): ml.append(M(I(MF, ac[m][t][tt], f.dst, Xf[k][tt], 0 if k == 0 else ac[m][t][tt]), f))
            if k == 0: first1[(it, t)] = len(W.m)
            sc.feed(ml)
            if k == 17: last1[(it, t)] = len(W.m) - 1
    gC = len(W.m)
    hq = [[A(4, f'hq{k}_{t}') for t in range(2)] for k in range(9)]
    uC = [[Unit(f'C{g}{L}', 4 if g < 2 else 1, mkdma(vC if g < 2 else vC[:1], sC, 'Cc' if g == 2 else 'Ca',
                (4 * 18432 if g == 1 else 0) + 128 * L), (True if L == 0 and g < 2 else False)) for L in range(2)] for g in range(3)]
    vCl = [V(1, f'vCl{b}') for b in range(3)]; vE = [V(1, f'vE{b}') for b in range(2)]
    uCl = Unit('Cl', 3, mkdma(vCl, sC, 'Cb', 0), False)
    accs = [[V(4, f's{t}_{a}') for a in range(2)] for t in range(9)]; lastS = {}
    for t in range(9):
        ml = []
        for k in range(9):
            if k < 8: f = bfrag(A(4, 'fc'), uC[t >> 2][k >> 2], vCr[k & 3], (t & 3) * 1024, ('c', t, k // 3))
            else: f = bfrag(A(4, 'fc'), uCl, vCr[4], t * 256, ('c', t, k // 3))
            for a in range(2): ml.append(M(I(MF, accs[t][a], f.dst, hq[k][a], 0 if k == 0 else accs[t][a]), f))
        sc.feed(ml); lastS[t] = len(W.m) - 1
    g2 = len(W.m)
    Hh = [V(8, f'Hh{x}') for x in range(4)]
    Hq = [[[A(4, f'Hq{x}{kl}{a}') for a in range(2)] for kl in range(8)] + [[Hh[x][0:4], Hh[x][4:8]]] for x in range(4)]
    accd = [[V(4, f'd{t}_{a}') for a in range(2)] for t in range(12)]; seen = set(); lastD = {}; useH = {}
    uD = [[Unit(f'D{x}{it}', 4, mkdma(vD, sD, f'Pf{x}', it * 64 * 1152)) for it in range(4)] + [Unit(f'D{x}h', 2, mkdma(vD[:2], sD, f'Ph{x}', 0))] for x in range(4)]
    uL = [Unit(f'L{it}', 2, mkdma(vD[:2], sD, 'L8', it * 64 * 1152)) for it in range(4)] + [Unit('Lh', 2, mkdma(vD[:2], sD, 'L8h', 0))]
    uD[0][4].brk = True
    uE = [[Unit(f'E{x}{L}', 4, mkdma(vD[:2] + vE, sD, f'Pl{x}', 128 * 1152 + 128 * L), x == 1) for L in range(2)] for x in range(4)]
    gcnt = [0]
    def dstep(x, kl, t):
        it, kk = kl >> 1, kl & 1
        if x and it in (2, 3): f = tfrag(uE[x][t >> 2], vU[t & 1], kk, (it - 2) * 2048 + ((t >> 1) & 1) * 512, ('d', gcnt[0] >> 2), 2)
        elif t < 8: f = tfrag(uD[x][it], vU[t & 1], t >> 2, kk * 2048 + ((t >> 1) & 1) * 512, ('d', gcnt[0] >> 2), 2)
        else: f = tfrag(uL[it], vU[t & 1], kk, ((t >> 1) & 1) * 512, ('d', gcnt[0] >> 2), 2)
        gcnt[0] += 1
        useH.setdefault((x, kl), len(W.m))
        sc.feed([M(I(MF, accd[t][a], f.dst, Hq[x][kl][a], accd[t][a] if t in seen else 0), f) for a in range(2)])
        seen.add(t); lastD[t] = len(W.m) - 1
    seqH = [(x, 8) for x in range(4)] + [(x, 2 * it + kk) for it in range(2) for x in range(4) for kk in range(2)] + [(0, kl) for kl in range(4, 8)]
    for x, kl in seqH:
        for t in range(12 if x == 0 else 8): dstep(x, kl, t)
    g3 = len(W.m)
    lateH = [(x, kl) for x in (1, 2, 3) for kl in range(4, 8)]
    for t in range(8):
        for x, kl in lateH: dstep(x, kl, t)
    gE = len(W.m)
    gSetC = gI[3] + 40; gSetD = gI[3] + 170
    for u in sum(uC, []) + [uCl]: u.early = gSetC
    for u in sum(uD, []) + uL: u.early = gSetD
    sc.plan(lambda g: o['ep'], lambda g: 99)
    spacing = lambda g: o['sp']
    sc.allocate(o['p0max'], spacing)
    bar = sc.bar
    col = p.v('v_and_b32', 15, l, name='col'); l16 = p.v('v_lshlrev_b32', 4, l, name='l16')
    vAg = p.v('v_lshlrev_b32', 8, col, name='vAg'); big = p.v('v_mov_b32', BIG)
    p('v_cmp_gt_u32', 'vcc', 16, l); vAs = p.v('v_cndmask_b32', big, vAg, 'vcc', name='vAs')
    p('v_cmp_gt_u32', 'vcc', 16, v0); vAm = p.v('v_cndmask_b32', big, vAg, 'vcc', name='vAm')
    p('v_cmp_ne_u32', 'vcc', 0, v0); vM0 = p.v('v_cndmask_b32', 0, big, 'vcc', name='vM0')
    sa('s_lshl1_add_u32', 't0', mt, tw); sa('s_lshl_b32', 't1', sG_, 13); sa('s_lshl2_add_u32', 'a0', S('t0'), S('t1')); sa('s_add_u32', 'a1', S('a0'), 4096)
    sa('s_lshl1_add_u32', 't0', jg, Tr); sa('s_add_u32', 't0', S('t0'), 64); sa('s_lshl_b32', 't1', S('t0'), 12)
    sa('s_lshl1_add_u32', 't0', mt, je); sa('s_lshl2_add_u32', 'a2', S('t0'), S('t1'))
    assert AG_OFF == 0
    sa('s_lshl_b32', 't0', mt, 7); sFr = sa('s_add_u32', 'Fr', S('t0'), FL_OFF); sFl = sa('s_lshl2_add_u32', 'Fl', j, sFr)
    m1 = p.v('v_mov_b32', -1); zz = V(4)
    for e in range(4): p('v_mov_b32', zz[e], 0)
    sa('s_mul_i32', 't0', 's2', 36); t = p.v('v_add_u32', S('t0'), v0); t2 = p.v('v_and_b32', -8, t); t = p.v('v_add_lshl_u32', t, t2, 4)
    p('v_cmp_gt_u32', 'vcc', 36, v0); t = p.v('v_cndmask_b32', big, t, 'vcc')
    ini = P()
    for u in range(3): ini('buffer_store_dword', m1, vAm if u == 2 else vAs, sS, S(f'a{u}'), mods='offen offset:128 sc1', tag='init', cost=2)
    ini('buffer_store_dwordx4', zz, t, sS, 0, mods='offen sc1', tag='init', cost=2)
    ini('buffer_store_dword', zz[0], vM0, sS, sFl, mods='offen sc1', tag='init', cost=2)
    t = p.v('v_mul_u32_u24', 9216, rm); p('v_add_u32', vW[0], t, c64)
    for b in (1, 2, 3): p('v_add_u32', vW[b], b * (16 * 9216 - 1024), vW[0])
    vm = [[x] for x in vm]
    for u in sc.p0:
        d_ = u.dma(u.addr, f'E{u.epoch}'); vm += [d_[:3]] + [[x] for x in d_[3:]]
    t = p.v('v_lshlrev_b32', 6, row); l3 = p.v('v_and_b32', 3, l); t = p.v('v_lshl_add_u32', l3, 3, t); tp0 = p.v('v_lshl_add_u32', r2, 5, t)
    sa('s_lshl_b32', 'f9', fw, 9); t = p.v('v_lshl_add_u32', hi, 10, tp0); p('v_add_u32', vT[0][0], S('f9'), t); p('v_xor_b32', vT[1][0], 32, vT[0][0])
    sa('s_lshl_b32', 't0', fw, 5); t = p.v('v_lshl_add_u32', hi, 9, tp0); p('v_xor_b32', vTh[0], S('t0'), t)
    for r in (vT[0], vT[1], vTh):
        for k in (1, 2): p('v_add_u32', r[k], 65536 * k, r[0])
    ih = p.v('v_bfe_u32', l, 3, 1); i1 = p.v('v_bfe_u32', l, 1, 3); t = p.v('v_xor_b32', q, i1); t = p.v('v_lshlrev_b32', 4, t); L0 = p.v('v_lshl_add_u32', sl, 7, t)
    LX = p.v('v_lshl_add_u32', ih, 10, L0)
    sa('s_mul_i32', 't0', tw, 2 * QS); p('v_add_u32', vXr[0][0], S('t0'), LX); p('v_add_u32', vXr[0][1], QS, vXr[0][0])
    sa('s_lshl1_add_u32', 't0', je, tw); sa('s_mul_i32', 't0', S('t0'), QS); sa('s_lshl2_add_u32', 't0', S('f9'), S('t0')); p('v_add_u32', vXm[0], S('t0'), LX)
    t = p.v('v_mul_u32_u24', QS, ih); p('v_add_u32', vBq[0][0], t, L0); p('v_add_u32', vBq[0][1], 2 * QS, vBq[0][0])
    sa('s_mul_i32', 't0', fw, 2 * QS); p('v_add_u32', vBr[0], S('t0'), vBq[0][0])
    for a, b in ((vXr[1][0], vXr[0][0]), (vXr[1][1], vXr[0][1]), (vXm[1], vXm[0]), (vBq[1][0], vBq[0][0]), (vBq[1][1], vBq[0][1]), (vBr[1], vBr[0])): p('v_xor_b32', a, 64, b)
    vQ = p.v('v_add_u32', sQ, l16, name='vQ')
    if o['rot']:
        sa('s_lshl_b32', 't0', jq, 10); p('v_add_u32', vXw[0], S('t0'), vQ)
        for g in (1, 2, 3): p('v_xor_b32', vXw[g], g * 1024, vXw[0])
    else: vXw[0] = vQ
    t = p.v('v_lshlrev_b32', 4, b0); c_ = p.v('v_mov_b32', 0x3f80); one = p.v('v_lshlrev_b32', t, c_)
    p('v_cmp_eq_u32', 'vcc', 0, b1); p('v_cndmask_b32', idn[0], 0, one, 'vcc'); p('v_xor_b32', idn[1], idn[0], one)
    asum = V(4, 'asum'); t = p.v('v_bfe_u32', l, 2, 2); c_ = p.v('v_mov_b32', 0x3f803f80); p('v_cmp_eq_u32', 'vcc', t, q)
    for e in range(4): p('v_cndmask_b32', asum[e], 0, c_, 'vcc')
    p('v_cmp_ne_u32', S('k1', 2), 0, b0); p('v_cmp_ne_u32', S('k2', 2), 0, b1)
    sa('s_mov_b32', 'rc', o['rc'])
    p.append(KEEP(pfd)); p.extend(st.t(4))
    c = P()
    sgn = c.v('v_lshlrev_b32', 31, ih)
    vKw = c.v('v_lshl_add_u32', l, 3, sQ)
    lre, lim, ldt = [c.v('v_lshlrev_b32', 16, x) for x in raw]
    t = c.v('v_mul_f32', LOG2E, ldt); dt = c.v('v_exp_f32', t)
    den = c.v('v_mul_f32', lre, lre); c('v_fmac_f32', den, lim, lim); rd = c.v('v_rcp_f32', den)
    dt = c.v('v_cvt_pk_bf16_f32', dt, dt); dt = c.v('v_and_b32', 0xffff0000, dt)
    xr_ = c.v('v_mul_f32', dt, lre); xi = c.v('v_mul_f32', dt, lim)
    t = c.v('v_mul_f32', LOG2E, xr_); mag = c.v('v_exp_f32', t)
    t = c.v('v_mul_f32', 1 / (2 * math.pi), xi); t = c.v('v_fract_f32', t)
    cs = c.v('v_cos_f32', t); sn = c.v('v_sin_f32', t)
    rd = c.v('v_add_f32', rd, rd)
    k1 = V(2); c('v_mul_f32', k1[0], mag, cs); b = c.v('v_mul_f32', mag, sn)
    am = c.v('v_add_f32', -1.0, k1[0])
    cr = c.v('v_mul_f32', am, lre); c('v_fmac_f32', cr, b, lim)
    ci = c.v('v_mul_f32', b, lre); ci = c.v('v_fma_f32', Neg(am), lim, ci)
    k0 = V(2); cr = c.v('v_mul_f32', cr, rd); c('v_mul_f32_e64', k0[1], Neg(ci), rd); c('v_xor_b32', k0[0], sgn, cr)
    c('v_xor_b32', k1[1], sgn, b)
    CI = {'cf': 0, 'l1': 1, 'l16': 2, 'l64': 3, 'l512': 4}
    def kput(nm, r): c('ds_write_b64', vKw, r, mods=f'offset:{CST + 512 * CI[nm]}')
    kput('cf', k0); kput('l1', k1); cur = k1
    for n in range(1, 10):
        nx = V(2); a2 = c.v('v_mul_f32', cur[0], cur[0]); t = c.v('v_add_f32', cur[0], cur[0])
        c('v_fma_f32', nx[0], Neg(cur[1]), cur[1], a2); c('v_mul_f32', nx[1], t, cur[1]); cur = nx
        if n in (4, 6, 9): kput(f'l{1<<n}', cur)
    pend = list(c)
    sS_ = [V(4, f'sum{g}') for g in range(4)]; sQ_ = [V(4, f'sq{g}') for g in range(4)]; nmean = []; qsum = []
    def post(g):
        r = P(); a = sS_[g][0]
        for m in ('quad_perm:[1,0,3,2]', 'quad_perm:[2,3,0,1]', 'row_half_mirror'): a = r.v('v_add_f32_dpp', a, a, mods=m + DM)
        a = r.v('v_mul_f32', -1.0 / 576, a); nmean.append(a); t = r.v('v_cvt_pk_bf16_f32', a, a)
        for e in range(4): r('v_and_b32', Cm[g][e], 0xffff0000, t)
        r2_ = P(); b = r2_.v('v_mov_b32_dpp', sQ_[g][0], mods='quad_perm:[0,0,0,0]' + DM)
        for e in (1, 2, 3): b = r2_.v('v_add_f32_dpp', sQ_[g][e], b, mods=f'quad_perm:[{e},{e},{e},{e}]' + DM)
        b = r2_.v('v_add_f32_dpp', b, b, mods='row_half_mirror' + DM); qsum.append(b)
        out = inter([r, r2_]); prev = None
        for s in range(NS):
            ti, cv = center(g, s); out += ti
            if prev: out += prev
            prev = cv + [xwrite(g, s)]
        return out + prev
    for g in range(4):
        per = -(-len(pend) // 9)
        for s in range(9):
            x = xr[g][s]; f = pend[:per]; pend = pend[per:]
            p(TINY, sQ_[g], x[0:2], x[0:2], 0 if s == 0 else sQ_[g]); p(MF, sS_[g], asum, x, 0 if s == 0 else sS_[g])
            p.extend(f[:2]); p(TINY, sQ_[g], x[2:4], x[2:4], sQ_[g]); p.extend(f[2:])
            if vm: p.extend(vm.pop(0))
        p.extend(st.t(5 + g))
        pend = post(g)
    p.extend(pend)
    if o['pf'] & 3: p.append(KEEP(pfx))
    for x in vm: p.extend(x)
    sc.xlg[0].append(f'xw{NS-1}')
    def R(items, g):
        items[0].ready = g; return items
    def Dl(items, g):
        items[-1].dead = g; return items
    qc = []; qw = []
    for s in range(NS, 9):
        e = uX[s].epoch
        for g in range(4):
            ti, cv = ctr[(g, s)]; cv[0].deps = [(ti[1], 2)]; cv[-1].dead = ti[1].gap + 7; qc += cv
            x = xwrite(g, s); x.ready = bar[uX[s].at] + 1; x.deps = [(cv[-1], 0)]; x.dead = bar[e] - 9 + 2 * g; qw.append(x)
        sc.xlg[e].append(f'xw{s}')
    W.queue(qc, 45, 'ctr'); W.queue(qw, 46, 'xw')
    qe = P()
    sa('s_lshl1_add_u32', 'e0', mt, tw, q=qe); sa('s_mul_i32', 'e0', S('e0'), 288, q=qe); sa('s_mul_i32', 'e1', j, 9, q=qe); sa('s_add_u32', 'e0', S('e0'), S('e1'), q=qe)
    sa('s_lshl1_add_u32', 'e0', S('e0'), fw, q=qe); sa('s_lshl_b32', 'e0', S('e0'), 10, q=qe); sa('s_add_u32', 'e0', S('e0'), H_OFF + 16384, q=qe)
    sa('s_lshl1_add_u32', 'Hs', S('f9'), S('e0'), q=qe)
    sa('s_add_u32', 'e1', S('e0'), 144 * 2048, q=qe)
    qe[0].ready = gA - 60
    def epi(g, u, dst, ready):
        n0 = len(qe)
        for e in range(4): qe('v_mul_f32', g[e], g[e], u[e])
        for e in range(2): qe('v_cvt_pk_bf16_f32', dst[e], g[2 * e], g[2 * e + 1])
        qe[n0].ready = ready
    def hst(r, so, off, tag): return qe('buffer_store_dwordx4', r, l16, sS, so, mods=f'offen offset:{off} sc1', cost=2, tag=tag)
    for a in range(2):
        r = V(4, 'Hh')
        for k in range(2): epi(acch[0][2*a+k], acch[1][2*a+k], r[2*k:2*k+2], gA - 4 + 2*a + k + 3)
        hst(r, S(f'e{a}'), 0, 'H0')
    qe[-1].dead = first1[(0, 1)] + 8
    hlast = {}
    for it in range(4):
        Hf = [V(4, f'Hf{tt}') for tt in range(4)]; ac = acc1[it]
        sa('s_add_u32', 'e0', S('Hs'), it * 4096 - 16384, q=qe); sa('s_add_u32', 'e1', S('Hs'), it * 4096 - 16384 + 144 * 2048, q=qe)
        for t in range(2):
            for tt in range(4):
                epi(ac[0][t][tt], ac[1][t][tt], Hf[tt][2*t:2*t+2], last1[(it, t)] + tt)
                if it < 3: qe[-1].dead = first1[(it + 1, t)] + tt - 1 + o.get('eslack', 0)
                if t == 1: hlast[it] = hst(Hf[tt], S(f'e{tt >> 1}'), (tt & 1) * 1024, f'H{it}')
    def part(ac, so, off, ready, tag):
        r = V(4, 'pk'); n0 = len(qe)
        for e in range(4): qe('v_cvt_pk_bf16_f32', r[e], ac[e >> 1][2*(e&1)], ac[e >> 1][2*(e&1)+1])
        qe[n0].ready = ready + 3
        return hst(r, so, off, tag)
    for t in range(9):
        if t % 4 == 0: sa('s_add_u32', 'e0', S('Pb'), (8 + t) * 1024, q=qe)
        slast = part(accs[t], S('e0'), (t & 3) * 1024, lastS[t], 'sp')
    for u in range(4):
        sa('s_add_u32', 'e0', S('P8'), u * 4 * FIN, q=qe); part(accd[8 + u], S('e0'), 0, lastD[8 + u], 'dp')
    sa('s_add_u32', 'e0', S('Pb'), 4096, q=qe)
    dst_ = []
    for t in range(8): dst_.append(part(accd[t], S('Pb') if t < 4 else S('e0'), (t & 3) * 1024, lastD[t], 'dp'))
    W.queue(qe, 40, 'epi')
    qs = P()
    def sb(op, name, *a): return sa(op, name, *a, q=qs)
    sb('s_lshl2_add_u32', 'u0', mt, jq); sb('s_lshl2_add_u32', 'u1', S('u0'), w); sb('s_lshl2_add_u32', 'u1', S('u1'), jg); sb('s_mul_i32', 'u1', S('u1'), SRC); sb('s_add_u32', 'Pb', S('u1'), PX_OFF)
    sb('s_lshl2_add_u32', 'u0', S('u0'), jg); sb('s_mul_i32', 'u0', S('u0'), FIN); sb('s_lshl_b32', 'u1', w, 8); sb('s_add_u32', 'u0', S('u0'), S('u1')); sb('s_add_u32', 'Pc', S('u0'), PX_OFF)
    sb('s_mul_i32', 'u0', jq, 4 * FIN - 1024); sb('s_sub_u32', 'u0', S('Pb'), S('u0')); sb('s_add_u32', 'P8', S('u0'), 17 * 1024)
    qs[0].ready = gI[0] + 20
    sb('s_mul_i32', 'u0', jq, 8 * 18432); sb('s_lshl_b32', 'u1', jg, 8); sb('s_add_u32', 'Ca', S('u0'), S('u1'))
    sb('s_lshl_b32', 'u2', jg, 5); sb('s_add_u32', 'u0', S('u0'), S('u2')); sb('s_add_u32', 'Cb', S('u0'), 1024)
    sb('s_mul_i32', 'u0', jq, 18432); sb('s_add_u32', 'u0', S('u0'), 32 * 18432); sb('s_add_u32', 'Cc', S('u0'), S('u1'))
    sb('s_lshl2_add_u32', 'u3', mt, w); sb('s_mul_i32', 'u3', S('u3'), 144 * 2048); sb('s_add_u32', 'u3', S('u3'), H_OFF)
    sb('s_mul_i32', 'u2', fw, 36864 - 128)
    for x in range(4):
        sb('s_add_u32', 'u0', jq, x); sb('s_and_b32', 'u0', S('u0'), 3); sb('s_and_b32', 'u1', S('u0'), 1); sb('s_lshl2_add_u32', 'u0', jg, S('u0'))
        sb('s_mul_i32', f'Hp{x}', S('u0'), 18432); sb('s_add_u32', f'Hp{x}', S(f'Hp{x}'), S('u3'))
        sb('s_mul_i32', 'u0', S('u0'), 9); sb('s_add_u32', f'Pf{x}', S('u0'), S('u1')); sb('s_mul_i32', f'Pf{x}', S(f'Pf{x}'), 36864)
        sb('s_xor_b32', 'u1', S('u1'), 1); sb('s_lshl3_add_u32', 'u0', S('u1'), S('u0')); sb('s_mul_i32', f'Ph{x}', S('u0'), 36864)
        if x: sb('s_add_u32', f'Pl{x}', S(f'Pf{x}'), S('u2'))
    sb('s_lshl_b32', 'u0', jq, 8); sb('s_sub_u32', 'u0', 1024, S('u0')); sb('s_add_u32', 'u0', S('u0'), S('u2'))
    sb('s_add_u32', 'L8', S('Pf0'), S('u0')); sb('s_add_u32', 'L8h', S('Ph0'), S('u0'))
    n0 = len(qs)
    t = qs.v('v_and_b32', 7, col); t = qs.v('v_xor_b32', t, q); t2 = qs.v('v_lshlrev_b32', 4, t)
    sb('s_lshl_b32', 'u0', tw, 6); sb('s_mul_i32', 'u1', tw, 8 * 1152)
    t = qs.v('v_lshrrev_b32', 7, l16); t = qs.v('v_mul_u32_u24', 1152, t); t = qs.v('v_xad_u32', t2, S('u0'), t); qs('v_add_u32', vC[0], S('u1'), t)
    for b in (1, 2, 3): qs('v_add_u32', vC[b], b * (18432 - 1024), vC[0])
    t = qs.v('v_lshrrev_b32', 1, col); t = qs.v('v_mul_u32_u24', 1152, t); t2 = qs.v('v_and_b32', 16, l16); t = qs.v('v_add3_u32', t, t2, S('u1'))
    t2 = qs.v('v_mul_u32_u24', 18432, q); qs('v_add_u32', vCl[0], t, t2); qs('v_add_u32', vCl[1], 4 * 18432 - 1024, vCl[0])
    sb('s_mul_i32', 'u0', jq, 7 * 18432); sb('s_sub_u32', 'u0', 32 * 18432 - 2048, S('u0')); qs('v_add_u32', vCl[2], S('u0'), t)
    qs[n0].ready = gI[3] - 60; qs[-1].dead = gSetC - 1
    sb('s_lshl1_add_u32', 'u0', jq, fw); sb('s_lshl_b32', 'u0', S('u0'), 7); sb('s_mul_i32', 'u1', tw, 16 * 1152); sb('s_add_u32', 'u0', S('u0'), S('u1'))
    t = qs.v('v_bfe_u32', l16, 6, 3); t = qs.v('v_mul_u32_u24', 1152, t); t2 = qs.v('v_and_b32', 127, vW[0]); qs('v_add3_u32', vD[0], t, t2, S('u0'))
    for b, k in ((1, 8192), (2, 36864 - 2048), (3, 46080 - 3072)): qs('v_add_u32', vD[b], k, vD[0])
    qs[-1].dead = gSetD - 1
    t = qs.v('v_bfe_u32', col, 1, 3); t4 = qs.v('v_and_b32', 1, q); t = qs.v('v_xor_b32', t, t4); t = qs.v('v_lshlrev_b32', 4, t)
    t5 = qs.v('v_and_b32', 7, col); t = qs.v('v_lshl_add_u32', t5, 7, t)
    t2 = qs.v('v_lshrrev_b32', 3, col); t3 = qs.v('v_lshrrev_b32', 1, q); t2 = qs.v('v_lshl_add_u32', t2, 1, t3); t2 = qs.v('v_mul_u32_u24', QS, t2)
    qs('v_add_u32', vCr[0], t, t2)
    for k in (1, 2, 3): qs('v_xor_b32', vCr[k], 32 * k, vCr[0])
    t = qs.v('v_lshl_add_u32', t5, 1, t4); qs('v_lshl_add_u32', vCr[4], t, 4, t2)
    qs[-1].dead = gC - 40
    mm = V(4, 'mm')
    for e in range(4): qs('v_mov_b32', mm[e], -1)
    prev = None
    for n in range(12):
        if n == 4: sb('s_add_u32', 'u0', S('Pb'), 4096)
        if n >= 8: sb('s_add_u32', 'u0', S('P8'), (n - 8) * 4 * FIN)
        x = qs('buffer_store_dwordx4', mm, l16, sS, S('Pb') if n < 4 else S('u0'), mods=f'offen offset:{(n & 3) * 1024 if n < 8 else 0} sc1', cost=2, tag='sent')
        if prev: x.deps = [(prev, o.get('sentgap', 12))]
        x.soft = 3; prev = x
    n0 = len(qs)
    for a in range(2):
        for k in range(3): qs('v_subrev_u32', vU[a][k], S('f9'), vT[a][k])
    qs('v_add_u32', vE[0], 73728 - 2048, vD[0]); qs('v_add_u32', vE[1], 73728 + 9216 - 3072, vD[0])
    qs[n0].ready = gC; qs[-1].dead = g2 - 40
    W.queue(qs, 5, 'setup')
    qp = P()
    if o['pf'] & 4:
        for it in range(o['pw0'], 4):
            pw[it].ready = o['pwg'][it]; pw[it].soft = 1; qp.append(pw[it])
    if o['pf'] & 8:
        def pfl(v, srd, so):
            x = qp('buffer_load_dword', pfw, v, srd, so, mods='offen', cost=2); x.d = []; x.soft = 1
        n0 = len(qp)
        t = qp.v('v_lshrrev_b32', 4, l16); t = qp.v('v_min_u32', 26, t); t2 = qp.v('v_mul_u32_u24', 43, t); t2 = qp.v('v_lshrrev_b32', 7, t2)
        t3 = qp.v('v_mul_u32_u24', 3, t2); t = qp.v('v_sub_u32', t, t3); t2 = qp.v('v_mul_u32_u24', 9, t2)
        t3 = qp.v('v_lshrrev_b32', 1, t); t3 = qp.v('v_lshlrev_b32', 3, t3); sa('s_lshl_b32', 'p0', jg, 1, q=qp); t = qp.v('v_add_u32', S('p0'), t); t = qp.v('v_max_u32', t, t3)
        t = qp.v('v_add_lshl_u32', t, t2, 7); sa('s_mul_i32', 'p0', n2, 9 * 1152, q=qp)
        pfl(t, sC, S('p0'))
        qp[n0].ready = o['pcg']; n0 = len(qp)
        sa('s_lshl_b32', 'p0', jg, 6, q=qp); sa('s_add_u32', 'p0', S('p0'), n2, q=qp); sa('s_lshl1_add_u32', 'p0', S('p0'), fw, q=qp); sa('s_mul_i32', 'p0', S('p0'), 81 * 128, q=qp)
        t = qp.v('v_lshlrev_b32', 3, l16); pfl(t, sD, S('p0'))
        t = qp.v('v_min_u32', 16 * 128, t); t = qp.v('v_add_u32', 8192, t); pfl(t, sD, S('p0'))
        qp[n0].ready = o['pdg']
    qp.append(KEEP(pfw)); qp[-1].ready = gE - 10
    W.queue(qp, 48, 'pf')
    m = P(); stubs = []
    def sm(op, name, *a): return sa(op, name, *a, q=m)
    def poll(name, loads, check, keep, lat, gap=None):
        ld = loads()
        if gap: ld[0].deps = [gap]
        m.extend(ld); return ld
    def verify(name, loads, check, keep, dep, q=None):
        q = m if q is None else q
        c = check()
        if dep: c[0].deps = [dep]
        br = I('s_cbranch_vccnz', f'L_r{name}'); br.deps = [(c[-1], 1)]
        q.extend(c); q.extend([br, LABEL(f'L_b{name}'), KEEP(*keep)])
        stubs.append((name, loads, check)); return br
    for x in ini: x.soft = 1
    m.extend(ini); eI = o['eI']; sc.xvm[eI].append('init'); m[-1].dead = bar[1] + 10
    def pick(x):
        a = m.v('v_cndmask_b32', x[0], x[1], S('k1')); b = m.v('v_cndmask_b32', x[2], x[3], S('k1')); return m.v('v_cndmask_b32', a, b, S('k2'))
    def rbf(x): t = m.v('v_cvt_pk_bf16_f32', x, x); return m.v('v_and_b32', 0xffff0000, t)
    nm = pick(nmean); qq = pick(qsum)
    t = m.v('v_mul_f32', nm, nm); c_ = m.v('v_mov_b32', 1.0 / 576); var = m.v('v_fma_f32', qq, c_, Neg(t)); var = m.v('v_max_f32', 0, var)
    nm = rbf(nm); var = rbf(var); var = rbf(m.v('v_add_f32', 1e-5, var)); t = m.v('v_sqrt_f32', var)
    g_ = m.v('v_bfe_u32', l16, 4, 2)
    if o['rot']: g_ = m.v('v_xor_b32', jq, g_)
    sd = rbf(t); rr = m.v('v_rcp_f32', sd)
    t = m.v('v_and_b32', 1, g_); t = m.v('v_lshl_add_u32', t, 5, tokl); t2 = m.v('v_and_b32', 2, g_); t = m.v('v_lshl_add_u32', t2, 1, t)
    t = m.v('v_add_lshl_u32', S('tk0'), t, 2); t2 = m.v('v_add_u32', STM - STR, t)
    m('ds_write_b32', t, rr, mods=f'offset:{STR}', tag='stat'); m('ds_write_b32', t2, nm, mods=f'offset:{STR}', tag='stat')
    eS = 4; m[-1].dead = bar[eS] - 4; sc.xlg[eS].append('stat')
    o1 = m.v('v_mov_b32', 1); sm('s_and_b32', 'm0_', 's2', 1); sm('s_lshl_b32', 'm0_', S('m0_'), 7)
    x = m('buffer_atomic_add', o1, vM0, sG, S('m0_'), mods='offen sc1', cost=2); x.ready = bar[eI] + 1; x.soft = 1
    n0 = len(m)
    sm('s_lshl_b32', 'm0_', tw, 8); vRr = m.v('v_lshl_add_u32', q, 6, S('m0_'))
    sm('s_lshl4_add_u32', 'm0_', je, w); sm('s_lshl_b32', 'm0_', S('m0_'), 4); vRm = m.v('v_lshl_add_u32', q, 6, S('m0_'))
    vK = m.v('v_lshl_add_u32', col, 3, sQ, name='vK'); vBp = m.v('v_lshlrev_b32', 2, col, name='vBp')
    vRg = [m.v('v_add_u32', RGO + 2 * QS * k, l16) for k in range(2)]
    m[n0].ready = gA - 40
    rq = [V(4, f'rq{k}') for k in range(5)]
    for k in range(4): m('ds_read_b128', rq[k], vRr, mods=f'offset:{STR + 16 * k}')
    m('ds_read_b128', rq[4], vRm, mods=f'offset:{STR}')
    def getc(u, nm_):
        r = V(2, f'{nm_}{u}'); m('ds_read_b64', r, vK, mods=f'offset:{CST + 512 * CI[nm_] + 128 * u}'); return r
    l1 = [getc(u, 'l1') for u in range(3)]
    n0 = len(m)
    for e in range(4): m('v_mul_f32', accm[e], accm[e], rq[4][e])
    m[n0].ready = gA - 5
    eR = sc.barafter(gA + 10)
    m('ds_write_b128', vQ, accm, mods=f'offset:{RGO}', cost=2, tag='rg'); m[-1].dead = bar[eR] - 4; sc.xlg[eR].append('rg')
    for u in range(2):
        for tt in range(4):
            for e in range(4): m('v_mul_f32', accb[u][tt][e], accb[u][tt][e], rq[tt][e])
    um = [V(4, f'um{tt}') for tt in range(4)]
    n0 = len(m)
    for tt in range(4): m('ds_read_b128', um[tt], vRg[tt >> 1], mods=f'offset:{(tt & 1) * QS}')
    m[n0].ready = bar[eR] + 1; lr = m[-1]
    U = [accb[0], accb[1], um]
    cf = [getc(u, 'cf') for u in range(3)]; l16c = [getc(u, 'l16') for u in range(3)]
    def horner(z, c, u, neg=False):
        d = V(1); return d, [I('v_fma_f32', d, c[0], z, u), I('v_fmac_f32_dpp', d, z, Neg(c[1]) if neg else c[1], mods=DPP8)]
    def coef(d, u, x): return [I('v_mul_f32', d, cf[u][0], x), I('v_fmac_f32_dpp', d, x, cf[u][1], mods=DPP8)]
    ch = []; ee = []
    for u in range(3):
        z = U[u][0][0]; c = []
        for k in range(1, 16):
            z, ins = horner(z, l1[u], U[u][k >> 2][k & 3], True); c += ins
        d = V(1); c += coef(d, u, z)
        ch.append(c); ee.append(d)
    c = inter(ch); c[0].deps = [(lr, 5)]; m.extend(c)
    eb = [V(4, f'eb{u}') for u in range(3)]
    for u in range(3):
        for k in range(4): m('ds_bpermute_b32', eb[u][k], vBp, ee[u], mods=f'offset:{64*k}')
    lastbp = m[-1]
    vCn = m.v('v_lshlrev_b32', 3, l16); vCn = m.v('v_and_b32', 128, vCn, name='vCn'); cn = V(1, 'cn')
    cnl = lambda: [I('buffer_load_dword', cn, vCn, sG, 0, mods='offen sc1', cost=2)]
    cnc = lambda: [I('v_cmp_gt_u32', 'vcc', 128, cn)]
    ldc = cnl(); m.extend(ldc)
    ch = []
    for u in range(3):
        z = eb[u][0]; c = []
        for k in range(1, 4):
            z, ins = horner(z, l16c[u], eb[u][k]); c += ins
        z2 = V(1); c.append(I('v_min_u32', z2, -2, z))
        c.append(I('buffer_store_dword', z2, vAm if u == 2 else vAs, sS, S(f'a{u}'), mods='offen offset:128 sc1', cost=2))
        ch.append(c)
    c = inter(ch); c[0].deps = [(lastbp, 5)]; m.extend(c); agst = m[-1]
    Z = [[V(4, f'z{u}_{tt}') for tt in range(4)] for u in range(3)]
    def coefs(u):
        for tt in range(4): m.extend(inter([coef(Z[u][tt][e], u, U[u][tt][e]) for e in range(4)]))
    coefs(0); coefs(1); coefs(2)
    t = m.v('v_lshlrev_b32', 5, q); vAl = m.v('v_sub_u32', vAg, t); vAl = m.v('v_add_u32', 96, vAl, name='vAl')
    brc = verify('c', cnl, cnc, [vCn, cn], (ldc[0], o['cntlat']))
    ag4 = [[V(4, f'ag{u}{h}') for h in range(2)] for u in range(3)]; mx = V(1, 'mx')
    ag = [[ag4[u][k >> 2][k & 3] for k in range(8)] for u in range(3)]
    agl = lambda: [I('buffer_load_dwordx4', ag4[u][h], vAl, sS, S(f'a{u}'), mods=f'offen offset:{16*h} sc1', cost=2) for u in range(3) for h in range(2)]
    def agc():
        al = [ag[u][k] for u in range(3) for k in range(8)]
        r = [I('v_max3_u32', mx, al[0], al[1], al[2])]
        for k in range(3, 23, 2): r.append(I('v_max3_u32', mx, mx, al[k], al[k + 1]))
        return r + [I('v_max_u32', mx, mx, al[23]), I('v_cmp_eq_u32', 'vcc', -1, mx)]
    lda = agl(); lda[0].deps = [(agst, o['aggap'])]; m.extend(lda)
    l64 = [getc(u, 'l64') for u in range(3)]
    bra = verify('a', agl, agc, [vAl, mx], (lda[-1], o['aglat']))
    ch = []; sq_ = []
    for u in range(3):
        z = ag[u][0]; c = []
        for k in range(1, 8):
            z, ins = horner(z, l64[u], ag[u][k]); c += ins
        ch.append(c); sq_.append(z)
    m.extend(inter(ch))
    l512 = [getc(u, 'l512') for u in range(3)]; l16c = [getc(u, 'l16') for u in range(3)]; l1 = [getc(u, 'l1') for u in range(3)]
    sb_ = [V(4, f'sb{u}') for u in range(3)]
    for u in range(3):
        for k in range(4): m('ds_bpermute_b32', sb_[u][k], vBp, sq_[u], mods=f'offset:{64*k}')
    lastbp = m[-1]
    for k in range(3): m('v_cmp_lt_u32', S(f'k{k}', 2), k, q)
    t = m.v('v_mul_u32_u24', 144, col); t = m.v('v_lshl_add_u32', q, 5, t); vHw = m.v('v_add_u32', sQ, t)
    t = m.v('v_lshrrev_b32', 6, l16); t = m.v('v_mul_u32_u24', 144, t); t2 = m.v('v_and_b32', 3, col); t = m.v('v_lshl_add_u32', t2, 5, t)
    vHr = m.v('v_add_u32', sQ, t); sm('s_lshl_b32', 'm0_', w, 3); vHm = m.v('v_add_u32', S('m0_'), vHr)
    zs = lambda u, k: Z[u][k >> 2][k & 3]
    ch = []; pk = [[V(4), V(4)] for u in range(3)]
    for u in range(3):
        z = sb_[u][3]; c = []
        for k in (2, 1, 0):
            z, ins = horner(z, l512[u], sb_[u][k]); c += ins
        for k in range(3):
            z2, ins = horner(z, l16c[u], eb[u][k]); c += ins
            z3 = V(1); c.append(I('v_cndmask_b32', z3, z, z2, S(f'k{k}'))); z = z3
        for k in range(16):
            c += [I('v_fmac_f32', zs(u, k), l1[u][0], z), I('v_fmac_f32_dpp', zs(u, k), z, l1[u][1], mods=DPP8)]; z = zs(u, k)
            if k == 9 or k == 15:
                h = k // 10
                for e in range(4): c.append(I('v_cvt_pk_bf16_f32', pk[u][h][e], zs(u, 8*h + 2*e), zs(u, 8*h + 2*e + 1)))
        ch.append(c)
    c = inter(ch); c[0].deps = [(lastbp, 5)]; m.extend(c)
    hf = [V(4, f'hf{tt}') for tt in range(4)]; hm = V(2, 'hm')
    for u in range(3):
        for h in range(2): m('ds_write_b128', vHw, pk[u][h], mods=f'offset:{MISC + 16*h}', cost=2)
        if u < 2:
            for tt in range(4): m('ds_read_b64_tr_b16', hf[tt][2*u:2*u+2], vHr, mods=f'offset:{MISC + 8*tt}')
        else: m('ds_read_b64_tr_b16', hm, vHm, mods=f'offset:{MISC}')
    lastrd = m[-1]
    sm('s_lshl1_add_u32', 'a0', mt, tw); sm('s_mul_i32', 'a0', S('a0'), 72); sm('s_add_u32', 'a0', S('a0'), sG_); sm('s_lshl_b32', 'a0', S('a0'), 11); sm('s_add_u32', 'a0', S('a0'), HF_OFF)
    sm('s_add_u32', 'a1', S('a0'), 36 * 2048)
    sm('s_lshl1_add_u32', 'a2', mt, je); sm('s_lshl1_add_u32', 'a2', S('a2'), tw); sm('s_mul_i32', 'a2', S('a2'), 36); sm('s_add_u32', 'a2', S('a2'), jg)
    sm('s_lshl1_add_u32', 'a2', S('a2'), fw); sm('s_lshl_b32', 'a2', S('a2'), 10); sm('s_lshl3_add_u32', 'a2', Tr, S('a2')); sm('s_add_u32', 'a2', S('a2'), HF_OFF + 32 * 2048)
    n0 = len(m)
    for tt in range(4): m('buffer_store_dwordx4', hf[tt], l16, sS, S(f'a{tt >> 1}'), mods=f'offen offset:{(tt & 1) * 1024} sc1', cost=2, tag='hs')
    m('buffer_store_dwordx2', hm, l16, sS, S('a2'), mods='offen sc1', cost=2, tag='hs')
    m[n0].deps = [(lastrd, 5)]; hsl = m[-1]
    e1 = sc.barafter(gI[2] + o['pub1']); sc.xvm[e1] += ['hs', 'H0', 'H1']; hsl.dead = bar[e1] - 30
    fl = V(1, 'fl')
    fll = lambda: [I('buffer_load_dword', fl, vBp, sS, sFr, mods='offen sc1', cost=2)]
    def publish(val, e):
        t = m.v('v_mov_b32', val); x = m('buffer_store_dword', t, vM0, sS, sFl, mods='offen sc1', cost=2); x.ready = bar[e] + 1; return x
    sm('s_lshl_b32', 'm0_', jg, 2); m('s_lshl_b32', S.sub('k0', 0), 15, S('m0_')); m('s_mov_b32', S.sub('k0', 1), 0)
    sm('s_lshl2_add_u32', 'a0', mt, w); sm('s_mul_i32', 'a0', S('a0'), 36); sm('s_add_u32', 'a1', S('a0'), jg); sm('s_lshl3_add_u32', 'a0', jg, S('a0'))
    sm('s_lshl_b32', 'a0', S('a0'), 11); sm('s_lshl_b32', 'a1', S('a1'), 11); sm('s_add_u32', 'a1', S('a1'), HF_OFF + 32 * 2048)
    pb1 = publish(1, e1)
    ld = fll(); ld[0].deps = [(pb1, o['chk1'])]; m.extend(ld)
    br1 = verify('f', fll, lambda: [I('v_cmp_gt_u32', 'vcc', 1, fl), I('s_nop', 3), I('s_and_b64', 'vcc', 'vcc', S('k0'))], [vBp, fl], (ld[0], o['lat1']))
    nld = [0]
    def gld(d, so, off, dead):
        x = m('buffer_load_dwordx4', d, l16, sS, so, mods=f'offen offset:{off} sc1', cost=2); x.dead = dead; x.soft = 1
        if ref(d).vr.cls == 'a' and nld[0] < o['xa']:
            x.ready = gI[3] + 16 * max(nld[0] // 4 + 1, E) + 2; nld[0] += 1
        return x
    for k in range(9):
        if k % 2 == 0 and k < 8: sm('s_add_u32', 'a2', S('a0'), HF_OFF + k * 2048)
        for a in range(2): hl = gld(hq[k][a], S('a2') if k < 8 else S('a1'), (k & 1) * 2048 + a * 1024, gC - 30)
    def Hld(x, kl):
        if kl & 1 == 0: sm('s_add_u32', 'a2', S(f'Hp{x}'), kl * 2048)
        return [gld(Hq[x][kl][a], S('a2'), (kl & 1) * 2048 + a * 1024, useH[(x, kl)] - 40) for a in range(2)]
    qx = P()
    for x, kl in seqH[:20]:
        r = Hld(x, kl)
        if kl == 8:
            r[0].ready = gC + 2
            for e in range(2): qx('v_swap_b32', Hh[x][2 + e], Hh[x][4 + e])
            qx[-2].deps = [(r[1], 60)]; qx[-1].dead = useH[(x, kl)] - 3
    W.queue(qx, 20, 'swap')
    eo = sc.barafter(hlast[3].ready if False else gC + 130); sc.xvm[eo] += ['H2', 'H3']; hlast[3].dead = bar[eo] - 40
    n0 = len(m)
    for x, kl in seqH[20:]: Hld(x, kl)
    m[n0].ready = bar[eo] + 1
    e2 = sc.barafter(g2 + o['pub2']); sc.xvm[e2] += ['sp', 'sent']; slast.dead = bar[e2] - 40; assert e2 >= eo
    pb2 = publish(2, e2)
    ld = fll(); ld[0].deps = [(pb2, o['chk2'])]; m.extend(ld)
    br2 = verify('g', fll, lambda: [I('v_cmp_gt_u32', 'vcc', 2, fl)], [vBp, fl], (ld[0], o['lat1']))
    for x, kl in lateH: Hld(x, kl)
    t = m.v('v_mul_u32_u24', SRC, q); vPl = m.v('v_lshl_add_u32', col, 4, t, name='vPl')
    for k in range(1, 6): sm('s_add_u32', f'c{k}', S('Pc'), 4096 * k)
    pr = [A(4, f'pr{b}') for b in range(21)]
    def pld(bs): return [I('buffer_load_dwordx4', pr[b], vPl, sS, S(f'c{b >> 2}') if b >= 4 else S('Pc'), mods=f'offen offset:{(b & 3) * 1024} sc1', cost=2) for b in bs]
    m.extend(pld(range(8, 17)))
    t = m.v('v_and_b32', 12, col); t2 = m.v('v_and_b32', 3, col); t = m.v('v_lshl_add_u32', t, 2, t2); t2 = m.v('v_and_b32', 1, q); t = m.v('v_lshl_add_u32', t2, 2, t)
    sm('s_lshr_b32', 'a0', jg, 1); sm('s_lshl_b32', 'a0', S('a0'), 6); sm('s_and_b32', 'a1', jg, 1); sm('s_lshl3_add_u32', 'a0', S('a1'), S('a0'))
    tok = m.v('v_add_u32', S('a0'), t, name='tok'); th = m.v('v_lshrrev_b32', 1, q); vk = m.v('v_lshlrev_b32', 5, th)
    vx8 = m.v('v_mul_u32_u24', 1152, tok); vx = m.v('v_add_u32', vx8, vk, name='vx')
    sm('s_lshl_b32', 'a0', jq, 8); sm('s_lshl3_add_u32', 'kc', w, S('a0')); sm('s_lshl2_add_u32', 'a0', jq, w); sm('s_lshl_b32', 'a0', S('a0'), 3); sm('s_add_u32', 'k8', S('a0'), 1024)
    sm('s_mul_i32', 'a0', mt, 128 * 1152); sm('s_add_u32', 'xc', S('a0'), S('kc')); sm('s_add_u32', 'x8', S('a0'), S('k8'))
    xv = [V(2, f'xv{n}') for n in range(5)]; kv = [V(2, f'kv{n}') for n in range(5)]
    for n in range(5):
        m('buffer_load_dwordx2', xv[n], vx if n < 4 else vx8, sX, S('xc') if n < 4 else S('x8'), mods=f'offen offset:{64 * (n & 3)}', cost=2)
        if n < 4: m('buffer_load_dwordx2', kv[n], vk, sK, S('kc'), mods=f'offen offset:{64 * n}', cost=2)
        else: m('buffer_load_dwordx2', kv[n], 'off', sK, S('k8'), cost=2)
    DB = [[0, 1], [2, 3], [4, 5], [6, 7], [17, 18, 19, 20]]
    r = pld(DB[4]); r[0].ready = gE - o['d0'] - 20; m.extend(r)
    r = pld(DB[0]); r[0].ready = gE - o['d0']; m.extend(r)
    r = pld(DB[1]); r[0].ready = gE - o['d1']; r[-1].dead = gE - 1; m.extend(r)
    W.queue(m, 10, 'main')
    for k, g in enumerate([gA] + gI[1:] + [gC, g2, g3]): st.at(W, g, 10 + k)
    sc.emit(spacing, lambda g: o['softA'] if g < gA else o['soft'])
    p.extend(sc.bar0); p.extend(st.t(9))
    body = W.build()
    sc.report()
    print(f"; gaps A {gA} I {gI} C {gC} 2 {g2} 3 {g3} E {gE} | cnt {ldc[0].gap} agst {agst.gap} agld {lda[0].gap} agbr {bra.gap} hs {hsl.gap} pub1 {pb1.gap} chk1 {br1.gap} hld {hl.gap} "
          f"H3 {hlast[3].gap} eo {bar[eo]} sp {slast.gap} pub2 {pb2.gap} chk2 {br2.gap} dp {[x.gap for x in dst_]} sent {prev.gap}")
    p.extend(body)
    p.extend(st.t(17))
    t = p.v('v_lshlrev_b32', 2, tok); t2 = p.v('v_add_u32', STM - STR, t); rr = V(1); nm = V(1)
    p('ds_read_b32', rr, t, mods=f'offset:{STR}'); p('ds_read_b32', nm, t2, mods=f'offset:{STR}')
    t = p.v('v_and_b32', 16, l16); c_ = p.v('v_mov_b32', 0x3f80); one = p.v('v_lshlrev_b32', t, c_); t = p.v('v_lshrrev_b32', 1, col)
    sel = [V(4, 'sel0'), V(4, 'sel1')]
    for k in range(8):
        p('v_cmp_eq_u32', S(f'k{k % 3}'), k, t)
        if k >= 2: p('v_cndmask_b32', sel[(k - 2) >> 2][(k - 2) & 3], 0, one, S(f'k{(k - 2) % 3}'))
    for k in (6, 7): p('v_cndmask_b32', sel[1][k & 3], 0, one, S(f'k{k % 3}'))
    def red(d, bs): return [I(MF, d, sel[k & 1 if len(bs) == 2 else 0], pr[b], d if k else 0) for k, b in enumerate(bs)]
    Y = [V(4, f'Y{n}') for n in range(5)]
    for n in range(5): p.extend(red(Y[n], [8 + 2 * n, 9 + 2 * n] if n < 4 else [16]))
    vo = p.v('v_lshlrev_b32', 1, vx); p('v_cmp_gt_u32', 'vcc', 2, q); big = p.v('v_mov_b32', BIG); vo8 = p.v('v_cndmask_b32', big, vo, 'vcc')
    sa('s_lshl_b32', 'xc', S('xc'), 1); sa('s_lshl_b32', 'x8', S('x8'), 1)
    nmr = p.v('v_mul_f32', nm, rr); r2_ = p.v('v_mul_f32', rr, rr); ce = p.v('v_mul_f32', -LOG2E, r2_)
    xf = [V(4, f'xf{n}') for n in range(5)]
    def ypre(n):
        un = lambda d, r, e: I('v_lshlrev_b32', d, 16, r[e >> 1]) if e % 2 == 0 else I('v_and_b32', d, 0xffff0000, r[e >> 1])
        ch = []
        for e in range(4):
            k = V(1); t = V(1)
            ch.append([un(xf[n][e], xv[n], e), un(k, kv[n], e), I('v_fma_f32', t, xf[n][e], rr, nmr), I('v_fmac_f32', Y[n][e], t, k), I('v_mul_f32', Y[n][e], Y[n][e], r2_)])
        p.extend(inter(ch))
    def fin(n):
        d = V(4, f'D{n}')
        verify(f'd{n}', lambda: pld(DB[n]), lambda: red(d, DB[n]) + [I('s_nop', 7), I('v_cmp_u_f32', 'vcc', d[0], d[0]), I('s_nop', 0)], [vPl, sel[0], sel[1]] + [pr[b] for b in DB[n]], None, q=p)
        ch = []
        for e in range(4):
            t = V(1)
            ch.append([I('v_mul_f32', t, ce, d[e]), I('v_exp_f32', t, t), I('v_mul_f32', d[e], d[e], Y[n][e]), I('v_add_f32', t, 1.0, t), I('v_rcp_f32', t, t), I('v_fmac_f32', xf[n][e], d[e], t)])
        p.extend(inter(ch))
        p('buffer_store_dwordx4', xf[n], vo if n < 4 else vo8, sO, S('xc') if n < 4 else S('x8'), mods=f'offen offset:{128 * (n & 3)}')
    for n in (4, 0, 1, 2, 3): ypre(n)
    p.extend(st.t(18))
    p.extend(pld(DB[2])); fin(4); fin(0); p.extend(st.t(19)); fin(1); p.extend(pld(DB[3])); p.extend(st.t(20)); fin(2); p.extend(st.t(21)); fin(3)
    if st.on: p('v_writelane_b32', st.v, S('rc'), 40)
    st.flush(p, sS, v0)
    p.append(LABEL('L_end')); p('s_endpgm')
    lines, peak, prog = finish(p)
    for name, loads, check in stubs:
        rt = [LABEL(f'L_r{name}')] + loads() + [I('s_waitcnt', mods='vmcnt(0)')] + check() + \
             [I('s_sub_u32', S('rc'), S('rc'), 1), I('s_cbranch_scc1', f'L_x{name}'), I('s_cbranch_vccnz', f'L_r{name}'), I('s_branch', f'L_b{name}'),
              LABEL(f'L_x{name}'), I('s_mov_b32', S('rc'), 0), I('s_branch', f'L_b{name}')]
        for ins in rt: lines.append(ins.name + ':' if ins.op == 'LABEL' else ins.text())
    lines += ['  s_endpgm', 'L_fin:']
    print("; sgprs", S.n, "instr", len(lines))
    return lines, st.peak(peak)

if __name__ == '__main__':
    import sys, json
    opt = json.loads(sys.argv[2]) if len(sys.argv) > 2 else {}
    lst = opt.pop('list', 1)
    label = 'x_kernel' if lst else NAME + '_kernel'
    l, pk = gen_x(label, opt)
    s = f"; @launch {'kernel=' + label + ' ' if lst else ''}grid=(256,1,1) block=(256,1,1) lds=163840\n"
    s += '.amdgcn_target "amdgcn-amd-amdhsa--gfx950"\n.text\n' + kernel_text(label, l) + '.section .rodata,"a"\n' + kernel_desc(label, pk['v'], pk['a'])
    open(sys.argv[1], 'w').write(s)
```

```python
import re

class VR:
    cnt = 0
    def __init__(s, cls, n=1, name=None, phys=None):
        s.cls, s.n, s.phys = cls, n, phys
        VR.cnt += 1
        s.id = VR.cnt
        s.name = name or f"{cls}{s.id}"
        s.pinned = phys is not None
    def __getitem__(s, k):
        if isinstance(k, slice):
            lo = k.start or 0; hi = s.n if k.stop is None else k.stop
            assert 0 <= lo < hi <= s.n, (s.name, k)
            return Ref(s, lo, hi - lo)
        assert 0 <= k < s.n, (s.name, k)
        return Ref(s, k, 1)
class Ref:
    def __init__(s, vr, lo, n): s.vr, s.lo, s.n = vr, lo, n
    def __getitem__(s, k):
        if isinstance(k, slice):
            lo = k.start or 0; hi = s.n if k.stop is None else k.stop
            return Ref(s.vr, s.lo + lo, hi - lo)
        return Ref(s.vr, s.lo + k, 1)
def V(n=1, name=None): return VR('v', n, name)
def A(n=1, name=None): return VR('a', n, name)
def ref(x): return Ref(x, 0, x.n) if isinstance(x, VR) else x

TRANS = ('v_exp_f32', 'v_log_f32', 'v_rcp_f32', 'v_rsq_f32', 'v_sqrt_f32', 'v_sin_f32', 'v_cos_f32')

def sregs(tok):
    if not isinstance(tok, str): return set()
    t = tok.strip().lstrip('-').strip('|')
    m = re.fullmatch(r's(\d+)', t)
    if m: return {int(m.group(1))}
    m = re.fullmatch(r's\[(\d+):(\d+)\]', t)
    if m: return set(range(int(m.group(1)), int(m.group(2)) + 1))
    if t in ('vcc', 'vcc_lo', 'vcc_hi'): return {'vcc'}
    if t in ('exec', 'exec_lo', 'exec_hi'): return {'exec'}
    if t == 'm0': return {'m0'}
    return set()

class Neg:
    def __init__(s, r): s.r = ref(r)

class I:
    def __init__(s, op, *ops, mods='', tag=None, cost=1, note=None):
        s.op = op; s.ops = [ref(o) for o in ops]; s.mods = mods; s.tag = tag; s.cost = cost; s.note = note
        s.gap = None
        n = len(s.ops); allo = list(range(n))
        d, u = [0], allo[1:]
        k = 'S'
        if op.startswith('v_mfma'): k = 'M'
        elif op.startswith('ds_'):
            k = 'L'
            if op.startswith('ds_write'): d, u = [], allo
        elif op.startswith('buffer_') or op.startswith('global_'):
            k = 'X'
            if 'store' in op or ' lds' in (' ' + mods) or ('atomic' in op and 'sc0' not in mods): d, u = [], allo
            elif 'atomic' in op: d, u = [0], allo
        elif op.startswith('v_'):
            k = 'V'
            if op.startswith('v_fmac') or op.startswith('v_mac') or op.startswith('v_writelane'): u = allo
            if 'swap' in op: d, u = [0, 1], [0, 1]
            if op == 'v_nop': d, u = [], []
        elif op.startswith('s_load') or op in ('s_memtime', 's_memrealtime'): k = 'K'
        elif op.startswith('s_'):
            if op.startswith(('s_cmp', 's_cbranch', 's_branch', 's_barrier', 's_waitcnt', 's_nop', 's_setprio', 's_endpgm', 's_sleep', 's_bitcmp')):
                d, u = [], allo
        else: k = 'P'; d, u = [], []
        s.kind = k; s.d = d; s.u = u
    def refs(s, idx):
        out = []
        for i in idx:
            o = s.ops[i]
            if isinstance(o, Neg): o = o.r
            if isinstance(o, Ref): out.append(o)
        return out
    def phys(s, idx):
        out = set()
        for r in s.refs(idx):
            for j in range(r.n): out.add((r.vr.cls, r.vr.phys + r.lo + j))
        return out
    def sset(s, idx):
        out = set()
        for i in idx:
            o = s.ops[i]
            if isinstance(o, Ref) and o.vr.cls == 's': out |= set(range(o.vr.phys + o.lo, o.vr.phys + o.lo + o.n))
            else: out |= sregs(o)
        return out
    def text(s):
        def f(o):
            if isinstance(o, Neg): return '-' + f(o.r)
            if isinstance(o, Ref):
                lo = o.vr.phys + o.lo
                return f"{o.vr.cls}{lo}" if o.n == 1 else f"{o.vr.cls}[{lo}:{lo+o.n-1}]"
            if isinstance(o, float): return repr(o)
            if isinstance(o, int): return str(o) if -16 <= o <= 64 else hex(o & 0xffffffff)
            return o
        t = "  " + s.op + (" " + ", ".join(f(o) for o in s.ops) if s.ops else "") + (" " + s.mods if s.mods else "")
        if s.note: t += "  ; " + s.note
        return t

def LABEL(n): i = I('LABEL'); i.name = n; i.cost = 0; return i
def WAIT(vm=None, lgkm=None):
    i = I('WAIT'); i.vm = vm; i.lgkm = lgkm; return i
def LOOPB(): i = I('LOOPB'); i.cost = 0; return i
def LOOPE(): i = I('LOOPE'); i.cost = 0; return i
def KEEP(*rs):
    i = I('KEEP', *rs); i.u = list(range(len(rs))); i.cost = 0; return i
def DEF(*rs):
    i = I('DEF', *rs); i.d = list(range(len(rs))); i.cost = 0; return i
def DRAINED():
    i = I('NOP0'); i.cost = 0; return i

class Grp:
    def __init__(s, *ins):
        s.ins = list(ins); s.cost = sum(i.cost for i in ins); s.gap = None; s.op = 'GRP'
def flat(items):
    out = []
    for it in items:
        if isinstance(it, Grp):
            for i in it.ins: i.gap = it.gap
            out += it.ins
        else: out.append(it)
    return out

def allocate(prog, limits={'v': 256, 'a': 256, 's': 96}, verbose=True):
    first, last = {}, {}
    loops = []; st = []
    vrs = {}
    for p, ins in enumerate(prog):
        if ins.op == 'LOOPB': st.append(p)
        if ins.op == 'LOOPE': loops.append((st.pop(), p))
        for r in ins.refs(ins.u):
            if r.vr.id not in first:
                assert r.vr.pinned, f"use before def: {r.vr.name} at {p} {ins.op}"
                first[r.vr.id] = -1
            last[r.vr.id] = p; vrs[r.vr.id] = r.vr
        for r in ins.refs(ins.d):
            first.setdefault(r.vr.id, p); last[r.vr.id] = max(last.get(r.vr.id, p), p); vrs[r.vr.id] = r.vr
    for (b, e) in loops:
        for k in vrs:
            if first[k] < b and last[k] > b: last[k] = max(last[k], e)
    busy = {c: [-2] * limits[c] for c in limits}
    peak = {c: 0 for c in limits}
    for k in vrs:
        if vrs[k].pinned:
            first[k] = -1
    for k in sorted(vrs, key=lambda k: (first[k], -vrs[k].n)):
        v = vrs[k]; b = busy[v.cls]
        if v.pinned:
            for j in range(v.n): b[v.phys + j] = max(b[v.phys + j], last[k])
            continue
        al = 1 if v.n == 1 else (2 if v.n == 2 else 4)
        same_ok = prog[first[k]].kind in 'VS' and v.n == 1 and 'dpp' not in prog[first[k]].op
        def free(j): return b[j] < first[k] or (same_ok and b[j] == first[k])
        cand = [lo for lo in range(0, limits[v.cls] - v.n + 1, al) if all(free(lo + j) for j in range(v.n))]
        if not cand:
            live = [(vrs[q].name, vrs[q].n) for q in vrs if vrs[q].cls == v.cls and vrs[q].phys is not None and last[q] >= first[k]]
            raise RuntimeError(f"out of {v.cls} regs for {v.name} n={v.n} at {first[k]}: live={sum(x[1] for x in live)} {live}")
        if v.n < 4:
            def score(lo):
                q = lo & ~3
                return -sum(0 if free(q + j) else 1 for j in range(4))
            cand.sort(key=lambda lo: (score(lo), lo))
        else:
            cand.sort(key=lambda lo: (max(b[lo + j] for j in range(v.n)) > first[k] - 12, lo))
        v.phys = cand[0]
        for j in range(v.n): b[v.phys + j] = last[k]
        peak[v.cls] = max(peak[v.cls], v.phys + v.n)
    if verbose: print("; alloc peak", peak)
    return peak

def expand(prog):
    seq = []; st = None
    for p, ins in enumerate(prog):
        seq.append(p)
        if ins.op == 'LOOPB': st = p
        if ins.op == 'LOOPE': seq += list(range(st + 1, p + 1))
    return seq

def insert_waits(prog):
    req = {}
    qv, ql = [], []
    def need(q, pred):
        for i in range(len(q) - 1, -1, -1):
            if pred(q[i]): return len(q) - 1 - i
        return None
    hp = None
    for p in expand(prog):
        ins = prog[p]
        nv = nl = None
        if ins.op == 'WAIT':
            has = lambda t, x: (x in t) if isinstance(t, (list, tuple, set)) else x == t
            if ins.vm is not None: nv = (0 if qv else None) if ins.vm == 0 else need(qv, lambda e: has(ins.vm, e[1]))
            if ins.lgkm is not None: nl = (0 if ql else None) if ins.lgkm == 0 else need(ql, lambda e: has(ins.lgkm, e[1]))
            if nl is not None and any(e[2] for e in ql): nl = 0
            if ins.vm == 0: nv = 0
            if ins.lgkm == 0: nl = 0
        elif ins.kind != 'P':
            touched = ins.phys(ins.u) | ins.phys(ins.d) | {('s', x) for x in ins.sset(ins.u) | ins.sset(ins.d)}
            if touched:
                nv = need(qv, lambda e: e[0] & touched)
                nl = need(ql, lambda e: e[0] & touched)
                if nl is not None and any(e[2] for e in ql): nl = 0
        if nv is not None or nl is not None:
            mn = lambda a, b: b if a is None else (a if b is None else min(a, b))
            at = p; kv = kl = 0
            if hp is not None:
                kv = sum(e[3] >= hp for e in qv); kl = sum(e[3] >= hp for e in ql)
                if (nv is None or nv >= kv) and (nl is None or nl >= kl): at = hp
                else: kv = kl = 0
            if nv is not None: nv = min(nv, 63 + kv)
            if nl is not None: nl = min(nl, 15 + kl)
            o = req.get(at, (None, None))
            req[at] = (mn(o[0], None if nv is None else nv - kv), mn(o[1], None if nl is None else nl - kl))
            if nv is not None: qv[:] = qv[len(qv) - nv:] if nv else []
            if nl is not None: ql[:] = ql[len(ql) - nl:] if nl else []
        if ins.kind == 'X': qv.append((ins.phys(ins.d), ins.tag, False, p))
        if ins.kind == 'L': ql.append((ins.phys(ins.d), ins.tag, False, p))
        if ins.kind == 'K': ql.append(({('s', x) for x in ins.sset(ins.d)}, ins.tag, True, p))
        if ins.kind == 'M' and getattr(ins, 'stream', False): hp = p + 1
        elif ins.kind == 'M' or ins.op in ('LABEL', 's_barrier', 'LOOPB', 'LOOPE') or ins.op.startswith('s_cbranch') or (hp is not None and p - hp > 8): hp = None
    out = []
    for p, ins in enumerate(prog):
        if p in req:
            nv, nl = req[p]
            out.append(I('s_waitcnt', mods=" ".join(x for x in ((f"vmcnt({nv})" if nv is not None else ""), (f"lgkmcnt({nl})" if nl is not None else "")) if x)))
        if ins.op != 'WAIT': out.append(ins)
    return out

def hazard_need(pr, co):
    n = 0
    if pr.kind == 'M':
        D = pr.phys(pr.d); far = 5 if '4x4x4' in pr.op else 8
        if co.kind == 'M':
            if D & co.phys([1, 2]): n = max(n, far)
            C = co.phys([3])
            if D & C and D != C: n = max(n, 6)
            if D & C and D == C and pr.op != co.op: n = max(n, 6)
            if D & C and '4x4x4' in pr.op: n = max(n, 2)
            if D & co.phys([0]) and not (D & C): n = max(n, 0)
        elif co.kind in 'VLX':
            if D & (co.phys(co.u) | co.phys(co.d)): n = max(n, far)
            if co.kind == 'V' and pr.phys([3]) & co.phys(co.d): n = max(n, 3)
    elif pr.kind == 'V':
        D = pr.phys(pr.d); SD = pr.sset(pr.d)
        if pr.op.startswith('v_cmpx'): SD = SD | {'exec'}
        if co.kind == 'M' and D & co.phys(co.u): n = max(n, 2)
        if co.kind == 'V':
            U = co.phys(co.u)
            if D & U:
                if 'dpp' in co.op: n = max(n, 2)
                if 'permlane' in co.op: n = max(n, 2)
                if co.op.startswith(('v_readfirstlane', 'v_readlane')): n = max(n, 1)
                if pr.op.replace('_e32', '').replace('_e64', '') in TRANS: n = max(n, 1)
                if 'sdwa' in pr.op or 'op_sel' in pr.mods: n = max(n, 1)
            if SD & co.sset(co.u): n = max(n, 4 if 'lane' in co.op else 2)
            if 'exec' in SD: n = max(n, 5)
        if co.kind == 'X' and SD & co.sset(co.u): n = max(n, 5)
        if co.kind == 'M' and 'exec' in SD: n = max(n, 4)
    elif pr.kind == 'S':
        if 'm0' in pr.sset(pr.d) and co.kind == 'X' and ' lds' in ' ' + co.mods: n = max(n, 1)
    elif pr.kind == 'X':
        if 'store' in pr.op and ('x4' in pr.op or 'x3' in pr.op):
            if pr.phys([0]) & co.phys(co.d): n = max(n, 2)
    return n

def pad_hazards(prog, verbose=True):
    add = {}
    seq = expand(prog)
    hist = []
    for p in seq:
        ins = prog[p]
        if ins.kind == 'P': continue
        dist = add.get(p, 0); needmax = 0
        d = 0
        for (h, w) in reversed(hist):
            if d >= 10: break
            if h is not None:
                nd = hazard_need(h, ins) - d
                needmax = max(needmax, nd)
            d += w
        if needmax > dist: add[p] = needmax
        if add.get(p, 0): hist.append((None, add[p]))
        hist.append((ins, int(ins.ops[0]) + 1 if ins.op == 's_nop' else 1))
        hist = hist[-12:]
    out = []
    for p, ins in enumerate(prog):
        if add.get(p, 0): out.append(I('s_nop', add[p] - 1, note='pad'))
        out.append(ins)
    if verbose: print("; hazard pads:", len(add), "states", sum(add.values()))
    return out

def finish(prog, limits={'v': 256, 'a': 256, 's': 96}, verbose=True):
    peak = allocate(prog, limits, verbose)
    prog = insert_waits(prog)
    prog = pad_hazards(prog, verbose)
    lines = []
    for ins in prog:
        if ins.op == 'LABEL': lines.append(ins.name + ":")
        elif ins.kind == 'P': continue
        else: lines.append(ins.text())
    return lines, peak, prog

class Weave:
    def __init__(s, cap=2):
        s.back = 1e9; s.m = []; s.fixed = {}; s.queues = []; s.cap = cap; s.capov = {}; s.pre = {}
    def capat(s, g):
        for (a, b, c) in getattr(s, 'capr', []):
            if a <= g < b: return c
        return s.cap
    def mfma(s, ins): s.m.append(ins); return len(s.m) - 1
    def at(s, g, *ins):
        for i in ins:
            s.fixed.setdefault(g, []).append(i); i.gap = g; i.q = None
    def reserve(s, g, n=1): s.capov[g] = s.capov.get(g, 0) + n
    def queue(s, items, prio=0, name=''):
        for it in items: it.q = name
        s.queues.append([prio, list(items), name])
    def build(s, verbose=True):
        out = []
        qs = sorted(s.queues, key=lambda q: -q[0])
        n = len(s.m); over = 0; load = []
        lastx = [-99]; pa = Path(getattr(s, 'par', None)); T = [0.0]; pa.tis = getattr(s, 'seed', 0); tagd = {}; regd = {}; s.T = []; iss = []
        isx = lambda it: it.kind == 'X'
        def ok(it, g):
            if getattr(it, 'ready', -1) > g: return False
            if isx(it):
                if g - lastx[0] < getattr(s, 'vgap', 0): return False
                if pa.front() - T[0] > getattr(it, 'back', s.back) and getattr(it, 'need', 1 << 30) - g > getattr(s, 'urg', 0): return False
                nl, c = mcls(it)
                if c in 'mcsq' and nl > 2 and not getattr(it, 'chain', 0) and max(pa.fab, pa.fc if c == 'c' else 0) - max(T[0], pa.front()) > getattr(s, 'backf', 1e9): return False
            for (d, k) in getattr(it, 'deps', []):
                if d.gap is None or d.gap + max(k, 1) > g: return False
            return True
        for g in range(-1, n):
            if g >= 0:
                out.append(s.m[g]); s.m[g].gap = g; s.m[g].stream = True
                T[0] = max([T[0]] + [regd.get((r.vr.id, r.lo >> 2), 0) for r in s.m[g].refs([1, 2])])
            fx = s.fixed.get(g, [])
            st = dict(c=s.capat(g) - s.capov.get(g, 0), sfree=True, nl=0); rank = {}; items = []
            def price(it, q):
                k = cls(it); r = rank.get(q, -1)
                if k < 0: return 0, True
                if k == 0: return (0 if st['sfree'] and r <= 0 else 1) + (3 if it.op == 's_barrier' else 0), True
                if k == 1 and r == 2: return icost(it) + 2, False
                if it.kind == 'L' and st['nl']: return icost(it) + 1, False
                return icost(it), True
            def put(it, q):
                c, _ = price(it, q); k = cls(it)
                if getattr(it, 'free', False): c = 0
                if k == 0 and rank.get(q, -1) <= 0 and not getattr(it, 'free', False): st['sfree'] = False
                if it.kind == 'L': st['nl'] += 1
                rank[q] = max(rank.get(q, -1), k); items.append((max(rank[q], 0), len(items), it)); st['c'] -= c; it.gap = g
                if isx(it):
                    if len(iss) >= pa.P['Q']: T[0] = max(T[0], iss[-pa.P['Q']])
                    lastx[0] = g; it.tdone = tagd[it.tag] = pa.issue(T[0], it); iss.append(pa.tis)
                    for r in it.refs(it.d): regd[(r.vr.id, r.lo >> 2)] = it.tdone
                elif it.kind == 'V': T[0] = max([T[0]] + [regd.get((r.vr.id, r.lo >> 2), 0) for r in it.refs(it.u)])
                if it.op == 'WAIT' and isinstance(it.vm, list): T[0] = max([T[0]] + [tagd.get(x, 0) for x in it.vm])
            isbar = any(i.op == 's_barrier' for i in fx)
            for i in fx: put(i, 'w' if getattr(i, 'last', False) else ('r' if i.kind == 'L' else 'f'))
            if g < 0: st['c'] = -99
            for q in qs:
                lastdead = -1
                for k, it in enumerate(q[1]):
                    if getattr(it, 'dead', 1 << 30) <= g: lastdead = k
                for _ in range(lastdead + 1):
                    it = q[1].pop(0)
                    assert getattr(it, 'ready', -1) <= g and all(d.gap is not None and d.gap < g or d in [x[2] for x in items if x[2].q == q[2]] for d, _ in getattr(it, 'deps', [])), ("deadline before ready", q[2], g, it.op)
                    put(it, q[2])
            prog = not isbar and g >= 0
            while prog:
                prog = False
                xs = [q for q in qs if q[1] and isx(q[1][0]) and ok(q[1][0], g)]
                best = min(xs, key=lambda q: getattr(q[1][0], 'need', getattr(q[1][0], 'dead', g + 150))) if xs else None
                for q in ([best] if best else []) + qs:
                    if not (q[1] and ok(q[1][0], g)) or (isx(q[1][0]) and q is not best): continue
                    it = q[1][0]
                    if not hasattr(it, 'seen'): it.seen = g
                    c, fine = price(it, q[2])
                    if fine and (c == 0 or min(c, s.cap) <= st['c'] or (st['c'] >= 1 and g - it.seen >= getattr(it, 'soft', 2))):
                        put(q[1].pop(0), q[2]); prog = True
                        break
            if isbar or g < 0: items = [(9 if getattr(x[2], 'last', False) else x[0], x[1], x[2]) for x in items]
            out += [x[2] for x in sorted(items, key=lambda x: x[:2])]
            c = st['c']
            if c < 0 and g >= 0: over += -c
            load.append(s.cap - c); s.T.append(T[0])
            if g >= 0: T[0] += (12 if '4x4x4' in s.m[g].op else 16.3) + 4 * max(0, -c)
        rest = []
        while any(q[1] for q in qs):
            q = next(q for q in qs if q[1] and all(d.gap is not None for d, _ in getattr(q[1][0], 'deps', [])))
            rest.append(q[1].pop(0)); rest[-1].gap = n
        if verbose: print(f"; weave: {n} mfma, overflow {over}, leftover {len(rest)}")
        s.load = load
        s.nrest = len(rest)
        return out + rest

def cls(it):
    if it.op == 'WAIT' or it.kind in 'SK': return 0
    if it.kind in 'LX': return 1
    if it.kind == 'V': return 2
    return -1
def icost(it):
    op = it.op
    if it.kind == 'V': return 2 if op.replace('_e32', '').replace('_e64', '') in TRANS else 1
    if 'store' in op or 'atomic' in op: return 4 if 'x4' in op else (3 if 'x2' in op else 2)
    if op.startswith('ds_write'): return {'b128': 5, 'b64': 3}.get(op.split('_')[-1], 2)
    if 'permute' in op: return 2
    return 1

PAR = dict(N=200, Q=8, th=2.15, Lh=300, Lm=600, Lc=1100, Ls=480, Lp=330, fr=6.5, fc=6.5)
def mcls(ins):
    nl, c = getattr(ins, 'mc', None) or (8, 's' if ('store' in ins.op or 'atomic' in ins.op) else 'h')
    if c == 's' and 'sc1' not in ins.mods: c = 'p'
    return nl, c
class Path:
    def __init__(s, par=None):
        s.P = dict(PAR); s.P.update(par or {}); s.ret = []; s.tis = 0.0; s.fab = s.fc = 0.0; s.busy = []
    def front(s):
        return max(s.tis, s.ret[-s.P['N']] if len(s.ret) >= s.P['N'] else 0)
    def issue(s, t, ins):
        P = s.P; ret = s.ret
        nl, c = mcls(ins)
        th = P['th'] * (1.5 if c in 'ps' else 1); a0 = None
        for i in range(max(1, int(nl * 4))):
            a = max(s.tis, t + 20)
            if a0 is None: a0 = a
            if len(ret) >= P['N']: a = max(a, ret[-P['N']])
            s.tis = a + th
            cc = c
            if c == 'q': cc = 'm' if i % 4 == 0 else 'd'
            if cc == 'h': e = a + P['Lh']
            elif cc == 'p': e = a + P['Lp']
            elif cc == 'd': e = max(a, s.fab) + P['Lm']
            else:
                b = max(a, s.fab); s.fab = b + P['fr']
                if cc in 'cx': b = max(b, s.fc); s.fc = b + P['fc'] * (.5 if cc == 'x' else 1)
                e = b + P['L' + cc.replace('x', 'c')]
            ret.append(max(e, ret[-1]) if ret else e)
        s.busy.append((a0, s.tis))
        return ret[-1]
```

```python
from asmlib import *
NBLK = 36

class Unit:
    def __init__(s, name, nblk, dma=None, brk=None):
        s.name, s.nblk, s.dma, s.brk = name, nblk, dma, brk
        s.addr = None; s.epoch = None; s.fu = None; s.done = -9; s.at = None; s.pre = False; s.early = -9
class Frag:
    def __init__(s, dst, unit, n, fn, grp, rate=1, lat=6):
        s.dst, s.unit, s.n, s.fn, s.grp, s.rate, s.lat = dst, unit, n, fn, grp, rate, lat
        s.fu = None
class M:
    def __init__(s, ins, *frags, tiny=False): s.ins, s.frags, s.tiny = ins, frags, tiny

class Sched:
    def __init__(s, cap=2):
        s.W = Weave(cap); s.frags = []; s.units = []; s.tiny = set()
    def feed(s, ml):
        for m in ml:
            g = s.W.mfma(m.ins); m.ins.gap = g
            if m.tiny: s.tiny.add(g); s.W.reserve(g, m.tiny - 1)
            for f in m.frags:
                if f.fu is None:
                    f.fu = g; s.frags.append(f)
                    if f.unit.fu is None: f.unit.fu = g; s.units.append(f.unit)
    def plan(s, target, maxblk, tail=0):
        e = -1; start = 0; blk = 0
        for u in s.units:
            new = e < 0 or u.brk is True or (u.brk is None and (u.fu - start >= target(u.fu) or blk + u.nblk > maxblk(u.fu)))
            if new: e += 1; start = u.fu; blk = 0
            u.epoch = e; blk += u.nblk
        s.ne = e + 1
        gi = -1; prev = object(); s.gfu = []
        for f in s.frags:
            if f.grp != prev: gi += 1; prev = f.grp; s.gfu.append(f.fu)
            f.gi = gi
        first = {}
        for k, f in enumerate(s.frags): first.setdefault(f.unit.epoch, k)
        used = {}; nrd = {}
        s.bar = [None] * s.ne
        nxt = 1 << 30; lb = None
        s.xvm = [[] for _ in range(s.ne)]; s.xlg = [[] for _ in range(s.ne)]
        for k in range(len(s.frags) - 1, -1, -1):
            f = s.frags[k]; f.pos = [None] * f.n
            dn = s.gfu[f.gi] - 1
            if tail and lb is not None and dn >= s.bar[lb] > 0 and f.unit.done < s.bar[lb]:
                nxt = min(nxt, s.bar[lb] - tail); dn = s.bar[lb] - 1; s.xlg[lb].append(f'g{f.gi}')
            for r in range(f.n - 1, -1, -1):
                p = min(s.gfu[f.gi] - 1 - f.lat, nxt)
                while p >= 0 and (nrd.get(p, 0) >= f.rate or used.get(p, 0) >= s.W.capat(p)): p -= 1
                p = max(p, -1)
                f.pos[r] = p; nxt = p; nrd[p] = nrd.get(p, 0) + 1; used[p] = used.get(p, 0) + 1
            f.unit.done = max(f.unit.done, dn)
            if first[f.unit.epoch] == k:
                b = nxt - 1
                while b >= 0 and (b in s.tiny or used.get(b, 0) > 0) and nxt - b < 3: b -= 1
                b = max(b, -2)
                s.bar[f.unit.epoch] = b; used[b] = 9; nxt = max(b - 1, -1); lb = f.unit.epoch
        assert all(s.bar[i] < s.bar[i + 1] for i in range(s.ne - 1)), s.bar
        assert s.bar[0] == -2 and s.bar[1] >= 0, s.bar[:3]
    def _alloc(s, u):
        al = 4 if u.nblk >= 3 else u.nblk
        c = [a for a in range(0, NBLK - u.nblk + 1, al) if all(s.free[a:a + u.nblk])]
        if not c: return False
        c.sort(key=lambda a: (sum(s.free[a & ~3:(a & ~3) + 4]), a))
        a = c[0]
        for k in range(u.nblk): s.free[a + k] = False
        u.addr = a * 1024; s.live.append(u); return True
    def allocate(s, p0max, spacing):
        s.free = [True] * NBLK; s.live = []
        pend = [u for u in s.units if u.dma]; ds = [u for u in s.units if not u.dma]
        for u in ds:
            if u.pre: assert s._alloc(u); u.at = -1
        s.p0 = []
        while pend and p0max >= pend[0].nblk and s._alloc(pend[0]):
            u = pend.pop(0); u.at = -1; s.p0.append(u); p0max -= u.nblk
        for e in range(s.ne):
            for u in list(s.live):
                if u.done < s.bar[e] and u.epoch < e:
                    s.live.remove(u)
                    for k in range(u.nblk): s.free[u.addr // 1024 + k] = True
            for u in ds:
                if u.epoch == e + 1 and not u.pre: assert s._alloc(u), ("no room for", u.name); u.at = e
            room = ((s.bar[e + 1] if e + 1 < s.ne else len(s.W.m)) - max(s.bar[e], 0)) // spacing(max(s.bar[e], 0))
            while pend and room > 0 and pend[0].early <= s.bar[e] and s._alloc(pend[0]):
                u = pend.pop(0); u.at = e; room -= u.nblk
                assert u.epoch > e, ("late unit", u.name, u.epoch, e)
        assert not pend, [u.name for u in pend]
    def barafter(s, g):
        for e in range(s.ne):
            if s.bar[e] >= g: return e
        raise RuntimeError(f"no barrier after {g}")
    def emit(s, spacing, soft, minlat=20):
        W = s.W
        for k, f in enumerate(s.frags):
            r = f.fn(f.unit.addr); assert len(r) == f.n
            for x, p in zip(r, f.pos): x.tag = f'g{f.gi}'; W.at(p, x)
        for gi, g in enumerate(s.gfu):
            w = WAIT(lgkm=f'g{gi}'); w.last = True; W.at(g - 1, w)
        s.bar0 = None
        for e in range(s.ne):
            w = WAIT(vm=[f'E{e}'] + s.xvm[e], lgkm=s.xlg[e] or None); b = I('s_barrier'); w.last = b.last = True
            if e == 0: s.bar0 = [w, b]
            else: W.at(s.bar[e], w, b)
        q = []; prev = None; s.dmas = []
        for u in s.units:
            if not u.dma or u.at < 0: continue
            its = u.dma(u.addr, f'E{u.epoch}'); sal = None
            for x in its:
                x.ready = s.bar[u.at] + 1
                if x.kind == 'X':
                    x.deps = ([(prev, spacing(x.ready))] if prev else []) + ([(sal, 1)] if sal else [])
                    x.dead = max(s.bar[u.epoch] - minlat, x.ready); x.need = s.bar[u.epoch]; prev = x; sal = None; s.dmas.append((x, u)); x.soft = soft(x.ready)
                else: sal = x
            q += its
        W.queue(q, prio=50, name='dma')
    def report(s):
        sl = {}
        for x, u in s.dmas: sl[u.epoch] = min(sl.get(u.epoch, 1 << 30), s.bar[u.epoch] - x.gap)
        print("; bars", s.bar)
        print("; units", " ".join(f"{u.name}:{u.addr//1024}@{u.at}>{u.epoch}-{u.done}" for u in s.units))
        print("; dma slack per epoch", [sl.get(e) for e in range(s.ne)])
        ld = s.W.load[1:]
        seg = [sum(max(0, x - 2) for x in ld[a:b]) for a, b in zip([0] + s.bar[1:], s.bar[1:] + [len(ld)])]
        print("; overflow per epoch", seg)
        fr = [sum(max(0, 2 - x) for x in ld[a:b]) for a, b in zip([0] + s.bar[1:], s.bar[1:] + [len(ld)])]
        print("; free per epoch", fr)
```

```python
from asmlib import *
import re
def simulate(prog, marks=None, par=None, start=0, verbose=False):
    pa = Path(par); P = pa.P
    t = 0.0; lastM = -99; lastMlen = 16; prevk = None; sfree = False
    done = []; issued = []
    log = []; stalls = []
    gap = -1
    for ins in prog:
        k = ins.kind
        if k == 'P': continue
        if k == 'M':
            tiny = '4x4x4' in ins.op
            need = lastM + lastMlen + (8 if (lastMlen == 8 and not tiny) else 0)
            t = max(t, need); lastM = t; lastMlen = 8 if tiny else 16.3; t += 4 if tiny else 8; sfree = not tiny
            if getattr(ins, 'stream', False): gap = ins.gap
            prevk = 'M'; continue
        if k in 'SK':
            if ins.op == 's_waitcnt':
                m = re.search(r'vmcnt\((\d+)\)', ins.mods)
                if m:
                    n = int(m.group(1))
                    if len(done) > n and done[len(done) - 1 - n] > t:
                        stalls.append((gap, 'wait', done[len(done) - 1 - n] - t)); t = done[len(done) - 1 - n]
            if ins.op == 's_nop': t += 4 * int(ins.ops[0])
            if ins.op == 's_barrier': t += 12; log.append((gap, t))
            if not sfree: t += 4
            sfree = False; continue
        sfree = False
        if k in 'LX' and prevk == 'V': t += 8
        if k == 'L' and prevk == 'L': t += 4
        if k == 'X':
            if len(issued) >= P['Q'] and issued[-P['Q']] > t:
                stalls.append((gap, 'queue', issued[-P['Q']] - t)); t = issued[-P['Q']]
            done.append(pa.issue(t, ins)); issued.append(pa.tis)
        t += 4 * icost(ins)
        prevk = k
    simulate.pa = pa
    return t, log, stalls
def report(prog, bars, name, par=None):
    t, log, st = simulate(prog, par=par)
    ts = [x[1] for x in log]; g = [-1] + bars
    ex = [int(ts[i + 1] - ts[i] - 16 * (g[i + 1] - g[i])) for i in range(len(ts) - 1)]
    print("; gap  ", " ".join(f"{x:5d}" for x in g[:-1]))
    print("; extra", " ".join(f"{x:5d}" for x in ex))
    bz = simulate.pa.busy
    print("; idle ", " ".join(f"{int(b - a - sum(max(0, min(y, b) - max(x, a)) for x, y in bz)):5d}" for a, b in zip(ts, ts[1:] + [t])))
    return st
```

```python
from common import *
from sched import *
import math, sim
import numpy as np
QS = 40960; MISC = 36864
CST = MISC; RGO = MISC + 2560; STR = MISC + 3584; STM = QS + MISC + 3584
AG_OFF = 0; AR_OFF = 0x20000; FL_OFF = 0x50000; HF_OFF = 0x100000; HR_OFF = 0x500000; PX_OFF = 0x600000; H_OFF = 0x1B00000
P8_OFF = 0x1300000; SRC = 5120; FIN = 4 * SRC; PW = 12288
TINY = 'v_mfma_f32_4x4x4_16b_bf16'
DM = ' row_mask:0xf bank_mask:0xf'
DPP8 = 'row_ror:8' + DM
BIG = 0x7ff00000
LOG2E = math.log2(math.e)

def inter(lists):
    out = []
    for k in range(max(len(x) for x in lists)):
        for x in lists:
            if k < len(x): out.append(x[k])
    return out
def SR(n=1, name=None, phys=None): return VR('s', n, name, phys)
class Q(P):
    def s(s, op, *ops, name=None):
        d = SR(1, name); s.append(I(op, d, *ops)); return d
def mc(x, n, c, **k):
    x.mc = (n, c)
    for a, b in k.items(): setattr(x, a, b)
    return x

def gen_y(label, opt=None):
    o = dict(S=3, SE=3, stamp=False, p0max=13, xa=56, ep=64, sp=3, vgap=2, edge=3, lat=6, agld=700, aglat=50, cng=570,
             pub1=250, chk=50, lat1=60, pub2=130, pub3=60, d0=40, d1=4, rc=20000, plan='4:X0,120:Y0,400:X2,560:Y2,780:Da+D8,880:C0,1000:Db', eI=8,
             softA=1, soft=2, rate2=1, tail=5, sp2=3, back=300, backf=60, seed=600, sentg=70, nsent=8, nt=0, om=' sc1', tlb=0, hst=60)
    o.update(opt or {})
    plan = [(int(x.split(':')[0]), x.split(':')[1].replace('+', ' ')) for x in o['plan'].split(',')]
    p = Q(); v0 = VR('v', 1, 'tid', phys=0)
    st = ST(o['stamp'], 0, 255)
    ka = SR(2, 'ka', 0); wid = SR(1, 'wid', 2)
    p('s_cmp_ge_u32', wid, 256); p('s_cbranch_scc1', 'L_end')
    p.extend(st.rt(0) + st.t(1))
    p('s_load_dwordx16', 's[4:19]', ka, 0); p('s_load_dwordx16', 's[20:35]', ka, 64)
    sX, sB, sC, sO, sK, sW, sD, sG, sS = [SR(4, n, b) for n, b in zip('XBCOKWDGS', range(4, 40, 4))]
    def tail_(q, r, n): q('s_mov_b32', r[2], n); q('s_mov_b32', r[3], 0x20000)
    NT = lambda b: ' nt' if o['nt'] & b else ''
    sI = SR(4, 'I', 40)
    p('s_getpc_b64', sI[0:2]); p.append(LABEL('L_pc')); tail_(p, sI, 'L_fin-L_pc')
    pfd = V(1, 'pfd'); p.append(DEF(pfd))
    def pf(v, srd, so, off, nl, md='', c='c'):
        x = I('buffer_load_dword', pfd, v, srd, so, mods=f'offen offset:{off}' + md); x.d = []; x.soft = 1; return mc(x, nl, c)
    t = p.s('s_lshl_b32', wid, 4); t = p.s('s_and_b32', t, 31 * 128); t = p.v('v_lshl_add_u32', v0, 12, t)
    p.append(pf(t, sI, 0, 0, 3.5))
    wv = p.v('v_lshrrev_b32', 6, v0); l = p.v('v_and_b32', 63, v0, name='lane')
    w = SR(1, 'w'); p('v_readfirstlane_b32', w, wv)
    jg = p.s('s_and_b32', wid, 3, name='jg'); jq = p.s('s_bfe_u32', wid, (2 << 16) | 3, name='jq')
    t = p.s('s_bfe_u32', wid, (1 << 16) | 2); t2 = p.s('s_lshr_b32', wid, 5); mt = p.s('s_lshl3_add_u32', t, t2, name='mt')
    fw = p.s('s_and_b32', w, 1, name='fw'); tw = p.s('s_lshr_b32', w, 1, name='tw')
    j = p.s('s_lshl2_add_u32', jg, jq, name='j'); je = p.s('s_and_b32', jq, 1, name='je'); Tr = p.s('s_lshr_b32', jq, 1, name='Tr')
    sl = p.v('v_and_b32', 7, l); hi = p.v('v_lshrrev_b32', 5, l); q = p.v('v_lshrrev_b32', 4, l, name='q')
    r83 = p.v('v_bfe_u32', l, 3, 2)
    cx = p.v('v_xor_b32', sl, q); cx = p.v('v_lshlrev_b32', 4, cx, name='cx')
    tokl = p.v('v_lshl_add_u32', hi, 4, r83, name='tokl')
    t = p.s('s_lshl_b32', tw, 6); tk0 = p.s('s_lshl3_add_u32', fw, t, name='tk0')
    t = p.s('s_lshl_b32', mt, 7); t = p.s('s_add_u32', t, tk0); xb = p.s('s_mul_i32', t, 1152, name='xb')
    t = p.v('v_mul_u32_u24', 1152, tokl); vX0 = p.v('v_add_u32', t, cx)
    je6 = p.s('s_lshl_b32', je, 6, name='je6'); t1 = p.s('s_mul_i32', je, 36864); t2 = p.s('s_mul_i32', Tr, 4608)
    a = p.v('v_xor_b32', je6, vX0); b = p.v('v_xor_b32', 64, a)
    a = p.v('v_add_u32', t1, a); t1 = p.s('s_sub_u32', 36864, t1); b = p.v('v_add_u32', t1, b)
    vX = [p.v('v_add_u32', t2, a), p.v('v_add_u32', t2, b)]
    t2 = p.s('s_sub_u32', 4608, t2); vX += [p.v('v_add_u32', t2, a), p.v('v_add_u32', t2, b)]
    Gn = p.s('s_lshl1_add_u32', j, fw, name='Gn')
    t = p.s('s_lshl2_add_u32', jg, Tr); t = p.s('s_lshl_b32', t, 2); chr_ = p.s('s_add_u32', t, 512, name='chr')
    t = p.v('v_and_b32', 4, l); cho = p.v('v_add_u32', t, sl)
    t = p.s('s_lshl_b32', Gn, 4); t = p.v('v_lshl_add_u32', q, 2, t)
    t2 = p.v('v_mul_u32_u24', chr_, hi); t = p.v('v_max_u32', t, t2)
    vL = p.v('v_add_lshl_u32', t, cho, 1)
    t = p.s('s_lshr_b32', wid, 3); n2 = p.s('s_lshl1_add_u32', t, tw, name='n2')
    t0 = p.s('s_lshl_b32', jg, 6); t0 = p.s('s_add_u32', t0, n2); t0 = p.s('s_mul_i32', t0, 2304)
    t = p.v('v_min_u32', 17, l); t = p.v('v_lshl_add_u32', t, 7, t0)
    t0 = p.s('s_mul_i32', n2, 3); t0 = p.s('s_sub_u32', t0, 32); t2 = p.v('v_min_u32', 34, l); t2 = p.v('v_add_u32', t0, t2); t2 = p.v('v_min_u32', 143, t2)
    t0 = p.s('s_mul_i32', jg, 18432); t0 = p.s('s_add_u32', t0, 512 * 1152); t2 = p.v('v_lshl_add_u32', t2, 7, t0)
    p('v_cmp_gt_u32', 'vcc', 32, l); vPB = p.v('v_cndmask_b32', t2, t, 'vcc')
    l8 = p.v('v_min_u32', 8, l, name='l8'); vPW = p.v('v_mul_u32_u24', 9216, l8, name='vPW')
    t0 = p.s('s_mul_i32', n2, 9 * 9216); t1 = p.s('s_mul_i32', jg, 2304); sPW = p.s('s_add_u32', t0, t1, name='sPW')
    row = p.v('v_bfe_u32', l, 2, 3, name='row'); r2 = p.v('v_bfe_u32', l, 4, 1)
    b1 = p.v('v_bfe_u32', l, 1, 1); pp = p.v('v_xor_b32', b1, r2); b0 = p.v('v_and_b32', 1, l)
    c32 = p.v('v_lshlrev_b32', 5, pp); c32 = p.v('v_lshl_add_u32', b0, 4, c32)
    c64 = p.v('v_lshl_add_u32', hi, 6, c32, name='c64')
    rm = p.v('v_lshl_add_u32', r2, 2, row); t0 = p.s('s_lshl_b32', tw, 2); rm = p.v('v_add_u32', t0, rm)
    t = p.v('v_lshl_add_u32', hi, 4, rm); t = p.v('v_mul_u32_u24', 9216, t); vH0 = p.v('v_add_u32', t, c32, name='vH0')
    vH = [vH0, p.v('v_add_u32', 32 * 9216 - 1024, vH0, name='vH1')]
    t = p.v('v_lshl_add_u32', hi, 3, r83); t = p.v('v_mul_u32_u24', 1152, t)
    t0 = p.s('s_lshl_b32', fw, 6); vB0 = p.v('v_xad_u32', cx, t0, t, name='vB0')
    vB = [vB0, p.v('v_add_u32', 4608 - 1024, vB0, name='vB1')]
    p.append(WAIT(lgkm=0)); p.append(KEEP(ka))
    p.extend(st.t(2))
    raw = [V(1) for _ in range(3)]
    lre_ = SR(2, 'lre'); p('s_mov_b64', lre_, 's[6:7]')
    tail_(p, sX, 2048 * 1152)
    xr = [[V(4, f'xr{g}_{s}') for s in range(9)] for g in range(4)]
    xld = [mc(I('buffer_load_dwordx4', xr[g][s], vX[g], sX, xb, mods=f'offen offset:{128*s}' + ('' if g else NT(1))), 8, 'h' if g else 'x') for g in range(4) for s in range(9)]
    vm = [[x] for x in xld[9:]]
    for x, s_ in zip(raw, (lre_, 's[8:9]', 's[18:19]')): mc(p('global_load_ushort', x, vL, s_), 1, 'c')
    if o.get('pfp', -1) >= 0: p.extend(xld[:9])
    p('s_cmp_eq_u32', fw, 0)
    p('s_cselect_b64', sB[0:2], 's[10:11]', 's[12:13]'); p('s_cselect_b64', sC[0:2], 's[14:15]', 's[16:17]')
    p('s_cselect_b64', sW[0:2], 's[24:25]', 's[26:27]')
    p('s_mov_b64', sO[0:2], 's[30:31]'); p('s_mov_b64', sS[0:2], 's[34:35]')
    for r, sz in ((sB, 576 * 1152), (sW, 576 * 9216), (sS, WS_BYTES), (sC, 576 * 1152), (sK, 1152), (sD, 4608 * 1152), (sO, 2048 * 2304), (sG, 256)):
        tail_(p, r, sz)
    t = [pf(vPB, sB, 0, 0, 21, NT(128)), pf(vPW, sW, sPW, 128 * 4, 9, NT(128)), pf(vPW, sW, sPW, 128 * 13, 9, NT(128))]
    if o.get('pfp', -1) < 0: p.extend(t + xld[:9])
    elif o['pfp'] == 0: p.extend(t)
    else: vm[o['pfp'] - 1] += t
    p.extend(st.t(3))
    sQ = p.s('s_mul_i32', w, QS, name='Q')
    t0 = p.s('s_mul_i32', j, 576); fb = p.s('s_add_u32', t0, je6, name='fb')
    t1 = p.s('s_lshl_b32', je, 9); t0 = p.s('s_add_u32', t0, 512); hb = p.s('s_sub_u32', t0, t1, name='hb')
    t0 = p.s('s_lshl1_add_u32', j, tw); Bb = p.s('s_mul_i32', t0, 18432, name='Bb')
    Rc = p.s('s_mul_i32', chr_, 1152, name='Rc'); t1 = p.s('s_lshl_b32', tw, 7); Rb = p.s('s_add_u32', Rc, t1, name='Rb')
    def dma(v, srd, so, off, tag): return mc(I('buffer_load_dwordx4', v, srd, so, mods=f'offen offset:{off} lds', tag=tag), {'vH': 17, 'vW': 8.75, 'vCl': 32, 'vCm': 8}.get(v.name[:-1], 8), 'h')
    def mkdma(vs, srd, base, add, sq=sQ):
        def f(addr, tag):
            so = SR(1, 'T')
            return [I('s_add_u32', 'm0', sq, addr), I('s_add_u32', so, base, add)] + [dma(v, srd, so, 1024 * b, tag) for b, v in enumerate(vs)]
        return f
    vW = [V(1, f'vW{b}') for b in range(4)]; vC = [V(1, f'vC{b}') for b in range(2)]; vD = [V(1, f'vD{b}') for b in range(4)]
    vT = [[V(1, f'vT{a}{k}') for k in range(3)] for a in range(2)]; vU = [[V(1, f'vU{a}{k}') for k in range(3)] for a in range(2)]
    vTh = [V(1, f'vTh{k}') for k in range(3)]
    vXr = [[V(1, f'vXr{a}{k}') for k in range(2)] for a in range(2)]; vXm = [V(1, f'vXm{a}') for a in range(2)]
    vBq = [[V(1, f'vBq{a}{k}') for k in range(2)] for a in range(2)]; vBr = [V(1, f'vBr{a}') for a in range(2)]
    vCr = [V(1, f'vCr{c}') for c in range(5)]
    def trd(bases, qa, qb, extra):
        def mk(dst):
            def f(addr):
                r = []
                for h, qq in enumerate((qa, qb)):
                    A_ = qq * QS + addr + extra
                    r.append(I('ds_read_b64_tr_b16', dst[2*h:2*h+2], bases[A_ >> 16], mods=f'offset:{A_ & 0xffff}'))
                return r
            return f
        return mk
    def tfrag(unit, bases, sel, extra, grp, rate=1, lat=None):
        d = A(4, 'f' + unit.name); return Frag(d, unit, 2, trd(bases, sel, sel + 2, extra)(d), grp, rate, lat or o['lat'])
    def bfrag(d, unit, base, extra, grp, lat=None):
        return Frag(d, unit, 1, lambda addr: [I('ds_read_b128', d, base, mods=f'offset:{addr + extra}')], grp, 1, lat or o['lat'])
    sc = Sched(); W = sc.W; W.vgap = o['vgap']; W.back = o['back']; W.backf = o['backf']; W.seed = o['seed']; W.par = o.get('par'); W.urg = o.get('urg', 100)
    NS = o['S']; pre = lambda g: NS if g == 3 else o['SE']
    Xf = [[(A if 4 * k + tt < o['xa'] else V)(4, f'X{k}_{tt}') for tt in range(4)] for k in range(18)]
    uX = [Unit(f'X{s}', 4, None, True) for s in range(9)]
    for s in range(NS): uX[s].pre = True
    uB = [Unit(f'B{s}', 2, mkdma(vB, sB, Bb, 128 * s), False) for s in range(9)]
    uH = [Unit(f'H{s}', 2, mkdma(vH, sW, hb, 64 * 9216 * s), False) for s in range(9)]
    uR = [Unit(f'R{n}', 1, mkdma(vB[:1], sB, Rb if n < 4 else Rc, 256 * n), False) for n in range(5)]
    accb = [[V(4, f'b{u}_{tt}') for tt in range(4)] for u in range(2)]; accm = V(4, 'bm')
    acch = [[V(4, f'h{m}_{tt}') for tt in range(4)] for m in range(2)]
    idn = V(2, 'idn'); Cm = [V(4, f'Cm{g}') for g in range(4)]
    def center(g, s):
        T = [V(4, 'T0'), V(4, 'T1')]
        ti = [I(TINY, T[h], idn, xr[g][s][2*h:2*h+2], Cm[g]) for h in range(2)]
        cv = [I('v_cvt_pk_bf16_f32', xr[g][s][e], T[e >> 1][2*(e&1)], T[e >> 1][2*(e&1)+1]) for e in range(4)]
        return ti, cv
    vXw = [V(1, f'vXw{g}') for g in range(4)]
    def xwrite(g, s): return I('ds_write_b128', vXw[g], xr[g][s], mods=f'offset:{uX[s].addr}', tag=f'xw{s}')
    ctr = {}
    for s in range(9):
        ml = []
        for kp in range(2):
            k = 2 * s + kp; z = lambda a: 0 if k == 0 else a
            fx = [bfrag(Xf[k][tt], uX[s], vXr[kp][tt >> 1], (tt & 1) * 2048, ('a', k)) for tt in range(4)]
            fbs = [bfrag(A(4, 'fb'), uB[s], vBr[kp], u * 1024, ('a', k)) for u in range(2)]
            for u in range(2):
                for tt in range(4): ml.append(M(I(MF, accb[u][tt], Xf[k][tt], fbs[u].dst, z(accb[u][tt])), fx[tt], fbs[u]))
            fm = bfrag(A(4, 'fxm'), uX[s], vXm[kp], 0, ('b', k)); fr = bfrag(A(4, 'fbm'), uR[s >> 1], vBq[kp][s & 1], 0, ('b', k))
            ml.append(M(I(MF, accm, fm.dst, fr.dst, z(accm)), fm, fr))
            for m in range(2):
                f = tfrag(uH[s], vTh, m, kp * 1024, ('b', k))
                for tt in range(4): ml.append(M(I(MF, acch[m][tt], f.dst, Xf[k][tt], z(acch[m][tt])), f))
        for g in range(3, -1, -1):
            if pre(g) <= s + 2 < 9:
                ti, cv = center(g, s + 2); ctr[(g, s + 2)] = (ti, cv)
                ml[5 + 8 * g:5 + 8 * g] = [M(ti[0], tiny=2), M(ti[1], tiny=1)]
        sc.feed(ml)
    gA = len(W.m)
    E = o['edge']
    order = [(0, k) for k in range(E)] + [(1, k) for k in range(E)] + [(t, k) for k in range(E, 18 - E) for t in range(2)] + \
            [(0, k) for k in range(18 - E, 18)] + [(1, k) for k in range(18 - E, 18)]
    acc1 = []; gI = []; last1 = {}; first1 = {}
    for it in range(4):
        gI.append(len(W.m))
        uW = [Unit(f'W{it}_{s}', 4, mkdma(vW, sW, fb, 128 * it + 64 * 9216 * s), True if (it, s) == (0, 0) else None) for s in range(9)]
        for u in uW: u.early = max(g for g, its in plan if any(x in its for x in (f'W{it}', f'Q{it}', f'Y{it}', f'Y{it-1}'))) + (gA - 354 if it else 0) + 30
        ac = [[[V(4, f'g{it}{m}{t}{tt}') for tt in range(4)] for t in range(2)] for m in range(2)]; acc1.append(ac)
        for n, (t, k) in enumerate(order):
            ml = []
            for m in range(2):
                f = tfrag(uW[k >> 1], vT[t], m, (k & 1) * 2048, ('w', it, n >> 1))
                for tt in range(4): ml.append(M(I(MF, ac[m][t][tt], f.dst, Xf[k][tt], 0 if k == 0 else ac[m][t][tt]), f))
            if k == 0: first1[(it, t)] = len(W.m)
            sc.feed(ml)
            if k == 17: last1[(it, t)] = len(W.m) - 1
    gC = len(W.m); G = lambda g: g + gA - 354
    hq = [[A(4, f'hq{k}_{t}') for t in range(2)] for k in range(9)]
    Ca = [[SR(1, f'Ca{g}{L}') for L in range(2)] for g in range(3)]; Cb = SR(1, 'Cb')
    sQc = [SR(1, 'Qa'), SR(1, 'Qb')]
    two = lambda b: (lambda addr, tag: mkdma(vC, sC, b, 0, sQc[0])(addr, tag) + mkdma(vC, sC, b, 2 * 18432, sQc[1])(addr, tag))
    uC = [[Unit(f'C{g}{L}', 4 if g < 2 else 1, two(Ca[g][L]) if g < 2 else mkdma(vC[:1], sC, Ca[g][L], 0),
                (True if L == 0 and g < 2 else False)) for L in range(2)] for g in range(3)]
    vCl = [V(1, 'vCl0'), V(1, 'vCl1'), V(1, 'vCm2')]; vE = [V(1, f'vE{b}') for b in range(2)]
    uCl = Unit('Cl', 3, mkdma(vCl, sC, Cb, 0), False)
    accs = [[V(4, f's{t}_{a}') for a in range(2)] for t in range(9)]; lastS = {}
    for t in range(9):
        ml = []
        for k in range(9):
            if k < 8: f = bfrag(A(4, 'fc'), uC[t >> 2][k >> 2], vCr[k & 3], (t & 3) * 1024, ('c', t, k // 3))
            else: f = bfrag(A(4, 'fc'), uCl, vCr[4], t * 256, ('c', t, k // 3))
            for a in range(2): ml.append(M(I(MF, accs[t][a], hq[k][a], f.dst, 0 if k == 0 else accs[t][a]), f))
        sc.feed(ml); lastS[t] = len(W.m) - 1
    g2 = len(W.m)
    Hh = [V(8, f'Hh{x}') for x in range(4)]
    Hq = [[[(V if x == 3 and kl < 4 else A)(4, f'Hq{x}{kl}{a}') for a in range(2)] for kl in range(8)] + [[Hh[x][0:4], Hh[x][4:8]]] for x in range(4)]
    accd = [[V(4, f'd{t}_{a}') for a in range(2)] for t in range(12)]; seen = set(); lastD = {}; useH = {}
    Pf, Ph, Pl, Pm, Hp = [[SR(1, f'{n}{x}') for x in range(4)] for n in ('Pf', 'Ph', 'Pl', 'Pm', 'Hp')]; L8 = SR(1, 'L8'); L8h = SR(1, 'L8h')
    uD = [[Unit(f'D{x}{it}', 4, mkdma(vD, sD, Pf[x], it * 64 * 1152)) for it in range(4)] + [Unit(f'D{x}h', 2, mkdma(vD[:2], sD, Ph[x], 0))] for x in range(4)]
    uL = [Unit(f'L{it}', 2, mkdma(vD[:2], sD, L8, it * 64 * 1152)) for it in range(4)] + [Unit('Lh', 2, mkdma(vD[:2], sD, L8h, 0))]
    uD[0][4].brk = True
    uE = [[Unit(f'E{x}{L}', 4, mkdma(vD[:2] + vE, sD, (Pl, Pm)[L][x], 128 * 1152), f'{x}{L}' in o.get('ebrk', '10 11')) for L in range(2)] for x in range(4)]
    gcnt = [0]
    def dstep(x, kl, t):
        it, kk = kl >> 1, kl & 1
        if x and it in (2, 3): f = tfrag(uE[x][t >> 2], vU[t & 1], kk, (it - 2) * 2048 + ((t >> 1) & 1) * 512, ('d', gcnt[0] >> 2), o['rate2'])
        elif t < 8: f = tfrag(uD[x][it], vU[t & 1], t >> 2, kk * 2048 + ((t >> 1) & 1) * 512, ('d', gcnt[0] >> 2), o['rate2'])
        else: f = tfrag(uL[it], vU[t & 1], kk, ((t >> 1) & 1) * 512, ('d', gcnt[0] >> 2), o['rate2'])
        gcnt[0] += 1
        useH.setdefault((x, kl), len(W.m))
        sc.feed([M(I(MF, accd[t][a], Hq[x][kl][a], f.dst, accd[t][a] if t in seen else 0), f) for a in range(2)])
        seen.add(t); lastD[t] = len(W.m) - 1
    for kl in (8, 0, 1, 2, 3, 4, 5, 6, 7):
        for t in (range(12) if kl != 7 else (8, 9, 10, 11, 0, 1, 2, 3, 4, 5, 6, 7)): dstep(0, kl, t)
    gP = len(W.m)
    earlyH = [(x, kl) for x in (1, 2, 3) for kl in (8, 0, 1, 2, 3)]
    for x, kl in earlyH:
        for t in range(8): dstep(x, kl, t)
    g3 = len(W.m)
    lateH = [(x, kl) for x in (1, 2, 3) for kl in range(4, 8)]
    pr = [A(4, f'pr{b}') for b in range(5)]; ps = [[V(4, f'ps{r}{i}') for i in range(2)] for r in range(3)]; pd = [[V(4, f'pd{r}{i}') for i in range(2)] for r in range(3)]
    xv = [V(4, f'xv{n}') for n in range(3)]; xf = [[V(4, f'xf{i}{a}') for a in range(2)] for i in range(2)]; xf4 = V(4, 'xf4'); Y4 = V(4, 'Y4'); D4 = V(4, 'D4')
    sel = V(4, 'sel'); idm = [V(4, 'id0'), V(4, 'id1')]; sA_ = V(8, 'selA'); selA = [sA_[2:6], sA_[0:4]]
    addp = lambda ac, src: [I(MF, ac[6 + i][a], selA[a], src[i], ac[6 + i][a]) for i in range(2) for a in range(2)]
    for ts in o.get('late', [[0, 1], [2, 3], [4], [5], [6], [7]]):
        for x, kl in lateH:
            for t in ts: dstep(x, kl, t)
        if t == o.get('t4', 3):
            gX = len(W.m)
            sc.feed([M(x) for x in inter([[I(MF, D4, sel, pr[1 + k], D4 if k else 0) for k in range(4)], [I(MF, xf[i][a], xv[a], idm[i], 0) for i in range(2) for a in range(2)]]) +
                     [I(MF, xf4, xv[2], idm[0], 0), I(MF, Y4, sel, pr[0], 0)]])
        if t == 5: gS = len(W.m); sc.feed([M(x) for r in range(3) for x in addp(accs, ps[r])])
    gD = len(W.m); sc.feed([M(x) for r in range(2) for x in addp(accd, pd[r])])
    gE = len(W.m)
    gSetC = gI[3] + o.get('setc', 40); gSetD = gI[3] + o.get('setd', 100)
    for u in sum(uC, []) + [uCl]: u.early = gSetC
    for u in sum(uD, []) + uL: u.early = gSetD
    sc.plan(lambda g: o['ep'], lambda g: 99, o['tail'])
    spacing = lambda g: o['sp'] if g < gSetC else o['sp2']
    sc.allocate(o['p0max'], spacing)
    bar = sc.bar
    col = p.v('v_and_b32', 15, l, name='col'); l16 = p.v('v_lshlrev_b32', 4, l, name='l16')
    big = p.v('v_mov_b32', BIG); p('v_cmp_ne_u32', 'vcc', 0, v0); vM0 = p.v('v_cndmask_b32', 0, big, 'vcc', name='vM0')
    t = p.v('v_mul_u32_u24', 9216, rm); p('v_add_u32', vW[0], t, c64)
    for b in (1, 2, 3): p('v_add_u32', vW[b], b * (16 * 9216 - 1024), vW[0])
    for u in sc.p0:
        d_ = u.dma(u.addr, f'E{u.epoch}'); vm += [d_[:3]] + [[x] for x in d_[3:]]
    t0 = p.s('s_lshl2_add_u32', mt, jq); t1 = p.s('s_lshl2_add_u32', t0, w); t1 = p.s('s_lshl2_add_u32', t1, jg); t1 = p.s('s_mul_i32', t1, SRC); Pb = p.s('s_add_u32', t1, P8_OFF, name='Pb')
    jx = p.s('s_xor_b32', jg, 3, name='jx'); t0 = p.s('s_lshl2_add_u32', t0, jx); Pp = []
    for r in range(3):
        t1 = p.s('s_xor_b32', t0, r); t1 = p.s('s_lshl2_add_u32', t1, w); t1 = p.s('s_mul_i32', t1, PW); Pp.append(p.s('s_add_u32', t1, PX_OFF + 4096 * r, name=f'Pp{r}'))
    mw = p.s('s_lshl2_add_u32', mt, w, name='mw')
    if o['tlb']:
        dmy = SR(1, 'dmy'); p.append(DEF(dmy))
        def touch(srd, so):
            x = p('s_buffer_load_dword', dmy, srd, so); x.kind = 'K'; x.d = []
        t0 = p.s('s_mul_i32', mw, 144 * 2048); t0 = p.s('s_add_u32', t0, H_OFF); touch(sS, t0)
        t0 = p.s('s_lshl_b32', mw, 16); t0 = p.s('s_add_u32', t0, HF_OFF); touch(sS, t0)
        touch(sS, Pb); t0 = p.s('s_mov_b32', HR_OFF); touch(sS, t0); touch(sS, 0)
        t0 = p.s('s_mul_i32', mw, 32 * 2304); touch(sO, t0)
        t0 = p.s('s_lshl2_add_u32', jg, w); t0 = p.s('s_mul_i32', t0, 288 * 1152); touch(sD, t0)
        touch(sC, 0); touch(sK, 0); touch(sG, 0)
    t = p.v('v_lshlrev_b32', 6, row); l3 = p.v('v_and_b32', 3, l); t = p.v('v_lshl_add_u32', l3, 3, t); tp0 = p.v('v_lshl_add_u32', r2, 5, t)
    f9 = p.s('s_lshl_b32', fw, 9, name='f9'); t = p.v('v_lshl_add_u32', hi, 10, tp0); p('v_add_u32', vT[0][0], f9, t); p('v_xor_b32', vT[1][0], 32, vT[0][0])
    t0 = p.s('s_lshl_b32', fw, 5); t = p.v('v_lshl_add_u32', hi, 9, tp0); p('v_xor_b32', vTh[0], t0, t)
    for r in (vT[0], vT[1], vTh):
        for k in (1, 2): p('v_add_u32', r[k], 65536 * k, r[0])
    ih = p.v('v_bfe_u32', l, 3, 1); i1 = p.v('v_bfe_u32', l, 1, 3); t = p.v('v_xor_b32', q, i1); t = p.v('v_lshlrev_b32', 4, t); L0 = p.v('v_lshl_add_u32', sl, 7, t)
    LX = p.v('v_lshl_add_u32', ih, 10, L0)
    t0 = p.s('s_mul_i32', tw, 2 * QS); p('v_add_u32', vXr[0][0], t0, LX); p('v_add_u32', vXr[0][1], QS, vXr[0][0])
    t0 = p.s('s_lshl1_add_u32', je, tw); t0 = p.s('s_mul_i32', t0, QS); t0 = p.s('s_lshl2_add_u32', f9, t0); p('v_add_u32', vXm[0], t0, LX)
    t = p.v('v_mul_u32_u24', QS, ih); p('v_add_u32', vBq[0][0], t, L0); p('v_add_u32', vBq[0][1], 2 * QS, vBq[0][0])
    t0 = p.s('s_mul_i32', fw, 2 * QS); p('v_add_u32', vBr[0], t0, vBq[0][0])
    for a, b in ((vXr[1][0], vXr[0][0]), (vXr[1][1], vXr[0][1]), (vXm[1], vXm[0]), (vBq[1][0], vBq[0][0]), (vBq[1][1], vBq[0][1]), (vBr[1], vBr[0])): p('v_xor_b32', a, 64, b)
    vQ = p.v('v_add_u32', sQ, l16, name='vQ')
    t0 = p.s('s_lshl_b32', jq, 10); p('v_add_u32', vXw[0], t0, vQ)
    for g in (1, 2, 3): p('v_xor_b32', vXw[g], g * 1024, vXw[0])
    t = p.v('v_lshlrev_b32', 4, b0); c_ = p.v('v_mov_b32', 0x3f80); one = p.v('v_lshlrev_b32', t, c_)
    p('v_cmp_eq_u32', 'vcc', 0, b1); p('v_cndmask_b32', idn[0], 0, one, 'vcc'); p('v_xor_b32', idn[1], idn[0], one)
    asum = V(4, 'asum'); t = p.v('v_bfe_u32', l, 2, 2); c_ = p.v('v_mov_b32', 0x3f803f80); p('v_cmp_eq_u32', 'vcc', t, q)
    for e in range(4): p('v_cndmask_b32', asum[e], 0, c_, 'vcc')
    kb0 = SR(2, 'kb0'); kb1 = SR(2, 'kb1')
    p('v_cmp_ne_u32', kb0, 0, b0); p('v_cmp_ne_u32', kb1, 0, b1)
    rc = p.s('s_mov_b32', o['rc'], name='rc')
    p.extend(st.t(4))
    c = P()
    sgn = c.v('v_lshlrev_b32', 31, ih)
    vKw = c.v('v_lshl_add_u32', l, 3, sQ)
    lre, lim, ldt = [c.v('v_lshlrev_b32', 16, x) for x in raw]
    t = c.v('v_mul_f32', LOG2E, ldt); dt = c.v('v_exp_f32', t)
    den = c.v('v_mul_f32', lre, lre); c('v_fmac_f32', den, lim, lim); rd = c.v('v_rcp_f32', den)
    dt = c.v('v_cvt_pk_bf16_f32', dt, dt); dt = c.v('v_and_b32', 0xffff0000, dt)
    xr_ = c.v('v_mul_f32', dt, lre); xi = c.v('v_mul_f32', dt, lim)
    t = c.v('v_mul_f32', LOG2E, xr_); mag = c.v('v_exp_f32', t)
    t = c.v('v_mul_f32', 1 / (2 * math.pi), xi); t = c.v('v_fract_f32', t)
    cs = c.v('v_cos_f32', t); sn = c.v('v_sin_f32', t)
    rd = c.v('v_add_f32', rd, rd)
    k1 = V(2); c('v_mul_f32', k1[0], mag, cs); b = c.v('v_mul_f32', mag, sn)
    am = c.v('v_add_f32', -1.0, k1[0])
    cr = c.v('v_mul_f32', am, lre); c('v_fmac_f32', cr, b, lim)
    ci = c.v('v_mul_f32', b, lre); ci = c.v('v_fma_f32', Neg(am), lim, ci)
    k0 = V(2); cr = c.v('v_mul_f32', cr, rd); c('v_mul_f32_e64', k0[1], Neg(ci), rd); c('v_xor_b32', k0[0], sgn, cr)
    c('v_xor_b32', k1[1], sgn, b)
    CI = {'cf': 0, 'l1': 1, 'l16': 2, 'l64': 3, 'l512': 4}
    def kput(nm, r): c('ds_write_b64', vKw, r, mods=f'offset:{CST + 512 * CI[nm]}')
    kput('cf', k0); kput('l1', k1); cur = k1
    for n in range(1, 10):
        nx = V(2); a2 = c.v('v_mul_f32', cur[0], cur[0]); t = c.v('v_add_f32', cur[0], cur[0])
        c('v_fma_f32', nx[0], Neg(cur[1]), cur[1], a2); c('v_mul_f32', nx[1], t, cur[1]); cur = nx
        if n in (4, 6, 9): kput(f'l{1<<n}', cur)
    cst = list(c)
    sS_ = [V(4, f'sum{g}') for g in range(4)]; sQ_ = [V(4, f'sq{g}') for g in range(4)]; nmean = []; qsum = []
    def post(g):
        r = P(); a = sS_[g][0]
        for m in ('quad_perm:[1,0,3,2]', 'quad_perm:[2,3,0,1]', 'row_half_mirror'): a = r.v('v_add_f32_dpp', a, a, mods=m + DM)
        a = r.v('v_mul_f32', -1.0 / 576, a); nmean.append(a); t = r.v('v_cvt_pk_bf16_f32', a, a)
        for e in range(4): r('v_and_b32', Cm[g][e], 0xffff0000, t)
        r2_ = P(); b = r2_.v('v_mov_b32_dpp', sQ_[g][0], mods='quad_perm:[0,0,0,0]' + DM)
        for e in (1, 2, 3): b = r2_.v('v_add_f32_dpp', sQ_[g][e], b, mods=f'quad_perm:[{e},{e},{e},{e}]' + DM)
        b = r2_.v('v_add_f32_dpp', b, b, mods='row_half_mirror' + DM); qsum.append(b)
        out = inter([r, r2_]); prev = None
        for s in range(pre(g)):
            ti, cv = center(g, s); out += ti
            if prev: out += prev
            prev = cv + ([xwrite(g, s)] if s < NS else [])
        return out + prev
    pend = []
    if o.get('cst0', 2) == 2: p.extend(cst[:8] + (st.t(15) if o.get('bst') else []) + cst[8:]); cst = []
    for _ in range(o.get('xa1', 9)): p.extend(vm.pop(0))
    for g in range(4):
        per = -(-len(pend) // 9)
        for s in range(9):
            x = xr[g][s]; f = pend[:per]; pend = pend[per:]
            p(TINY, sQ_[g], x[0:2], x[0:2], 0 if s == 0 else sQ_[g]); p(MF, sS_[g], asum, x, 0 if s == 0 else sS_[g])
            if g == 0 and s == o.get('s16', 0) and o.get('bst'): p.extend(st.t(16))
            if vm: p.extend(vm.pop(0))
            p.extend(f[:2]); p(TINY, sQ_[g], x[2:4], x[2:4], sQ_[g]); p.extend(f[2:])
        p.extend(st.t(5 + g))
        pend = post(g)
        if g == 0 and o.get('cst0', 2) == 1: p.extend(cst); cst = []
    k = max(1, len(pend) // (len(vm) + 1))
    while pend or vm:
        p.extend(pend[:k]); pend = pend[k:]
        if vm: p.extend(vm.pop(0))
    if o['tlb']: p.append(WAIT(lgkm=0)); p.append(KEEP(dmy))
    sc.xlg[0].append(f'xw{NS-1}')
    qc = []; qw = []
    for s in range(NS, 9):
        e = uX[s].epoch
        for g in range(4):
            x = xwrite(g, s); x.ready = bar[uX[s].at] + 1; x.dead = bar[e] - 9 + 2 * g; qw.append(x)
            if (g, s) in ctr:
                ti, cv = ctr[(g, s)]; cv[0].deps = [(ti[1], 2)]; cv[-1].dead = ti[1].gap + 7; qc += cv; x.deps = [(cv[-1], 0)]
        sc.xlg[e].append(f'xw{s}')
    W.queue(qc, 45, 'ctr'); W.queue(qw, 46, 'xw')
    e1 = sc.barafter(gI[2] + o['pub1']); sc.xvm[e1] += ['hs', 'H0', 'H1']
    eh = sc.barafter(gI[3] + 130); sc.xvm[eh] += ['H2']
    e2 = sc.barafter(gC + o['pub2']); sc.xvm[e2] += ['H3', 'sp']
    e3 = sc.barafter(lastD[11] + o['pub3']); sc.xvm[e3] += ['d8']
    qe = P(); qt = Q()
    t0 = qt.s('s_lshl1_add_u32', mt, tw); t0 = qt.s('s_mul_i32', t0, 288); t1 = qt.s('s_mul_i32', j, 9); t0 = qt.s('s_add_u32', t0, t1)
    t0 = qt.s('s_lshl1_add_u32', t0, fw); t0 = qt.s('s_lshl_b32', t0, 10); e0 = qt.s('s_add_u32', t0, H_OFF + 16384)
    Hs = qt.s('s_lshl1_add_u32', f9, e0, name='Hs')
    es = [e0, qt.s('s_add_u32', e0, 144 * 2048)]
    qt[0].ready = gA - 60
    def epi(g, u, dst, ready):
        n0 = len(qe)
        for e in range(4): qe('v_mul_f32', g[e], g[e], u[e])
        for e in range(2): qe('v_cvt_pk_bf16_f32', dst[e], g[2 * e], g[2 * e + 1])
        qe[n0].ready = ready
    def hst(r, so, off, tag, g0):
        x = qt('buffer_store_dwordx4', r, l16, sS, so, mods=f'offen offset:{off} sc1', tag=tag)
        x.deps = [(qe[-1], 1)]; x.need = g0; x.dead = min(g0 + o['hst'], gE + 9); x.soft = 1; qe[-1].dead = min(getattr(qe[-1], 'dead', 1 << 30), x.dead - 2); return x
    for a in range(2):
        r = V(4, 'Hh')
        for k in range(2): epi(acch[0][2*a+k], acch[1][2*a+k], r[2*k:2*k+2], gA - 4 + 2*a + k + 3)
        if a: qe[-1].dead = first1[(0, 1)] + 4
        hst(r, es[a], 0, 'H0', gA + 20)
    hlast = {}
    for it in range(4):
        Hf = [V(4, f'Hf{tt}') for tt in range(4)]; ac = acc1[it]
        es = [qt.s('s_add_u32', Hs, it * 4096 - 16384 + k * 144 * 2048) for k in range(2)]; qt[-2].ready = last1[(it, 1)] - 10
        for t in range(2):
            for tt in range(4):
                epi(ac[0][t][tt], ac[1][t][tt], Hf[tt][2*t:2*t+2], last1[(it, t)] + tt)
                if it < 3: qe[-1].dead = first1[(it + 1, t)] + tt - 1
                if t == 1: hlast[it] = hst(Hf[tt], es[tt >> 1], (tt & 1) * 1024, f'H{it}', last1[(it, 1)] + 10 + 10 * tt)
    def part(ac, so, off, ready, tag):
        r = V(4, 'pk'); n0 = len(qe)
        for e in range(4): qe('v_cvt_pk_bf16_f32', r[e], ac[e >> 1][2*(e&1)], ac[e >> 1][2*(e&1)+1])
        qe[n0].ready = ready + 3
        return hst(r, so, off, tag, ready + 10)
    for t in (0, 1, 2, 3, 4, 5, 8): slast = part(accs[t], Pp[t >> 1] if t < 8 else Pb, (t & 1) * 1024, lastS[t], 'sp' if t < 8 else 'd8')
    t0 = qt.s('s_mul_i32', jq, 4 * FIN - 1024); P8 = qt.s('s_sub_u32', Pb, t0); t1 = qt.s('s_and_b32', jx, 1); t1 = qt.s('s_lshl_b32', t1, 1)
    for u in range(4):
        e0 = qt.s('s_xor_b32', t1, u); e0 = qt.s('s_mul_i32', e0, 4 * FIN); e0 = qt.s('s_add_u32', e0, P8); d8 = part(accd[8 + u], e0, 1024, lastD[8 + u], 'd8')
    d8.dead = min(d8.dead, bar[e3] - 20)
    dst_ = []
    for t in range(6):
        dst_.append(part(accd[t], Pp[t >> 1], 2048 + (t & 1) * 1024, lastD[t], 'dp')); dst_[-1].back = 2000; dst_[-1].need = 0; dst_[-1].chain = 1
    W.queue(qe, 40, 'epi'); W.queue(qt, 47, 'st')
    qs = Q()
    x0 = qs.s('s_and_b32', jx, 1, name='x0'); x1 = qs.s('s_lshr_b32', jx, 1, name='x1'); fx = qs.s('s_xor_b32', fw, x1, name='fx')
    u0 = qs.s('s_mul_i32', jq, 8 * 18432); u1 = qs.s('s_lshl1_add_u32', jg, Tr); u1 = qs.s('s_lshl_b32', u1, 7); u4 = qs.s('s_add_u32', u0, u1)
    u2 = qs.s('s_mul_i32', x1, 4 * 18432); qs('s_add_u32', Ca[0][0], u4, u2); u2 = qs.s('s_sub_u32', 4 * 18432, u2); qs('s_add_u32', Ca[1][0], u4, u2)
    u2 = qs.s('s_lshl_b32', jg, 5); qs('s_add_u32', Cb, u0, u2)
    u0 = qs.s('s_lshl_b32', x0, 11); qs('s_add_u32', sQc[0], sQ, u0); qs('s_xor_b32', sQc[1], 2048, sQc[0])
    u0 = qs.s('s_mul_i32', jq, 18432); u0 = qs.s('s_add_u32', u0, 32 * 18432); qs('s_add_u32', Ca[2][0], u0, u1)
    for g in range(3): qs('s_xor_b32', Ca[g][1], 128, Ca[g][0])
    u3 = qs.s('s_mul_i32', mw, 144 * 2048); u3 = qs.s('s_add_u32', u3, H_OFF)
    u2 = qs.s('s_mul_i32', fw, 36864); t0 = qs.s('s_lshl_b32', fx, 7); u2 = qs.s('s_sub_u32', u2, t0)
    t0 = qs.s('s_lshl_b32', x1, 7); u5 = qs.s('s_add_u32', u2, t0); t0 = qs.s('s_xor_b32', t0, 128); u6 = qs.s('s_add_u32', u2, t0)
    for x in range(4):
        u0 = qs.s('s_add_u32', jq, x); u0 = qs.s('s_and_b32', u0, 3); u1 = qs.s('s_and_b32', u0, 1); u0 = qs.s('s_lshl2_add_u32', jg, u0)
        t0 = qs.s('s_mul_i32', u0, 18432); qs('s_add_u32', Hp[x], t0, u3)
        u0 = qs.s('s_mul_i32', u0, 9); t0 = qs.s('s_add_u32', u0, u1); qs('s_mul_i32', Pf[x], t0, 36864)
        u1 = qs.s('s_xor_b32', u1, 1); u0 = qs.s('s_lshl3_add_u32', u1, u0); qs('s_mul_i32', Ph[x], u0, 36864)
        if x: qs('s_add_u32', Pl[x], Pf[x], u5); qs('s_add_u32', Pm[x], Pf[x], u6)
    u0 = qs.s('s_lshl_b32', jq, 8); u0 = qs.s('s_sub_u32', 1024, u0); u0 = qs.s('s_add_u32', u0, u2)
    qs('s_add_u32', L8, Pf[0], u0); qs('s_add_u32', L8h, Ph[0], u0)
    qs[0].ready = gI[2] + 20; qs[-1].dead = gI[3] - 70; sdone = qs[-1]
    n0 = len(qs)
    t = qs.v('v_and_b32', 7, col); t = qs.v('v_xor_b32', t, q); t2 = qs.v('v_lshlrev_b32', 4, t)
    u0 = qs.s('s_lshl_b32', tw, 6); u1 = qs.s('s_mul_i32', tw, 8 * 1152)
    t = qs.v('v_lshrrev_b32', 7, l16); t = qs.v('v_mul_u32_u24', 1152, t); t = qs.v('v_xad_u32', t2, u0, t); qs('v_add_u32', vC[0], u1, t); qs('v_add_u32', vC[1], 18432 - 1024, vC[0])
    t = qs.v('v_lshrrev_b32', 1, col); t = qs.v('v_mul_u32_u24', 1152, t); t2 = qs.v('v_and_b32', 16, l16); t = qs.v('v_add3_u32', t, t2, u1)
    u0 = qs.s('s_lshl_b32', jx, 1); t2 = qs.v('v_xor_b32', u0, q); t3 = qs.v('v_xor_b32', 4, t2); t2 = qs.v('v_mul_u32_u24', 18432, t2); t3 = qs.v('v_mul_u32_u24', 18432, t3)
    t2 = qs.v('v_add_u32', 1024, t2); qs('v_add_u32', vCl[0], t, t2); qs('v_add_u32', vCl[1], t, t3)
    u0 = qs.s('s_mul_i32', jq, 7 * 18432); u0 = qs.s('s_sub_u32', 32 * 18432 - 1024, u0); t2 = qs.v('v_lshlrev_b32', 24, q); qs('v_add3_u32', vCl[2], u0, t, t2)
    qs[n0].ready = gSetC - 100; qs[-1].dead = gSetC - 1
    u0 = qs.s('s_lshl1_add_u32', jq, fx); u0 = qs.s('s_lshl_b32', u0, 7); u1 = qs.s('s_mul_i32', tw, 16 * 1152); u0 = qs.s('s_add_u32', u0, u1)
    t = qs.v('v_bfe_u32', l16, 6, 3); t = qs.v('v_mul_u32_u24', 1152, t); t2 = qs.v('v_and_b32', 127, vW[0]); u1 = qs.s('s_lshl_b32', x0, 6); t = qs.v('v_xad_u32', t2, u1, t); qs('v_add_u32', vD[0], u0, t)
    for b, k in ((1, 8192), (2, 36864 - 2048), (3, 46080 - 3072)): qs('v_add_u32', vD[b], k, vD[0])
    qs[-1].dead = gSetD - 1
    t = qs.v('v_bfe_u32', col, 1, 3); t4 = qs.v('v_and_b32', 1, q); t = qs.v('v_xor_b32', t, t4); t = qs.v('v_lshlrev_b32', 4, t)
    t5 = qs.v('v_and_b32', 7, col); t = qs.v('v_lshl_add_u32', t5, 7, t)
    t2 = qs.v('v_lshrrev_b32', 3, col); t3 = qs.v('v_lshrrev_b32', 1, q); t2 = qs.v('v_lshl_add_u32', t2, 1, t3); t2 = qs.v('v_mul_u32_u24', QS, t2)
    u0 = qs.s('s_lshl_b32', je, 6); qs('v_xad_u32', vCr[0], t, u0, t2)
    for k in (1, 2, 3): qs('v_xor_b32', vCr[k], 32 * k, vCr[0])
    t = qs.v('v_lshl_add_u32', t5, 1, t4); qs('v_lshl_add_u32', vCr[4], t, 4, t2)
    qs[-1].dead = gC - 40
    n0 = len(qs)
    for a in range(2):
        for k in range(3): qs('v_subrev_u32', vU[a][k], f9, vT[a][k])
    qs('v_add_u32', vE[0], 73728 - 2048, vD[0]); qs('v_add_u32', vE[1], 73728 + 9216 - 3072, vD[0])
    qs[n0].ready = gC; qs[-1].dead = g2 - 70
    W.queue(qs, 5, 'setup')
    qp = Q(); pfl = []
    def pfs(xs, g):
        for x in xs: x.need = g; x.ready = g
        if o.get('pfb', 1):
            for x in xs[1:]: x.chain = 1; x.back = 1e9; x.need = -9
        pfl.append((g, xs))
    vP9 = V(1, 'vP9'); a_ = Q()
    t0 = a_.s('s_lshl_b32', jg, 6); t0 = a_.s('s_add_u32', t0, n2); t0 = a_.s('s_lshl1_add_u32', t0, fw); sPD = a_.s('s_mul_i32', t0, 9 * 1152)
    sPC = a_.s('s_mul_i32', n2, 9 * 1152); t0 = a_.s('s_lshl_b32', jg, 8); sPC2 = a_.s('s_add_u32', sPC, t0); a_('v_lshrrev_b32', vP9, 3, vPW)
    g0 = min(g for g, its in plan if 'D' in its or 'C' in its); a_[0].ready = G(g0) - 30; pfl.append((G(g0) - 30, list(a_)))
    for g, its in plan:
        xs = []; a_ = Q()
        def alt(base, step, second):
            t0 = a_.s('s_bfe_u32', wid, (1 << 16) | 2)
            if second: t0 = a_.s('s_xor_b32', t0, 1)
            t0 = a_.s('s_mul_i32', t0, step); return a_.s('s_add_u32', base, t0)
        for c_, n in its.split():
            if c_ in 'WXY': so = sPW if c_ == 'W' else alt(sPW, 128, c_ == 'Y'); xs += [pf(vPW, sW, so, 128 * (k + int(n)), 9, '', 'm' if c_ == 'Y' else 'c') for k in (0, 5, 9, 14)]
            elif c_ in 'PQ': so = alt(sPW, 1152, c_ == 'Q'); xs += [pf(vPW, sW, so, 128 * (k + int(n)), 9, '', 'm' if c_ == 'Q' else 'c') for k in (0, 5)]
            elif c_ == 'D' and n in 'ab': so = alt(sPD, 512, n == 'b'); xs += [pf(vP9, sD, so, 128 * k, 9, '', 'm' if n == 'b' else 'c') for k in range(4)]
            elif c_ == 'D': xs += [pf(vP9, sD, sPD, 128 * k, 9) for k in {'l': range(4), 'h': range(4, 8), '8': [8]}[n]]
            elif c_ == 'T': xs += [pf(vM0, {'c': sC, 'd': sD, 'o': sO, 'k': sK}[n], 0, 0, .25)]
            else: xs += [pf(vP9, sC, sPC2, 0, 9), pf(vP9, sC, sPC2, 128, 9), pf(vP9, sC, sPC, 1024, 9)]
        g = G(g) if g > 100 else g
        if a_: a_[0].ready = g - 12; pfl.append((g - .5, list(a_)))
        pfs(xs, g)
    for g in o.get('pcode', []):
        a_ = Q(); t0 = a_.s('s_lshl_b32', wid, 4); t0 = a_.s('s_and_b32', t0, 31 * 128); t1 = a_.s('s_lshl_b32', w, 18); t0 = a_.s('s_add_u32', t0, t1)
        t = a_.v('v_lshl_add_u32', l16, 8, t0); a_[0].ready = G(g) - 10; x = pf(t, sI, 0, 0, 3.5, c='m'); x.need = -9; x.back = 1e9; x.chain = 1; pfl.append((G(g), list(a_) + [x]))
    for g, xs in sorted(pfl, key=lambda x: x[0]): qp.extend(xs)
    qp.append(KEEP(pfd)); qp[-1].ready = max([gC] + o.get('pcode', [])) + 100
    W.queue(qp, 48, 'pf')
    qi = Q(); eI = o['eI']; sc.xvm[eI].append('init')
    t0 = qi.s('s_lshl1_add_u32', mt, tw); t0 = qi.s('s_sub_u32', 31, t0); t1 = qi.s('s_lshl_b32', Gn, 5); t0 = qi.s('s_add_u32', t0, t1); a0 = qi.s('s_lshl_b32', t0, 7, name='a0')
    t0 = qi.s('s_lshl1_add_u32', mt, je); t0 = qi.s('s_sub_u32', 31 + AR_OFF // 64, t0); t1 = qi.s('s_lshl1_add_u32', jg, Tr); t1 = qi.s('s_lshl_b32', t1, 5); t0 = qi.s('s_add_u32', t0, t1)
    a2 = qi.s('s_lshl_b32', t0, 6, name='a2')
    t0 = qi.s('s_lshl_b32', mt, 7); Fr = qi.s('s_add_u32', t0, FL_OFF, name='Fr'); Fl = qi.s('s_lshl2_add_u32', j, Fr, name='Fl')
    mm = V(4, 'mm'); vA8 = qi.v('v_lshlrev_b32', 3, col, name='vA8'); vBp = qi.v('v_lshlrev_b32', 2, col, name='vBp'); zz = qi.v('v_mov_b32', 0)
    for e in range(4): qi('v_mov_b32', mm[e], -1)
    qi[0].ready = o['sentg'] - 30
    xs = [mc(I('buffer_store_dwordx4', mm, l16, sS, Pp[n >> 1], mods=f'offen offset:{2048 + (n & 1) * 1024} sc1'), 8, 's') for n in range(6)]
    xs[1:1] = [mc(I('buffer_store_dwordx2', mm[0:2], vA8, sS, a0, mods='offen sc1'), 1, 's'), mc(I('buffer_store_dword', mm[0], vBp, sS, a2, mods='offen sc1'), 1, 's'),
               mc(I('buffer_store_dword', zz, vM0, sS, Fl, mods='offen sc1'), .25, 's')]
    for x in xs: x.tag = 'init'; x.soft = 1; x.ready = o['sentg']; x.need = o.get('sentn', bar[eI] - 100)
    qi.extend(xs); qi[-1].dead = bar[eI] - 30; sentl = qi[-1]
    o1 = qi.v('v_mov_b32', 1); t0 = qi.s('s_and_b32', wid, 1); t0 = qi.s('s_lshl_b32', t0, 7)
    mc(qi('buffer_atomic_add', o1, vM0, sG, t0, mods='offen sc1'), .25, 's', ready=bar[eI] + 1, soft=1, need=0)
    W.queue(qi, 12, 'init')
    m = Q(); stubs = []
    def verify(name, loads, check, dep, q):
        c = check()
        if dep: c[0].deps = [dep]
        br = I('s_cbranch_vccnz', f'L_r{name}'); br.deps = [(c[-1], 1)]
        keep = {r.vr.id: r.vr for x in loads() + check() for r in x.refs(x.u + x.d)}
        q.extend(c); q.extend([br, LABEL(f'L_b{name}'), KEEP(rc, *keep.values())])
        if st.on and o.get('bst') and name in ('c', 'a', 'f1', 'f2', 'f3'): q('v_writelane_b32', st.v, rc, 10 + ('c', 'a', 'f1', 'f2', 'f3').index(name))
        stubs.append((name, loads, check)); return br
    m.extend(cst)
    def pick(x):
        a = m.v('v_cndmask_b32', x[0], x[1], kb0); b = m.v('v_cndmask_b32', x[2], x[3], kb0); return m.v('v_cndmask_b32', a, b, kb1)
    def rbf(x): t = m.v('v_cvt_pk_bf16_f32', x, x); return m.v('v_and_b32', 0xffff0000, t)
    nm = pick(nmean); qq = pick(qsum)
    t = m.v('v_mul_f32', nm, nm); c_ = m.v('v_mov_b32', 1.0 / 576); var = m.v('v_fma_f32', qq, c_, Neg(t)); var = m.v('v_max_f32', 0, var)
    nm = rbf(nm); var = rbf(var); var = rbf(m.v('v_add_f32', 1e-5, var)); t = m.v('v_sqrt_f32', var)
    g_ = m.v('v_bfe_u32', l16, 4, 2); g_ = m.v('v_xor_b32', jq, g_)
    sd = rbf(t); rr = m.v('v_rcp_f32', sd)
    t = m.v('v_and_b32', 1, g_); t = m.v('v_lshl_add_u32', t, 5, tokl); t2 = m.v('v_and_b32', 2, g_); t = m.v('v_lshl_add_u32', t2, 1, t)
    t = m.v('v_add_lshl_u32', tk0, t, 2); t2 = m.v('v_add_u32', STM - STR, t)
    m('ds_write_b32', t, rr, mods=f'offset:{STR}', tag='stat'); m('ds_write_b32', t2, nm, mods=f'offset:{STR}', tag='stat')
    eS = 6; m[-1].dead = bar[eS] - 4; sc.xlg[eS].append('stat')
    n0 = len(m)
    t0 = m.s('s_lshl_b32', tw, 8); vRr = m.v('v_lshl_add_u32', q, 6, t0)
    t0 = m.s('s_lshl4_add_u32', je, w); t0 = m.s('s_lshl_b32', t0, 4); vRm = m.v('v_lshl_add_u32', q, 6, t0)
    vK = m.v('v_lshl_add_u32', col, 3, sQ, name='vK')
    vRg = [m.v('v_add_u32', RGO + 2 * QS * k, l16) for k in range(2)]
    m[n0].ready = gA - 40; assert bar[eS] < gA - 40
    rq = [V(4, f'rq{k}') for k in range(5)]
    for k in range(4): m('ds_read_b128', rq[k], vRr, mods=f'offset:{STR + 16 * k}')
    m('ds_read_b128', rq[4], vRm, mods=f'offset:{STR}')
    def getc(u, nm_):
        r = V(2, f'{nm_}{u}'); m('ds_read_b64', r, vK, mods=f'offset:{CST + 512 * CI[nm_] + 128 * u}'); return r
    l1 = [getc(u, 'l1') for u in range(3)]
    n0 = len(m)
    for e in range(4): m('v_mul_f32', accm[e], accm[e], rq[4][e])
    m[n0].ready = gA - 5
    eR = sc.barafter(gA + 10)
    m('ds_write_b128', vQ, accm, mods=f'offset:{RGO}', tag='rg'); m[-1].dead = bar[eR] - 4; sc.xlg[eR].append('rg')
    for u in range(2):
        for tt in range(4):
            for e in range(4): m('v_mul_f32', accb[u][tt][e], accb[u][tt][e], rq[tt][e])
    um = [V(4, f'um{tt}') for tt in range(4)]
    n0 = len(m)
    for tt in range(4): m('ds_read_b128', um[tt], vRg[tt >> 1], mods=f'offset:{(tt & 1) * QS}')
    m[n0].ready = bar[eR] + 1; lr = m[-1]
    U = [accb[0], accb[1], um]
    cf = [getc(u, 'cf') for u in range(3)]; l16c = [getc(u, 'l16') for u in range(3)]
    def horner(z, c, u, neg=False):
        d = V(1); return d, [I('v_fma_f32', d, c[0], z, u), I('v_fmac_f32_dpp', d, z, Neg(c[1]) if neg else c[1], mods=DPP8)]
    def coef(d, u, x): return [I('v_mul_f32', d, cf[u][0], x), I('v_fmac_f32_dpp', d, x, cf[u][1], mods=DPP8)]
    ch = []; ee = []
    for u in range(3):
        z = U[u][0][0]; c = []
        for k in range(1, 16):
            z, ins = horner(z, l1[u], U[u][k >> 2][k & 3], True); c += ins
        d = V(1); c += coef(d, u, z)
        ch.append(c); ee.append(d)
    c = inter(ch); c[0].deps = [(lr, 5)]; m.extend(c[:-40])
    vCn = m.v('v_lshlrev_b32', 3, l16); vCn = m.v('v_and_b32', 128, vCn, name='vCn'); cn = V(1, 'cn')
    cnl = lambda: [mc(I('buffer_load_dword', cn, vCn, sG, 0, mods='offen sc1'), 2, 'm', need=0, soft=1, back=2000)]
    cnc = lambda: [I('v_cmp_gt_u32', 'vcc', 128, cn)]
    m.extend(c[-40:])
    eb = [V(4, f'eb{u}') for u in range(3)]
    for u in range(3):
        for k in range(4): m('ds_bpermute_b32', eb[u][k], vBp, ee[u], mods=f'offset:{64*k}')
    lastbp = m[-1]
    ch = []; z01 = V(2, 'z01'); z2 = V(1, 'z2')
    for u in range(3):
        z = eb[u][0]; c = []
        for k in range(1, 4):
            z, ins = horner(z, l16c[u], eb[u][k]); c += ins
        c.append(I('v_min_u32', z01[u] if u < 2 else z2, -2, z))
        ch.append(c)
    c = inter(ch); c[0].deps = [(lastbp, 5)]; m.extend(c)
    mc(m('buffer_store_dwordx2', z01, vA8, sS, a0, mods='offen sc1'), 1, 's', need=0, soft=1, back=2000)
    agst = mc(m('buffer_store_dword', z2, vBp, sS, a2, mods='offen sc1'), 1, 's', need=0, soft=1, back=2000)
    Z = [[V(4, f'z{u}_{tt}') for tt in range(4)] for u in range(3)]
    zc = [inter([coef(Z[u][tt][e], u, U[u][tt][e]) for e in range(4)]) for u in range(3) for tt in range(4)]
    ldc = cnl(); ldc[0].ready = G(o['cng']); m.extend(ldc)
    for x in zc[:o.get('zc', 8)]: m.extend(x)
    vAl = m.v('v_lshl_add_u32', q, 10, vA8, name='vAl'); vAr = m.v('v_lshrrev_b32', 1, vAl, name='vAr')
    sA = SR(4, 'A'); sR = SR(4, 'R')
    for r, a_, k in ((sA, a0, 4095), (sR, a2, 2047)):
        m('s_mov_b64', r[0:2], sS[0:2]); t0 = m.s('s_or_b32', a_, k); m('s_add_u32', r[2], t0, 1); m('s_mov_b32', r[3], 0x20000)
    brc = verify('c', cnl, cnc, (ldc[0], 50), m)
    ag2 = [V(2, f'ag{k}') for k in range(8)]; ag1 = [V(1, f'ar{k}') for k in range(8)]; mx = V(1, 'mx')
    ag = [[ag2[7 - k][0] for k in range(8)], [ag2[7 - k][1] for k in range(8)], ag1[::-1]]
    agl = lambda: inter([[mc(I('buffer_load_dwordx2', ag2[k], vAl, sA, a0, mods=f'offen offset:{128*k+128} sc1'), 3, 'q', need=0, soft=1) for k in range(8)],
                         [mc(I('buffer_load_dword', ag1[k], vAr, sR, a2, mods=f'offen offset:{64*k+64} sc1'), 3, 'q', need=0, soft=1) for k in range(8)]])
    def agc():
        al = [ag[u][k] for k in range(7, -1, -1) for u in range(3)]
        r = [I('v_max3_u32', mx, al[0], al[1], al[2])]
        for k in range(3, 23, 2): r.append(I('v_max3_u32', mx, mx, al[k], al[k + 1]))
        return r + [I('v_max_u32', mx, mx, al[23]), I('v_cmp_eq_u32', 'vcc', -1, mx)]
    lda = agl(); lda[0].ready = G(o['agld']); zr = sum(zc[o.get('zc', 8):], [])
    for k, x in enumerate(lda): m.append(x); m.extend(zr[2 * k:2 * k + 2])
    m.extend(zr[32:])
    l64 = [getc(u, 'l64') for u in range(3)]
    bra = verify('a', agl, agc, (lda[-1], o['aglat']), m)
    ch = []; sq_ = []
    for u in range(3):
        z = ag[u][0]; c = []
        for k in range(1, 8):
            z, ins = horner(z, l64[u], ag[u][k]); c += ins
        ch.append(c); sq_.append(z)
    m.extend(inter(ch))
    l512 = [getc(u, 'l512') for u in range(3)]; l16c = [getc(u, 'l16') for u in range(3)]; l1 = [getc(u, 'l1') for u in range(3)]
    sb_ = [V(4, f'sb{u}') for u in range(3)]
    for u in range(3):
        for k in range(4): m('ds_bpermute_b32', sb_[u][k], vBp, sq_[u], mods=f'offset:{64*k}')
    lastbp = m[-1]
    kq = [SR(2, f'kq{k}') for k in range(3)]
    for k in range(3): m('v_cmp_lt_u32', kq[k], k, q)
    t = m.v('v_mul_u32_u24', 144, col); t = m.v('v_lshl_add_u32', q, 5, t); vHw = m.v('v_add_u32', sQ, t)
    t = m.v('v_lshrrev_b32', 6, l16); t = m.v('v_mul_u32_u24', 144, t); t2 = m.v('v_and_b32', 3, col); t = m.v('v_lshl_add_u32', t2, 5, t)
    vHr = m.v('v_add_u32', sQ, t); t0 = m.s('s_lshl_b32', w, 3); vHm = m.v('v_add_u32', t0, vHr)
    zs = lambda u, k: Z[u][k >> 2][k & 3]
    ch = []; pk = [[V(4), V(4)] for u in range(3)]
    for u in range(3):
        z = sb_[u][3]; c = []
        for k in (2, 1, 0):
            z, ins = horner(z, l512[u], sb_[u][k]); c += ins
        for k in range(3):
            z2, ins = horner(z, l16c[u], eb[u][k]); c += ins
            z3 = V(1); c.append(I('v_cndmask_b32', z3, z, z2, kq[k])); z = z3
        for k in range(16):
            c += [I('v_fmac_f32', zs(u, k), l1[u][0], z), I('v_fmac_f32_dpp', zs(u, k), z, l1[u][1], mods=DPP8)]; z = zs(u, k)
            if k == 9 or k == 15:
                h = k // 10
                for e in range(4): c.append(I('v_cvt_pk_bf16_f32', pk[u][h][e], zs(u, 8*h + 2*e), zs(u, 8*h + 2*e + 1)))
        ch.append(c)
    c = inter(ch); c[0].deps = [(lastbp, 5)]; m.extend(c)
    hf = [V(4, f'hf{tt}') for tt in range(4)]; hm = V(2, 'hm')
    for u in range(3):
        for h in range(2): m('ds_write_b128', vHw, pk[u][h], mods=f'offset:{MISC + 16*h}')
        if u < 2:
            for tt in range(4): m('ds_read_b64_tr_b16', hf[tt][2*u:2*u+2], vHr, mods=f'offset:{MISC + 8*tt}')
        else: m('ds_read_b64_tr_b16', hm, vHm, mods=f'offset:{MISC}')
    lastrd = m[-1]
    t0 = m.s('s_lshl1_add_u32', mt, tw); t0 = m.s('s_lshl_b32', t0, 6); t0 = m.s('s_add_u32', t0, Gn); t0 = m.s('s_lshl_b32', t0, 11)
    hs_ = [m.s('s_add_u32', t0, HF_OFF + k * 65536) for k in range(2)]
    t0 = m.s('s_lshl1_add_u32', mt, je); t0 = m.s('s_lshl1_add_u32', t0, tw); t0 = m.s('s_lshl2_add_u32', t0, jg)
    t0 = m.s('s_lshl1_add_u32', t0, fw); t0 = m.s('s_lshl_b32', t0, 10); t0 = m.s('s_lshl3_add_u32', Tr, t0); t0 = m.s('s_add_u32', t0, HR_OFF)
    n0 = len(m)
    for tt in range(4): mc(m('buffer_store_dwordx4', hf[tt], l16, sS, hs_[tt >> 1], mods=f'offen offset:{(tt & 1) * 1024} sc1', tag='hs'), 8, 's', need=0, soft=1, chain=o.get('hsc', 1))
    mc(m('buffer_store_dwordx2', hm, l16, sS, t0, mods='offen sc1', tag='hs'), 8, 's', need=0, soft=1, chain=o.get('hsc', 1))
    m[n0].deps = [(lastrd, 5)]; hsl = m[-1]; hsl.dead = bar[e1] - 30
    W.queue(m, 10, 'scan')
    qf = Q(); fl = V(1, 'fl'); kg = SR(2, 'kg')
    fll = lambda: [mc(I('buffer_load_dword', fl, vBp, sS, Fr, mods='offen sc1'), 1, 'm', need=0, soft=1, back=2000)]
    t0 = qf.s('s_lshl_b32', jg, 2); qf('s_lshl_b32', kg[0], 15, t0); qf('s_mov_b32', kg[1], 0); qf[0].ready = bar[e1] - 20
    pb = {}; br = {}
    for n, e in ((1, e1), (2, e2), (3, e3)):
        t = qf.v('v_mov_b32', n); qf[-1].ready = bar[e] - 6
        pb[n] = mc(qf('buffer_store_dword', t, vM0, sS, Fl, mods='offen sc1'), .25, 's', need=0, soft=1, back=2000, ready=bar[e] + 1)
        ld = fll(); ld[0].deps = [(pb[n], o.get(f'chk{n}', o['chk']))]; qf.extend(ld)
        br[n] = verify(f'f{n}', fll, lambda n=n: [I('v_cmp_gt_u32', 'vcc', n, fl)] + ([I('s_nop', 3), I('s_and_b64', 'vcc', 'vcc', kg)] if n < 3 else []), (ld[0], o['lat1']), qf)
        if n == 2 and o.get('f2b', 1):
            qf('s_lshl_b32', kg[0], 0x1111, jq); ld = fll(); ld[0].ready = gP + o.get('f2g', -60); qf.extend(ld)
            br[4] = verify('f4', fll, lambda: [I('v_cmp_gt_u32', 'vcc', 2, fl), I('s_nop', 3), I('s_and_b64', 'vcc', 'vcc', kg)], (ld[0], 45), qf)
    W.queue(qf, 49, 'flag')
    qa = Q(); qb = Q(); qx = P(); nld = [0]
    def gld(q, d, so, off, use, c):
        x = mc(q('buffer_load_dwordx4', d, l16, sS, so, mods=f'offen offset:{off} sc1'), 8, c, dead=use - o.get('gdead', 40), need=use - o.get('gneed', 45), soft=1)
        if ref(d).vr.cls == 'a' and nld[0] < o['xa']:
            x.ready = gI[3] + 16 * max(nld[0] // 4 + 1, E) + 2; nld[0] += 1
        elif ref(d).vr.cls == 'v': x.ready = gC + o.get('vld', 30)
        else: x.ready = g2
        return x
    def Hld(q, x, kls, after=None, dep=None, need=None):
        for kl in kls:
            if kl & 1 == 0:
                so = q.s('s_add_u32', Hp[x], kl * 2048)
                if kl == kls[0]:
                    q[-1].deps = [(sdone, 1)] + ([(dep, 1)] if dep else [])
                    if after is not None: q[-1].ready = bar[after] + 1
            r = [gld(q, Hq[x][kl][a], so, (kl & 1) * 2048 + a * 1024, useH[(x, kl)], 'h' if x else 'm') for a in range(2)]
            if need is not None:
                for y in r: y.need = need
            if kl == 8:
                for e in range(2): qx('v_swap_b32', Hh[x][2 + e], Hh[x][4 + e])
                qx[-2].deps = [(r[1], 35)]; qx[-1].dead = useH[(x, kl)] - 3
    t0 = qa.s('s_lshl2_add_u32', mw, jg); t1 = qa.s('s_lshl2_add_u32', t0, jq); t1 = qa.s('s_lshl_b32', t1, 12); h0 = qa.s('s_add_u32', t1, HF_OFF, name='h0')
    t0 = qa.s('s_lshl_b32', t0, 11); h8 = qa.s('s_add_u32', t0, HR_OFF, name='h8'); qa[0].ready = bar[e1] - 10; qa[-1].ready = bar[e1] + 1; hdone = qa[-1]
    for k in range(2):
        for a in range(2): gld(qa, hq[k][a], h0, k * 2048 + a * 1024, gC + 10, 'm').need = 0
    Hld(qa, 0, (0, 1, 2, 3), need=1)
    for k in range(2, 9):
        if k % 2 == 0 and k < 8:
            so = qb.s('s_xor_b32', h0, k * 2048)
            if k == 2: qb[-1].deps = [(br[1], 1), (hdone, 1)]
        for a in range(2): hl = gld(qb, hq[k][a], so if k < 8 else h8, (k & 1) * 2048 + a * 1024, gC + 10, 'h' if k < 8 else 'q')
    Hld(qa, 0, (4, 5), after=eh, need=gC - 20)
    Hld(qb, 1, (0, 1, 2, 3)); Hld(qb, 2, (0, 1, 2, 3))
    Hld(qa, 0, (8,), need=gC); Hld(qa, 0, (6, 7), after=e2, need=2)
    q8 = Q(); Hld(q8, 1, (8,), dep=br[1]); Hld(q8, 2, (8,)); Hld(q8, 3, (8,)); Hld(qb, 3, (0, 1, 2, 3))
    for x in (1, 2, 3): Hld(qb, x, (4, 5, 6, 7), dep=br[2])
    W.queue(qx, 20, 'swap'); W.queue(qa, 30, 'own'); W.queue(qb, 29, 'par'); W.queue(q8, 28, 'p8')
    z = Q(); y = Q()
    t = z.v('v_mul_u32_u24', SRC, q); vPl = z.v('v_lshl_add_u32', col, 4, t, name='vPl');
    t0 = z.s('s_lshl2_add_u32', mt, jq); t0 = z.s('s_lshl2_add_u32', t0, jg); t2 = z.s('s_lshl2_add_u32', t0, w); t2 = z.s('s_mul_i32', t2, PW)
    Pd = [z.s('s_add_u32', t2, PX_OFF + 4096 * r) for r in range(3)]
    t0 = z.s('s_mul_i32', t0, FIN); t1 = z.s('s_lshl_b32', w, 8); t0 = z.s('s_add_u32', t0, t1); Pc = [z.s('s_add_u32', t0, P8_OFF + 1024 * k) for k in range(2)]
    t0 = z.s('s_lshr_b32', jg, 1); t0 = z.s('s_lshl2_add_u32', t0, w); t1 = z.s('s_and_b32', jg, 1); t0 = z.s('s_lshl1_add_u32', t0, t1); tb = z.s('s_lshl_b32', t0, 3, name='tb')
    t1 = z.s('s_lshl_b32', mt, 7); t0 = z.s('s_add_u32', t1, tb); t0 = z.s('s_mul_i32', t0, 1152)
    kc = z.s('s_lshl2_add_u32', jq, jg); kc = z.s('s_lshl_b32', kc, 6); k8 = z.s('s_lshl_b32', jq, 5); k8 = z.s('s_add_u32', k8, 1024); x8 = z.s('s_add_u32', t0, k8)
    t1 = z.s('s_add_u32', t1, tk0); t1 = z.s('s_mul_i32', t1, 1152); xc = [z.s('s_add_u32', t1, kc)]; xc.append(z.s('s_add_u32', xc[0], 4608))
    t = z.v('v_lshrrev_b32', 3, col); c3 = z.v('v_and_b32', 3, col); ae = z.v('v_lshl_add_u32', t, 2, c3, name='ae'); t = z.v('v_mul_u32_u24', 1152, ae)
    q1 = z.v('v_and_b32', 1, q); vx8 = z.v('v_lshl_add_u32', q1, 4, t); c4 = z.v('v_lshrrev_b32', 2, col)
    t = z.v('v_lshl_add_u32', c4, 4, c3); t = z.v('v_mul_u32_u24', 1152, t); vx = z.v('v_lshl_add_u32', q, 4, t); vk = z.v('v_lshlrev_b32', 1, col); zdone = z[-1]
    kv = [V(1, f'kv{n}') for n in range(3)]; fl_ = dict(soft=1, chain=o.get('prc', 1))
    z[0].ready = gP + o.get('zb', -60) - 30; zl = []
    for n in range(3): mc(z('buffer_load_ushort', kv[n], vk, sK, kc if n < 2 else k8, mods=f'offen offset:{32 * (n & 1)}'), 1, 'm', need=0, **fl_)
    for n in range(3): zl.append(mc(z('buffer_load_dwordx4', xv[n], vx if n < 2 else vx8, sX, xc[n] if n < 2 else x8, mods='offen'), 16 if n < 2 else 8, 'm', deps=[]))
    def lps():
        for r in range(3):
            for i in range(2): zl.append(mc(z('buffer_load_dwordx4', ps[r][i], l16, sS, Pd[r], mods=f'offen offset:{i * 1024} sc1'), 8, 'm', dead=gS - 40, deps=[(br.get(4, br[3]), 1)]))
    if 4 in br: lps()
    for b in (1, 2, 3, 4, 0): zl.append(mc(z('buffer_load_dwordx4', pr[b], vPl, sS, Pc[b > 0], mods=f'offen offset:{max(b - 1, 0) * 1024} sc1'), 8, 'm', dead=gX - 40, deps=[(br[3], 1)]))
    if 4 not in br: lps()
    for k, x in enumerate(zl):
        mc(x, *x.mc, need=0, back=o.get('zback', 2000), **fl_)
        if k: x.deps.append((zl[k - 1], o.get('zsp', 20)))
    pl8 = zl[-1]
    pld = lambda r: [mc(I('buffer_load_dwordx4', pd[r][i], l16, sS, Pd[r], mods=f'offen offset:{2048 + i * 1024} sc1'), 8, 'm', need=0, back=2000, **fl_) for i in range(2)]
    mxd = V(1, 'mxd')
    def pck(r):
        a, b = pd[r]
        return [I('v_max3_u32', mxd, a[0], a[1], a[2]), I('v_max3_u32', mxd, mxd, a[3], b[0]), I('v_max3_u32', mxd, mxd, b[1], b[2]), I('v_max_u32', mxd, mxd, b[3]), I('v_cmp_eq_u32', 'vcc', -1, mxd)]
    qd = Q(); ldd = []
    for r in range(3):
        ldd.append(pld(r)); ldd[r][0].deps = [(dst_[2 * r + 1], o.get(f'dl{r}', o.get('dl', 36))), (zdone, 1)]; ldd[r][1].dead = gE - 1
        z.extend(ldd[r])
        if r < 2: verify(f'd{r}', lambda r=r: pld(r), lambda r=r: pck(r), (ldd[r][1], 30), qd); qd[-1].dead = gD - 2
    t = y.v('v_and_b32', 16, l16); c_ = y.v('v_mov_b32', 0x3f80); one = y.v('v_lshlrev_b32', t, c_); y[0].deps = [(zdone, 1)]; y[0].ready = g3 - o.get('ybeg', 60)
    def onehot(idx, rs):
        ks = [SR(2) for _ in rs]
        for k in range(len(rs) + 2):
            if k < len(rs): y('v_cmp_eq_u32', ks[k], k, idx)
            if k >= 2: y('v_cndmask_b32', rs[k - 2], 0, one, ks[k - 2])
    t = y.v('v_lshrrev_b32', 1, ae); t2 = y.v('v_and_b32', 4, col); t = y.v('v_add_u32', t2, t); onehot(t, [sel[k] for k in range(4)])
    t = y.v('v_lshrrev_b32', 3, col); t = y.v('v_xor_b32', t, q); t2 = y.v('v_bfe_u32', col, 1, 2); t3 = y.v('v_lshl_add_u32', t, 1, t2); t = y.v('v_and_b32', 1, t); t = y.v('v_lshl_add_u32', t, 4, t3)
    onehot(t, [idm[k >> 2][k & 3] for k in range(8)])
    t = y.v('v_xor_b32', c4, q); t2 = y.v('v_lshrrev_b32', 1, c3); t = y.v('v_lshl_add_u32', t, 1, t2)
    for k in (0, 1, 4, 5): y('v_mov_b32', sA_[k], 0)
    onehot(t, [sA_[2], sA_[3]]); y[-1].dead = gX - 3
    hi_ = y.v('v_lshrrev_b32', 1, q); rr = [V(4, f'rr{n}') for n in range(3)]; nm = [V(4, f'nm{n}') for n in range(3)]
    t0 = y.s('s_lshl_b32', tb, 2); t8 = y.v('v_lshl_add_u32', hi_, 4, t0); t0 = y.s('s_lshl_b32', tk0, 2); t = y.v('v_lshl_add_u32', q, 6, t0)
    t9 = y.v('v_add_u32', STM - STR, t8); t2 = y.v('v_add_u32', STM - STR, t)
    for n in range(3): y('ds_read_b128', rr[n], t if n < 2 else t8, mods=f'offset:{STR + 16 * (n & 1)}'); y('ds_read_b128', nm[n], t2 if n < 2 else t9, mods=f'offset:{STR + 16 * (n & 1)}')
    lr = y[-1]
    t = y.v('v_bfe_u32', l16, 2, 7); t2 = y.v('v_mul_u32_u24', 4 * 2304, hi_); vo8 = y.v('v_add_u32', t, t2); vo8 = y.v('v_lshl_add_u32', q1, 30, vo8)
    vo = [y.v('v_lshl_add_u32', t2, 3, t)]; vo.append(y.v('v_add_u32', 16 * 2304, vo[0]))
    so = [[y.s('s_lshl_b32', x, 1), y.s('s_lshl1_add_u32', x, 4608)] for x in xc + [x8]]
    cl = y.s('s_mov_b32', int(np.float32(-LOG2E).view(np.uint32))); ce = [V(4, f'ce{n}') for n in range(3)]
    n0 = len(y)
    for n in range(3):
        for e in range(4): y('v_mul_f32', nm[n][e], nm[n][e], rr[n][e]); y('v_mul_f32', ce[n][e], cl, rr[n][e])
        for e in range(4): y('v_mul_f32', ce[n][e], ce[n][e], rr[n][e])
        y('v_lshlrev_b32', kv[n], 16, kv[n])
    y[n0].deps = [(lr, 4)]; y[n0 + 12].ready = gX - 30
    def skip(S, X, n, k):
        ch = []
        for e in range(4): t = V(1); ch.append([I('v_fma_f32', t, X[e], rr[n][e], nm[n][e]), I('v_fmac_f32', S[e], t, kv[k])])
        return inter(ch)
    def gate(d, S, X, n):
        ch = []
        for e in range(4):
            t = V(1); ch.append([I('v_mul_f32', d[e], ce[n][e], d[e]), I('v_exp_f32', t, d[e]), I('v_mul_f32', d[e], d[e], S[e]), I('v_fma_f32', t, t, cl, cl), I('v_rcp_f32', t, t), I('v_fmac_f32', X[e], d[e], t)])
        return ch
    ost = lambda r, v, n, e: mc(I('buffer_store_dword', r, v, sO, so[n][e >> 1], mods=f'offen offset:{2304 * (e & 1)}' + o['om']), 2, 's', need=0, soft=1, chain=1, back=2000)
    n0 = len(y)
    for i in range(2):
        for a in range(2): y.extend(skip(accs[6 + i][a], xf[i][a], a, i))
    y[n0].ready = gX + 10; y[-1].dead = gS - 2
    y.extend(skip(Y4, xf4, 2, 2)); y.extend(inter(gate(D4, Y4, xf4, 2))); y.extend([ost(xf4[e], vo8, 2, e) for e in range(4)])
    W.queue(z, 9, 'fin'); W.queue(y, 8, 'pre'); W.queue(qd, 41, 'chk')
    if not o.get('bst'):
        for k, g in enumerate([gA] + gI[1:] + [gC, g2, g3]): st.at(W, g, 10 + k)
    else:
        for e in range(1, len(bar)): st.at(W, bar[e] + 1, 21 + e + (e > 18))
        assert len(bar) < 40
        print("; BARS", bar[1:] + [gE])
    sc.emit(spacing, lambda g: o['softA'] if g < gA else o['soft'])
    p.extend(sc.bar0); p.extend(st.t(9))
    body = W.build()
    sc.report()
    print(f"; gaps A {gA} I {gI} C {gC} 2 {g2} P {gP} 3 {g3} E {gE} | sent {sentl.gap} eI {bar[eI]} agst {agst.gap} cbr {brc.gap} agld {lda[0].gap}-{lda[-1].gap} agbr {bra.gap} hs {hsl.gap} "
          f"pub {[pb[n].gap for n in pb]} chk {[br[n].gap for n in br]} hld {hl.gap} H {[hlast[k].gap for k in hlast]} eh {bar[eh]} sp {slast.gap} d8 {d8.gap} pl8 {pl8.gap} dp {[x.gap for x in dst_]} X {gX} S {gS} D {gD} ld {[x[1].gap for x in ldd]} y {y[-1].gap} qd {qd[-1].gap}")
    if o.get('vx'): print("; X", " ".join(f"{x.gap}{x.q[:2]}{mcls(x)[1]}" for x in body if x.kind == 'X'))
    pendv = None
    for x in body:
        if x.kind != 'P' and x.d and x.ops[0] == 'vcc': assert pendv in (None, x.q), (x.op, x.gap); pendv = x.q
        if x.op == 's_cbranch_vccnz': pendv = None
    p.extend(body)
    p.extend(st.t(17))
    verify('d2', lambda: pld(2), lambda: pck(2) + [I('s_nop', 0)], None, p)
    p.extend(st.t(18))
    r = addp(accd, pd[2]); p.extend([r[0], r[2], r[1], r[3]])
    for a in range(2):
        p.extend(inter(gate(accd[6][a], accs[6][a], xf[0][a], a) + gate(accd[7][a], accs[7][a], xf[1][a], a)))
        for e in range(4): p('v_permlane16_swap_b32', xf[0][a][e], xf[1][a][e])
        for e in range(4): p.extend([ost(xf[i][a][e], vo[i], a, e) for i in range(2)])
        p.extend(st.t(19 + a))
    p.extend(st.t(21))
    if st.on: p('v_writelane_b32', st.v, rc, 40)
    st.flush(p, sS, v0); p.append(KEEP(wid))
    p.append(LABEL('L_end')); p('s_endpgm')
    lines, peak, prog = finish(p)
    for nm_, par in (('cold', {}), ('warm', dict(Lc=600, fc=0))):
        stl = sim.report(prog, bar[1:] + [gE], nm_, par)
        if o.get('simv') and nm_ == 'cold': print("; stalls", [(g, k[0], int(x)) for g, k, x in stl if x > 60])
    for name, loads, check in stubs:
        rt = [LABEL(f'L_r{name}')] + loads() + [I('s_waitcnt', mods='vmcnt(0)')] + check() + \
             [I('s_sub_u32', rc, rc, 1), I('s_cbranch_scc1', f'L_x{name}'), I('s_cbranch_vccnz', f'L_r{name}'), I('s_branch', f'L_b{name}'),
              LABEL(f'L_x{name}'), I('s_mov_b32', rc, 0), I('s_branch', f'L_b{name}')]
        for ins in rt: lines.append(ins.name + ':' if ins.op == 'LABEL' else ins.text())
    lines += ['  s_endpgm', 'L_fin:']
    print("; instr", len(lines))
    return lines, st.peak(peak)

if __name__ == '__main__':
    import sys, json
    opt = json.loads(sys.argv[2]) if len(sys.argv) > 2 else {}
    lst = opt.pop('list', 1)
    label = 'x_kernel' if lst else NAME + '_kernel'
    l, pk = gen_y(label, opt)
    s = f"; @launch {'kernel=' + label + ' ' if lst else ''}grid=(256,1,1) block=(256,1,1) lds=163840\n"
    s += '.amdgcn_target "amdgcn-amd-amdhsa--gfx950"\n.text\n' + kernel_text(label, l) + '.section .rodata,"a"\n' + kernel_desc(label, pk['v'], pk['a'])
    open(sys.argv[1], 'w').write(s)
```

```python
from common import *
from sched import *
import math, sim
import numpy as np
QS = 40960; MISC = 36864
CST = MISC; RGO = MISC + 2560; STR = MISC + 3584; STM = QS + MISC + 3584
AG_OFF = 0; AR_OFF = 0x20000; FL_OFF = 0x50000; HF_OFF = 0x100000; HR_OFF = 0x500000; PX_OFF = 0x600000; H_OFF = 0x1B00000
P8_OFF = 0x1300000; SRC = 5120; FIN = 4 * SRC; PW = 12288
TINY = 'v_mfma_f32_4x4x4_16b_bf16'
DM = ' row_mask:0xf bank_mask:0xf'
DPP8 = 'row_ror:8' + DM
BIG = 0x7ff00000
LOG2E = math.log2(math.e)

def inter(lists):
    out = []
    for k in range(max(len(x) for x in lists)):
        for x in lists:
            if k < len(x): out.append(x[k])
    return out
def SR(n=1, name=None, phys=None): return VR('s', n, name, phys)
class Q(P):
    def s(s, op, *ops, name=None):
        d = SR(1, name); s.append(I(op, d, *ops)); return d
def mc(x, n, c, **k):
    x.mc = (n, c)
    for a, b in k.items(): setattr(x, a, b)
    return x

def gen_y(label, opt=None):
    o = dict(S=3, SE=3, stamp=False, p0max=13, xa=56, ep=64, sp=3, vgap=2, edge=3, lat=6, agld=700, aglat=50, cng=570,
             pub1=250, chk=50, lat1=60, pub2=130, pub3=60, d0=40, d1=4, rc=20000, plan='4:X0,120:Y0,405:X2,560:Y2,830:Da+D8,980:C0,1060:Db', eI=8,
             softA=1, soft=2, rate2=1, tail=5, sp2=3, back=300, backf=60, seed=600, sentg=70, nsent=8, nt=0, om=' sc1', tlb=0, hst=60,
             loc=1, f2b=2, lat11=45, lat12=45, lat13=45, chk1=90, chk3=90, zsp=16, k=55, k8=1)
    o.update(opt or {})
    plan = [(int(x.split(':')[0]), x.split(':')[1].replace('+', ' ')) for x in o['plan'].split(',')]
    p = Q(); v0 = VR('v', 1, 'tid', phys=0)
    LOC = o.get('loc', 0); SRC = 16384 if LOC & 16 else 5120; FIN = 4 * SRC; WSB = 0x8000000
    def mlS(q):
        ml = q.s('s_and_b32', mt, 7); S = q.s('s_and_b32', mt, 8); S = q.s('s_lshl_b32', S, 10)
        return ml, (q.s('s_xor_b32', S, 0x2000) if o.get('par2') else S)
    def fix(q, x, name=None): t = q.s('s_lshr_b32', x, 8); t = q.s('s_and_b32', t, 0x2000); return q.s('s_xor_b32', x, t, name=name)
    st = ST(o['stamp'], 0, 255)
    ka = SR(2, 'ka', 0); wid = SR(1, 'wid', 2)
    p('s_cmp_ge_u32', wid, 256); p('s_cbranch_scc1', 'L_end')
    p.extend(st.rt(0) + st.t(1))
    p('s_load_dwordx16', 's[4:19]', ka, 0); p('s_load_dwordx16', 's[20:35]', ka, 64)
    sX, sB, sC, sO, sK, sW, sD, sG, sS = [SR(4, n, b) for n, b in zip('XBCOKWDGS', range(4, 40, 4))]
    def tail_(q, r, n): q('s_mov_b32', r[2], n); q('s_mov_b32', r[3], 0x20000)
    NT = lambda b: ' nt' if o['nt'] & b else ''
    sI = SR(4, 'I', 40)
    p('s_getpc_b64', sI[0:2]); p.append(LABEL('L_pc')); tail_(p, sI, 'L_fin-L_pc')
    pfd = V(1, 'pfd'); p.append(DEF(pfd))
    def pf(v, srd, so, off, nl, md='', c='c'):
        x = I('buffer_load_dword', pfd, v, srd, so, mods=f'offen offset:{off}' + md); x.d = []; x.soft = 1; return mc(x, nl, c)
    t = p.s('s_lshl_b32', wid, 4); t = p.s('s_and_b32', t, 31 * 128); t = p.v('v_lshl_add_u32', v0, 12, t)
    p.append(pf(t, sI, 0, 0, 3.5))
    wv = p.v('v_lshrrev_b32', 6, v0); l = p.v('v_and_b32', 63, v0, name='lane')
    w = SR(1, 'w'); p('v_readfirstlane_b32', w, wv)
    HB = o.get('hb', 2)
    jg = p.s('s_and_b32', wid, 3, name='jg') if HB == 2 else p.s('s_bfe_u32', wid, (2 << 16) | 1, name='jg')
    jq = p.s('s_bfe_u32', wid, (2 << 16) | 3, name='jq')
    t = p.s('s_bfe_u32', wid, (1 << 16) | HB); t2 = p.s('s_lshr_b32', wid, 5)
    if o.get('swp') == 1: t = p.s('s_xor_b32', t, 1)
    if o.get('swp') == 2: mt = p.s('s_lshl1_add_u32', t2, t, name='mt')
    else: mt = p.s('s_lshl3_add_u32', t, t2, name='mt')
    fw = p.s('s_and_b32', w, 1, name='fw'); tw = p.s('s_lshr_b32', w, 1, name='tw')
    j = p.s('s_lshl2_add_u32', jg, jq, name='j'); je = p.s('s_and_b32', jq, 1, name='je'); Tr = p.s('s_lshr_b32', jq, 1, name='Tr')
    sl = p.v('v_and_b32', 7, l); hi = p.v('v_lshrrev_b32', 5, l); q = p.v('v_lshrrev_b32', 4, l, name='q')
    r83 = p.v('v_bfe_u32', l, 3, 2)
    cx = p.v('v_xor_b32', sl, q); cx = p.v('v_lshlrev_b32', 4, cx, name='cx')
    tokl = p.v('v_lshl_add_u32', hi, 4, r83, name='tokl')
    t = p.s('s_lshl_b32', tw, 6); tk0 = p.s('s_lshl3_add_u32', fw, t, name='tk0')
    t = p.s('s_lshl_b32', mt, 7); t = p.s('s_add_u32', t, tk0); xb = p.s('s_mul_i32', t, 1152, name='xb')
    t = p.v('v_mul_u32_u24', 1152, tokl); vX0 = p.v('v_add_u32', t, cx)
    je6 = p.s('s_lshl_b32', je, 6, name='je6'); t1 = p.s('s_mul_i32', je, 36864); t2 = p.s('s_mul_i32', Tr, 4608)
    a = p.v('v_xor_b32', je6, vX0); b = p.v('v_xor_b32', 64, a)
    a = p.v('v_add_u32', t1, a); t1 = p.s('s_sub_u32', 36864, t1); b = p.v('v_add_u32', t1, b)
    vX = [p.v('v_add_u32', t2, a), p.v('v_add_u32', t2, b)]
    t2 = p.s('s_sub_u32', 4608, t2); vX += [p.v('v_add_u32', t2, a), p.v('v_add_u32', t2, b)]
    Gn = p.s('s_lshl1_add_u32', j, fw, name='Gn')
    t = p.s('s_lshl2_add_u32', jg, Tr); t = p.s('s_lshl_b32', t, 2); chr_ = p.s('s_add_u32', t, 512, name='chr')
    t = p.v('v_and_b32', 4, l); cho = p.v('v_add_u32', t, sl)
    t = p.s('s_lshl_b32', Gn, 4); t = p.v('v_lshl_add_u32', q, 2, t)
    t2 = p.v('v_mul_u32_u24', chr_, hi); t = p.v('v_max_u32', t, t2)
    vL = p.v('v_add_lshl_u32', t, cho, 1)
    t = p.s('s_lshr_b32', wid, 3); n2 = p.s('s_lshl1_add_u32', t, tw, name='n2')
    t0 = p.s('s_lshl_b32', jg, 6); t0 = p.s('s_add_u32', t0, n2); t0 = p.s('s_mul_i32', t0, 2304)
    t = p.v('v_min_u32', 17, l); t = p.v('v_lshl_add_u32', t, 7, t0)
    t0 = p.s('s_mul_i32', n2, 3); t0 = p.s('s_sub_u32', t0, 32); t2 = p.v('v_min_u32', 34, l); t2 = p.v('v_add_u32', t0, t2); t2 = p.v('v_min_u32', 143, t2)
    t0 = p.s('s_mul_i32', jg, 18432); t0 = p.s('s_add_u32', t0, 512 * 1152); t2 = p.v('v_lshl_add_u32', t2, 7, t0)
    p('v_cmp_gt_u32', 'vcc', 32, l); vPB = p.v('v_cndmask_b32', t2, t, 'vcc')
    l8 = p.v('v_min_u32', 8, l, name='l8'); vPW = p.v('v_mul_u32_u24', 9216, l8, name='vPW')
    t0 = p.s('s_mul_i32', n2, 9 * 9216); t1 = p.s('s_mul_i32', jg, 2304); sPW = p.s('s_add_u32', t0, t1, name='sPW')
    row = p.v('v_bfe_u32', l, 2, 3, name='row'); r2 = p.v('v_bfe_u32', l, 4, 1)
    b1 = p.v('v_bfe_u32', l, 1, 1); pp = p.v('v_xor_b32', b1, r2); b0 = p.v('v_and_b32', 1, l)
    c32 = p.v('v_lshlrev_b32', 5, pp); c32 = p.v('v_lshl_add_u32', b0, 4, c32)
    c64 = p.v('v_lshl_add_u32', hi, 6, c32, name='c64')
    rm = p.v('v_lshl_add_u32', r2, 2, row); t0 = p.s('s_lshl_b32', tw, 2); rm = p.v('v_add_u32', t0, rm)
    t = p.v('v_lshl_add_u32', hi, 4, rm); t = p.v('v_mul_u32_u24', 9216, t); vH0 = p.v('v_add_u32', t, c32, name='vH0')
    vH = [vH0, p.v('v_add_u32', 32 * 9216 - 1024, vH0, name='vH1')]
    t = p.v('v_lshl_add_u32', hi, 3, r83); t = p.v('v_mul_u32_u24', 1152, t)
    t0 = p.s('s_lshl_b32', fw, 6); vB0 = p.v('v_xad_u32', cx, t0, t, name='vB0')
    vB = [vB0, p.v('v_add_u32', 4608 - 1024, vB0, name='vB1')]
    p.append(WAIT(lgkm=0)); p.append(KEEP(ka))
    p.extend(st.t(2))
    raw = [V(1) for _ in range(3)]
    lre_ = SR(2, 'lre'); p('s_mov_b64', lre_, 's[6:7]')
    tail_(p, sX, 2048 * 1152)
    xr = [[V(4, f'xr{g}_{s}') for s in range(9)] for g in range(4)]
    xld = [mc(I('buffer_load_dwordx4', xr[g][s], vX[g], sX, xb, mods=f'offen offset:{128*s}' + ('' if g else NT(1))), 8, 'h' if g else 'x') for g in range(4) for s in range(9)]
    vm = [[x] for x in xld[9:]]
    for x, s_ in zip(raw, (lre_, 's[8:9]', 's[18:19]')): mc(p('global_load_ushort', x, vL, s_), 1, 'c')
    if o.get('pfp', -1) >= 0: p.extend(xld[:9])
    p('s_cmp_eq_u32', fw, 0)
    p('s_cselect_b64', sB[0:2], 's[10:11]', 's[12:13]'); p('s_cselect_b64', sC[0:2], 's[14:15]', 's[16:17]')
    p('s_cselect_b64', sW[0:2], 's[24:25]', 's[26:27]')
    p('s_mov_b64', sO[0:2], 's[30:31]'); p('s_mov_b64', sS[0:2], 's[34:35]')
    for r, sz in ((sB, 576 * 1152), (sW, 576 * 9216), (sS, WSB), (sC, 576 * 1152), (sK, 1152), (sD, 4608 * 1152), (sO, 2048 * 2304), (sG, 256)):
        tail_(p, r, sz)
    t = [pf(vPB, sB, 0, 0, 21, NT(128)), pf(vPW, sW, sPW, 128 * 4, 9, NT(128)), pf(vPW, sW, sPW, 128 * 13, 9, NT(128))]
    if o.get('pfp', -1) < 0: p.extend(t + xld[:9])
    elif o['pfp'] == 0: p.extend(t)
    else: vm[o['pfp'] - 1] += t
    p.extend(st.t(3))
    sQ = p.s('s_mul_i32', w, QS, name='Q')
    t0 = p.s('s_mul_i32', j, 576); fb = p.s('s_add_u32', t0, je6, name='fb')
    t1 = p.s('s_lshl_b32', je, 9); t0 = p.s('s_add_u32', t0, 512); hb = p.s('s_sub_u32', t0, t1, name='hb')
    t0 = p.s('s_lshl1_add_u32', j, tw); Bb = p.s('s_mul_i32', t0, 18432, name='Bb')
    Rc = p.s('s_mul_i32', chr_, 1152, name='Rc'); t1 = p.s('s_lshl_b32', tw, 7); Rb = p.s('s_add_u32', Rc, t1, name='Rb')
    def dma(v, srd, so, off, tag): return mc(I('buffer_load_dwordx4', v, srd, so, mods=f'offen offset:{off} lds', tag=tag), {'vH': 17, 'vW': 8.75, 'vCl': 32, 'vCm': 8}.get(v.name[:-1], 8), 'h')
    def mkdma(vs, srd, base, add, sq=sQ):
        def f(addr, tag):
            so = SR(1, 'T')
            return [I('s_add_u32', 'm0', sq, addr), I('s_add_u32', so, base, add)] + [dma(v, srd, so, 1024 * b, tag) for b, v in enumerate(vs)]
        return f
    vW = [V(1, f'vW{b}') for b in range(4)]; vC = [V(1, f'vC{b}') for b in range(2)]; vD = [V(1, f'vD{b}') for b in range(4)]
    vT = [[V(1, f'vT{a}{k}') for k in range(3)] for a in range(2)]; vU = [[V(1, f'vU{a}{k}') for k in range(3)] for a in range(2)]
    vTh = [V(1, f'vTh{k}') for k in range(3)]
    vXr = [[V(1, f'vXr{a}{k}') for k in range(2)] for a in range(2)]; vXm = [V(1, f'vXm{a}') for a in range(2)]
    vBq = [[V(1, f'vBq{a}{k}') for k in range(2)] for a in range(2)]; vBr = [V(1, f'vBr{a}') for a in range(2)]
    vCr = [V(1, f'vCr{c}') for c in range(5)]
    def trd(bases, qa, qb, extra):
        def mk(dst):
            def f(addr):
                r = []
                for h, qq in enumerate((qa, qb)):
                    A_ = qq * QS + addr + extra
                    r.append(I('ds_read_b64_tr_b16', dst[2*h:2*h+2], bases[A_ >> 16], mods=f'offset:{A_ & 0xffff}'))
                return r
            return f
        return mk
    def tfrag(unit, bases, sel, extra, grp, rate=1, lat=None):
        d = A(4, 'f' + unit.name); return Frag(d, unit, 2, trd(bases, sel, sel + 2, extra)(d), grp, rate, lat or o['lat'])
    def bfrag(d, unit, base, extra, grp, lat=None):
        return Frag(d, unit, 1, lambda addr: [I('ds_read_b128', d, base, mods=f'offset:{addr + extra}')], grp, 1, lat or o['lat'])
    sc = Sched(); W = sc.W; W.vgap = o['vgap']; W.back = o['back']; W.backf = o['backf']; W.seed = o['seed']; W.par = o.get('par'); W.urg = o.get('urg', 100)
    NS = o['S']; pre = lambda g: NS if g == 3 else o['SE']
    Xf = [[(A if 4 * k + tt < o['xa'] else V)(4, f'X{k}_{tt}') for tt in range(4)] for k in range(18)]
    uX = [Unit(f'X{s}', 4, None, True) for s in range(9)]
    for s in range(NS): uX[s].pre = True
    uB = [Unit(f'B{s}', 2, mkdma(vB, sB, Bb, 128 * s), False) for s in range(9)]
    uH = [Unit(f'H{s}', 2, mkdma(vH, sW, hb, 64 * 9216 * s), False) for s in range(9)]
    uR = [Unit(f'R{n}', 1, mkdma(vB[:1], sB, Rb if n < 4 else Rc, 256 * n), False) for n in range(5)]
    accb = [[V(4, f'b{u}_{tt}') for tt in range(4)] for u in range(2)]; accm = V(4, 'bm')
    acch = [[V(4, f'h{m}_{tt}') for tt in range(4)] for m in range(2)]
    idn = V(2, 'idn'); Cm = [V(4, f'Cm{g}') for g in range(4)]
    def center(g, s):
        T = [V(4, 'T0'), V(4, 'T1')]
        ti = [I(TINY, T[h], idn, xr[g][s][2*h:2*h+2], Cm[g]) for h in range(2)]
        cv = [I('v_cvt_pk_bf16_f32', xr[g][s][e], T[e >> 1][2*(e&1)], T[e >> 1][2*(e&1)+1]) for e in range(4)]
        return ti, cv
    vXw = [V(1, f'vXw{g}') for g in range(4)]
    def xwrite(g, s): return I('ds_write_b128', vXw[g], xr[g][s], mods=f'offset:{uX[s].addr}', tag=f'xw{s}')
    ctr = {}
    for s in range(9):
        ml = []
        for kp in range(2):
            k = 2 * s + kp; z = lambda a: 0 if k == 0 else a
            fx = [bfrag(Xf[k][tt], uX[s], vXr[kp][tt >> 1], (tt & 1) * 2048, ('a', k)) for tt in range(4)]
            fbs = [bfrag(A(4, 'fb'), uB[s], vBr[kp], u * 1024, ('a', k)) for u in range(2)]
            for u in range(2):
                for tt in range(4): ml.append(M(I(MF, accb[u][tt], Xf[k][tt], fbs[u].dst, z(accb[u][tt])), fx[tt], fbs[u]))
            fm = bfrag(A(4, 'fxm'), uX[s], vXm[kp], 0, ('b', k)); fr = bfrag(A(4, 'fbm'), uR[s >> 1], vBq[kp][s & 1], 0, ('b', k))
            ml.append(M(I(MF, accm, fm.dst, fr.dst, z(accm)), fm, fr))
            for m in range(2):
                f = tfrag(uH[s], vTh, m, kp * 1024, ('b', k))
                for tt in range(4): ml.append(M(I(MF, acch[m][tt], f.dst, Xf[k][tt], z(acch[m][tt])), f))
        for g in range(3, -1, -1):
            if pre(g) <= s + 2 < 9:
                ti, cv = center(g, s + 2); ctr[(g, s + 2)] = (ti, cv)
                ml[5 + 8 * g:5 + 8 * g] = [M(ti[0], tiny=2), M(ti[1], tiny=1)]
        sc.feed(ml)
    gA = len(W.m)
    E = o['edge']
    order = [(0, k) for k in range(E)] + [(1, k) for k in range(E)] + [(t, k) for k in range(E, 18 - E) for t in range(2)] + \
            [(0, k) for k in range(18 - E, 18)] + [(1, k) for k in range(18 - E, 18)]
    acc1 = []; gI = []; last1 = {}; first1 = {}
    for it in range(4):
        gI.append(len(W.m))
        uW = [Unit(f'W{it}_{s}', 4, mkdma(vW, sW, fb, 128 * it + 64 * 9216 * s), True if (it, s) == (0, 0) else None) for s in range(9)]
        for u in uW: u.early = max(g for g, its in plan if any(x in its.upper() for x in (f'W{it}', f'Q{it}', f'Y{it}', f'Y{it-1}', f'Z{it+1}', f'F{it}'))) + (gA - 354 if it else 0) + 30
        ac = [[[V(4, f'g{it}{m}{t}{tt}') for tt in range(4)] for t in range(2)] for m in range(2)]; acc1.append(ac)
        for n, (t, k) in enumerate(order):
            ml = []
            for m in range(2):
                f = tfrag(uW[k >> 1], vT[t], m, (k & 1) * 2048, ('w', it, n >> 1))
                for tt in range(4): ml.append(M(I(MF, ac[m][t][tt], f.dst, Xf[k][tt], 0 if k == 0 else ac[m][t][tt]), f))
            if k == 0: first1[(it, t)] = len(W.m)
            sc.feed(ml)
            if k == 17: last1[(it, t)] = len(W.m) - 1
    gC = len(W.m); G = lambda g: g + gA - 354
    hq = [[A(4, f'hq{k}_{t}') for t in range(2)] for k in range(9)]
    Ca = [[SR(1, f'Ca{g}{L}') for L in range(2)] for g in range(3)]; Cb = SR(1, 'Cb')
    sQc = [SR(1, 'Qa'), SR(1, 'Qb')]
    two = lambda b: (lambda addr, tag: mkdma(vC, sC, b, 0, sQc[0])(addr, tag) + mkdma(vC, sC, b, 2 * 18432, sQc[1])(addr, tag))
    uC = [[Unit(f'C{g}{L}', 4 if g < 2 else 1, two(Ca[g][L]) if g < 2 else mkdma(vC[:1], sC, Ca[g][L], 0),
                (True if L == 0 and g < 2 else False)) for L in range(2)] for g in range(3)]
    vCl = [V(1, 'vCl0'), V(1, 'vCl1'), V(1, 'vCm2')]; vE = [V(1, f'vE{b}') for b in range(2)]
    uCl = Unit('Cl', 3, mkdma(vCl, sC, Cb, 0), False)
    accs = [[V(4, f's{t}_{a}') for a in range(2)] for t in range(9)]; lastS = {}
    for t in range(9):
        ml = []
        for k in range(9):
            if k < 8: f = bfrag(A(4, 'fc'), uC[t >> 2][k >> 2], vCr[k & 3], (t & 3) * 1024, ('c', t, k // 3))
            else: f = bfrag(A(4, 'fc'), uCl, vCr[4], t * 256, ('c', t, k // 3))
            for a in range(2): ml.append(M(I(MF, accs[t][a], hq[k][a], f.dst, 0 if k == 0 else accs[t][a]), f))
        sc.feed(ml); lastS[t] = len(W.m) - 1
    g2 = len(W.m)
    Hh = [V(8, f'Hh{x}') for x in range(4)]
    Hq = [[[(V if x == 3 and kl < 4 else A)(4, f'Hq{x}{kl}{a}') for a in range(2)] for kl in range(8)] + [[Hh[x][0:4], Hh[x][4:8]]] for x in range(4)]
    accd = [[V(4, f'd{t}_{a}') for a in range(2)] for t in range(12)]; seen = set(); lastD = {}; useH = {}
    Pf, Ph, Pl, Pm, Hp = [[SR(1, f'{n}{x}') for x in range(4)] for n in ('Pf', 'Ph', 'Pl', 'Pm', 'Hp')]; L8 = SR(1, 'L8'); L8h = SR(1, 'L8h')
    uD = [[Unit(f'D{x}{it}', 4, mkdma(vD, sD, Pf[x], it * 64 * 1152)) for it in range(4)] + [Unit(f'D{x}h', 2, mkdma(vD[:2], sD, Ph[x], 0))] for x in range(4)]
    uL = [Unit(f'L{it}', 2, mkdma(vD[:2], sD, L8, it * 64 * 1152)) for it in range(4)] + [Unit('Lh', 2, mkdma(vD[:2], sD, L8h, 0))]
    uD[0][4].brk = True
    uE = [[Unit(f'E{x}{L}', 4, mkdma(vD[:2] + vE, sD, (Pl, Pm)[L][x], 128 * 1152), f'{x}{L}' in o.get('ebrk', '10 11')) for L in range(2)] for x in range(4)]
    gcnt = [0]
    def dstep(x, kl, t):
        it, kk = kl >> 1, kl & 1
        if x and it in (2, 3): f = tfrag(uE[x][t >> 2], vU[t & 1], kk, (it - 2) * 2048 + ((t >> 1) & 1) * 512, ('d', gcnt[0] >> 2), o['rate2'])
        elif t < 8: f = tfrag(uD[x][it], vU[t & 1], t >> 2, kk * 2048 + ((t >> 1) & 1) * 512, ('d', gcnt[0] >> 2), o['rate2'])
        else: f = tfrag(uL[it], vU[t & 1], kk, ((t >> 1) & 1) * 512, ('d', gcnt[0] >> 2), o['rate2'])
        gcnt[0] += 1
        useH.setdefault((x, kl), len(W.m))
        sc.feed([M(I(MF, accd[t][a], Hq[x][kl][a], f.dst, accd[t][a] if t in seen else 0), f) for a in range(2)])
        seen.add(t); lastD[t] = len(W.m) - 1
    for kl in (8, 0, 1, 2, 3, 4, 5, 6, 7):
        for t in (range(12) if kl != 7 else (8, 9, 10, 11, 0, 1, 2, 3, 4, 5, 6, 7)): dstep(0, kl, t)
    gP = len(W.m)
    earlyH = [(x, kl) for x in (1, 2, 3) for kl in (8, 0, 1, 2, 3)]
    for x, kl in earlyH:
        for t in range(8): dstep(x, kl, t)
    g3 = len(W.m)
    lateH = [(x, kl) for x in (1, 2, 3) for kl in range(4, 8)]
    pr = [A(4, f'pr{b}') for b in range(5)]; ps = [[V(4, f'ps{r}{i}') for i in range(2)] for r in range(3)]; pd = [[V(4, f'pd{r}{i}') for i in range(2)] for r in range(3)]
    xv = [V(4, f'xv{n}') for n in range(3)]; xf = [[V(4, f'xf{i}{a}') for a in range(2)] for i in range(2)]; xf4 = V(4, 'xf4'); Y4 = V(4, 'Y4'); D4 = V(4, 'D4')
    sel = V(4, 'sel'); idm = [V(4, 'id0'), V(4, 'id1')]; sA_ = V(8, 'selA'); selA = [sA_[2:6], sA_[0:4]]
    addp = lambda ac, src: [I(MF, ac[6 + i][a], selA[a], src[i], ac[6 + i][a]) for i in range(2) for a in range(2)]
    for ts in o.get('late', [[0, 1], [2, 3], [4], [5], [6], [7]]):
        for x, kl in lateH:
            for t in ts: dstep(x, kl, t)
        if t == o.get('t4', 3):
            gX = len(W.m)
            sc.feed([M(x) for x in inter([[I(MF, D4, sel, pr[1 + k], D4 if k else 0) for k in range(4)], [I(MF, xf[i][a], xv[a], idm[i], 0) for i in range(2) for a in range(2)]]) +
                     [I(MF, xf4, xv[2], idm[0], 0), I(MF, Y4, sel, pr[0], 0)]])
        if t == 5: gS = len(W.m); sc.feed([M(x) for r in range(3) for x in addp(accs, ps[r])])
    gD = len(W.m); sc.feed([M(x) for r in range(2) for x in addp(accd, pd[r])])
    gE = len(W.m)
    gSetC = gI[3] + o.get('setc', 40); gSetD = gI[3] + o.get('setd', 100)
    for u in sum(uC, []) + [uCl]: u.early = gSetC
    for u in sum(uD, []) + uL: u.early = gSetD
    sc.plan(lambda g: o['ep'], lambda g: 99, o['tail'])
    spacing = lambda g: o['sp'] if g < gSetC else o['sp2']
    sc.allocate(o['p0max'], spacing)
    bar = sc.bar
    col = p.v('v_and_b32', 15, l, name='col'); l16 = p.v('v_lshlrev_b32', 4, l, name='l16')
    big = p.v('v_mov_b32', BIG); p('v_cmp_ne_u32', 'vcc', 0, v0); vM0 = p.v('v_cndmask_b32', 0, big, 'vcc', name='vM0')
    t = p.v('v_mul_u32_u24', 9216, rm); p('v_add_u32', vW[0], t, c64)
    for b in (1, 2, 3): p('v_add_u32', vW[b], b * (16 * 9216 - 1024), vW[0])
    for u in sc.p0:
        d_ = u.dma(u.addr, f'E{u.epoch}'); vm += [d_[:3]] + [[x] for x in d_[3:]]
    if LOC & 24: ml, S = mlS(p)
    t0 = p.s('s_lshl2_add_u32', ml if LOC & 16 else mt, jq); t1 = p.s('s_lshl2_add_u32', t0, w); t1 = p.s('s_lshl2_add_u32', t1, jg); t1 = p.s('s_mul_i32', t1, SRC)
    if LOC & 16: t1 = fix(p, p.s('s_add_u32', t1, S))
    Pb = p.s('s_add_u32', t1, 0x6800000 if LOC & 16 else P8_OFF, name='Pb')
    if LOC & 24 in (8, 16): t0 = p.s('s_lshl2_add_u32', ml if LOC & 8 else mt, jq)
    jx = p.s('s_xor_b32', jg, 3, name='jx'); t0 = p.s('s_lshl2_add_u32', t0, jx); Pp = []
    PXo = (0x7000000, 0x7001000, 0x7004000)
    if LOC & 8:
        t1 = p.s('s_lshl2_add_u32', t0, w); t1 = p.s('s_lshl_b32', t1, 15); t1 = fix(p, p.s('s_add_u32', t1, S))
        for r in range(3): Pp.append(p.s('s_xor_b32', t1, PXo[r] + (r << 17), name=f'Pp{r}'))
    for r in range(0 if LOC & 8 else 3):
        t1 = p.s('s_xor_b32', t0, r); t1 = p.s('s_lshl2_add_u32', t1, w); t1 = p.s('s_mul_i32', t1, PW); Pp.append(p.s('s_add_u32', t1, PX_OFF + 4096 * r, name=f'Pp{r}'))
    mw = p.s('s_lshl2_add_u32', mt, w, name='mw')
    dmy = SR(1, 'dmy')
    def touches():
        p.append(DEF(dmy))
        def touch(srd, so):
            x = p('s_buffer_load_dword', dmy, srd, so); x.kind = 'K'; x.d = []
        p('s_cmp_ge_u32', wid, o.get('tn', 8)); p('s_cbranch_scc1', 'L_nt')
        t0 = p.s('s_lshl_b32', w, 21); T = o['tlb']
        if T & 1: touch(sC, 0); touch(sK, 0); touch(sD, t0)
        if T & 2: touch(sG, 0); touch(sO, t0)
        if T & 4:
            for k in range(6): touch(sS, p.s('s_add_u32', t0, k << 23))
        p.append(LABEL('L_nt'))
    if o['tlb'] and not o.get('tp'): touches()
    t = p.v('v_lshlrev_b32', 6, row); l3 = p.v('v_and_b32', 3, l); t = p.v('v_lshl_add_u32', l3, 3, t); tp0 = p.v('v_lshl_add_u32', r2, 5, t)
    f9 = p.s('s_lshl_b32', fw, 9, name='f9'); t = p.v('v_lshl_add_u32', hi, 10, tp0); p('v_add_u32', vT[0][0], f9, t); p('v_xor_b32', vT[1][0], 32, vT[0][0])
    t0 = p.s('s_lshl_b32', fw, 5); t = p.v('v_lshl_add_u32', hi, 9, tp0); p('v_xor_b32', vTh[0], t0, t)
    for r in (vT[0], vT[1], vTh):
        for k in (1, 2): p('v_add_u32', r[k], 65536 * k, r[0])
    ih = p.v('v_bfe_u32', l, 3, 1); i1 = p.v('v_bfe_u32', l, 1, 3); t = p.v('v_xor_b32', q, i1); t = p.v('v_lshlrev_b32', 4, t); L0 = p.v('v_lshl_add_u32', sl, 7, t)
    LX = p.v('v_lshl_add_u32', ih, 10, L0)
    t0 = p.s('s_mul_i32', tw, 2 * QS); p('v_add_u32', vXr[0][0], t0, LX); p('v_add_u32', vXr[0][1], QS, vXr[0][0])
    t0 = p.s('s_lshl1_add_u32', je, tw); t0 = p.s('s_mul_i32', t0, QS); t0 = p.s('s_lshl2_add_u32', f9, t0); p('v_add_u32', vXm[0], t0, LX)
    t = p.v('v_mul_u32_u24', QS, ih); p('v_add_u32', vBq[0][0], t, L0); p('v_add_u32', vBq[0][1], 2 * QS, vBq[0][0])
    t0 = p.s('s_mul_i32', fw, 2 * QS); p('v_add_u32', vBr[0], t0, vBq[0][0])
    for a, b in ((vXr[1][0], vXr[0][0]), (vXr[1][1], vXr[0][1]), (vXm[1], vXm[0]), (vBq[1][0], vBq[0][0]), (vBq[1][1], vBq[0][1]), (vBr[1], vBr[0])): p('v_xor_b32', a, 64, b)
    vQ = p.v('v_add_u32', sQ, l16, name='vQ')
    t0 = p.s('s_lshl_b32', jq, 10); p('v_add_u32', vXw[0], t0, vQ)
    for g in (1, 2, 3): p('v_xor_b32', vXw[g], g * 1024, vXw[0])
    t = p.v('v_lshlrev_b32', 4, b0); c_ = p.v('v_mov_b32', 0x3f80); one = p.v('v_lshlrev_b32', t, c_)
    p('v_cmp_eq_u32', 'vcc', 0, b1); p('v_cndmask_b32', idn[0], 0, one, 'vcc'); p('v_xor_b32', idn[1], idn[0], one)
    asum = V(4, 'asum'); t = p.v('v_bfe_u32', l, 2, 2); c_ = p.v('v_mov_b32', 0x3f803f80); p('v_cmp_eq_u32', 'vcc', t, q)
    for e in range(4): p('v_cndmask_b32', asum[e], 0, c_, 'vcc')
    kb0 = SR(2, 'kb0'); kb1 = SR(2, 'kb1')
    p('v_cmp_ne_u32', kb0, 0, b0); p('v_cmp_ne_u32', kb1, 0, b1)
    rc = p.s('s_mov_b32', o['rc'], name='rc')
    p.extend(st.t(4))
    c = P()
    sgn = c.v('v_lshlrev_b32', 31, ih)
    vKw = c.v('v_lshl_add_u32', l, 3, sQ)
    lre, lim, ldt = [c.v('v_lshlrev_b32', 16, x) for x in raw]
    t = c.v('v_mul_f32', LOG2E, ldt); dt = c.v('v_exp_f32', t)
    den = c.v('v_mul_f32', lre, lre); c('v_fmac_f32', den, lim, lim); rd = c.v('v_rcp_f32', den)
    dt = c.v('v_cvt_pk_bf16_f32', dt, dt); dt = c.v('v_and_b32', 0xffff0000, dt)
    xr_ = c.v('v_mul_f32', dt, lre); xi = c.v('v_mul_f32', dt, lim)
    t = c.v('v_mul_f32', LOG2E, xr_); mag = c.v('v_exp_f32', t)
    t = c.v('v_mul_f32', 1 / (2 * math.pi), xi); t = c.v('v_fract_f32', t)
    cs = c.v('v_cos_f32', t); sn = c.v('v_sin_f32', t)
    rd = c.v('v_add_f32', rd, rd)
    k1 = V(2); c('v_mul_f32', k1[0], mag, cs); b = c.v('v_mul_f32', mag, sn)
    am = c.v('v_add_f32', -1.0, k1[0])
    cr = c.v('v_mul_f32', am, lre); c('v_fmac_f32', cr, b, lim)
    ci = c.v('v_mul_f32', b, lre); ci = c.v('v_fma_f32', Neg(am), lim, ci)
    k0 = V(2); cr = c.v('v_mul_f32', cr, rd); c('v_mul_f32_e64', k0[1], Neg(ci), rd); c('v_xor_b32', k0[0], sgn, cr)
    c('v_xor_b32', k1[1], sgn, b)
    CI = {'cf': 0, 'l1': 1, 'l16': 2, 'l64': 3, 'l512': 4}
    def kput(nm, r): c('ds_write_b64', vKw, r, mods=f'offset:{CST + 512 * CI[nm]}')
    kput('cf', k0); kput('l1', k1); cur = k1
    for n in range(1, 10):
        nx = V(2); a2 = c.v('v_mul_f32', cur[0], cur[0]); t = c.v('v_add_f32', cur[0], cur[0])
        c('v_fma_f32', nx[0], Neg(cur[1]), cur[1], a2); c('v_mul_f32', nx[1], t, cur[1]); cur = nx
        if n in (4, 6, 9): kput(f'l{1<<n}', cur)
    cst = list(c)
    sS_ = [V(4, f'sum{g}') for g in range(4)]; sQ_ = [V(4, f'sq{g}') for g in range(4)]; nmean = []; qsum = []
    def post(g):
        r = P(); a = sS_[g][0]
        for m in ('quad_perm:[1,0,3,2]', 'quad_perm:[2,3,0,1]', 'row_half_mirror'): a = r.v('v_add_f32_dpp', a, a, mods=m + DM)
        a = r.v('v_mul_f32', -1.0 / 576, a); nmean.append(a); t = r.v('v_cvt_pk_bf16_f32', a, a)
        for e in range(4): r('v_and_b32', Cm[g][e], 0xffff0000, t)
        r2_ = P(); b = r2_.v('v_mov_b32_dpp', sQ_[g][0], mods='quad_perm:[0,0,0,0]' + DM)
        for e in (1, 2, 3): b = r2_.v('v_add_f32_dpp', sQ_[g][e], b, mods=f'quad_perm:[{e},{e},{e},{e}]' + DM)
        b = r2_.v('v_add_f32_dpp', b, b, mods='row_half_mirror' + DM); qsum.append(b)
        out = inter([r, r2_]); prev = None
        for s in range(pre(g)):
            ti, cv = center(g, s); out += ti
            if prev: out += prev
            prev = cv + ([xwrite(g, s)] if s < NS else [])
        return out + prev
    pend = []
    if o.get('cst0', 2) == 2: p.extend(cst[:8] + (st.t(15) if o.get('bst') else []) + cst[8:]); cst = []
    if o['tlb'] and o.get('tp'): touches()
    for _ in range(o.get('xa1', 9)): p.extend(vm.pop(0))
    for g in range(4):
        per = -(-len(pend) // 9)
        for s in range(9):
            x = xr[g][s]; f = pend[:per]; pend = pend[per:]
            p(TINY, sQ_[g], x[0:2], x[0:2], 0 if s == 0 else sQ_[g]); p(MF, sS_[g], asum, x, 0 if s == 0 else sS_[g])
            if g == 0 and s == o.get('s16', 0) and o.get('bst'): p.extend(st.t(16))
            if vm: p.extend(vm.pop(0))
            p.extend(f[:2]); p(TINY, sQ_[g], x[2:4], x[2:4], sQ_[g]); p.extend(f[2:])
        p.extend(st.t(5 + g))
        pend = post(g)
        if g == 0 and o.get('cst0', 2) == 1: p.extend(cst); cst = []
    k = max(1, len(pend) // (len(vm) + 1))
    while pend or vm:
        p.extend(pend[:k]); pend = pend[k:]
        if vm: p.extend(vm.pop(0))
    if o['tlb']: p.append(WAIT(lgkm=0)); p.append(KEEP(dmy))
    sc.xlg[0].append(f'xw{NS-1}')
    qc = []; qw = []
    for s in range(NS, 9):
        e = uX[s].epoch
        for g in range(4):
            x = xwrite(g, s); x.ready = bar[uX[s].at] + 1; x.dead = bar[e] - 9 + 2 * g; qw.append(x)
            if (g, s) in ctr:
                ti, cv = ctr[(g, s)]; cv[0].deps = [(ti[1], 2)]; cv[-1].dead = ti[1].gap + 7; qc += cv; x.deps = [(cv[-1], 0)]
        sc.xlg[e].append(f'xw{s}')
    W.queue(qc, 45, 'ctr'); W.queue(qw, 46, 'xw')
    e1 = sc.barafter(gI[2] + o['pub1']); sc.xvm[e1] += ['hs', 'H0', 'H1']
    eh = sc.barafter(gI[3] + 130); sc.xvm[eh] += ['H2']
    e2 = sc.barafter(gC + o['pub2']); sc.xvm[e2] += ['H3', 'sp']
    e3 = sc.barafter(lastD[11] + o['pub3']); sc.xvm[e3] += ['d8']
    qe = P(); qt = Q()
    if LOC & 2:
        ml, S = mlS(qt); t0 = qt.s('s_lshl2_add_u32', ml, tw); t0 = qt.s('s_lshl_b32', t0, 5); t0 = qt.s('s_add_u32', t0, j); t0 = qt.s('s_lshl_b32', t0, 15)
        t0 = qt.s('s_add_u32', t0, S); e0 = qt.s('s_lshl1_add_u32', f9, t0); Hs = qt.s('s_lshl1_add_u32', f9, e0, name='Hs')
        es = [qt.s('s_xor_b32', e0, 0x4202000 + k * 0x80000) for k in range(2)]
    else:
        t0 = qt.s('s_lshl1_add_u32', mt, tw); t0 = qt.s('s_mul_i32', t0, 288); t1 = qt.s('s_mul_i32', j, 9); t0 = qt.s('s_add_u32', t0, t1)
        t0 = qt.s('s_lshl1_add_u32', t0, fw); t0 = qt.s('s_lshl_b32', t0, 10); e0 = qt.s('s_add_u32', t0, H_OFF + 16384)
        Hs = qt.s('s_lshl1_add_u32', f9, e0, name='Hs')
        es = [e0, qt.s('s_add_u32', e0, 144 * 2048)]
    qt[0].ready = gA - 60
    def epi(g, u, dst, ready):
        n0 = len(qe)
        for e in range(4): qe('v_mul_f32', g[e], g[e], u[e])
        for e in range(2): qe('v_cvt_pk_bf16_f32', dst[e], g[2 * e], g[2 * e + 1])
        qe[n0].ready = ready
    def hst(r, so, off, tag, g0):
        x = qt('buffer_store_dwordx4', r, l16, sS, so, mods=f'offen offset:{off} sc1', tag=tag)
        x.deps = [(qe[-1], 1)]; x.need = g0; x.dead = min(g0 + o['hst'], gE + 9); x.soft = 1; qe[-1].dead = min(getattr(qe[-1], 'dead', 1 << 30), x.dead - 2); return x
    for a in range(2):
        r = V(4, 'Hh')
        for k in range(2): epi(acch[0][2*a+k], acch[1][2*a+k], r[2*k:2*k+2], gA - 4 + 2*a + k + 3)
        if a: qe[-1].dead = first1[(0, 1)] + 4
        hst(r, es[a], 0, 'H0', gA + 20)
    hlast = {}
    for it in range(4):
        Hf = [V(4, f'Hf{tt}') for tt in range(4)]; ac = acc1[it]
        es = [qt.s('s_xor_b32', Hs, 0x4000000 + (it >> 1) * 16384 + (it & 1) * 4096 + k * 0x80000) if LOC & 2 else qt.s('s_add_u32', Hs, it * 4096 - 16384 + k * 144 * 2048) for k in range(2)]; qt[-2].ready = last1[(it, 1)] - 10
        for t in range(2):
            for tt in range(4):
                epi(ac[0][t][tt], ac[1][t][tt], Hf[tt][2*t:2*t+2], last1[(it, t)] + tt)
                if it < 3: qe[-1].dead = first1[(it + 1, t)] + tt - 1
                if t == 1: hlast[it] = hst(Hf[tt], es[tt >> 1], (tt & 1) * 1024, f'H{it}', last1[(it, 1)] + 10 + 10 * tt)
    def part(ac, so, off, ready, tag):
        r = V(4, 'pk'); n0 = len(qe)
        for e in range(4): qe('v_cvt_pk_bf16_f32', r[e], ac[e >> 1][2*(e&1)], ac[e >> 1][2*(e&1)+1])
        qe[n0].ready = ready + 3
        return hst(r, so, off, tag, ready + 10)
    for t in (0, 1, 2, 3, 4, 5, 8): slast = part(accs[t], Pp[t >> 1] if t < 8 else Pb, (t & 1) * 1024, lastS[t], 'sp' if t < 8 else 'd8')
    t0 = qt.s('s_mul_i32', jq, 4 * FIN - 1024); P8 = qt.s('s_sub_u32', Pb, t0); t1 = qt.s('s_and_b32', jx, 1); t1 = qt.s('s_lshl_b32', t1, 1)
    for u in range(4):
        e0 = qt.s('s_xor_b32', t1, u); e0 = qt.s('s_mul_i32', e0, 4 * FIN); e0 = qt.s('s_add_u32', e0, P8); d8 = part(accd[8 + u], e0, 1024, lastD[8 + u], 'd8')
    d8.dead = min(d8.dead, bar[e3] - 20)
    dst_ = []
    for t in range(6):
        dst_.append(part(accd[t], Pp[t >> 1], 2048 + (t & 1) * 1024, lastD[t], 'dp')); dst_[-1].back = 2000; dst_[-1].need = 0; dst_[-1].chain = 1
    W.queue(qe, 40, 'epi'); W.queue(qt, 47, 'st')
    qs = Q()
    x0 = qs.s('s_and_b32', jx, 1, name='x0'); x1 = qs.s('s_lshr_b32', jx, 1, name='x1'); fx = qs.s('s_xor_b32', fw, x1, name='fx')
    u0 = qs.s('s_mul_i32', jq, 8 * 18432); u1 = qs.s('s_lshl1_add_u32', jg, Tr); u1 = qs.s('s_lshl_b32', u1, 7); u4 = qs.s('s_add_u32', u0, u1)
    u2 = qs.s('s_mul_i32', x1, 4 * 18432); qs('s_add_u32', Ca[0][0], u4, u2); u2 = qs.s('s_sub_u32', 4 * 18432, u2); qs('s_add_u32', Ca[1][0], u4, u2)
    u2 = qs.s('s_lshl_b32', jg, 5); qs('s_add_u32', Cb, u0, u2)
    u0 = qs.s('s_lshl_b32', x0, 11); qs('s_add_u32', sQc[0], sQ, u0); qs('s_xor_b32', sQc[1], 2048, sQc[0])
    u0 = qs.s('s_mul_i32', jq, 18432); u0 = qs.s('s_add_u32', u0, 32 * 18432); qs('s_add_u32', Ca[2][0], u0, u1)
    for g in range(3): qs('s_xor_b32', Ca[g][1], 128, Ca[g][0])
    if LOC & 2: ml, S = mlS(qs); u3 = qs.s('s_lshl3_add_u32', ml, w); u3 = qs.s('s_lshl_b32', u3, 19); u3 = qs.s('s_add_u32', u3, S); u3 = qs.s('s_xor_b32', u3, 0x4000000)
    else: u3 = qs.s('s_mul_i32', mw, 144 * 2048); u3 = qs.s('s_add_u32', u3, H_OFF)
    u2 = qs.s('s_mul_i32', fw, 36864); t0 = qs.s('s_lshl_b32', fx, 7); u2 = qs.s('s_sub_u32', u2, t0)
    t0 = qs.s('s_lshl_b32', x1, 7); u5 = qs.s('s_add_u32', u2, t0); t0 = qs.s('s_xor_b32', t0, 128); u6 = qs.s('s_add_u32', u2, t0)
    for x in range(4):
        u0 = qs.s('s_add_u32', jq, x); u0 = qs.s('s_and_b32', u0, 3); u1 = qs.s('s_and_b32', u0, 1); u0 = qs.s('s_lshl2_add_u32', jg, u0)
        t0 = qs.s('s_mul_i32', u0, 32768 if LOC & 2 else 18432); qs('s_add_u32', Hp[x], t0, u3)
        u0 = qs.s('s_mul_i32', u0, 9); t0 = qs.s('s_add_u32', u0, u1); qs('s_mul_i32', Pf[x], t0, 36864)
        u1 = qs.s('s_xor_b32', u1, 1); u0 = qs.s('s_lshl3_add_u32', u1, u0); qs('s_mul_i32', Ph[x], u0, 36864)
        if x: qs('s_add_u32', Pl[x], Pf[x], u5); qs('s_add_u32', Pm[x], Pf[x], u6)
    u0 = qs.s('s_lshl_b32', jq, 8); u0 = qs.s('s_sub_u32', 1024, u0); u0 = qs.s('s_add_u32', u0, u2)
    qs('s_add_u32', L8, Pf[0], u0); qs('s_add_u32', L8h, Ph[0], u0)
    qs[0].ready = gI[2] + 20; qs[-1].dead = gI[3] - 70; sdone = qs[-1]
    n0 = len(qs)
    t = qs.v('v_and_b32', 7, col); t = qs.v('v_xor_b32', t, q); t2 = qs.v('v_lshlrev_b32', 4, t)
    u0 = qs.s('s_lshl_b32', tw, 6); u1 = qs.s('s_mul_i32', tw, 8 * 1152)
    t = qs.v('v_lshrrev_b32', 7, l16); t = qs.v('v_mul_u32_u24', 1152, t); t = qs.v('v_xad_u32', t2, u0, t); qs('v_add_u32', vC[0], u1, t); qs('v_add_u32', vC[1], 18432 - 1024, vC[0])
    t = qs.v('v_lshrrev_b32', 1, col); t = qs.v('v_mul_u32_u24', 1152, t); t2 = qs.v('v_and_b32', 16, l16); t = qs.v('v_add3_u32', t, t2, u1)
    u0 = qs.s('s_lshl_b32', jx, 1); t2 = qs.v('v_xor_b32', u0, q); t3 = qs.v('v_xor_b32', 4, t2); t2 = qs.v('v_mul_u32_u24', 18432, t2); t3 = qs.v('v_mul_u32_u24', 18432, t3)
    t2 = qs.v('v_add_u32', 1024, t2); qs('v_add_u32', vCl[0], t, t2); qs('v_add_u32', vCl[1], t, t3)
    u0 = qs.s('s_mul_i32', jq, 7 * 18432); u0 = qs.s('s_sub_u32', 32 * 18432 - 1024, u0); t2 = qs.v('v_lshlrev_b32', 24, q); qs('v_add3_u32', vCl[2], u0, t, t2)
    qs[n0].ready = gSetC - 100; qs[-1].dead = gSetC - 1
    u0 = qs.s('s_lshl1_add_u32', jq, fx); u0 = qs.s('s_lshl_b32', u0, 7); u1 = qs.s('s_mul_i32', tw, 16 * 1152); u0 = qs.s('s_add_u32', u0, u1)
    t = qs.v('v_bfe_u32', l16, 6, 3); t = qs.v('v_mul_u32_u24', 1152, t); t2 = qs.v('v_and_b32', 127, vW[0]); u1 = qs.s('s_lshl_b32', x0, 6); t = qs.v('v_xad_u32', t2, u1, t); qs('v_add_u32', vD[0], u0, t)
    for b, k in ((1, 8192), (2, 36864 - 2048), (3, 46080 - 3072)): qs('v_add_u32', vD[b], k, vD[0])
    qs[-1].dead = gSetD - 1
    t = qs.v('v_bfe_u32', col, 1, 3); t4 = qs.v('v_and_b32', 1, q); t = qs.v('v_xor_b32', t, t4); t = qs.v('v_lshlrev_b32', 4, t)
    t5 = qs.v('v_and_b32', 7, col); t = qs.v('v_lshl_add_u32', t5, 7, t)
    t2 = qs.v('v_lshrrev_b32', 3, col); t3 = qs.v('v_lshrrev_b32', 1, q); t2 = qs.v('v_lshl_add_u32', t2, 1, t3); t2 = qs.v('v_mul_u32_u24', QS, t2)
    u0 = qs.s('s_lshl_b32', je, 6); qs('v_xad_u32', vCr[0], t, u0, t2)
    for k in (1, 2, 3): qs('v_xor_b32', vCr[k], 32 * k, vCr[0])
    t = qs.v('v_lshl_add_u32', t5, 1, t4); qs('v_lshl_add_u32', vCr[4], t, 4, t2)
    qs[-1].dead = gC - 40
    n0 = len(qs)
    for a in range(2):
        for k in range(3): qs('v_subrev_u32', vU[a][k], f9, vT[a][k])
    qs('v_add_u32', vE[0], 73728 - 2048, vD[0]); qs('v_add_u32', vE[1], 73728 + 9216 - 3072, vD[0])
    qs[n0].ready = gC; qs[-1].dead = g2 - 70
    W.queue(qs, 5, 'setup')
    qp = Q(); pfl = []
    def pfs(xs, g):
        for x in xs: x.need = g; x.ready = g
        if o.get('pfb', 1):
            for x in xs[1:]: x.chain = 1; x.back = 1e9; x.need = -9
        pfl.append((g, xs))
    vP9 = V(1, 'vP9'); a_ = Q()
    t0 = a_.s('s_lshl_b32', jg, 6); t0 = a_.s('s_add_u32', t0, n2); t0 = a_.s('s_lshl1_add_u32', t0, fw); sPD = a_.s('s_mul_i32', t0, 9 * 1152)
    sPC = a_.s('s_mul_i32', n2, 9 * 1152); t0 = a_.s('s_lshl_b32', jg, 8); sPC2 = a_.s('s_add_u32', sPC, t0); a_('v_lshrrev_b32', vP9, 3, vPW)
    g0 = min(g for g, its in plan if any(c_ in its.upper() for c_ in ('D', 'C', 'E', 'N8'))); a_[0].ready = G(g0) - 30; pfl.append((G(g0) - 30, list(a_)))
    for g, its in plan:
        xs = []; a_ = Q()
        def alt(base, step, second):
            t0 = a_.s('s_bfe_u32', wid, (1 << 16) | HB)
            if second ^ o.get('flip', 0): t0 = a_.s('s_xor_b32', t0, 1)
            t0 = a_.s('s_mul_i32', t0, step); return a_.s('s_add_u32', base, t0)
        def lag(base, a, b):
            t0 = a_.s('s_bfe_u32', wid, (1 << 16) | HB); a, b = [BIG if x is None else x for x in ((b, a) if o.get('near', 0) else (a, b))]
            t0 = a_.s('s_mul_i32', t0, (b - a) & 0xffffffff); t0 = a_.s('s_add_u32', base, t0); return a_.s('s_add_u32', t0, a) if a else t0
        for c_, n in its.split():
            n0 = len(xs); low = c_.islower(); c_ = c_.upper()
            if c_ == 'Z': n = int(n); so = lag(sPW, 128 * n if n < 4 else None, 128 * n - 128 if n else None); xs += [pf(vPW, sW, so, 128 * k, 9, '', 'm' if n == 4 else 'c') for k in (0, 5, 9, 14)]
            elif c_ == 'E': n = int(n); so = lag(sPD, 512 * n if n < 2 else None, 512 * n - 512 if n else None); xs += [pf(vP9, sD, so, 128 * k, 9, '', 'm' if n == 2 else 'c') for k in range(4)]
            elif c_ in 'NF':
                ab = (0, None) if c_ == 'N' else (None, 0); cl_ = 'c' if c_ == 'N' else 'm'
                if n in '0123': so = lag(sPW, *ab); xs += [pf(vPW, sW, so, 128 * (k + int(n)), 9, '', cl_) for k in (0, 5, 9, 14)]
                elif n == '8': xs += [pf(vP9, sD, lag(sPD, *ab), 1024, 9, '', cl_)]
                else: s1 = lag(sPC2, *ab); s2 = lag(sPC, *ab); xs += [pf(vP9, sC, s1, 0, 9, '', cl_), pf(vP9, sC, s1, 128, 9, '', cl_), pf(vP9, sC, s2, 1024, 9, '', cl_)]
            elif c_ in 'WXY': so = sPW if c_ == 'W' else alt(sPW, 128, c_ == 'Y'); xs += [pf(vPW, sW, so, 128 * (k + int(n)), 9, '', 'm' if c_ == 'Y' else 'c') for k in (0, 5, 9, 14)]
            elif c_ in 'PQ': so = alt(sPW, 1152, c_ == 'Q'); xs += [pf(vPW, sW, so, 128 * (k + int(n)), 9, '', 'm' if c_ == 'Q' else 'c') for k in (0, 5)]
            elif c_ == 'D' and n in 'ab': so = alt(sPD, 512, n == 'b'); xs += [pf(vP9, sD, so, 128 * k, 9, '', 'm' if n == 'b' else 'c') for k in range(4)]
            elif c_ == 'D': xs += [pf(vP9, sD, sPD, 128 * k, 9) for k in {'l': range(4), 'h': range(4, 8), '8': [8]}[n]]
            elif c_ == 'L':
                t0 = a_.s('s_lshl1_add_u32', n2, fw); t1 = a_.s('s_lshr_b32', t0, 5); t0 = a_.s('s_and_b32', t0, 31); t2 = a_.s('s_and_b32', t1, 1); t0 = a_.s('s_lshl3_add_u32', t2, t0)
                t1 = a_.s('s_lshl2_add_u32', jg, t1); t1 = a_.s('s_mul_i32', t1, 72); t0 = a_.s('s_add_u32', t0, t1); t0 = a_.s('s_add_u32', t0, 32); so = a_.s('s_mul_i32', t0, 4608)
                t = a_.v('v_min_u32', 35 * 16, l16); t = a_.v('v_lshlrev_b32', 3, t); xs += [pf(t, sD, so, 0, 36, '', n)]
            elif c_ == 'T':
                t = a_.v('v_lshlrev_b32', 24, l16); tl = []
                if n in 'as':
                    t0 = a_.s('s_mul_i32', mw, 144); t1 = a_.s('s_mul_i32', j, 9); t0 = a_.s('s_add_u32', t0, t1); t0 = a_.s('s_lshl_b32', t0, 11); tl.append((sS, a_.s('s_add_u32', t0, H_OFF)))
                    t0 = a_.s('s_lshl4_add_u32', mw, j); t0 = a_.s('s_lshl_b32', t0, 12); tl.append((sS, a_.s('s_add_u32', t0, HF_OFF)))
                    tl += [(sS, Pp[0]), (sS, Pp[2]), (sS, Pb)]
                if n in 'ai':
                    t0 = a_.s('s_lshl2_add_u32', jg, w); tl += [(sD, a_.s('s_mul_i32', t0, 288 * 1152)), (sC, 0), (sK, 0), (sO, a_.s('s_mul_i32', mw, 32 * 2304))]
                xs += [pf(t, r, so, 0, 1) for r, so in tl]
            elif n in 'ab': xs += [pf(vP9, sC, alt(sPC2, 128, n == 'b'), 0, 9, '', 'm' if n == 'b' else 'c')]
            elif n == '8': xs += [pf(vP9, sC, sPC, 1024, 9, '', 'm')]
            elif n == 't':
                t0 = a_.s('s_and_b32', wid, 7); t0 = a_.s('s_mul_i32', t0, 1152); t0 = a_.s('s_add_u32', t0, sPC); t = a_.v('v_min_u32', 1152, vP9); xs += [pf(t, sC, t0, 1024, 2)]
            else: xs += [pf(vP9, sC, sPC2, 0, 9), pf(vP9, sC, sPC2, 128, 9), pf(vP9, sC, sPC, 1024, 9)][:3 if n == '0' else 2]
            if low:
                for x in xs[n0:]: x.mods += o.get('pm', ' nt')
        g = G(g) if g > 100 else g
        if a_: a_[0].ready = g - 20; pfl.append((g - .5, list(a_)))
        pfs(xs, g)
    for g in o.get('pcode', []):
        a_ = Q(); t0 = a_.s('s_lshl_b32', wid, 4); t0 = a_.s('s_and_b32', t0, 31 * 128); t1 = a_.s('s_lshl_b32', w, 18); t0 = a_.s('s_add_u32', t0, t1)
        t = a_.v('v_lshl_add_u32', l16, 8, t0); a_[0].ready = G(g) - 10; x = pf(t, sI, 0, 0, 3.5, c='m'); x.need = -9; x.back = 1e9; x.chain = 1; pfl.append((G(g), list(a_) + [x]))
    for g, xs in sorted(pfl, key=lambda x: x[0]): qp.extend(xs)
    qp.append(KEEP(pfd)); qp[-1].ready = max([gC] + o.get('pcode', []) + [g for g, _ in plan]) + 100
    W.queue(qp, 48, 'pf')
    RS = 7 if o.get('k', 0) & 32 else 6
    qi = Q(); eI = o['eI']; sc.xvm[eI].append('init')
    t0 = qi.s('s_lshl1_add_u32', mt, tw); t0 = qi.s('s_sub_u32', 31, t0); t1 = qi.s('s_lshl_b32', Gn, 5); t0 = qi.s('s_add_u32', t0, t1); a0 = qi.s('s_lshl_b32', t0, 7, name='a0')
    t0 = qi.s('s_lshl1_add_u32', mt, je); t0 = qi.s('s_sub_u32', 31 + (AR_OFF >> RS), t0); t1 = qi.s('s_lshl1_add_u32', jg, Tr); t1 = qi.s('s_lshl_b32', t1, 5); t0 = qi.s('s_add_u32', t0, t1)
    a2 = qi.s('s_lshl_b32', t0, RS, name='a2')
    FS = o.get('fs', 2)
    if FS > 2: t0 = qi.s('s_and_b32', mt, 4); t1 = qi.s('s_and_b32', mt, 7); t0 = qi.s('s_add_u32', t0, t1); t0 = qi.s('s_lshl_b32', t0, 11)
    elif o.get('f1l'): assert LOC & 1; t0 = qi.s('s_and_b32', mt, 7); t0 = qi.s('s_lshl_b32', t0, 10)
    else: t0 = qi.s('s_lshl_b32', mt, 7)
    def own(q, x): t = q.s('s_lshl_b32', jg, 7); return q.s('s_add_u32', t, x)
    if LOC & 1: t0 = qi.s('s_add_u32', t0, mlS(qi)[1])
    Fr = qi.s('s_add_u32', t0, FL_OFF, name='Fr'); t0 = qi.s('s_lshl_b32', j, FS); Fl = qi.s('s_add_u32', t0, Fr, name='Fl')
    mm = V(4, 'mm'); vA8 = qi.v('v_lshlrev_b32', 3, col, name='vA8'); vBp = qi.v('v_lshlrev_b32', 2, col, name='vBp'); zz = qi.v('v_mov_b32', 0)
    for e in range(4): qi('v_mov_b32', mm[e], -1)
    qi[0].ready = o['sentg'] - 30
    xs = [mc(I('buffer_store_dwordx4', mm, l16, sS, Pp[n >> 1], mods=f'offen offset:{2048 + (n & 1) * 1024} sc1'), 8, 's') for n in range(6)]
    if o.get('sl'):
        qn = Q(); sc.xvm[e3].append('mark')
        for g, k in o['sl']:
            m2 = V(4, 'm2')
            for e in range(4): qn('v_mov_b32', m2[e], -1)
            qn[-4].ready = g - 4
            for _ in range(k):
                x = xs.pop(0); x.ops[0] = ref(m2); x.tag = 'mark'; mc(x, 8, 's', soft=1, need=0, chain=1, back=o.get('slb', 300)); qn.append(x)
        W.queue(qn, 44, 'mark')
    K = o.get('k', 0)
    def only(q, c, x): t = q.s('s_min_u32', c, 1); t = q.s('s_lshl_b32', t, 28); return q.s('s_add_u32', t, x)
    if K & 1:
        t = qi.v('v_lshrrev_b32', 7, l16); t8 = qi.v('v_lshl_add_u32', t, 28, l16); t = qi.v('v_lshrrev_b32', 6, l16); t4 = qi.v('v_lshl_add_u32', t, 27, l16)
        xs[1:1] = [mc(I('buffer_store_dwordx4', mm, t8, sS, a0, mods='offen sc1'), 1, 's'), mc(I('buffer_store_dwordx4', mm, t8 if K & 32 else t4, sS, only(qi, w, a2), mods='offen sc1'), .25, 's'),
                   mc(I('buffer_store_dwordx4', mm, t8 if K & 16 else t4, sS, only(qi, qi.s('s_or_b32', j, w), Fr), mods='offen sc1'), .25, 's')]
    else: xs[1:1] = [mc(I('buffer_store_dwordx2', mm[0:2], vA8, sS, a0, mods='offen sc1'), 1, 's'), mc(I('buffer_store_dword', mm[0], vBp, sS, a2, mods='offen sc1'), 1, 's'),
               mc(I('buffer_store_dword', zz, vM0, sS, Fl, mods='offen sc1'), .25, 's')] + \
              ([mc(I('buffer_store_dword', zz, vM0, sS, own(qi, Fl), mods='offen offset:128 sc1'), .25, 's')] if o.get('f1l') else [])
    for x in xs: x.tag = 'init'; x.soft = 1; x.ready = o['sentg']; x.need = o.get('sentn', bar[eI] - 100)
    qi.extend(xs); qi[-1].dead = bar[eI] - 30; sentl = qi[-1]
    o1 = qi.v('v_mov_b32', 1); t0 = qi.s('s_and_b32', wid, 1); t0 = qi.s('s_lshl_b32', t0, 7)
    mc(qi('buffer_atomic_add', o1, vM0, sG, t0, mods='offen sc1'), .25, 's', ready=bar[eI] + 1, soft=1, need=0)
    W.queue(qi, 12, 'init')
    m = Q(); stubs = []
    def verify(name, loads, check, dep, q):
        c = check()
        if dep: c[0].deps = [dep]
        br = I('s_cbranch_vccnz', f'L_r{name}'); br.deps = [(c[-1], 1)]
        keep = {r.vr.id: r.vr for x in loads() + check() for r in x.refs(x.u + x.d)}
        q.extend(c); q.extend([br, LABEL(f'L_b{name}'), KEEP(rc, *keep.values())])
        if st.on and o.get('bst') and name in ('c', 'a', 'f1', 'f2', 'f3'): q('v_writelane_b32', st.v, rc, 10 + ('c', 'a', 'f1', 'f2', 'f3').index(name))
        stubs.append((name, loads, check)); return br
    m.extend(cst)
    def pick(x):
        a = m.v('v_cndmask_b32', x[0], x[1], kb0); b = m.v('v_cndmask_b32', x[2], x[3], kb0); return m.v('v_cndmask_b32', a, b, kb1)
    def rbf(x): t = m.v('v_cvt_pk_bf16_f32', x, x); return m.v('v_and_b32', 0xffff0000, t)
    nm = pick(nmean); qq = pick(qsum)
    t = m.v('v_mul_f32', nm, nm); c_ = m.v('v_mov_b32', 1.0 / 576); var = m.v('v_fma_f32', qq, c_, Neg(t)); var = m.v('v_max_f32', 0, var)
    nm = rbf(nm); var = rbf(var); var = rbf(m.v('v_add_f32', 1e-5, var)); t = m.v('v_sqrt_f32', var)
    g_ = m.v('v_bfe_u32', l16, 4, 2); g_ = m.v('v_xor_b32', jq, g_)
    sd = rbf(t); rr = m.v('v_rcp_f32', sd)
    t = m.v('v_and_b32', 1, g_); t = m.v('v_lshl_add_u32', t, 5, tokl); t2 = m.v('v_and_b32', 2, g_); t = m.v('v_lshl_add_u32', t2, 1, t)
    t = m.v('v_add_lshl_u32', tk0, t, 2); t2 = m.v('v_add_u32', STM - STR, t)
    m('ds_write_b32', t, rr, mods=f'offset:{STR}', tag='stat'); m('ds_write_b32', t2, nm, mods=f'offset:{STR}', tag='stat')
    eS = 6; m[-1].dead = bar[eS] - 4; sc.xlg[eS].append('stat')
    n0 = len(m)
    t0 = m.s('s_lshl_b32', tw, 8); vRr = m.v('v_lshl_add_u32', q, 6, t0)
    t0 = m.s('s_lshl4_add_u32', je, w); t0 = m.s('s_lshl_b32', t0, 4); vRm = m.v('v_lshl_add_u32', q, 6, t0)
    vK = m.v('v_lshl_add_u32', col, 3, sQ, name='vK')
    vRg = [m.v('v_add_u32', RGO + 2 * QS * k, l16) for k in range(2)]
    m[n0].ready = gA - 40; assert bar[eS] < gA - 40
    rq = [V(4, f'rq{k}') for k in range(5)]
    for k in range(4): m('ds_read_b128', rq[k], vRr, mods=f'offset:{STR + 16 * k}')
    m('ds_read_b128', rq[4], vRm, mods=f'offset:{STR}')
    def getc(u, nm_):
        r = V(2, f'{nm_}{u}'); m('ds_read_b64', r, vK, mods=f'offset:{CST + 512 * CI[nm_] + 128 * u}'); return r
    l1 = [getc(u, 'l1') for u in range(3)]
    n0 = len(m)
    for e in range(4): m('v_mul_f32', accm[e], accm[e], rq[4][e])
    m[n0].ready = gA - 5
    eR = sc.barafter(gA + 10)
    m('ds_write_b128', vQ, accm, mods=f'offset:{RGO}', tag='rg'); m[-1].dead = bar[eR] - 4; sc.xlg[eR].append('rg')
    for u in range(2):
        for tt in range(4):
            for e in range(4): m('v_mul_f32', accb[u][tt][e], accb[u][tt][e], rq[tt][e])
    um = [V(4, f'um{tt}') for tt in range(4)]
    n0 = len(m)
    for tt in range(4): m('ds_read_b128', um[tt], vRg[tt >> 1], mods=f'offset:{(tt & 1) * QS}')
    m[n0].ready = bar[eR] + 1; lr = m[-1]
    U = [accb[0], accb[1], um]
    cf = [getc(u, 'cf') for u in range(3)]; l16c = [getc(u, 'l16') for u in range(3)]
    def horner(z, c, u, neg=False):
        d = V(1); return d, [I('v_fma_f32', d, c[0], z, u), I('v_fmac_f32_dpp', d, z, Neg(c[1]) if neg else c[1], mods=DPP8)]
    def coef(d, u, x): return [I('v_mul_f32', d, cf[u][0], x), I('v_fmac_f32_dpp', d, x, cf[u][1], mods=DPP8)]
    ch = []; ee = []
    for u in range(3):
        z = U[u][0][0]; c = []
        for k in range(1, 16):
            z, ins = horner(z, l1[u], U[u][k >> 2][k & 3], True); c += ins
        d = V(1); c += coef(d, u, z)
        ch.append(c); ee.append(d)
    c = inter(ch); c[0].deps = [(lr, 5)]; m.extend(c[:-40])
    vCn = m.v('v_lshlrev_b32', 3, l16); vCn = m.v('v_and_b32', 128, vCn, name='vCn'); cn = V(1, 'cn')
    cnl = lambda: [mc(I('buffer_load_dword', cn, vCn, sG, 0, mods='offen sc1'), 2, 'm', need=0, soft=1, back=2000)]
    cnc = lambda: [I('v_cmp_gt_u32', 'vcc', 128, cn)]
    m.extend(c[-40:])
    eb = [V(4, f'eb{u}') for u in range(3)]
    for u in range(3):
        for k in range(4): m('ds_bpermute_b32', eb[u][k], vBp, ee[u], mods=f'offset:{64*k}')
    lastbp = m[-1]
    ch = []; z01 = V(2, 'z01'); z2 = V(1, 'z2')
    for u in range(3):
        z = eb[u][0]; c = []
        for k in range(1, 4):
            z, ins = horner(z, l16c[u], eb[u][k]); c += ins
        c.append(I('v_min_u32', z01[u] if u < 2 else z2, -2, z))
        ch.append(c)
    c = inter(ch); c[0].deps = [(lastbp, 5)]; m.extend(c)
    tA, tB, a2m = (m.v('v_lshl_add_u32', q, 28, vA8), m.v('v_lshl_add_u32', q, 28, vBp), only(m, w, a2)) if K & 2 else (vA8, vBp, a2)
    mc(m('buffer_store_dwordx2', z01, tA, sS, a0, mods='offen sc1'), 1, 's', need=0, soft=1, back=2000)
    agst = mc(m('buffer_store_dword', z2, tB, sS, a2m, mods='offen sc1'), 1, 's', need=0, soft=1, back=2000)
    Z = [[V(4, f'z{u}_{tt}') for tt in range(4)] for u in range(3)]
    zc = [inter([coef(Z[u][tt][e], u, U[u][tt][e]) for e in range(4)]) for u in range(3) for tt in range(4)]
    ldc = cnl(); ldc[0].ready = G(o['cng']); m.extend(ldc)
    for x in zc[:o.get('zc', 8)]: m.extend(x)
    vAl = m.v('v_lshl_add_u32', q, 10, vA8, name='vAl'); vAr = m.v('v_lshl_add_u32', q, RS + 3, vBp, name='vAr')
    sA = SR(4, 'A'); sR = SR(4, 'R')
    for r, a_, k in ((sA, a0, 4095), (sR, a2, (32 << RS) - 1)):
        m('s_mov_b64', r[0:2], sS[0:2]); t0 = m.s('s_or_b32', a_, k); m('s_add_u32', r[2], t0, 1); m('s_mov_b32', r[3], 0x20000)
    brc = verify('c', cnl, cnc, (ldc[0], 50), m)
    ag2 = [V(2, f'ag{k}') for k in range(8)]; ag1 = [V(1, f'ar{k}') for k in range(8)]; mx = V(1, 'mx')
    ag = [[ag2[7 - k][0] for k in range(8)], [ag2[7 - k][1] for k in range(8)], ag1[::-1]]
    agl = lambda: inter([[mc(I('buffer_load_dwordx2', ag2[k], vAl, sA, a0, mods=f'offen offset:{128*k+128} sc1'), 3, 'q', need=0, soft=1) for k in range(8)],
                         [mc(I('buffer_load_dword', ag1[k], vAr, sR, a2, mods=f'offen offset:{k + 1 << RS} sc1'), 3, 'q', need=0, soft=1) for k in range(8)]])
    def agc():
        al = [ag[u][k] for k in range(7, -1, -1) for u in range(3)]
        r = [I('v_max3_u32', mx, al[0], al[1], al[2])]
        for k in range(3, 23, 2): r.append(I('v_max3_u32', mx, mx, al[k], al[k + 1]))
        return r + [I('v_max_u32', mx, mx, al[23]), I('v_cmp_eq_u32', 'vcc', -1, mx)]
    lda = agl(); lda[0].ready = G(o['agld']); zr = sum(zc[o.get('zc', 8):], [])
    for k, x in enumerate(lda): m.append(x); m.extend(zr[2 * k:2 * k + 2])
    m.extend(zr[32:])
    l64 = [getc(u, 'l64') for u in range(3)]
    bra = verify('a', agl, agc, (lda[-1], o['aglat']), m)
    ch = []; sq_ = []
    for u in range(3):
        z = ag[u][0]; c = []
        for k in range(1, 8):
            z, ins = horner(z, l64[u], ag[u][k]); c += ins
        ch.append(c); sq_.append(z)
    m.extend(inter(ch))
    l512 = [getc(u, 'l512') for u in range(3)]; l16c = [getc(u, 'l16') for u in range(3)]; l1 = [getc(u, 'l1') for u in range(3)]
    sb_ = [V(4, f'sb{u}') for u in range(3)]
    for u in range(3):
        for k in range(4): m('ds_bpermute_b32', sb_[u][k], vBp, sq_[u], mods=f'offset:{64*k}')
    lastbp = m[-1]
    kq = [SR(2, f'kq{k}') for k in range(3)]
    for k in range(3): m('v_cmp_lt_u32', kq[k], k, q)
    t = m.v('v_mul_u32_u24', 144, col); t = m.v('v_lshl_add_u32', q, 5, t); vHw = m.v('v_add_u32', sQ, t)
    t = m.v('v_lshrrev_b32', 6, l16); t = m.v('v_mul_u32_u24', 144, t); t2 = m.v('v_and_b32', 3, col); t = m.v('v_lshl_add_u32', t2, 5, t)
    vHr = m.v('v_add_u32', sQ, t); t0 = m.s('s_lshl_b32', w, 3); vHm = m.v('v_add_u32', t0, vHr)
    zs = lambda u, k: Z[u][k >> 2][k & 3]
    ch = []; pk = [[V(4), V(4)] for u in range(3)]
    for u in range(3):
        z = sb_[u][3]; c = []
        for k in (2, 1, 0):
            z, ins = horner(z, l512[u], sb_[u][k]); c += ins
        for k in range(3):
            z2, ins = horner(z, l16c[u], eb[u][k]); c += ins
            z3 = V(1); c.append(I('v_cndmask_b32', z3, z, z2, kq[k])); z = z3
        for k in range(16):
            c += [I('v_fmac_f32', zs(u, k), l1[u][0], z), I('v_fmac_f32_dpp', zs(u, k), z, l1[u][1], mods=DPP8)]; z = zs(u, k)
            if k == 9 or k == 15:
                h = k // 10
                for e in range(4): c.append(I('v_cvt_pk_bf16_f32', pk[u][h][e], zs(u, 8*h + 2*e), zs(u, 8*h + 2*e + 1)))
        ch.append(c)
    c = inter(ch); c[0].deps = [(lastbp, 5)]; m.extend(c)
    hf = [V(4, f'hf{tt}') for tt in range(4)]; hm4 = V(4 if K & 8 else 2, 'hm'); hm = hm4[0:2]
    for u in range(3):
        for h in range(2): m('ds_write_b128', vHw, pk[u][h], mods=f'offset:{MISC + 16*h}')
        if u < 2:
            for tt in range(4): m('ds_read_b64_tr_b16', hf[tt][2*u:2*u+2], vHr, mods=f'offset:{MISC + 8*tt}')
        else: m('ds_read_b64_tr_b16', hm, vHm, mods=f'offset:{MISC}')
    lastrd = m[-1]
    if LOC & 4:
        ml, S = mlS(m); t0 = m.s('s_lshl1_add_u32', ml, tw); t1 = m.s('s_and_b32', Gn, 28); t1 = m.s('s_add_u32', t1, Gn); t0 = m.s('s_lshl_b32', t0, 7); t0 = m.s('s_add_u32', t0, t1)
        t0 = m.s('s_lshl_b32', t0, 11); t0 = fix(m, m.s('s_add_u32', t0, S)); hs_ = [m.s('s_add_u32', t0, 0x6000000 + k * 131072) for k in range(2)]
        t0 = m.s('s_lshl1_add_u32', ml, je); t0 = m.s('s_lshl1_add_u32', t0, tw); t0 = m.s('s_lshl3_add_u32', t0, jg)
    else:
        t0 = m.s('s_lshl1_add_u32', mt, tw); t0 = m.s('s_lshl_b32', t0, 6); t0 = m.s('s_add_u32', t0, Gn); t0 = m.s('s_lshl_b32', t0, 11)
        hs_ = [m.s('s_add_u32', t0, HF_OFF + k * 65536) for k in range(2)]
        t0 = m.s('s_lshl1_add_u32', mt, je); t0 = m.s('s_lshl1_add_u32', t0, tw); t0 = m.s('s_lshl2_add_u32', t0, jg)
    t0 = m.s('s_lshl1_add_u32', t0, fw); t0 = m.s('s_lshl_b32', t0, 10); t1 = m.s('s_lshl_b32', Tr, 9 if K & 12 else 3); t0 = m.s('s_add_u32', t1, t0); t0 = m.s('s_add_u32', t0, HR_OFF)
    if K & 12: l8w = m.v('v_lshrrev_b32', 1, l16)
    if K & 8: t = m.v('v_and_b32', 16, l16); l8w = m.v('v_lshl_add_u32', t, 24, l8w)
    if LOC & 4: t0 = m.s('s_add_u32', t0, S)
    n0 = len(m)
    for tt in range(4): mc(m('buffer_store_dwordx4', hf[tt], l16, sS, hs_[tt >> 1], mods=f'offen offset:{(tt & 1) * 1024} sc1', tag='hs'), 8, 's', need=0, soft=1, chain=o.get('hsc', 1))
    if K & 8:
        m[n0 + 1:n0 + 1] = [I('v_mov_b32_dpp', hm4[2 + e], hm4[e], mods='quad_perm:[1,1,3,3]' + DM) for e in range(2)]
        mc(m('buffer_store_dwordx4', hm4, l8w, sS, t0, mods='offen sc1', tag='hs'), 4, 's', need=0, soft=1, chain=o.get('hsc', 1))
    else: mc(m('buffer_store_dwordx2', hm, l8w if K & 4 else l16, sS, t0, mods='offen sc1', tag='hs'), 4 if K & 4 else 8, 's', need=0, soft=1, chain=o.get('hsc', 1))
    m[n0].deps = [(lastrd, 5)]; hsl = m[-1]; hsl.dead = bar[e1] - 30
    W.queue(m, 10, 'scan')
    qf = Q(); fl = V(1, 'fl'); kg = SR(2, 'kg')
    vF = [vBp]
    fll = lambda: [mc(I('buffer_load_dword', fl, vF[0], sS, Fr, mods='offen sc1'), 1, 'm', need=0, soft=1, back=2000)]
    t0 = qf.s('s_lshl_b32', jg, 2); qf('s_lshl_b32', kg[0], 15, t0); qf('s_mov_b32', kg[1], 0); qf[0].ready = bar[e1] - 20
    pb = {}; br = {}
    for n, e in ((1, e1), (2, e2), (3, e3)):
        t = qf.v('v_mov_b32', n); qf[-1].ready = bar[e] - 6
        a, b, of = (own(qf, Fl), own(qf, Fr), 128) if n == 1 and o.get('f1l') else (Fl, Fr, 0)
        pb[n] = mc(qf('buffer_store_dword', t, vM0, sS, a, mods=f'offen offset:{of} sc1'), .25, 's', need=0, soft=1, back=2000, ready=bar[e] + 1)
        fll = lambda b=b, of=of: [mc(I('buffer_load_dword', fl, vBp, sS, b, mods=f'offen offset:{of} sc1'), 1, 'm', need=0, soft=1, back=2000)]
        if n == 2 and o.get('f2b', 1) == 2:
            t0 = qf.s('s_lshl_b32', 0x1111, jq); qf('s_or_b32', kg[0], kg[0], t0)
        if FS > 2:
            assert LOC & 1 and o.get('f2b') == 2
            t = qf.v('v_lshlrev_b32', FS, col)
            if n < 3: t = qf.v('v_cndmask_b32', -16, t, kg)
            fll = lambda t=t: [mc(I('buffer_load_dword', fl, t, sS, Fr, mods='offen sc1'), 1, 'm', need=0, soft=1, back=2000)]
        ld = fll(); ld[0].deps = [(pb[n], o.get(f'chk{n}', o['chk']))]; qf.extend(ld)
        if n == 2 and o.get('f2b', 1) == 2: ld[0].ready = gP + o.get('f2g', -60)
        br[n] = verify(f'f{n}', fll, lambda n=n: [I('v_cmp_gt_i32', 'vcc', n, fl)] + ([I('s_nop', 3), I('s_and_b64', 'vcc', 'vcc', kg)] if n < 3 else []), (ld[0], o.get(f'lat1{n}', o['lat1'])), qf)
        if n == 2 and o.get('f2b', 1) == 2: br[4] = br[2]
        elif n == 2 and o.get('f2b', 1):
            qf('s_lshl_b32', kg[0], 0x1111, jq); ld = fll(); ld[0].ready = gP + o.get('f2g', -60); qf.extend(ld)
            br[4] = verify('f4', fll, lambda: [I('v_cmp_gt_i32', 'vcc', 2, fl), I('s_nop', 3), I('s_and_b64', 'vcc', 'vcc', kg)], (ld[0], 45), qf)
    W.queue(qf, 49, 'flag')
    qa = Q(); qb = Q(); qx = P(); nld = [0]
    def gld(q, d, so, off, use, c):
        x = mc(q('buffer_load_dwordx4', d, l16, sS, so, mods=f'offen offset:{off} sc1'), 8, c, dead=use - o.get('gdead', 40), need=use - o.get('gneed', 45), soft=1)
        if ref(d).vr.cls == 'a' and nld[0] < o['xa']:
            x.ready = gI[3] + 16 * max(nld[0] // 4 + 1, E) + 2; nld[0] += 1
        elif ref(d).vr.cls == 'v': x.ready = gC + o.get('vld', 30)
        else: x.ready = g2
        return x
    def Hld(q, x, kls, after=None, dep=None, need=None):
        for kl in kls:
            if kl & 1 == 0:
                so = q.s('s_xor_b32', Hp[x], (0, 4096, 16384, 20480, 0x202000)[kl >> 1]) if LOC & 2 else q.s('s_add_u32', Hp[x], kl * 2048)
                if kl == kls[0]:
                    q[-1].deps = [(sdone, 1)] + ([(dep, 1)] if dep else [])
                    if after is not None: q[-1].ready = bar[after] + 1
            r = [gld(q, Hq[x][kl][a], so, (kl & 1) * 2048 + a * 1024, useH[(x, kl)], 'h' if x else 'm') for a in range(2)]
            if need is not None:
                for y in r: y.need = need
            if kl == 8:
                for e in range(2): qx('v_swap_b32', Hh[x][2 + e], Hh[x][4 + e])
                qx[-2].deps = [(r[1], 35)]; qx[-1].dead = useH[(x, kl)] - 3
    if LOC & 4:
        ml, S = mlS(qa); t2 = qa.s('s_lshl2_add_u32', ml, w); t0 = qa.s('s_lshl2_add_u32', t2, jg); t0 = qa.s('s_lshl1_add_u32', t0, Tr); t0 = qa.s('s_lshl2_add_u32', t0, je); t0 = qa.s('s_lshl_b32', t0, 12)
        t0 = fix(qa, qa.s('s_add_u32', t0, S)); h0 = qa.s('s_add_u32', t0, 0x6000000, name='h0'); t0 = qa.s('s_lshl3_add_u32', t2, jg); t0 = qa.s('s_lshl_b32', t0, 11); t0 = qa.s('s_add_u32', t0, S)
    else:
        t0 = qa.s('s_lshl2_add_u32', mw, jg); t1 = qa.s('s_lshl2_add_u32', t0, jq); t1 = qa.s('s_lshl_b32', t1, 12); h0 = qa.s('s_add_u32', t1, HF_OFF, name='h0'); t0 = qa.s('s_lshl_b32', t0, 11)
    h8 = qa.s('s_add_u32', t0, HR_OFF, name='h8'); qa[0].ready = bar[e1] - 10; qa[-1].ready = bar[e1] + 1; hdone = qa[-1]
    for k in range(2):
        for a in range(2): gld(qa, hq[k][a], h0, k * 2048 + a * 1024, gC + 10, 'm').need = 0
    Hld(qa, 0, (0, 1, 2, 3), need=1)
    for k in ((8, 2, 3, 4, 5, 6, 7) if o.get('k8') else range(2, 9)):
        if k % 2 == 0 and k < 8: so = qb.s('s_xor_b32', h0, (0, 4096, 16384, 20480)[k >> 1] if LOC & 4 else k * 2048)
        if k == 8 and K & 12: l8r = qb.v('v_lshrrev_b32', 1, l16)
        qb[0].deps = [(br[1], 1), (hdone, 1)]
        for a in range(2):
            hl = gld(qb, hq[k][a], so if k < 8 else h8, (k & 1) * 2048 + a * 1024, gC + 10, 'h' if k < 8 else 'q')
            if k == 8 and K & 12:
                qb.pop(); x = hl
                for h in range(2): hl = mc(qb('buffer_load_dwordx2', hq[k][a][2*h:2*h+2], l8r, sS, h8, mods=f'offen offset:{a * 1024 + h * 512} sc1'), 4, 'q', dead=x.dead, need=x.need, soft=1, ready=x.ready)
    Hld(qa, 0, (4, 5), after=eh, need=gC - 20)
    Hld(qb, 1, (0, 1, 2, 3)); Hld(qb, 2, (0, 1, 2, 3))
    Hld(qa, 0, (8,), need=gC); Hld(qa, 0, (6, 7), after=e2, need=2)
    q8 = Q(); Hld(q8, 1, (8,), dep=br[1]); Hld(q8, 2, (8,)); Hld(q8, 3, (8,)); Hld(qb, 3, (0, 1, 2, 3))
    for x in (1, 2, 3): Hld(qb, x, (4, 5, 6, 7), dep=br[2])
    W.queue(qx, 20, 'swap'); W.queue(qa, 30, 'own'); W.queue(qb, 29, 'par'); W.queue(q8, 28, 'p8')
    z = Q(); y = Q()
    t = z.v('v_mul_u32_u24', SRC, q); vPl = z.v('v_lshl_add_u32', col, 4, t, name='vPl');
    if LOC & 24: ml, S = mlS(z)
    t0 = z.s('s_lshl2_add_u32', ml if LOC & 8 else mt, jq); t0 = z.s('s_lshl2_add_u32', t0, jg); t2 = z.s('s_lshl2_add_u32', t0, w); t2 = z.s('s_mul_i32', t2, 32768 if LOC & 8 else PW)
    if LOC & 8: t2 = fix(z, z.s('s_add_u32', t2, S))
    Pd = [z.s('s_add_u32', t2, PXo[r] if LOC & 8 else PX_OFF + 4096 * r) for r in range(3)]
    if LOC & 24 in (8, 16): t0 = z.s('s_lshl2_add_u32', ml if LOC & 16 else mt, jq); t0 = z.s('s_lshl2_add_u32', t0, jg)
    t0 = z.s('s_mul_i32', t0, FIN); t1 = z.s('s_lshl_b32', w, 8); t0 = z.s('s_add_u32', t0, t1)
    if LOC & 16: t0 = fix(z, z.s('s_add_u32', t0, S))
    Pc = [z.s('s_add_u32', t0, (0x6800000 if LOC & 16 else P8_OFF) + 1024 * k) for k in range(2)]
    t0 = z.s('s_lshr_b32', jg, 1); t0 = z.s('s_lshl2_add_u32', t0, w); t1 = z.s('s_and_b32', jg, 1); t0 = z.s('s_lshl1_add_u32', t0, t1); tb = z.s('s_lshl_b32', t0, 3, name='tb')
    t1 = z.s('s_lshl_b32', mt, 7); t0 = z.s('s_add_u32', t1, tb); t0 = z.s('s_mul_i32', t0, 1152)
    kc = z.s('s_lshl2_add_u32', jq, jg); kc = z.s('s_lshl_b32', kc, 6); k8 = z.s('s_lshl_b32', jq, 5); k8 = z.s('s_add_u32', k8, 1024); x8 = z.s('s_add_u32', t0, k8)
    t1 = z.s('s_add_u32', t1, tk0); t1 = z.s('s_mul_i32', t1, 1152); xc = [z.s('s_add_u32', t1, kc)]; xc.append(z.s('s_add_u32', xc[0], 4608))
    t = z.v('v_lshrrev_b32', 3, col); c3 = z.v('v_and_b32', 3, col); ae = z.v('v_lshl_add_u32', t, 2, c3, name='ae'); t = z.v('v_mul_u32_u24', 1152, ae)
    q1 = z.v('v_and_b32', 1, q); vx8 = z.v('v_lshl_add_u32', q1, 4, t); c4 = z.v('v_lshrrev_b32', 2, col)
    t = z.v('v_lshl_add_u32', c4, 4, c3); t = z.v('v_mul_u32_u24', 1152, t); vx = z.v('v_lshl_add_u32', q, 4, t); vk = z.v('v_lshlrev_b32', 1, col); zdone = z[-1]
    kv = [V(1, f'kv{n}') for n in range(3)]; fl_ = dict(soft=1, chain=o.get('prc', 1))
    z[0].ready = gP + o.get('zb', -60) - 30; zl = []
    for n in range(3): mc(z('buffer_load_ushort', kv[n], vk, sK, kc if n < 2 else k8, mods=f'offen offset:{32 * (n & 1)}'), 1, 'm', need=0, **fl_)
    for n in range(3): zl.append(mc(z('buffer_load_dwordx4', xv[n], vx if n < 2 else vx8, sX, xc[n] if n < 2 else x8, mods='offen'), 16 if n < 2 else 8, 'm', deps=[]))
    def lps():
        for r in range(3):
            for i in range(2): zl.append(mc(z('buffer_load_dwordx4', ps[r][i], l16, sS, Pd[r], mods=f'offen offset:{i * 1024} sc1'), 8, 'm', dead=gS - 40, deps=[(br.get(4, br[3]), 1)]))
    if 4 in br: lps()
    for b in (1, 2, 3, 4, 0): zl.append(mc(z('buffer_load_dwordx4', pr[b], vPl, sS, Pc[b > 0], mods=f'offen offset:{max(b - 1, 0) * 1024} sc1'), 8, 'm', dead=gX - 40, deps=[(br[3], 1)]))
    if 4 not in br: lps()
    for k, x in enumerate(zl):
        mc(x, *x.mc, need=0, back=o.get('zback', 2000), **fl_)
        if k: x.deps.append((zl[k - 1], o.get('zsp', 20)))
    pl8 = zl[-1]
    pld = lambda r: [mc(I('buffer_load_dwordx4', pd[r][i], l16, sS, Pd[r], mods=f'offen offset:{2048 + i * 1024} sc1'), 8, 'm', need=0, back=2000, **fl_) for i in range(2)]
    mxd = V(1, 'mxd')
    def pck(r):
        a, b = pd[r]
        return [I('v_max3_u32', mxd, a[0], a[1], a[2]), I('v_max3_u32', mxd, mxd, a[3], b[0]), I('v_max3_u32', mxd, mxd, b[1], b[2]), I('v_max_u32', mxd, mxd, b[3]), I('v_cmp_eq_u32', 'vcc', -1, mxd)]
    qd = Q(); ldd = []
    for r in range(3):
        ldd.append(pld(r)); ldd[r][0].deps = [(dst_[2 * r + 1], o.get(f'dl{r}', o.get('dl', 36))), (zdone, 1)]; ldd[r][1].dead = gE - 1
        z.extend(ldd[r])
        if r < 2: verify(f'd{r}', lambda r=r: pld(r), lambda r=r: pck(r), (ldd[r][1], 30), qd); qd[-1].dead = gD - 2
    t = y.v('v_and_b32', 16, l16); c_ = y.v('v_mov_b32', 0x3f80); one = y.v('v_lshlrev_b32', t, c_); y[0].deps = [(zdone, 1)]; y[0].ready = g3 - o.get('ybeg', 60)
    def onehot(idx, rs):
        ks = [SR(2) for _ in rs]
        for k in range(len(rs) + 2):
            if k < len(rs): y('v_cmp_eq_u32', ks[k], k, idx)
            if k >= 2: y('v_cndmask_b32', rs[k - 2], 0, one, ks[k - 2])
    t = y.v('v_lshrrev_b32', 1, ae); t2 = y.v('v_and_b32', 4, col); t = y.v('v_add_u32', t2, t); onehot(t, [sel[k] for k in range(4)])
    t = y.v('v_lshrrev_b32', 3, col); t = y.v('v_xor_b32', t, q); t2 = y.v('v_bfe_u32', col, 1, 2); t3 = y.v('v_lshl_add_u32', t, 1, t2); t = y.v('v_and_b32', 1, t); t = y.v('v_lshl_add_u32', t, 4, t3)
    onehot(t, [idm[k >> 2][k & 3] for k in range(8)])
    t = y.v('v_xor_b32', c4, q); t2 = y.v('v_lshrrev_b32', 1, c3); t = y.v('v_lshl_add_u32', t, 1, t2)
    for k in (0, 1, 4, 5): y('v_mov_b32', sA_[k], 0)
    onehot(t, [sA_[2], sA_[3]]); y[-1].dead = gX - 3
    hi_ = y.v('v_lshrrev_b32', 1, q); rr = [V(4, f'rr{n}') for n in range(3)]; nm = [V(4, f'nm{n}') for n in range(3)]
    t0 = y.s('s_lshl_b32', tb, 2); t8 = y.v('v_lshl_add_u32', hi_, 4, t0); t0 = y.s('s_lshl_b32', tk0, 2); t = y.v('v_lshl_add_u32', q, 6, t0)
    t9 = y.v('v_add_u32', STM - STR, t8); t2 = y.v('v_add_u32', STM - STR, t)
    for n in range(3): y('ds_read_b128', rr[n], t if n < 2 else t8, mods=f'offset:{STR + 16 * (n & 1)}'); y('ds_read_b128', nm[n], t2 if n < 2 else t9, mods=f'offset:{STR + 16 * (n & 1)}')
    lr = y[-1]
    t = y.v('v_bfe_u32', l16, 2, 7); t2 = y.v('v_mul_u32_u24', 4 * 2304, hi_); vo8 = y.v('v_add_u32', t, t2); vo8 = y.v('v_lshl_add_u32', q1, 30, vo8)
    vo = [y.v('v_lshl_add_u32', t2, 3, t)]; vo.append(y.v('v_add_u32', 16 * 2304, vo[0]))
    so = [[y.s('s_lshl_b32', x, 1), y.s('s_lshl1_add_u32', x, 4608)] for x in xc + [x8]]
    cl = y.s('s_mov_b32', int(np.float32(-LOG2E).view(np.uint32))); ce = [V(4, f'ce{n}') for n in range(3)]
    n0 = len(y)
    for n in range(3):
        for e in range(4): y('v_mul_f32', nm[n][e], nm[n][e], rr[n][e]); y('v_mul_f32', ce[n][e], cl, rr[n][e])
        for e in range(4): y('v_mul_f32', ce[n][e], ce[n][e], rr[n][e])
        y('v_lshlrev_b32', kv[n], 16, kv[n])
    y[n0].deps = [(lr, 4)]; y[n0 + 12].ready = gX - 30
    def skip(S, X, n, k):
        ch = []
        for e in range(4): t = V(1); ch.append([I('v_fma_f32', t, X[e], rr[n][e], nm[n][e]), I('v_fmac_f32', S[e], t, kv[k])])
        return inter(ch)
    def gate(d, S, X, n):
        ch = []
        for e in range(4):
            t = V(1); ch.append([I('v_mul_f32', d[e], ce[n][e], d[e]), I('v_exp_f32', t, d[e]), I('v_mul_f32', d[e], d[e], S[e]), I('v_fma_f32', t, t, cl, cl), I('v_rcp_f32', t, t), I('v_fmac_f32', X[e], d[e], t)])
        return ch
    ost = lambda r, v, n, e: mc(I('buffer_store_dword', r, v, sO, so[n][e >> 1], mods=f'offen offset:{2304 * (e & 1)}' + o['om']), 2, 's', need=0, soft=1, chain=1, back=2000)
    n0 = len(y)
    for i in range(2):
        for a in range(2): y.extend(skip(accs[6 + i][a], xf[i][a], a, i))
    y[n0].ready = gX + 10; y[-1].dead = gS - 2
    y.extend(skip(Y4, xf4, 2, 2)); y.extend(inter(gate(D4, Y4, xf4, 2))); y.extend([ost(xf4[e], vo8, 2, e) for e in range(o.get('n8', 4))])
    W.queue(z, 9, 'fin'); W.queue(y, 8, 'pre'); W.queue(qd, 41, 'chk')
    if not o.get('bst'):
        for k, g in enumerate([gA] + gI[1:] + [gC, g2, g3]): st.at(W, g, 10 + k)
    else:
        for e in range(1, len(bar)): st.at(W, bar[e] + 1, 21 + e + (e > 18))
        assert len(bar) < 40
        print("; BARS", bar[1:] + [gE])
    sc.emit(spacing, lambda g: o['softA'] if g < gA else o['soft'])
    p.extend(sc.bar0); p.extend(st.t(9))
    body = W.build()
    sc.report()
    print(f"; gaps A {gA} I {gI} C {gC} 2 {g2} P {gP} 3 {g3} E {gE} | sent {sentl.gap} eI {bar[eI]} agst {agst.gap} cbr {brc.gap} agld {lda[0].gap}-{lda[-1].gap} agbr {bra.gap} hs {hsl.gap} "
          f"pub {[pb[n].gap for n in pb]} chk {[br[n].gap for n in br]} hld {hl.gap} H {[hlast[k].gap for k in hlast]} eh {bar[eh]} sp {slast.gap} d8 {d8.gap} pl8 {pl8.gap} dp {[x.gap for x in dst_]} X {gX} S {gS} D {gD} ld {[x[1].gap for x in ldd]} y {y[-1].gap} qd {qd[-1].gap}")
    if o.get('vx'): print("; X", " ".join(f"{x.gap}{x.q[:2]}{mcls(x)[1]}" for x in body if x.kind == 'X'))
    pendv = None
    for x in body:
        if x.kind != 'P' and x.d and x.ops[0] == 'vcc': assert pendv in (None, x.q), (x.op, x.gap); pendv = x.q
        if x.op == 's_cbranch_vccnz': pendv = None
    p.extend(body)
    p.extend(st.t(17))
    verify('d2', lambda: pld(2), lambda: pck(2) + [I('s_nop', 0)], None, p)
    p.extend(st.t(18))
    r = addp(accd, pd[2]); p.extend([r[0], r[2], r[1], r[3]])
    for a in range(2):
        p.extend(inter(gate(accd[6][a], accs[6][a], xf[0][a], a) + gate(accd[7][a], accs[7][a], xf[1][a], a)))
        for e in range(4): p('v_permlane16_swap_b32', xf[0][a][e], xf[1][a][e])
        for e in range(4): p.extend([ost(xf[i][a][e], vo[i], a, e) for i in range(2)])
        p.extend(st.t(19 + a))
    p.extend(st.t(21))
    if st.on and o.get('fw'): p('s_waitcnt', mods='vmcnt(0)')
    if st.on: p('v_writelane_b32', st.v, rc, 40)
    st.flush(p, sS, v0); p.append(KEEP(wid))
    p.append(LABEL('L_end')); p('s_endpgm')
    lines, peak, prog = finish(p)
    for nm_, par in (('cold', {}), ('warm', dict(Lc=600, fc=0))):
        stl = sim.report(prog, bar[1:] + [gE], nm_, par)
        if o.get('simv') and nm_ == 'cold': print("; stalls", [(g, k[0], int(x)) for g, k, x in stl if x > 60])
    for name, loads, check in stubs:
        rt = [LABEL(f'L_r{name}')] + loads() + [I('s_waitcnt', mods='vmcnt(0)')] + check() + \
             [I('s_sub_u32', rc, rc, 1), I('s_cbranch_scc1', f'L_x{name}'), I('s_cbranch_vccnz', f'L_r{name}'), I('s_branch', f'L_b{name}'),
              LABEL(f'L_x{name}'), I('s_mov_b32', rc, 0), I('s_branch', f'L_b{name}')]
        for ins in rt: lines.append(ins.name + ':' if ins.op == 'LABEL' else ins.text())
    lines += ['  s_endpgm', 'L_fin:']
    print("; instr", len(lines))
    return lines, st.peak(peak)

if __name__ == '__main__':
    import sys, json
    opt = json.loads(sys.argv[2]) if len(sys.argv) > 2 else {}
    lst = opt.pop('list', 1)
    label = 'x_kernel' if lst else NAME + '_kernel'
    l, pk = gen_y(label, opt)
    s = f"; @launch {'kernel=' + label + ' ' if lst else ''}grid=(256,1,1) block=(256,1,1) lds=163840\n"
    s += '.amdgcn_target "amdgcn-amd-amdhsa--gfx950"\n.text\n' + kernel_text(label, l) + '.section .rodata,"a"\n' + kernel_desc(label, pk['v'], pk['a'])
    open(sys.argv[1], 'w').write(s)
```

```python
from common import *
from sched import *
import math, sim
import numpy as np
QS = 40960; MISC = 36864
CST = MISC; RGO = MISC + 2560; STR = MISC + 3584; STM = QS + MISC + 3584
AG_OFF = 0; AR_OFF = 0x20000; FL_OFF = 0x50000; HF_OFF = 0x100000; HR_OFF = 0x500000; PX_OFF = 0x600000; H_OFF = 0x1B00000
P8_OFF = 0x1300000; SRC = 5120; FIN = 4 * SRC; PW = 12288
TINY = 'v_mfma_f32_4x4x4_16b_bf16'
DM = ' row_mask:0xf bank_mask:0xf'
DPP8 = 'row_ror:8' + DM
BIG = 0x7ff00000
LOG2E = math.log2(math.e)

def inter(lists):
    out = []
    for k in range(max(len(x) for x in lists)):
        for x in lists:
            if k < len(x): out.append(x[k])
    return out
def SR(n=1, name=None, phys=None): return VR('s', n, name, phys)
class Q(P):
    def s(s, op, *ops, name=None):
        d = SR(1, name); s.append(I(op, d, *ops)); return d
def mc(x, n, c, **k):
    x.mc = (n, c)
    for a, b in k.items(): setattr(x, a, b)
    return x

def gen_y(label, opt=None):
    o = dict(S=3, SE=3, stamp=False, p0max=13, xa=56, ep=64, sp=3, vgap=2, edge=3, lat=6, agld=700, aglat=50, cng=570,
             pub1=250, chk=50, lat1=60, pub2=130, pub3=60, d0=40, d1=4, rc=20000, plan='4:X0,120:Y0,405:X2,560:Y2,830:Da+D8+K0,980:C0,1060:Db', eI=8,
             softA=1, soft=2, rate2=1, tail=5, sp2=3, back=300, backf=60, seed=600, sentg=70, nsent=8, nt=0, om=' sc1', tlb=0, hst=60,
             loc=1, f2b=2, lat11=45, lat12=45, lat13=45, chk1=90, chk3=90, zsp=16, k=55, k8=1)
    o.update(opt or {})
    plan = [(int(x.split(':')[0]), x.split(':')[1].replace('+', ' ')) for x in o['plan'].split(',')]
    p = Q(); v0 = VR('v', 1, 'tid', phys=0)
    LOC = o.get('loc', 0); SRC = 16384 if LOC & 16 else 5120; FIN = 4 * SRC; WSB = 0x8000000
    def mlS(q):
        ml = q.s('s_and_b32', mt, 7); S = q.s('s_and_b32', mt, 8); S = q.s('s_lshl_b32', S, 10)
        return ml, (q.s('s_xor_b32', S, 0x2000) if o.get('par2') else S)
    def fix(q, x, name=None): t = q.s('s_lshr_b32', x, 8); t = q.s('s_and_b32', t, 0x2000); return q.s('s_xor_b32', x, t, name=name)
    st = ST(o['stamp'], 0, 255)
    ka = SR(2, 'ka', 0); wid = SR(1, 'wid', 2)
    p('s_cmp_ge_u32', wid, 256); p('s_cbranch_scc1', 'L_end')
    p.extend(st.rt(0) + st.t(1))
    p('s_load_dwordx16', 's[4:19]', ka, 0); p('s_load_dwordx16', 's[20:35]', ka, 64)
    sX, sB, sC, sO, sK, sW, sD, sG, sS = [SR(4, n, b) for n, b in zip('XBCOKWDGS', range(4, 40, 4))]
    def tail_(q, r, n): q('s_mov_b32', r[2], n); q('s_mov_b32', r[3], 0x20000)
    NT = lambda b: ' nt' if o['nt'] & b else ''
    sI = SR(4, 'I', 40)
    p('s_getpc_b64', sI[0:2]); p.append(LABEL('L_pc')); tail_(p, sI, 'L_fin-L_pc')
    pfd = V(1, 'pfd'); p.append(DEF(pfd))
    def pf(v, srd, so, off, nl, md='', c='c'):
        x = I('buffer_load_dword', pfd, v, srd, so, mods=f'offen offset:{off}' + md); x.d = []; x.soft = 1; return mc(x, nl, c)
    t = p.s('s_lshl_b32', wid, 4); t = p.s('s_and_b32', t, 31 * 128); t = p.v('v_lshl_add_u32', v0, 12, t)
    p.append(pf(t, sI, 0, 0, 3.5))
    wv = p.v('v_lshrrev_b32', 6, v0); l = p.v('v_and_b32', 63, v0, name='lane')
    w = SR(1, 'w'); p('v_readfirstlane_b32', w, wv)
    HB = o.get('hb', 2)
    jg = p.s('s_and_b32', wid, 3, name='jg') if HB == 2 else p.s('s_bfe_u32', wid, (2 << 16) | 1, name='jg')
    jq = p.s('s_bfe_u32', wid, (2 << 16) | 3, name='jq')
    t = p.s('s_bfe_u32', wid, (1 << 16) | HB); t2 = p.s('s_lshr_b32', wid, 5)
    if o.get('swp') == 1: t = p.s('s_xor_b32', t, 1)
    if o.get('swp') == 2: mt = p.s('s_lshl1_add_u32', t2, t, name='mt')
    else: mt = p.s('s_lshl3_add_u32', t, t2, name='mt')
    fw = p.s('s_and_b32', w, 1, name='fw'); tw = p.s('s_lshr_b32', w, 1, name='tw')
    j = p.s('s_lshl2_add_u32', jg, jq, name='j'); je = p.s('s_and_b32', jq, 1, name='je'); Tr = p.s('s_lshr_b32', jq, 1, name='Tr')
    sl = p.v('v_and_b32', 7, l); hi = p.v('v_lshrrev_b32', 5, l); q = p.v('v_lshrrev_b32', 4, l, name='q')
    r83 = p.v('v_bfe_u32', l, 3, 2)
    cx = p.v('v_xor_b32', sl, q); cx = p.v('v_lshlrev_b32', 4, cx, name='cx')
    tokl = p.v('v_lshl_add_u32', hi, 4, r83, name='tokl')
    t = p.s('s_lshl_b32', tw, 6); tk0 = p.s('s_lshl3_add_u32', fw, t, name='tk0')
    t = p.s('s_lshl_b32', mt, 7); t = p.s('s_add_u32', t, tk0); xb = p.s('s_mul_i32', t, 1152, name='xb')
    t = p.v('v_mul_u32_u24', 1152, tokl); vX0 = p.v('v_add_u32', t, cx)
    je6 = p.s('s_lshl_b32', je, 6, name='je6'); t1 = p.s('s_mul_i32', je, 36864); t2 = p.s('s_mul_i32', Tr, 4608)
    a = p.v('v_xor_b32', je6, vX0); b = p.v('v_xor_b32', 64, a)
    a = p.v('v_add_u32', t1, a); t1 = p.s('s_sub_u32', 36864, t1); b = p.v('v_add_u32', t1, b)
    vX = [p.v('v_add_u32', t2, a), p.v('v_add_u32', t2, b)]
    t2 = p.s('s_sub_u32', 4608, t2); vX += [p.v('v_add_u32', t2, a), p.v('v_add_u32', t2, b)]
    Gn = p.s('s_lshl1_add_u32', j, fw, name='Gn')
    t = p.s('s_lshl2_add_u32', jg, Tr); t = p.s('s_lshl_b32', t, 2); chr_ = p.s('s_add_u32', t, 512, name='chr')
    t = p.v('v_and_b32', 4, l); cho = p.v('v_add_u32', t, sl)
    t = p.s('s_lshl_b32', Gn, 4); t = p.v('v_lshl_add_u32', q, 2, t)
    t2 = p.v('v_mul_u32_u24', chr_, hi); t = p.v('v_max_u32', t, t2)
    vL = p.v('v_add_lshl_u32', t, cho, 1)
    t = p.s('s_lshr_b32', wid, 3); n2 = p.s('s_lshl1_add_u32', t, tw, name='n2')
    t0 = p.s('s_lshl_b32', jg, 6); t0 = p.s('s_add_u32', t0, n2); t0 = p.s('s_mul_i32', t0, 2304)
    t = p.v('v_min_u32', 17, l); t = p.v('v_lshl_add_u32', t, 7, t0)
    t0 = p.s('s_mul_i32', n2, 3); t0 = p.s('s_sub_u32', t0, 32); t2 = p.v('v_min_u32', 34, l); t2 = p.v('v_add_u32', t0, t2); t2 = p.v('v_min_u32', 143, t2)
    t0 = p.s('s_mul_i32', jg, 18432); t0 = p.s('s_add_u32', t0, 512 * 1152); t2 = p.v('v_lshl_add_u32', t2, 7, t0)
    p('v_cmp_gt_u32', 'vcc', 32, l); vPB = p.v('v_cndmask_b32', t2, t, 'vcc')
    l8 = p.v('v_min_u32', 8, l, name='l8'); vPW = p.v('v_mul_u32_u24', 9216, l8, name='vPW')
    t0 = p.s('s_mul_i32', n2, 9 * 9216); t1 = p.s('s_mul_i32', jg, 2304); sPW = p.s('s_add_u32', t0, t1, name='sPW')
    row = p.v('v_bfe_u32', l, 2, 3, name='row'); r2 = p.v('v_bfe_u32', l, 4, 1)
    b1 = p.v('v_bfe_u32', l, 1, 1); pp = p.v('v_xor_b32', b1, r2); b0 = p.v('v_and_b32', 1, l)
    c32 = p.v('v_lshlrev_b32', 5, pp); c32 = p.v('v_lshl_add_u32', b0, 4, c32)
    c64 = p.v('v_lshl_add_u32', hi, 6, c32, name='c64')
    rm = p.v('v_lshl_add_u32', r2, 2, row); t0 = p.s('s_lshl_b32', tw, 2); rm = p.v('v_add_u32', t0, rm)
    t = p.v('v_lshl_add_u32', hi, 4, rm); t = p.v('v_mul_u32_u24', 9216, t); vH0 = p.v('v_add_u32', t, c32, name='vH0')
    vH = [vH0, p.v('v_add_u32', 32 * 9216 - 1024, vH0, name='vH1')]
    t = p.v('v_lshl_add_u32', hi, 3, r83); t = p.v('v_mul_u32_u24', 1152, t)
    t0 = p.s('s_lshl_b32', fw, 6); vB0 = p.v('v_xad_u32', cx, t0, t, name='vB0')
    vB = [vB0, p.v('v_add_u32', 4608 - 1024, vB0, name='vB1')]
    p.append(WAIT(lgkm=0)); p.append(KEEP(ka))
    p.extend(st.t(2))
    raw = [V(1) for _ in range(3)]
    lre_ = SR(2, 'lre'); p('s_mov_b64', lre_, 's[6:7]')
    tail_(p, sX, 2048 * 1152)
    xr = [[V(4, f'xr{g}_{s}') for s in range(9)] for g in range(4)]
    xld = [mc(I('buffer_load_dwordx4', xr[g][s], vX[g], sX, xb, mods=f'offen offset:{128*s}' + NT(8 if g else 1)), 8, 'h' if g else 'x') for g in range(4) for s in range(9)]
    vm = [[x] for x in xld[9:]]
    for x, s_ in zip(raw, (lre_, 's[8:9]', 's[18:19]')): mc(p('global_load_ushort', x, vL, s_), 1, 'c')
    if o.get('pfp', -1) >= 0: p.extend(xld[:9])
    p('s_cmp_eq_u32', fw, 0)
    p('s_cselect_b64', sB[0:2], 's[10:11]', 's[12:13]'); p('s_cselect_b64', sC[0:2], 's[14:15]', 's[16:17]')
    p('s_cselect_b64', sW[0:2], 's[24:25]', 's[26:27]')
    p('s_mov_b64', sO[0:2], 's[30:31]'); p('s_mov_b64', sS[0:2], 's[34:35]')
    for r, sz in ((sB, 576 * 1152), (sW, 576 * 9216), (sS, WSB), (sC, 576 * 1152), (sK, 1152), (sD, 4608 * 1152), (sO, 2048 * 2304), (sG, 256)):
        tail_(p, r, sz)
    t = [pf(vPB, sB, 0, 0, 21, NT(128)), pf(vPW, sW, sPW, 128 * 4, 9, NT(128)), pf(vPW, sW, sPW, 128 * 13, 9, NT(128))]
    if o.get('pfp', -1) < 0: p.extend(t + xld[:9])
    elif o['pfp'] == 0: p.extend(t)
    else: vm[o['pfp'] - 1] += t
    p.extend(st.t(3))
    sQ = p.s('s_mul_i32', w, QS, name='Q')
    t0 = p.s('s_mul_i32', j, 576); fb = p.s('s_add_u32', t0, je6, name='fb')
    t1 = p.s('s_lshl_b32', je, 9); t0 = p.s('s_add_u32', t0, 512); hb = p.s('s_sub_u32', t0, t1, name='hb')
    t0 = p.s('s_lshl1_add_u32', j, tw); Bb = p.s('s_mul_i32', t0, 18432, name='Bb')
    Rc = p.s('s_mul_i32', chr_, 1152, name='Rc'); t1 = p.s('s_lshl_b32', tw, 7); Rb = p.s('s_add_u32', Rc, t1, name='Rb')
    def dma(v, srd, so, off, tag): return mc(I('buffer_load_dwordx4', v, srd, so, mods=f'offen offset:{off}' + NT({'W': 2, 'H': 4, 'B': 4, 'C': 16, 'D': 32, 'E': 32}[v.name[1]]) + ' lds', tag=tag), {'vH': 17, 'vW': 8.75, 'vCl': 32, 'vCm': 8}.get(v.name[:-1], 8), 'h')
    def mkdma(vs, srd, base, add, sq=sQ):
        def f(addr, tag):
            so = SR(1, 'T')
            return [I('s_add_u32', 'm0', sq, addr), I('s_add_u32', so, base, add)] + [dma(v, srd, so, 1024 * b, tag) for b, v in enumerate(vs)]
        return f
    vW = [V(1, f'vW{b}') for b in range(4)]; vC = [V(1, f'vC{b}') for b in range(2)]; vD = [V(1, f'vD{b}') for b in range(4)]
    vT = [[V(1, f'vT{a}{k}') for k in range(3)] for a in range(2)]; vU = [[V(1, f'vU{a}{k}') for k in range(3)] for a in range(2)]
    vTh = [V(1, f'vTh{k}') for k in range(3)]
    vXr = [[V(1, f'vXr{a}{k}') for k in range(2)] for a in range(2)]; vXm = [V(1, f'vXm{a}') for a in range(2)]
    vBq = [[V(1, f'vBq{a}{k}') for k in range(2)] for a in range(2)]; vBr = [V(1, f'vBr{a}') for a in range(2)]
    vCr = [V(1, f'vCr{c}') for c in range(5)]
    def trd(bases, qa, qb, extra):
        def mk(dst):
            def f(addr):
                r = []
                for h, qq in enumerate((qa, qb)):
                    A_ = qq * QS + addr + extra
                    r.append(I('ds_read_b64_tr_b16', dst[2*h:2*h+2], bases[A_ >> 16], mods=f'offset:{A_ & 0xffff}'))
                return r
            return f
        return mk
    def tfrag(unit, bases, sel, extra, grp, rate=1, lat=None):
        d = A(4, 'f' + unit.name); return Frag(d, unit, 2, trd(bases, sel, sel + 2, extra)(d), grp, rate, lat or o['lat'])
    def bfrag(d, unit, base, extra, grp, lat=None):
        return Frag(d, unit, 1, lambda addr: [I('ds_read_b128', d, base, mods=f'offset:{addr + extra}')], grp, 1, lat or o['lat'])
    sc = Sched(); W = sc.W; W.vgap = o['vgap']; W.back = o['back']; W.backf = o['backf']; W.seed = o['seed']; W.par = o.get('par'); W.urg = o.get('urg', 100)
    NS = o['S']; pre = lambda g: NS if g == 3 else o['SE']
    Xf = [[(A if 4 * k + tt < o['xa'] else V)(4, f'X{k}_{tt}') for tt in range(4)] for k in range(18)]
    uX = [Unit(f'X{s}', 4, None, True) for s in range(9)]
    for s in range(NS): uX[s].pre = True
    uB = [Unit(f'B{s}', 2, mkdma(vB, sB, Bb, 128 * s), False) for s in range(9)]
    uH = [Unit(f'H{s}', 2, mkdma(vH, sW, hb, 64 * 9216 * s), False) for s in range(9)]
    uR = [Unit(f'R{n}', 1, mkdma(vB[:1], sB, Rb if n < 4 else Rc, 256 * n), False) for n in range(5)]
    accb = [[V(4, f'b{u}_{tt}') for tt in range(4)] for u in range(2)]; accm = V(4, 'bm')
    acch = [[V(4, f'h{m}_{tt}') for tt in range(4)] for m in range(2)]
    idn = V(2, 'idn'); Cm = [V(4, f'Cm{g}') for g in range(4)]
    def center(g, s):
        T = [V(4, 'T0'), V(4, 'T1')]
        ti = [I(TINY, T[h], idn, xr[g][s][2*h:2*h+2], Cm[g]) for h in range(2)]
        cv = [I('v_cvt_pk_bf16_f32', xr[g][s][e], T[e >> 1][2*(e&1)], T[e >> 1][2*(e&1)+1]) for e in range(4)]
        return ti, cv
    vXw = [V(1, f'vXw{g}') for g in range(4)]
    def xwrite(g, s): return I('ds_write_b128', vXw[g], xr[g][s], mods=f'offset:{uX[s].addr}', tag=f'xw{s}')
    ctr = {}
    for s in range(9):
        ml = []
        for kp in range(2):
            k = 2 * s + kp; z = lambda a: 0 if k == 0 else a
            fx = [bfrag(Xf[k][tt], uX[s], vXr[kp][tt >> 1], (tt & 1) * 2048, ('a', k)) for tt in range(4)]
            fbs = [bfrag(A(4, 'fb'), uB[s], vBr[kp], u * 1024, ('a', k)) for u in range(2)]
            for u in range(2):
                for tt in range(4): ml.append(M(I(MF, accb[u][tt], Xf[k][tt], fbs[u].dst, z(accb[u][tt])), fx[tt], fbs[u]))
            fm = bfrag(A(4, 'fxm'), uX[s], vXm[kp], 0, ('b', k)); fr = bfrag(A(4, 'fbm'), uR[s >> 1], vBq[kp][s & 1], 0, ('b', k))
            ml.append(M(I(MF, accm, fm.dst, fr.dst, z(accm)), fm, fr))
            for m in range(2):
                f = tfrag(uH[s], vTh, m, kp * 1024, ('b', k))
                for tt in range(4): ml.append(M(I(MF, acch[m][tt], f.dst, Xf[k][tt], z(acch[m][tt])), f))
        for g in range(3, -1, -1):
            if pre(g) <= s + 2 < 9:
                ti, cv = center(g, s + 2); ctr[(g, s + 2)] = (ti, cv)
                ml[5 + 8 * g:5 + 8 * g] = [M(ti[0], tiny=2), M(ti[1], tiny=1)]
        sc.feed(ml)
    gA = len(W.m)
    E = o['edge']
    order = [(0, k) for k in range(E)] + [(1, k) for k in range(E)] + [(t, k) for k in range(E, 18 - E) for t in range(2)] + \
            [(0, k) for k in range(18 - E, 18)] + [(1, k) for k in range(18 - E, 18)]
    acc1 = []; gI = []; last1 = {}; first1 = {}
    for it in range(4):
        gI.append(len(W.m))
        uW = [Unit(f'W{it}_{s}', 4, mkdma(vW, sW, fb, 128 * it + 64 * 9216 * s), True if (it, s) == (0, 0) else None) for s in range(9)]
        for u in uW: u.early = max(g for g, its in plan if any(x in its.upper() for x in (f'W{it}', f'Q{it}', f'Y{it}', f'Y{it-1}', f'Z{it+1}', f'F{it}'))) + (gA - 354 if it else 0) + 30
        ac = [[[V(4, f'g{it}{m}{t}{tt}') for tt in range(4)] for t in range(2)] for m in range(2)]; acc1.append(ac)
        for n, (t, k) in enumerate(order):
            ml = []
            for m in range(2):
                f = tfrag(uW[k >> 1], vT[t], m, (k & 1) * 2048, ('w', it, n >> 1))
                for tt in range(4): ml.append(M(I(MF, ac[m][t][tt], f.dst, Xf[k][tt], 0 if k == 0 else ac[m][t][tt]), f))
            if k == 0: first1[(it, t)] = len(W.m)
            sc.feed(ml)
            if k == 17: last1[(it, t)] = len(W.m) - 1
    gC = len(W.m); G = lambda g: g + gA - 354
    hq = [[A(4, f'hq{k}_{t}') for t in range(2)] for k in range(9)]
    Ca = [[SR(1, f'Ca{g}{L}') for L in range(2)] for g in range(3)]; Cb = SR(1, 'Cb')
    sQc = [SR(1, 'Qa'), SR(1, 'Qb')]
    two = lambda b: (lambda addr, tag: mkdma(vC, sC, b, 0, sQc[0])(addr, tag) + mkdma(vC, sC, b, 2 * 18432, sQc[1])(addr, tag))
    uC = [[Unit(f'C{g}{L}', 4 if g < 2 else 1, two(Ca[g][L]) if g < 2 else mkdma(vC[:1], sC, Ca[g][L], 0),
                (True if L == 0 and g < 2 else False)) for L in range(2)] for g in range(3)]
    vCl = [V(1, 'vCl0'), V(1, 'vCl1'), V(1, 'vCm2')]; vE = [V(1, f'vE{b}') for b in range(2)]
    uCl = Unit('Cl', 3, mkdma(vCl, sC, Cb, 0), False)
    accs = [[V(4, f's{t}_{a}') for a in range(2)] for t in range(9)]; lastS = {}
    for t in range(9):
        ml = []
        for k in range(9):
            if k < 8: f = bfrag(A(4, 'fc'), uC[t >> 2][k >> 2], vCr[k & 3], (t & 3) * 1024, ('c', t, k // 3))
            else: f = bfrag(A(4, 'fc'), uCl, vCr[4], t * 256, ('c', t, k // 3))
            for a in range(2): ml.append(M(I(MF, accs[t][a], hq[k][a], f.dst, 0 if k == 0 else accs[t][a]), f))
        sc.feed(ml); lastS[t] = len(W.m) - 1
    g2 = len(W.m)
    Hh = [V(8, f'Hh{x}') for x in range(4)]
    Hq = [[[(V if x == 3 and kl < 4 else A)(4, f'Hq{x}{kl}{a}') for a in range(2)] for kl in range(8)] + [[Hh[x][0:4], Hh[x][4:8]]] for x in range(4)]
    accd = [[V(4, f'd{t}_{a}') for a in range(2)] for t in range(12)]; seen = set(); lastD = {}; useH = {}
    Pf, Ph, Pl, Pm, Hp = [[SR(1, f'{n}{x}') for x in range(4)] for n in ('Pf', 'Ph', 'Pl', 'Pm', 'Hp')]; L8 = SR(1, 'L8'); L8h = SR(1, 'L8h')
    uD = [[Unit(f'D{x}{it}', 4, mkdma(vD, sD, Pf[x], it * 64 * 1152)) for it in range(4)] + [Unit(f'D{x}h', 2, mkdma(vD[:2], sD, Ph[x], 0))] for x in range(4)]
    uL = [Unit(f'L{it}', 2, mkdma(vD[:2], sD, L8, it * 64 * 1152)) for it in range(4)] + [Unit('Lh', 2, mkdma(vD[:2], sD, L8h, 0))]
    uD[0][4].brk = True
    uE = [[Unit(f'E{x}{L}', 4, mkdma(vD[:2] + vE, sD, (Pl, Pm)[L][x], 128 * 1152), f'{x}{L}' in o.get('ebrk', '10 11')) for L in range(2)] for x in range(4)]
    gcnt = [0]
    def dstep(x, kl, t):
        it, kk = kl >> 1, kl & 1
        if x and it in (2, 3): f = tfrag(uE[x][t >> 2], vU[t & 1], kk, (it - 2) * 2048 + ((t >> 1) & 1) * 512, ('d', gcnt[0] >> 2), o['rate2'])
        elif t < 8: f = tfrag(uD[x][it], vU[t & 1], t >> 2, kk * 2048 + ((t >> 1) & 1) * 512, ('d', gcnt[0] >> 2), o['rate2'])
        else: f = tfrag(uL[it], vU[t & 1], kk, ((t >> 1) & 1) * 512, ('d', gcnt[0] >> 2), o['rate2'])
        gcnt[0] += 1
        useH.setdefault((x, kl), len(W.m))
        sc.feed([M(I(MF, accd[t][a], Hq[x][kl][a], f.dst, accd[t][a] if t in seen else 0), f) for a in range(2)])
        seen.add(t); lastD[t] = len(W.m) - 1
    for kl in (8, 0, 1, 2, 3, 4, 5, 6, 7):
        for t in (range(12) if kl != 7 else (8, 9, 10, 11, 0, 1, 2, 3, 4, 5, 6, 7)): dstep(0, kl, t)
    gP = len(W.m)
    earlyH = [(x, kl) for x in (1, 2, 3) for kl in (8, 0, 1, 2, 3)]
    for x, kl in earlyH:
        for t in range(8): dstep(x, kl, t)
    g3 = len(W.m)
    lateH = [(x, kl) for x in (1, 2, 3) for kl in range(4, 8)]
    pr = [A(4, f'pr{b}') for b in range(5)]; ps = [[V(4, f'ps{r}{i}') for i in range(2)] for r in range(3)]; pd = [[V(4, f'pd{r}{i}') for i in range(2)] for r in range(3)]
    xv = [V(4, f'xv{n}') for n in range(3)]; xf = [[V(4, f'xf{i}{a}') for a in range(2)] for i in range(2)]; xf4 = V(4, 'xf4'); Y4 = V(4, 'Y4'); D4 = V(4, 'D4')
    sel = V(4, 'sel'); idm = [V(4, 'id0'), V(4, 'id1')]; sA_ = V(8, 'selA'); selA = [sA_[2:6], sA_[0:4]]
    addp = lambda ac, src: [I(MF, ac[6 + i][a], selA[a], src[i], ac[6 + i][a]) for i in range(2) for a in range(2)]
    for ts in o.get('late', [[0, 1], [2, 3], [4], [5], [6], [7]]):
        for x, kl in lateH:
            for t in ts: dstep(x, kl, t)
        if t == o.get('t4', 3):
            gX = len(W.m)
            sc.feed([M(x) for x in inter([[I(MF, D4, sel, pr[1 + k], D4 if k else 0) for k in range(4)], [I(MF, xf[i][a], xv[a], idm[i], 0) for i in range(2) for a in range(2)]]) +
                     [I(MF, xf4, xv[2], idm[0], 0), I(MF, Y4, sel, pr[0], 0)]])
        if t == 5: gS = len(W.m); sc.feed([M(x) for r in range(3) for x in addp(accs, ps[r])])
    gD = len(W.m); sc.feed([M(x) for r in range(2) for x in addp(accd, pd[r])])
    gE = len(W.m)
    gSetC = gI[3] + o.get('setc', 40); gSetD = gI[3] + o.get('setd', 100)
    for u in sum(uC, []) + [uCl]: u.early = gSetC
    for u in sum(uD, []) + uL: u.early = gSetD
    sc.plan(lambda g: o['ep'], lambda g: 99, o['tail'])
    spacing = lambda g: o['sp'] if g < gSetC else o['sp2']
    sc.allocate(o['p0max'], spacing)
    bar = sc.bar
    col = p.v('v_and_b32', 15, l, name='col'); l16 = p.v('v_lshlrev_b32', 4, l, name='l16')
    big = p.v('v_mov_b32', BIG); p('v_cmp_ne_u32', 'vcc', 0, v0); vM0 = p.v('v_cndmask_b32', 0, big, 'vcc', name='vM0')
    t = p.v('v_mul_u32_u24', 9216, rm); p('v_add_u32', vW[0], t, c64)
    for b in (1, 2, 3): p('v_add_u32', vW[b], b * (16 * 9216 - 1024), vW[0])
    for u in sc.p0:
        d_ = u.dma(u.addr, f'E{u.epoch}'); vm += [d_[:3]] + [[x] for x in d_[3:]]
    if LOC & 24: ml, S = mlS(p)
    t0 = p.s('s_lshl2_add_u32', ml if LOC & 16 else mt, jq); t1 = p.s('s_lshl2_add_u32', t0, w); t1 = p.s('s_lshl2_add_u32', t1, jg); t1 = p.s('s_mul_i32', t1, SRC)
    if LOC & 16: t1 = fix(p, p.s('s_add_u32', t1, S))
    Pb = p.s('s_add_u32', t1, 0x6800000 if LOC & 16 else P8_OFF, name='Pb')
    if LOC & 24 in (8, 16): t0 = p.s('s_lshl2_add_u32', ml if LOC & 8 else mt, jq)
    jx = p.s('s_xor_b32', jg, 3, name='jx'); t0 = p.s('s_lshl2_add_u32', t0, jx); Pp = []
    PXo = (0x7000000, 0x7001000, 0x7004000)
    if LOC & 8:
        t1 = p.s('s_lshl2_add_u32', t0, w); t1 = p.s('s_lshl_b32', t1, 15); t1 = fix(p, p.s('s_add_u32', t1, S))
        for r in range(3): Pp.append(p.s('s_xor_b32', t1, PXo[r] + (r << 17), name=f'Pp{r}'))
    for r in range(0 if LOC & 8 else 3):
        t1 = p.s('s_xor_b32', t0, r); t1 = p.s('s_lshl2_add_u32', t1, w); t1 = p.s('s_mul_i32', t1, PW); Pp.append(p.s('s_add_u32', t1, PX_OFF + 4096 * r, name=f'Pp{r}'))
    mw = p.s('s_lshl2_add_u32', mt, w, name='mw')
    dmy = SR(1, 'dmy')
    def touches():
        p.append(DEF(dmy))
        def touch(srd, so):
            x = p('s_buffer_load_dword', dmy, srd, so); x.kind = 'K'; x.d = []
        p('s_cmp_ge_u32', wid, o.get('tn', 8)); p('s_cbranch_scc1', 'L_nt')
        t0 = p.s('s_lshl_b32', w, 21); T = o['tlb']
        if T & 1: touch(sC, 0); touch(sK, 0); touch(sD, t0)
        if T & 2: touch(sG, 0); touch(sO, t0)
        if T & 4:
            for k in range(6): touch(sS, p.s('s_add_u32', t0, k << 23))
        p.append(LABEL('L_nt'))
    if o['tlb'] and not o.get('tp'): touches()
    t = p.v('v_lshlrev_b32', 6, row); l3 = p.v('v_and_b32', 3, l); t = p.v('v_lshl_add_u32', l3, 3, t); tp0 = p.v('v_lshl_add_u32', r2, 5, t)
    f9 = p.s('s_lshl_b32', fw, 9, name='f9'); t = p.v('v_lshl_add_u32', hi, 10, tp0); p('v_add_u32', vT[0][0], f9, t); p('v_xor_b32', vT[1][0], 32, vT[0][0])
    t0 = p.s('s_lshl_b32', fw, 5); t = p.v('v_lshl_add_u32', hi, 9, tp0); p('v_xor_b32', vTh[0], t0, t)
    for r in (vT[0], vT[1], vTh):
        for k in (1, 2): p('v_add_u32', r[k], 65536 * k, r[0])
    ih = p.v('v_bfe_u32', l, 3, 1); i1 = p.v('v_bfe_u32', l, 1, 3); t = p.v('v_xor_b32', q, i1); t = p.v('v_lshlrev_b32', 4, t); L0 = p.v('v_lshl_add_u32', sl, 7, t)
    LX = p.v('v_lshl_add_u32', ih, 10, L0)
    t0 = p.s('s_mul_i32', tw, 2 * QS); p('v_add_u32', vXr[0][0], t0, LX); p('v_add_u32', vXr[0][1], QS, vXr[0][0])
    t0 = p.s('s_lshl1_add_u32', je, tw); t0 = p.s('s_mul_i32', t0, QS); t0 = p.s('s_lshl2_add_u32', f9, t0); p('v_add_u32', vXm[0], t0, LX)
    t = p.v('v_mul_u32_u24', QS, ih); p('v_add_u32', vBq[0][0], t, L0); p('v_add_u32', vBq[0][1], 2 * QS, vBq[0][0])
    t0 = p.s('s_mul_i32', fw, 2 * QS); p('v_add_u32', vBr[0], t0, vBq[0][0])
    for a, b in ((vXr[1][0], vXr[0][0]), (vXr[1][1], vXr[0][1]), (vXm[1], vXm[0]), (vBq[1][0], vBq[0][0]), (vBq[1][1], vBq[0][1]), (vBr[1], vBr[0])): p('v_xor_b32', a, 64, b)
    vQ = p.v('v_add_u32', sQ, l16, name='vQ')
    t0 = p.s('s_lshl_b32', jq, 10); p('v_add_u32', vXw[0], t0, vQ)
    for g in (1, 2, 3): p('v_xor_b32', vXw[g], g * 1024, vXw[0])
    t = p.v('v_lshlrev_b32', 4, b0); c_ = p.v('v_mov_b32', 0x3f80); one = p.v('v_lshlrev_b32', t, c_)
    p('v_cmp_eq_u32', 'vcc', 0, b1); p('v_cndmask_b32', idn[0], 0, one, 'vcc'); p('v_xor_b32', idn[1], idn[0], one)
    asum = V(4, 'asum'); t = p.v('v_bfe_u32', l, 2, 2); c_ = p.v('v_mov_b32', 0x3f803f80); p('v_cmp_eq_u32', 'vcc', t, q)
    for e in range(4): p('v_cndmask_b32', asum[e], 0, c_, 'vcc')
    kb0 = SR(2, 'kb0'); kb1 = SR(2, 'kb1')
    p('v_cmp_ne_u32', kb0, 0, b0); p('v_cmp_ne_u32', kb1, 0, b1)
    rc = p.s('s_mov_b32', o['rc'], name='rc')
    p.extend(st.t(4))
    c = P()
    sgn = c.v('v_lshlrev_b32', 31, ih)
    vKw = c.v('v_lshl_add_u32', l, 3, sQ)
    lre, lim, ldt = [c.v('v_lshlrev_b32', 16, x) for x in raw]
    t = c.v('v_mul_f32', LOG2E, ldt); dt = c.v('v_exp_f32', t)
    den = c.v('v_mul_f32', lre, lre); c('v_fmac_f32', den, lim, lim); rd = c.v('v_rcp_f32', den)
    dt = c.v('v_cvt_pk_bf16_f32', dt, dt); dt = c.v('v_and_b32', 0xffff0000, dt)
    xr_ = c.v('v_mul_f32', dt, lre); xi = c.v('v_mul_f32', dt, lim)
    t = c.v('v_mul_f32', LOG2E, xr_); mag = c.v('v_exp_f32', t)
    t = c.v('v_mul_f32', 1 / (2 * math.pi), xi); t = c.v('v_fract_f32', t)
    cs = c.v('v_cos_f32', t); sn = c.v('v_sin_f32', t)
    rd = c.v('v_add_f32', rd, rd)
    k1 = V(2); c('v_mul_f32', k1[0], mag, cs); b = c.v('v_mul_f32', mag, sn)
    am = c.v('v_add_f32', -1.0, k1[0])
    cr = c.v('v_mul_f32', am, lre); c('v_fmac_f32', cr, b, lim)
    ci = c.v('v_mul_f32', b, lre); ci = c.v('v_fma_f32', Neg(am), lim, ci)
    k0 = V(2); cr = c.v('v_mul_f32', cr, rd); c('v_mul_f32_e64', k0[1], Neg(ci), rd); c('v_xor_b32', k0[0], sgn, cr)
    c('v_xor_b32', k1[1], sgn, b)
    CI = {'cf': 0, 'l1': 1, 'l16': 2, 'l64': 3, 'l512': 4}
    def kput(nm, r): c('ds_write_b64', vKw, r, mods=f'offset:{CST + 512 * CI[nm]}')
    kput('cf', k0); kput('l1', k1); cur = k1
    for n in range(1, 10):
        nx = V(2); a2 = c.v('v_mul_f32', cur[0], cur[0]); t = c.v('v_add_f32', cur[0], cur[0])
        c('v_fma_f32', nx[0], Neg(cur[1]), cur[1], a2); c('v_mul_f32', nx[1], t, cur[1]); cur = nx
        if n in (4, 6, 9): kput(f'l{1<<n}', cur)
    cst = list(c)
    sS_ = [V(4, f'sum{g}') for g in range(4)]; sQ_ = [V(4, f'sq{g}') for g in range(4)]; nmean = []; qsum = []
    def post(g):
        r = P(); a = sS_[g][0]
        for m in ('quad_perm:[1,0,3,2]', 'quad_perm:[2,3,0,1]', 'row_half_mirror'): a = r.v('v_add_f32_dpp', a, a, mods=m + DM)
        a = r.v('v_mul_f32', -1.0 / 576, a); nmean.append(a); t = r.v('v_cvt_pk_bf16_f32', a, a)
        for e in range(4): r('v_and_b32', Cm[g][e], 0xffff0000, t)
        r2_ = P(); b = r2_.v('v_mov_b32_dpp', sQ_[g][0], mods='quad_perm:[0,0,0,0]' + DM)
        for e in (1, 2, 3): b = r2_.v('v_add_f32_dpp', sQ_[g][e], b, mods=f'quad_perm:[{e},{e},{e},{e}]' + DM)
        b = r2_.v('v_add_f32_dpp', b, b, mods='row_half_mirror' + DM); qsum.append(b)
        out = inter([r, r2_]); prev = None
        for s in range(pre(g)):
            ti, cv = center(g, s); out += ti
            if prev: out += prev
            prev = cv + ([xwrite(g, s)] if s < NS else [])
        return out + prev
    pend = []
    if o.get('cst0', 2) == 2: p.extend(cst[:8] + (st.t(15) if o.get('bst') else []) + cst[8:]); cst = []
    if o['tlb'] and o.get('tp'): touches()
    for _ in range(o.get('xa1', 9)): p.extend(vm.pop(0))
    for g in range(4):
        per = -(-len(pend) // 9)
        for s in range(9):
            x = xr[g][s]; f = pend[:per]; pend = pend[per:]
            p(TINY, sQ_[g], x[0:2], x[0:2], 0 if s == 0 else sQ_[g]); p(MF, sS_[g], asum, x, 0 if s == 0 else sS_[g])
            if g == 0 and s == o.get('s16', 0) and o.get('bst'): p.extend(st.t(16))
            if vm: p.extend(vm.pop(0))
            p.extend(f[:2]); p(TINY, sQ_[g], x[2:4], x[2:4], sQ_[g]); p.extend(f[2:])
        p.extend(st.t(5 + g))
        pend = post(g)
        if g == 0 and o.get('cst0', 2) == 1: p.extend(cst); cst = []
    k = max(1, len(pend) // (len(vm) + 1))
    while pend or vm:
        p.extend(pend[:k]); pend = pend[k:]
        if vm: p.extend(vm.pop(0))
    if o['tlb']: p.append(WAIT(lgkm=0)); p.append(KEEP(dmy))
    sc.xlg[0].append(f'xw{NS-1}')
    qc = []; qw = []
    for s in range(NS, 9):
        e = uX[s].epoch
        for g in range(4):
            x = xwrite(g, s); x.ready = bar[uX[s].at] + 1; x.dead = bar[e] - 9 + 2 * g; qw.append(x)
            if (g, s) in ctr:
                ti, cv = ctr[(g, s)]; cv[0].deps = [(ti[1], 2)]; cv[-1].dead = ti[1].gap + 7; qc += cv; x.deps = [(cv[-1], 0)]
        sc.xlg[e].append(f'xw{s}')
    W.queue(qc, 45, 'ctr'); W.queue(qw, 46, 'xw')
    e1 = sc.barafter(gI[2] + o['pub1']); sc.xvm[e1] += ['hs', 'H0', 'H1']
    eh = sc.barafter(gI[3] + 130); sc.xvm[eh] += ['H2']
    e2 = sc.barafter(gC + o['pub2']); sc.xvm[e2] += ['H3', 'sp']
    e3 = sc.barafter(lastD[11] + o['pub3']); sc.xvm[e3] += ['d8']
    qe = P(); qt = Q()
    if LOC & 2:
        ml, S = mlS(qt); t0 = qt.s('s_lshl2_add_u32', ml, tw); t0 = qt.s('s_lshl_b32', t0, 5); t0 = qt.s('s_add_u32', t0, j); t0 = qt.s('s_lshl_b32', t0, 15)
        t0 = qt.s('s_add_u32', t0, S); e0 = qt.s('s_lshl1_add_u32', f9, t0); Hs = qt.s('s_lshl1_add_u32', f9, e0, name='Hs')
        es = [qt.s('s_xor_b32', e0, 0x4202000 + k * 0x80000) for k in range(2)]
    else:
        t0 = qt.s('s_lshl1_add_u32', mt, tw); t0 = qt.s('s_mul_i32', t0, 288); t1 = qt.s('s_mul_i32', j, 9); t0 = qt.s('s_add_u32', t0, t1)
        t0 = qt.s('s_lshl1_add_u32', t0, fw); t0 = qt.s('s_lshl_b32', t0, 10); e0 = qt.s('s_add_u32', t0, H_OFF + 16384)
        Hs = qt.s('s_lshl1_add_u32', f9, e0, name='Hs')
        es = [e0, qt.s('s_add_u32', e0, 144 * 2048)]
    qt[0].ready = gA - 60
    def epi(g, u, dst, ready):
        n0 = len(qe)
        for e in range(4): qe('v_mul_f32', g[e], g[e], u[e])
        for e in range(2): qe('v_cvt_pk_bf16_f32', dst[e], g[2 * e], g[2 * e + 1])
        qe[n0].ready = ready
    def hst(r, so, off, tag, g0):
        x = qt('buffer_store_dwordx4', r, l16, sS, so, mods=f'offen offset:{off} sc1', tag=tag)
        x.deps = [(qe[-1], 1)]; x.need = g0; x.dead = min(g0 + o['hst'], gE + 9); x.soft = 1; qe[-1].dead = min(getattr(qe[-1], 'dead', 1 << 30), x.dead - 2); return x
    for a in range(2):
        r = V(4, 'Hh')
        for k in range(2): epi(acch[0][2*a+k], acch[1][2*a+k], r[2*k:2*k+2], gA - 4 + 2*a + k + 3)
        if a: qe[-1].dead = first1[(0, 1)] + 4
        hl8 = hst(r, es[a], 0, 'H0', gA + 20)
    hlast = {8: hl8}
    for it in range(4):
        Hf = [V(4, f'Hf{tt}') for tt in range(4)]; ac = acc1[it]
        es = [qt.s('s_xor_b32', Hs, 0x4000000 + (it >> 1) * 16384 + (it & 1) * 4096 + k * 0x80000) if LOC & 2 else qt.s('s_add_u32', Hs, it * 4096 - 16384 + k * 144 * 2048) for k in range(2)]; qt[-2].ready = last1[(it, 1)] - 10
        for t in range(2):
            for tt in range(4):
                epi(ac[0][t][tt], ac[1][t][tt], Hf[tt][2*t:2*t+2], last1[(it, t)] + tt)
                if it < 3: qe[-1].dead = first1[(it + 1, t)] + tt - 1
                if t == 1: hlast[it] = hst(Hf[tt], es[tt >> 1], (tt & 1) * 1024, f'H{it}', last1[(it, 1)] + 10 + 10 * tt)
    def part(ac, so, off, ready, tag):
        r = V(4, 'pk'); n0 = len(qe)
        for e in range(4): qe('v_cvt_pk_bf16_f32', r[e], ac[e >> 1][2*(e&1)], ac[e >> 1][2*(e&1)+1])
        qe[n0].ready = ready + 3
        return hst(r, so, off, tag, ready + 10)
    for t in (0, 1, 2, 3, 4, 5, 8): slast = part(accs[t], Pp[t >> 1] if t < 8 else Pb, (t & 1) * 1024, lastS[t], 'sp' if t < 8 else 'd8')
    t0 = qt.s('s_mul_i32', jq, 4 * FIN - 1024); P8 = qt.s('s_sub_u32', Pb, t0); t1 = qt.s('s_and_b32', jx, 1); t1 = qt.s('s_lshl_b32', t1, 1)
    for u in range(4):
        e0 = qt.s('s_xor_b32', t1, u); e0 = qt.s('s_mul_i32', e0, 4 * FIN); e0 = qt.s('s_add_u32', e0, P8); d8 = part(accd[8 + u], e0, 1024, lastD[8 + u], 'd8')
    d8.dead = min(d8.dead, bar[e3] - 20)
    dst_ = []
    for t in range(6):
        dst_.append(part(accd[t], Pp[t >> 1], 2048 + (t & 1) * 1024, lastD[t], 'dp')); dst_[-1].back = 2000; dst_[-1].need = 0; dst_[-1].chain = 1
    W.queue(qe, 40, 'epi'); W.queue(qt, 47, 'st')
    qs = Q()
    x0 = qs.s('s_and_b32', jx, 1, name='x0'); x1 = qs.s('s_lshr_b32', jx, 1, name='x1'); fx = qs.s('s_xor_b32', fw, x1, name='fx')
    u0 = qs.s('s_mul_i32', jq, 8 * 18432); u1 = qs.s('s_lshl1_add_u32', jg, Tr); u1 = qs.s('s_lshl_b32', u1, 7); u4 = qs.s('s_add_u32', u0, u1)
    u2 = qs.s('s_mul_i32', x1, 4 * 18432); qs('s_add_u32', Ca[0][0], u4, u2); u2 = qs.s('s_sub_u32', 4 * 18432, u2); qs('s_add_u32', Ca[1][0], u4, u2)
    u2 = qs.s('s_lshl_b32', jg, 5); qs('s_add_u32', Cb, u0, u2)
    u0 = qs.s('s_lshl_b32', x0, 11); qs('s_add_u32', sQc[0], sQ, u0); qs('s_xor_b32', sQc[1], 2048, sQc[0])
    u0 = qs.s('s_mul_i32', jq, 18432); u0 = qs.s('s_add_u32', u0, 32 * 18432); qs('s_add_u32', Ca[2][0], u0, u1)
    for g in range(3): qs('s_xor_b32', Ca[g][1], 128, Ca[g][0])
    if LOC & 2: ml, S = mlS(qs); u3 = qs.s('s_lshl3_add_u32', ml, w); u3 = qs.s('s_lshl_b32', u3, 19); u3 = qs.s('s_add_u32', u3, S); u3 = qs.s('s_xor_b32', u3, 0x4000000)
    else: u3 = qs.s('s_mul_i32', mw, 144 * 2048); u3 = qs.s('s_add_u32', u3, H_OFF)
    u2 = qs.s('s_mul_i32', fw, 36864); t0 = qs.s('s_lshl_b32', fx, 7); u2 = qs.s('s_sub_u32', u2, t0)
    t0 = qs.s('s_lshl_b32', x1, 7); u5 = qs.s('s_add_u32', u2, t0); t0 = qs.s('s_xor_b32', t0, 128); u6 = qs.s('s_add_u32', u2, t0)
    for x in range(4):
        u0 = qs.s('s_add_u32', jq, x); u0 = qs.s('s_and_b32', u0, 3); u1 = qs.s('s_and_b32', u0, 1); u0 = qs.s('s_lshl2_add_u32', jg, u0)
        t0 = qs.s('s_mul_i32', u0, 32768 if LOC & 2 else 18432); qs('s_add_u32', Hp[x], t0, u3)
        u0 = qs.s('s_mul_i32', u0, 9); t0 = qs.s('s_add_u32', u0, u1); qs('s_mul_i32', Pf[x], t0, 36864)
        u1 = qs.s('s_xor_b32', u1, 1); u0 = qs.s('s_lshl3_add_u32', u1, u0); qs('s_mul_i32', Ph[x], u0, 36864)
        if x: qs('s_add_u32', Pl[x], Pf[x], u5); qs('s_add_u32', Pm[x], Pf[x], u6)
    u0 = qs.s('s_lshl_b32', jq, 8); u0 = qs.s('s_sub_u32', 1024, u0); u0 = qs.s('s_add_u32', u0, u2)
    qs('s_add_u32', L8, Pf[0], u0); qs('s_add_u32', L8h, Ph[0], u0)
    qs[0].ready = gI[2] + 20; qs[-1].dead = gI[3] - 70; sdone = qs[-1]
    n0 = len(qs)
    t = qs.v('v_and_b32', 7, col); t = qs.v('v_xor_b32', t, q); t2 = qs.v('v_lshlrev_b32', 4, t)
    u0 = qs.s('s_lshl_b32', tw, 6); u1 = qs.s('s_mul_i32', tw, 8 * 1152)
    t = qs.v('v_lshrrev_b32', 7, l16); t = qs.v('v_mul_u32_u24', 1152, t); t = qs.v('v_xad_u32', t2, u0, t); qs('v_add_u32', vC[0], u1, t); qs('v_add_u32', vC[1], 18432 - 1024, vC[0])
    t = qs.v('v_lshrrev_b32', 1, col); t = qs.v('v_mul_u32_u24', 1152, t); t2 = qs.v('v_and_b32', 16, l16); t = qs.v('v_add3_u32', t, t2, u1)
    u0 = qs.s('s_lshl_b32', jx, 1); t2 = qs.v('v_xor_b32', u0, q); t3 = qs.v('v_xor_b32', 4, t2); t2 = qs.v('v_mul_u32_u24', 18432, t2); t3 = qs.v('v_mul_u32_u24', 18432, t3)
    t2 = qs.v('v_add_u32', 1024, t2); qs('v_add_u32', vCl[0], t, t2); qs('v_add_u32', vCl[1], t, t3)
    u0 = qs.s('s_mul_i32', jq, 7 * 18432); u0 = qs.s('s_sub_u32', 32 * 18432 - 1024, u0); t2 = qs.v('v_lshlrev_b32', 24, q); qs('v_add3_u32', vCl[2], u0, t, t2)
    qs[n0].ready = gSetC - 100; qs[-1].dead = gSetC - 1
    u0 = qs.s('s_lshl1_add_u32', jq, fx); u0 = qs.s('s_lshl_b32', u0, 7); u1 = qs.s('s_mul_i32', tw, 16 * 1152); u0 = qs.s('s_add_u32', u0, u1)
    t = qs.v('v_bfe_u32', l16, 6, 3); t = qs.v('v_mul_u32_u24', 1152, t); t2 = qs.v('v_and_b32', 127, vW[0]); u1 = qs.s('s_lshl_b32', x0, 6); t = qs.v('v_xad_u32', t2, u1, t); qs('v_add_u32', vD[0], u0, t)
    for b, k in ((1, 8192), (2, 36864 - 2048), (3, 46080 - 3072)): qs('v_add_u32', vD[b], k, vD[0])
    qs[-1].dead = gSetD - 1
    t = qs.v('v_bfe_u32', col, 1, 3); t4 = qs.v('v_and_b32', 1, q); t = qs.v('v_xor_b32', t, t4); t = qs.v('v_lshlrev_b32', 4, t)
    t5 = qs.v('v_and_b32', 7, col); t = qs.v('v_lshl_add_u32', t5, 7, t)
    t2 = qs.v('v_lshrrev_b32', 3, col); t3 = qs.v('v_lshrrev_b32', 1, q); t2 = qs.v('v_lshl_add_u32', t2, 1, t3); t2 = qs.v('v_mul_u32_u24', QS, t2)
    u0 = qs.s('s_lshl_b32', je, 6); qs('v_xad_u32', vCr[0], t, u0, t2)
    for k in (1, 2, 3): qs('v_xor_b32', vCr[k], 32 * k, vCr[0])
    t = qs.v('v_lshl_add_u32', t5, 1, t4); qs('v_lshl_add_u32', vCr[4], t, 4, t2)
    qs[-1].dead = gC - 40
    n0 = len(qs)
    for a in range(2):
        for k in range(3): qs('v_subrev_u32', vU[a][k], f9, vT[a][k])
    qs('v_add_u32', vE[0], 73728 - 2048, vD[0]); qs('v_add_u32', vE[1], 73728 + 9216 - 3072, vD[0])
    qs[n0].ready = gC; qs[-1].dead = g2 - 70
    W.queue(qs, 5, 'setup')
    qp = Q(); pfl = []; warm = {}
    def pfs(xs, g):
        for x in xs: x.need = g; x.ready = g
        if o.get('pfb', 1):
            for x in xs[1:]: x.chain = 1; x.back = 1e9; x.need = -9
        pfl.append((g, xs))
    vP9 = V(1, 'vP9'); a_ = Q()
    t0 = a_.s('s_lshl_b32', jg, 6); t0 = a_.s('s_add_u32', t0, n2); t0 = a_.s('s_lshl1_add_u32', t0, fw); sPD = a_.s('s_mul_i32', t0, 9 * 1152)
    sPC = a_.s('s_mul_i32', n2, 9 * 1152); t0 = a_.s('s_lshl_b32', jg, 8); sPC2 = a_.s('s_add_u32', sPC, t0); a_('v_lshrrev_b32', vP9, 3, vPW)
    g0 = min(g for g, its in plan if any(c_ in its.upper() for c_ in ('D', 'C', 'E', 'N8'))); a_[0].ready = G(g0) - 30; pfl.append((G(g0) - 30, list(a_)))
    for g, its in plan:
        xs = []; a_ = Q()
        def alt(base, step, second):
            t0 = a_.s('s_bfe_u32', wid, (1 << 16) | HB)
            if second ^ o.get('flip', 0): t0 = a_.s('s_xor_b32', t0, 1)
            t0 = a_.s('s_mul_i32', t0, step); return a_.s('s_add_u32', base, t0)
        def lag(base, a, b):
            t0 = a_.s('s_bfe_u32', wid, (1 << 16) | HB); a, b = [BIG if x is None else x for x in ((b, a) if o.get('near', 0) else (a, b))]
            t0 = a_.s('s_mul_i32', t0, (b - a) & 0xffffffff); t0 = a_.s('s_add_u32', base, t0); return a_.s('s_add_u32', t0, a) if a else t0
        for c_, n in its.split():
            n0 = len(xs); low = c_.islower(); c_ = c_.upper()
            if c_ == 'Z': n = int(n); so = lag(sPW, 128 * n if n < 4 else None, 128 * n - 128 if n else None); xs += [pf(vPW, sW, so, 128 * k, 9, '', 'm' if n == 4 else 'c') for k in (0, 5, 9, 14)]
            elif c_ == 'E': n = int(n); so = lag(sPD, 512 * n if n < 2 else None, 512 * n - 512 if n else None); xs += [pf(vP9, sD, so, 128 * k, 9, '', 'm' if n == 2 else 'c') for k in range(4)]
            elif c_ in 'NF':
                ab = (0, None) if c_ == 'N' else (None, 0); cl_ = 'c' if c_ == 'N' else 'm'
                if n in '0123': so = lag(sPW, *ab); xs += [pf(vPW, sW, so, 128 * (k + int(n)), 9, '', cl_) for k in (0, 5, 9, 14)]
                elif n == '8': xs += [pf(vP9, sD, lag(sPD, *ab), 1024, 9, '', cl_)]
                else: s1 = lag(sPC2, *ab); s2 = lag(sPC, *ab); xs += [pf(vP9, sC, s1, 0, 9, '', cl_), pf(vP9, sC, s1, 128, 9, '', cl_), pf(vP9, sC, s2, 1024, 9, '', cl_)]
            elif c_ in 'WXY': so = sPW if c_ == 'W' else alt(sPW, 128, c_ == 'Y'); xs += [pf(vPW, sW, so, 128 * (k + int(n)), 9, '', 'm' if c_ == 'Y' else 'c') for k in (0, 5, 9, 14)]
            elif c_ in 'PQ': so = alt(sPW, 1152, c_ == 'Q'); xs += [pf(vPW, sW, so, 128 * (k + int(n)), 9, '', 'm' if c_ == 'Q' else 'c') for k in (0, 5)]
            elif c_ == 'D' and n in 'ab': so = alt(sPD, 512, n == 'b'); xs += [pf(vP9, sD, so, 128 * k, 9, '', 'm' if n == 'b' else 'c') for k in range(4)]
            elif c_ == 'D': xs += [pf(vP9, sD, sPD, 128 * k, 9) for k in {'l': range(4), 'h': range(4, 8), '8': [8]}[n]]
            elif c_ == 'K': t = a_.v('v_lshlrev_b32', 3, l16); xs += [pf(t, sK, 0, 0, 2.25)]
            elif c_ == 'H':
                assert not LOC & 2; e = sc.barafter(G(g) - 8); assert bar[e] < G(g), (bar[e], g); sc.xvm[e].append('H0' if n == '8' else 'H' + n); warm[n] = bar[e]
                t = a_.v('v_and_b32', 1, q); t = a_.v('v_mul_u32_u24', 144 * 2048, t); t = a_.v('v_lshl_add_u32', col, 7, t); t2 = a_.v('v_lshrrev_b32', 9, l16)
                if n == '8': t3 = a_.v('v_and_b32', 8, col); t2 = a_.v('v_add_u32', t2, t3); so = a_.s('s_lshl_b32', fw, 10); so = a_.s('s_sub_u32', Hs, so)
                else: so = a_.s('s_add_u32', Hs, int(n) * 4096 - 16384)
                t = a_.v('v_lshl_add_u32', t2, 27, t); xs += [pf(t, sS, so, 0, 16 if n == '8' else 32, ' sc1', 'm')]
            elif c_ == 'L':
                t0 = a_.s('s_lshl1_add_u32', n2, fw); t1 = a_.s('s_lshr_b32', t0, 5); t0 = a_.s('s_and_b32', t0, 31); t2 = a_.s('s_and_b32', t1, 1); t0 = a_.s('s_lshl3_add_u32', t2, t0)
                t1 = a_.s('s_lshl2_add_u32', jg, t1); t1 = a_.s('s_mul_i32', t1, 72); t0 = a_.s('s_add_u32', t0, t1); t0 = a_.s('s_add_u32', t0, 32); so = a_.s('s_mul_i32', t0, 4608)
                t = a_.v('v_min_u32', 35 * 16, l16); t = a_.v('v_lshlrev_b32', 3, t); xs += [pf(t, sD, so, 0, 36, '', n)]
            elif c_ == 'T':
                t = a_.v('v_lshlrev_b32', 24, l16); tl = []
                if n in 'as':
                    t0 = a_.s('s_mul_i32', mw, 144); t1 = a_.s('s_mul_i32', j, 9); t0 = a_.s('s_add_u32', t0, t1); t0 = a_.s('s_lshl_b32', t0, 11); tl.append((sS, a_.s('s_add_u32', t0, H_OFF)))
                    t0 = a_.s('s_lshl4_add_u32', mw, j); t0 = a_.s('s_lshl_b32', t0, 12); tl.append((sS, a_.s('s_add_u32', t0, HF_OFF)))
                    tl += [(sS, Pp[0]), (sS, Pp[2]), (sS, Pb)]
                if n in 'ai':
                    t0 = a_.s('s_lshl2_add_u32', jg, w); tl += [(sD, a_.s('s_mul_i32', t0, 288 * 1152)), (sC, 0), (sK, 0), (sO, a_.s('s_mul_i32', mw, 32 * 2304))]
                xs += [pf(t, r, so, 0, 1) for r, so in tl]
            elif n in 'ab': xs += [pf(vP9, sC, alt(sPC2, 128, n == 'b'), 0, 9, '', 'm' if n == 'b' else 'c')]
            elif n == '8': xs += [pf(vP9, sC, sPC, 1024, 9, '', 'm')]
            elif n == 't':
                t0 = a_.s('s_and_b32', wid, 7); t0 = a_.s('s_mul_i32', t0, 1152); t0 = a_.s('s_add_u32', t0, sPC); t = a_.v('v_min_u32', 1152, vP9); xs += [pf(t, sC, t0, 1024, 2)]
            else: xs += [pf(vP9, sC, sPC2, 0, 9), pf(vP9, sC, sPC2, 128, 9), pf(vP9, sC, sPC, 1024, 9)][:3 if n == '0' else 2]
            if low:
                for x in xs[n0:]: x.mods += o.get('pm', ' nt')
        g = G(g) if g > 100 else g
        if a_: a_[0].ready = g - 20; pfl.append((g - .5, list(a_)))
        pfs(xs, g)
    for g in o.get('pcode', []):
        a_ = Q(); t0 = a_.s('s_lshl_b32', wid, 4); t0 = a_.s('s_and_b32', t0, 31 * 128); t1 = a_.s('s_lshl_b32', w, 18); t0 = a_.s('s_add_u32', t0, t1)
        t = a_.v('v_lshl_add_u32', l16, 8, t0); a_[0].ready = G(g) - 10; x = pf(t, sI, 0, 0, 3.5, c='m'); x.need = -9; x.back = 1e9; x.chain = 1; pfl.append((G(g), list(a_) + [x]))
    for g, xs in sorted(pfl, key=lambda x: x[0]): qp.extend(xs)
    qp.append(KEEP(pfd)); qp[-1].ready = max([gC] + o.get('pcode', []) + [g for g, _ in plan]) + 100
    W.queue(qp, 48, 'pf')
    RS = 7 if o.get('k', 0) & 32 else 6
    qi = Q(); eI = o['eI']; sc.xvm[eI].append('init')
    t0 = qi.s('s_lshl1_add_u32', mt, tw); t0 = qi.s('s_sub_u32', 31, t0); t1 = qi.s('s_lshl_b32', Gn, 5); t0 = qi.s('s_add_u32', t0, t1); a0 = qi.s('s_lshl_b32', t0, 7, name='a0')
    t0 = qi.s('s_lshl1_add_u32', mt, je); t0 = qi.s('s_sub_u32', 31 + (AR_OFF >> RS), t0); t1 = qi.s('s_lshl1_add_u32', jg, Tr); t1 = qi.s('s_lshl_b32', t1, 5); t0 = qi.s('s_add_u32', t0, t1)
    a2 = qi.s('s_lshl_b32', t0, RS, name='a2')
    FS = o.get('fs', 2)
    if FS > 2: t0 = qi.s('s_and_b32', mt, 4); t1 = qi.s('s_and_b32', mt, 7); t0 = qi.s('s_add_u32', t0, t1); t0 = qi.s('s_lshl_b32', t0, 11)
    elif o.get('f1l'): assert LOC & 1; t0 = qi.s('s_and_b32', mt, 7); t0 = qi.s('s_lshl_b32', t0, 10)
    else: t0 = qi.s('s_lshl_b32', mt, 7)
    def own(q, x): t = q.s('s_lshl_b32', jg, 7); return q.s('s_add_u32', t, x)
    if LOC & 1: t0 = qi.s('s_add_u32', t0, mlS(qi)[1])
    Fr = qi.s('s_add_u32', t0, FL_OFF, name='Fr'); t0 = qi.s('s_lshl_b32', j, FS); Fl = qi.s('s_add_u32', t0, Fr, name='Fl')
    mm = V(4, 'mm'); vA8 = qi.v('v_lshlrev_b32', 3, col, name='vA8'); vBp = qi.v('v_lshlrev_b32', 2, col, name='vBp'); zz = qi.v('v_mov_b32', 0)
    for e in range(4): qi('v_mov_b32', mm[e], -1)
    qi[0].ready = o['sentg'] - 30
    xs = [mc(I('buffer_store_dwordx4', mm, l16, sS, Pp[n >> 1], mods=f'offen offset:{2048 + (n & 1) * 1024} sc1'), 8, 's') for n in range(6)]
    xs = xs[:o.get('ns', 6)]
    if o.get('sl'):
        qn = Q(); sc.xvm[e3].append('mark')
        for g, k in o['sl']:
            m2 = V(4, 'm2')
            for e in range(4): qn('v_mov_b32', m2[e], -1)
            qn[-4].ready = g - 4
            for _ in range(k):
                x = xs.pop(0); x.ops[0] = ref(m2); x.tag = 'mark'; mc(x, 8, 's', soft=1, need=0, chain=1, back=o.get('slb', 300)); qn.append(x)
        W.queue(qn, 44, 'mark')
    K = o.get('k', 0)
    def only(q, c, x): t = q.s('s_min_u32', c, 1); t = q.s('s_lshl_b32', t, 28); return q.s('s_add_u32', t, x)
    if K & 1:
        t = qi.v('v_lshrrev_b32', 7, l16); t8 = qi.v('v_lshl_add_u32', t, 28, l16); t = qi.v('v_lshrrev_b32', 6, l16); t4 = qi.v('v_lshl_add_u32', t, 27, l16)
        xs[1:1] = [mc(I('buffer_store_dwordx4', mm, t8, sS, a0, mods='offen sc1'), 1, 's'), mc(I('buffer_store_dwordx4', mm, t8 if K & 32 else t4, sS, only(qi, w, a2), mods='offen sc1'), .25, 's'),
                   mc(I('buffer_store_dwordx4', mm, t8 if K & 16 else t4, sS, only(qi, qi.s('s_or_b32', j, w), Fr), mods='offen sc1'), .25, 's')]
    else: xs[1:1] = [mc(I('buffer_store_dwordx2', mm[0:2], vA8, sS, a0, mods='offen sc1'), 1, 's'), mc(I('buffer_store_dword', mm[0], vBp, sS, a2, mods='offen sc1'), 1, 's'),
               mc(I('buffer_store_dword', zz, vM0, sS, Fl, mods='offen sc1'), .25, 's')] + \
              ([mc(I('buffer_store_dword', zz, vM0, sS, own(qi, Fl), mods='offen offset:128 sc1'), .25, 's')] if o.get('f1l') else [])
    for x in xs: x.tag = 'init'; x.soft = 1; x.ready = o['sentg']; x.need = o.get('sentn', bar[eI] - 100)
    qi.extend(xs); qi[-1].dead = bar[eI] - 30; sentl = qi[-1]
    o1 = qi.v('v_mov_b32', 1); t0 = qi.s('s_and_b32', wid, 1); t0 = qi.s('s_lshl_b32', t0, 7)
    mc(qi('buffer_atomic_add', o1, vM0, sG, t0, mods='offen sc1'), .25, 's', ready=bar[eI] + 1, soft=1, need=0)
    W.queue(qi, 12, 'init')
    m = Q(); stubs = []
    def verify(name, loads, check, dep, q):
        c = check()
        if dep: c[0].deps = [dep]
        br = I('s_cbranch_vccnz', f'L_r{name}'); br.deps = [(c[-1], 1)]
        keep = {r.vr.id: r.vr for x in loads() + check() for r in x.refs(x.u + x.d)}
        q.extend(c); q.extend([br, LABEL(f'L_b{name}'), KEEP(rc, *keep.values())])
        if st.on and o.get('bst') and name in ('c', 'a', 'f1', 'f2', 'f3'): q('v_writelane_b32', st.v, rc, 10 + ('c', 'a', 'f1', 'f2', 'f3').index(name))
        stubs.append((name, loads, check)); return br
    m.extend(cst)
    def pick(x):
        a = m.v('v_cndmask_b32', x[0], x[1], kb0); b = m.v('v_cndmask_b32', x[2], x[3], kb0); return m.v('v_cndmask_b32', a, b, kb1)
    def rbf(x): t = m.v('v_cvt_pk_bf16_f32', x, x); return m.v('v_and_b32', 0xffff0000, t)
    nm = pick(nmean); qq = pick(qsum)
    t = m.v('v_mul_f32', nm, nm); c_ = m.v('v_mov_b32', 1.0 / 576); var = m.v('v_fma_f32', qq, c_, Neg(t)); var = m.v('v_max_f32', 0, var)
    nm = rbf(nm); var = rbf(var); var = rbf(m.v('v_add_f32', 1e-5, var)); t = m.v('v_sqrt_f32', var)
    g_ = m.v('v_bfe_u32', l16, 4, 2); g_ = m.v('v_xor_b32', jq, g_)
    sd = rbf(t); rr = m.v('v_rcp_f32', sd)
    t = m.v('v_and_b32', 1, g_); t = m.v('v_lshl_add_u32', t, 5, tokl); t2 = m.v('v_and_b32', 2, g_); t = m.v('v_lshl_add_u32', t2, 1, t)
    t = m.v('v_add_lshl_u32', tk0, t, 2); t2 = m.v('v_add_u32', STM - STR, t)
    m('ds_write_b32', t, rr, mods=f'offset:{STR}', tag='stat'); m('ds_write_b32', t2, nm, mods=f'offset:{STR}', tag='stat')
    eS = 6; m[-1].dead = bar[eS] - 4; sc.xlg[eS].append('stat')
    n0 = len(m)
    t0 = m.s('s_lshl_b32', tw, 8); vRr = m.v('v_lshl_add_u32', q, 6, t0)
    t0 = m.s('s_lshl4_add_u32', je, w); t0 = m.s('s_lshl_b32', t0, 4); vRm = m.v('v_lshl_add_u32', q, 6, t0)
    vK = m.v('v_lshl_add_u32', col, 3, sQ, name='vK')
    vRg = [m.v('v_add_u32', RGO + 2 * QS * k, l16) for k in range(2)]
    m[n0].ready = gA - 40; assert bar[eS] < gA - 40
    rq = [V(4, f'rq{k}') for k in range(5)]
    for k in range(4): m('ds_read_b128', rq[k], vRr, mods=f'offset:{STR + 16 * k}')
    m('ds_read_b128', rq[4], vRm, mods=f'offset:{STR}')
    def getc(u, nm_):
        r = V(2, f'{nm_}{u}'); m('ds_read_b64', r, vK, mods=f'offset:{CST + 512 * CI[nm_] + 128 * u}'); return r
    l1 = [getc(u, 'l1') for u in range(3)]
    n0 = len(m)
    for e in range(4): m('v_mul_f32', accm[e], accm[e], rq[4][e])
    m[n0].ready = gA - 5
    eR = sc.barafter(gA + 10)
    m('ds_write_b128', vQ, accm, mods=f'offset:{RGO}', tag='rg'); m[-1].dead = bar[eR] - 4; sc.xlg[eR].append('rg')
    for u in range(2):
        for tt in range(4):
            for e in range(4): m('v_mul_f32', accb[u][tt][e], accb[u][tt][e], rq[tt][e])
    um = [V(4, f'um{tt}') for tt in range(4)]
    n0 = len(m)
    for tt in range(4): m('ds_read_b128', um[tt], vRg[tt >> 1], mods=f'offset:{(tt & 1) * QS}')
    m[n0].ready = bar[eR] + 1; lr = m[-1]
    U = [accb[0], accb[1], um]
    cf = [getc(u, 'cf') for u in range(3)]; l16c = [getc(u, 'l16') for u in range(3)]
    def horner(z, c, u, neg=False):
        d = V(1); return d, [I('v_fma_f32', d, c[0], z, u), I('v_fmac_f32_dpp', d, z, Neg(c[1]) if neg else c[1], mods=DPP8)]
    def coef(d, u, x): return [I('v_mul_f32', d, cf[u][0], x), I('v_fmac_f32_dpp', d, x, cf[u][1], mods=DPP8)]
    ch = []; ee = []
    for u in range(3):
        z = U[u][0][0]; c = []
        for k in range(1, 16):
            z, ins = horner(z, l1[u], U[u][k >> 2][k & 3], True); c += ins
        d = V(1); c += coef(d, u, z)
        ch.append(c); ee.append(d)
    c = inter(ch); c[0].deps = [(lr, 5)]; m.extend(c[:-40])
    vCn = m.v('v_lshlrev_b32', 3, l16); vCn = m.v('v_and_b32', 128, vCn, name='vCn'); cn = V(1, 'cn')
    cnl = lambda: [mc(I('buffer_load_dword', cn, vCn, sG, 0, mods='offen sc1'), 2, 'm', need=0, soft=1, back=2000)]
    cnc = lambda: [I('v_cmp_gt_u32', 'vcc', 128, cn)]
    m.extend(c[-40:])
    eb = [V(4, f'eb{u}') for u in range(3)]
    for u in range(3):
        for k in range(4): m('ds_bpermute_b32', eb[u][k], vBp, ee[u], mods=f'offset:{64*k}')
    lastbp = m[-1]
    ch = []; z01 = V(2, 'z01'); z2 = V(1, 'z2')
    for u in range(3):
        z = eb[u][0]; c = []
        for k in range(1, 4):
            z, ins = horner(z, l16c[u], eb[u][k]); c += ins
        c.append(I('v_min_u32', z01[u] if u < 2 else z2, -2, z))
        ch.append(c)
    c = inter(ch); c[0].deps = [(lastbp, 5)]; m.extend(c)
    tA, tB, a2m = (m.v('v_lshl_add_u32', q, 28, vA8), m.v('v_lshl_add_u32', q, 28, vBp), only(m, w, a2)) if K & 2 else (vA8, vBp, a2)
    mc(m('buffer_store_dwordx2', z01, tA, sS, a0, mods='offen sc1'), 1, 's', need=0, soft=1, back=2000)
    agst = mc(m('buffer_store_dword', z2, tB, sS, a2m, mods='offen sc1'), 1, 's', need=0, soft=1, back=2000)
    Z = [[V(4, f'z{u}_{tt}') for tt in range(4)] for u in range(3)]
    zc = [inter([coef(Z[u][tt][e], u, U[u][tt][e]) for e in range(4)]) for u in range(3) for tt in range(4)]
    ldc = cnl(); ldc[0].ready = G(o['cng']); m.extend(ldc)
    for x in zc[:o.get('zc', 8)]: m.extend(x)
    vAl = m.v('v_lshl_add_u32', q, 10, vA8, name='vAl'); vAr = m.v('v_lshl_add_u32', q, RS + 3, vBp, name='vAr')
    sA = SR(4, 'A'); sR = SR(4, 'R')
    for r, a_, k in ((sA, a0, 4095), (sR, a2, (32 << RS) - 1)):
        m('s_mov_b64', r[0:2], sS[0:2]); t0 = m.s('s_or_b32', a_, k); m('s_add_u32', r[2], t0, 1); m('s_mov_b32', r[3], 0x20000)
    brc = verify('c', cnl, cnc, (ldc[0], 50), m)
    ag2 = [V(2, f'ag{k}') for k in range(8)]; ag1 = [V(1, f'ar{k}') for k in range(8)]; mx = V(1, 'mx')
    ag = [[ag2[7 - k][0] for k in range(8)], [ag2[7 - k][1] for k in range(8)], ag1[::-1]]
    agl = lambda: inter([[mc(I('buffer_load_dwordx2', ag2[k], vAl, sA, a0, mods=f'offen offset:{128*k+128} sc1'), 3, 'q', need=0, soft=1) for k in range(8)],
                         [mc(I('buffer_load_dword', ag1[k], vAr, sR, a2, mods=f'offen offset:{k + 1 << RS} sc1'), 3, 'q', need=0, soft=1) for k in range(8)]])
    def agc():
        al = [ag[u][k] for k in range(7, -1, -1) for u in range(3)]
        r = [I('v_max3_u32', mx, al[0], al[1], al[2])]
        for k in range(3, 23, 2): r.append(I('v_max3_u32', mx, mx, al[k], al[k + 1]))
        return r + [I('v_max_u32', mx, mx, al[23]), I('v_cmp_eq_u32', 'vcc', -1, mx)]
    lda = agl(); lda[0].ready = G(o['agld']); zr = sum(zc[o.get('zc', 8):], [])
    for k, x in enumerate(lda): m.append(x); m.extend(zr[2 * k:2 * k + 2])
    m.extend(zr[32:])
    l64 = [getc(u, 'l64') for u in range(3)]
    bra = verify('a', agl, agc, (lda[-1], o['aglat']), m)
    ch = []; sq_ = []
    for u in range(3):
        z = ag[u][0]; c = []
        for k in range(1, 8):
            z, ins = horner(z, l64[u], ag[u][k]); c += ins
        ch.append(c); sq_.append(z)
    m.extend(inter(ch))
    l512 = [getc(u, 'l512') for u in range(3)]; l16c = [getc(u, 'l16') for u in range(3)]; l1 = [getc(u, 'l1') for u in range(3)]
    sb_ = [V(4, f'sb{u}') for u in range(3)]
    for u in range(3):
        for k in range(4): m('ds_bpermute_b32', sb_[u][k], vBp, sq_[u], mods=f'offset:{64*k}')
    lastbp = m[-1]
    kq = [SR(2, f'kq{k}') for k in range(3)]
    for k in range(3): m('v_cmp_lt_u32', kq[k], k, q)
    t = m.v('v_mul_u32_u24', 144, col); t = m.v('v_lshl_add_u32', q, 5, t); vHw = m.v('v_add_u32', sQ, t)
    t = m.v('v_lshrrev_b32', 6, l16); t = m.v('v_mul_u32_u24', 144, t); t2 = m.v('v_and_b32', 3, col); t = m.v('v_lshl_add_u32', t2, 5, t)
    vHr = m.v('v_add_u32', sQ, t); t0 = m.s('s_lshl_b32', w, 3); vHm = m.v('v_add_u32', t0, vHr)
    zs = lambda u, k: Z[u][k >> 2][k & 3]
    ch = []; pk = [[V(4), V(4)] for u in range(3)]
    for u in range(3):
        z = sb_[u][3]; c = []
        for k in (2, 1, 0):
            z, ins = horner(z, l512[u], sb_[u][k]); c += ins
        for k in range(3):
            z2, ins = horner(z, l16c[u], eb[u][k]); c += ins
            z3 = V(1); c.append(I('v_cndmask_b32', z3, z, z2, kq[k])); z = z3
        for k in range(16):
            c += [I('v_fmac_f32', zs(u, k), l1[u][0], z), I('v_fmac_f32_dpp', zs(u, k), z, l1[u][1], mods=DPP8)]; z = zs(u, k)
            if k == 9 or k == 15:
                h = k // 10
                for e in range(4): c.append(I('v_cvt_pk_bf16_f32', pk[u][h][e], zs(u, 8*h + 2*e), zs(u, 8*h + 2*e + 1)))
        ch.append(c)
    c = inter(ch); c[0].deps = [(lastbp, 5)]; m.extend(c)
    hf = [V(4, f'hf{tt}') for tt in range(4)]; hm4 = V(4 if K & 8 else 2, 'hm'); hm = hm4[0:2]
    for u in range(3):
        for h in range(2): m('ds_write_b128', vHw, pk[u][h], mods=f'offset:{MISC + 16*h}')
        if u < 2:
            for tt in range(4): m('ds_read_b64_tr_b16', hf[tt][2*u:2*u+2], vHr, mods=f'offset:{MISC + 8*tt}')
        else: m('ds_read_b64_tr_b16', hm, vHm, mods=f'offset:{MISC}')
    lastrd = m[-1]
    if LOC & 4:
        ml, S = mlS(m); t0 = m.s('s_lshl1_add_u32', ml, tw); t1 = m.s('s_and_b32', Gn, 28); t1 = m.s('s_add_u32', t1, Gn); t0 = m.s('s_lshl_b32', t0, 7); t0 = m.s('s_add_u32', t0, t1)
        t0 = m.s('s_lshl_b32', t0, 11); t0 = fix(m, m.s('s_add_u32', t0, S)); hs_ = [m.s('s_add_u32', t0, 0x6000000 + k * 131072) for k in range(2)]
        t0 = m.s('s_lshl1_add_u32', ml, je); t0 = m.s('s_lshl1_add_u32', t0, tw); t0 = m.s('s_lshl3_add_u32', t0, jg)
    else:
        t0 = m.s('s_lshl1_add_u32', mt, tw); t0 = m.s('s_lshl_b32', t0, 6); t0 = m.s('s_add_u32', t0, Gn); t0 = m.s('s_lshl_b32', t0, 11)
        hs_ = [m.s('s_add_u32', t0, HF_OFF + k * 65536) for k in range(2)]
        t0 = m.s('s_lshl1_add_u32', mt, je); t0 = m.s('s_lshl1_add_u32', t0, tw); t0 = m.s('s_lshl2_add_u32', t0, jg)
    t0 = m.s('s_lshl1_add_u32', t0, fw); t0 = m.s('s_lshl_b32', t0, 10); t1 = m.s('s_lshl_b32', Tr, 9 if K & 12 else 3); t0 = m.s('s_add_u32', t1, t0); t0 = m.s('s_add_u32', t0, HR_OFF)
    if K & 12: l8w = m.v('v_lshrrev_b32', 1, l16)
    if K & 8: t = m.v('v_and_b32', 16, l16); l8w = m.v('v_lshl_add_u32', t, 24, l8w)
    if LOC & 4: t0 = m.s('s_add_u32', t0, S)
    n0 = len(m)
    for tt in range(4): mc(m('buffer_store_dwordx4', hf[tt], l16, sS, hs_[tt >> 1], mods=f'offen offset:{(tt & 1) * 1024} sc1', tag='hs'), 8, 's', need=0, soft=1, chain=o.get('hsc', 1))
    if K & 8:
        m[n0 + 1:n0 + 1] = [I('v_mov_b32_dpp', hm4[2 + e], hm4[e], mods='quad_perm:[1,1,3,3]' + DM) for e in range(2)]
        mc(m('buffer_store_dwordx4', hm4, l8w, sS, t0, mods='offen sc1', tag='hs'), 4, 's', need=0, soft=1, chain=o.get('hsc', 1))
    else: mc(m('buffer_store_dwordx2', hm, l8w if K & 4 else l16, sS, t0, mods='offen sc1', tag='hs'), 4 if K & 4 else 8, 's', need=0, soft=1, chain=o.get('hsc', 1))
    m[n0].deps = [(lastrd, 5)]; hsl = m[-1]; hsl.dead = bar[e1] - 30
    W.queue(m, 10, 'scan')
    qf = Q(); fl = V(1, 'fl'); kg = SR(2, 'kg')
    vF = [vBp]
    fll = lambda: [mc(I('buffer_load_dword', fl, vF[0], sS, Fr, mods='offen sc1'), 1, 'm', need=0, soft=1, back=2000)]
    t0 = qf.s('s_lshl_b32', jg, 2); qf('s_lshl_b32', kg[0], 15, t0); qf('s_mov_b32', kg[1], 0); qf[0].ready = bar[e1] - 20
    pb = {}; br = {}
    for n, e in ((1, e1), (2, e2), (3, e3)):
        t = qf.v('v_mov_b32', n); qf[-1].ready = bar[e] - 6
        a, b, of = (own(qf, Fl), own(qf, Fr), 128) if n == 1 and o.get('f1l') else (Fl, Fr, 0)
        pb[n] = mc(qf('buffer_store_dword', t, vM0, sS, a, mods=f'offen offset:{of} sc1'), .25, 's', need=0, soft=1, back=2000, ready=bar[e] + 1)
        fll = lambda b=b, of=of: [mc(I('buffer_load_dword', fl, vBp, sS, b, mods=f'offen offset:{of} sc1'), 1, 'm', need=0, soft=1, back=2000)]
        if n == 2 and o.get('f2b', 1) == 2:
            t0 = qf.s('s_lshl_b32', 0x1111, jq); qf('s_or_b32', kg[0], kg[0], t0)
        if FS > 2:
            assert LOC & 1 and o.get('f2b') == 2
            t = qf.v('v_lshlrev_b32', FS, col)
            if n < 3: t = qf.v('v_cndmask_b32', -16, t, kg)
            fll = lambda t=t: [mc(I('buffer_load_dword', fl, t, sS, Fr, mods='offen sc1'), 1, 'm', need=0, soft=1, back=2000)]
        ld = fll(); ld[0].deps = [(pb[n], o.get(f'chk{n}', o['chk']))]; qf.extend(ld)
        if n == 2 and o.get('f2b', 1) == 2: ld[0].ready = gP + o.get('f2g', -60)
        br[n] = verify(f'f{n}', fll, lambda n=n: [I('v_cmp_gt_i32', 'vcc', n, fl)] + ([I('s_nop', 3), I('s_and_b64', 'vcc', 'vcc', kg)] if n < 3 else []), (ld[0], o.get(f'lat1{n}', o['lat1'])), qf)
        if n == 2 and o.get('f2b', 1) == 2: br[4] = br[2]
        elif n == 2 and o.get('f2b', 1):
            qf('s_lshl_b32', kg[0], 0x1111, jq); ld = fll(); ld[0].ready = gP + o.get('f2g', -60); qf.extend(ld)
            br[4] = verify('f4', fll, lambda: [I('v_cmp_gt_i32', 'vcc', 2, fl), I('s_nop', 3), I('s_and_b64', 'vcc', 'vcc', kg)], (ld[0], 45), qf)
    W.queue(qf, 49, 'flag')
    qa = Q(); qb = Q(); qx = P(); nld = [0]
    def gld(q, d, so, off, use, c):
        x = mc(q('buffer_load_dwordx4', d, l16, sS, so, mods=f'offen offset:{off} sc1' + NT(64 if c == 'h' else 0)), 8, c, dead=use - o.get('gdead', 40), need=use - o.get('gneed', 45), soft=1)
        if ref(d).vr.cls == 'a' and nld[0] < o['xa']:
            x.ready = gI[3] + 16 * max(nld[0] // 4 + 1, E) + 2; nld[0] += 1
        elif ref(d).vr.cls == 'v': x.ready = gC + o.get('vld', 30)
        else: x.ready = g2
        return x
    def Hld(q, x, kls, after=None, dep=None, need=None):
        for kl in kls:
            if kl & 1 == 0:
                so = q.s('s_xor_b32', Hp[x], (0, 4096, 16384, 20480, 0x202000)[kl >> 1]) if LOC & 2 else q.s('s_add_u32', Hp[x], kl * 2048)
                if kl == kls[0]:
                    q[-1].deps = [(sdone, 1)] + ([(dep, 1)] if dep else [])
                    if after is not None: q[-1].ready = bar[after] + 1
            r = [gld(q, Hq[x][kl][a], so, (kl & 1) * 2048 + a * 1024, useH[(x, kl)], 'h' if x or str(kl if kl == 8 else kl >> 1) in warm else 'm') for a in range(2)]
            if need is not None:
                for y in r: y.need = need
            if kl == 8:
                for e in range(2): qx('v_swap_b32', Hh[x][2 + e], Hh[x][4 + e])
                qx[-2].deps = [(r[1], 35)]; qx[-1].dead = useH[(x, kl)] - 3
    if LOC & 4:
        ml, S = mlS(qa); t2 = qa.s('s_lshl2_add_u32', ml, w); t0 = qa.s('s_lshl2_add_u32', t2, jg); t0 = qa.s('s_lshl1_add_u32', t0, Tr); t0 = qa.s('s_lshl2_add_u32', t0, je); t0 = qa.s('s_lshl_b32', t0, 12)
        t0 = fix(qa, qa.s('s_add_u32', t0, S)); h0 = qa.s('s_add_u32', t0, 0x6000000, name='h0'); t0 = qa.s('s_lshl3_add_u32', t2, jg); t0 = qa.s('s_lshl_b32', t0, 11); t0 = qa.s('s_add_u32', t0, S)
    else:
        t0 = qa.s('s_lshl2_add_u32', mw, jg); t1 = qa.s('s_lshl2_add_u32', t0, jq); t1 = qa.s('s_lshl_b32', t1, 12); h0 = qa.s('s_add_u32', t1, HF_OFF, name='h0'); t0 = qa.s('s_lshl_b32', t0, 11)
    h8 = qa.s('s_add_u32', t0, HR_OFF, name='h8'); qa[0].ready = bar[e1] - 10; qa[-1].ready = bar[e1] + 1; hdone = qa[-1]
    for k in range(2):
        for a in range(2): gld(qa, hq[k][a], h0, k * 2048 + a * 1024, gC + 10, 'm').need = 0
    Hld(qa, 0, (0, 1, 2, 3), need=1)
    for k in ((8, 2, 3, 4, 5, 6, 7) if o.get('k8') else range(2, 9)):
        if k % 2 == 0 and k < 8: so = qb.s('s_xor_b32', h0, (0, 4096, 16384, 20480)[k >> 1] if LOC & 4 else k * 2048)
        if k == 8 and K & 12: l8r = qb.v('v_lshrrev_b32', 1, l16)
        qb[0].deps = [(br[1], 1), (hdone, 1)]
        for a in range(2):
            hl = gld(qb, hq[k][a], so if k < 8 else h8, (k & 1) * 2048 + a * 1024, gC + 10, 'h' if k < 8 else 'q')
            if k == 8 and K & 12:
                qb.pop(); x = hl
                for h in range(2): hl = mc(qb('buffer_load_dwordx2', hq[k][a][2*h:2*h+2], l8r, sS, h8, mods=f'offen offset:{a * 1024 + h * 512} sc1'), 4, 'q', dead=x.dead, need=x.need, soft=1, ready=x.ready)
    Hld(qa, 0, (4, 5), after=eh, need=gC - 20)
    Hld(qb, 1, (0, 1, 2, 3)); Hld(qb, 2, (0, 1, 2, 3))
    Hld(qa, 0, (8,), need=gC); Hld(qa, 0, (6, 7), after=e2, need=2)
    q8 = Q(); Hld(q8, 1, (8,), dep=br[1]); Hld(q8, 2, (8,)); Hld(q8, 3, (8,)); Hld(qb, 3, (0, 1, 2, 3))
    for x in (1, 2, 3): Hld(qb, x, (4, 5, 6, 7), dep=br[2])
    W.queue(qx, 20, 'swap'); W.queue(qa, 30, 'own'); W.queue(qb, 29, 'par'); W.queue(q8, 28, 'p8')
    z = Q(); y = Q()
    t = z.v('v_mul_u32_u24', SRC, q); vPl = z.v('v_lshl_add_u32', col, 4, t, name='vPl');
    if LOC & 24: ml, S = mlS(z)
    t0 = z.s('s_lshl2_add_u32', ml if LOC & 8 else mt, jq); t0 = z.s('s_lshl2_add_u32', t0, jg); t2 = z.s('s_lshl2_add_u32', t0, w); t2 = z.s('s_mul_i32', t2, 32768 if LOC & 8 else PW)
    if LOC & 8: t2 = fix(z, z.s('s_add_u32', t2, S))
    Pd = [z.s('s_add_u32', t2, PXo[r] if LOC & 8 else PX_OFF + 4096 * r) for r in range(3)]
    if LOC & 24 in (8, 16): t0 = z.s('s_lshl2_add_u32', ml if LOC & 16 else mt, jq); t0 = z.s('s_lshl2_add_u32', t0, jg)
    t0 = z.s('s_mul_i32', t0, FIN); t1 = z.s('s_lshl_b32', w, 8); t0 = z.s('s_add_u32', t0, t1)
    if LOC & 16: t0 = fix(z, z.s('s_add_u32', t0, S))
    Pc = [z.s('s_add_u32', t0, (0x6800000 if LOC & 16 else P8_OFF) + 1024 * k) for k in range(2)]
    t0 = z.s('s_lshr_b32', jg, 1); t0 = z.s('s_lshl2_add_u32', t0, w); t1 = z.s('s_and_b32', jg, 1); t0 = z.s('s_lshl1_add_u32', t0, t1); tb = z.s('s_lshl_b32', t0, 3, name='tb')
    t1 = z.s('s_lshl_b32', mt, 7); t0 = z.s('s_add_u32', t1, tb); t0 = z.s('s_mul_i32', t0, 1152)
    kc = z.s('s_lshl2_add_u32', jq, jg); kc = z.s('s_lshl_b32', kc, 6); k8 = z.s('s_lshl_b32', jq, 5); k8 = z.s('s_add_u32', k8, 1024); x8 = z.s('s_add_u32', t0, k8)
    t1 = z.s('s_add_u32', t1, tk0); t1 = z.s('s_mul_i32', t1, 1152); xc = [z.s('s_add_u32', t1, kc)]; xc.append(z.s('s_add_u32', xc[0], 4608))
    t = z.v('v_lshrrev_b32', 3, col); c3 = z.v('v_and_b32', 3, col); ae = z.v('v_lshl_add_u32', t, 2, c3, name='ae'); t = z.v('v_mul_u32_u24', 1152, ae)
    q1 = z.v('v_and_b32', 1, q); vx8 = z.v('v_lshl_add_u32', q1, 4, t); c4 = z.v('v_lshrrev_b32', 2, col)
    t = z.v('v_lshl_add_u32', c4, 4, c3); t = z.v('v_mul_u32_u24', 1152, t); vx = z.v('v_lshl_add_u32', q, 4, t); vk = z.v('v_lshlrev_b32', 1, col); zdone = z[-1]
    kv = [V(1, f'kv{n}') for n in range(3)]; fl_ = dict(soft=1, chain=o.get('prc', 1))
    z[0].ready = gP + o.get('zb', -60) - 30; zl = []
    for n in range(3): mc(z('buffer_load_ushort', kv[n], vk, sK, kc if n < 2 else k8, mods=f'offen offset:{32 * (n & 1)}'), 1, 'm', need=0, **fl_)
    for n in range(3): zl.append(mc(z('buffer_load_dwordx4', xv[n], vx if n < 2 else vx8, sX, xc[n] if n < 2 else x8, mods='offen'), 16 if n < 2 else 8, 'm', deps=[]))
    def lps():
        for r in range(3):
            for i in range(2): zl.append(mc(z('buffer_load_dwordx4', ps[r][i], l16, sS, Pd[r], mods=f'offen offset:{i * 1024} sc1' + NT(256)), 8, 'm', dead=gS - 40, deps=[(br.get(4, br[3]), 1)]))
    if 4 in br: lps()
    for b in (1, 2, 3, 4, 0): zl.append(mc(z('buffer_load_dwordx4', pr[b], vPl, sS, Pc[b > 0], mods=f'offen offset:{max(b - 1, 0) * 1024} sc1' + NT(256)), 8, 'm', dead=gX - 40, deps=[(br[3], 1)]))
    if 4 not in br: lps()
    for k, x in enumerate(zl):
        mc(x, *x.mc, need=0, back=o.get('zback', 2000), **fl_)
        if k: x.deps.append((zl[k - 1], o.get('zsp', 20)))
    pl8 = zl[-1]
    pld = lambda r: [mc(I('buffer_load_dwordx4', pd[r][i], l16, sS, Pd[r], mods=f'offen offset:{2048 + i * 1024} sc1'), 8, 'm', need=0, back=2000, **fl_) for i in range(2)]
    mxd = V(1, 'mxd')
    def pck(r):
        a, b = pd[r]
        return [I('v_max3_u32', mxd, a[0], a[1], a[2]), I('v_max3_u32', mxd, mxd, a[3], b[0]), I('v_max3_u32', mxd, mxd, b[1], b[2]), I('v_max_u32', mxd, mxd, b[3]), I('v_cmp_eq_u32', 'vcc', -1, mxd)]
    qd = Q(); ldd = []
    for r in range(3):
        ldd.append(pld(r)); ldd[r][0].deps = [(dst_[2 * r + 1], o.get(f'dl{r}', o.get('dl', 36))), (zdone, 1)]; ldd[r][1].dead = gE - 1
        z.extend(ldd[r])
        if r < 2: verify(f'd{r}', lambda r=r: pld(r), lambda r=r: pck(r), (ldd[r][1], 30), qd); qd[-1].dead = gD - 2
    t = y.v('v_and_b32', 16, l16); c_ = y.v('v_mov_b32', 0x3f80); one = y.v('v_lshlrev_b32', t, c_); y[0].deps = [(zdone, 1)]; y[0].ready = g3 - o.get('ybeg', 60)
    def onehot(idx, rs):
        ks = [SR(2) for _ in rs]
        for k in range(len(rs) + 2):
            if k < len(rs): y('v_cmp_eq_u32', ks[k], k, idx)
            if k >= 2: y('v_cndmask_b32', rs[k - 2], 0, one, ks[k - 2])
    t = y.v('v_lshrrev_b32', 1, ae); t2 = y.v('v_and_b32', 4, col); t = y.v('v_add_u32', t2, t); onehot(t, [sel[k] for k in range(4)])
    t = y.v('v_lshrrev_b32', 3, col); t = y.v('v_xor_b32', t, q); t2 = y.v('v_bfe_u32', col, 1, 2); t3 = y.v('v_lshl_add_u32', t, 1, t2); t = y.v('v_and_b32', 1, t); t = y.v('v_lshl_add_u32', t, 4, t3)
    onehot(t, [idm[k >> 2][k & 3] for k in range(8)])
    t = y.v('v_xor_b32', c4, q); t2 = y.v('v_lshrrev_b32', 1, c3); t = y.v('v_lshl_add_u32', t, 1, t2)
    for k in (0, 1, 4, 5): y('v_mov_b32', sA_[k], 0)
    onehot(t, [sA_[2], sA_[3]]); y[-1].dead = gX - 3
    hi_ = y.v('v_lshrrev_b32', 1, q); rr = [V(4, f'rr{n}') for n in range(3)]; nm = [V(4, f'nm{n}') for n in range(3)]
    t0 = y.s('s_lshl_b32', tb, 2); t8 = y.v('v_lshl_add_u32', hi_, 4, t0); t0 = y.s('s_lshl_b32', tk0, 2); t = y.v('v_lshl_add_u32', q, 6, t0)
    t9 = y.v('v_add_u32', STM - STR, t8); t2 = y.v('v_add_u32', STM - STR, t)
    for n in range(3): y('ds_read_b128', rr[n], t if n < 2 else t8, mods=f'offset:{STR + 16 * (n & 1)}'); y('ds_read_b128', nm[n], t2 if n < 2 else t9, mods=f'offset:{STR + 16 * (n & 1)}')
    lr = y[-1]
    t = y.v('v_bfe_u32', l16, 2, 7); t2 = y.v('v_mul_u32_u24', 4 * 2304, hi_); vo8 = y.v('v_add_u32', t, t2); vo8 = y.v('v_lshl_add_u32', q1, 30, vo8)
    vo = [y.v('v_lshl_add_u32', t2, 3, t)]; vo.append(y.v('v_add_u32', 16 * 2304, vo[0]))
    so = [[y.s('s_lshl_b32', x, 1), y.s('s_lshl1_add_u32', x, 4608)] for x in xc + [x8]]
    cl = y.s('s_mov_b32', int(np.float32(-LOG2E).view(np.uint32))); ce = [V(4, f'ce{n}') for n in range(3)]
    n0 = len(y)
    for n in range(3):
        for e in range(4): y('v_mul_f32', nm[n][e], nm[n][e], rr[n][e]); y('v_mul_f32', ce[n][e], cl, rr[n][e])
        for e in range(4): y('v_mul_f32', ce[n][e], ce[n][e], rr[n][e])
        y('v_lshlrev_b32', kv[n], 16, kv[n])
    y[n0].deps = [(lr, 4)]; y[n0 + 12].ready = gX - 30
    def skip(S, X, n, k):
        ch = []
        for e in range(4): t = V(1); ch.append([I('v_fma_f32', t, X[e], rr[n][e], nm[n][e]), I('v_fmac_f32', S[e], t, kv[k])])
        return inter(ch)
    def gate(d, S, X, n):
        ch = []
        for e in range(4):
            t = V(1); ch.append([I('v_mul_f32', d[e], ce[n][e], d[e]), I('v_exp_f32', t, d[e]), I('v_mul_f32', d[e], d[e], S[e]), I('v_fma_f32', t, t, cl, cl), I('v_rcp_f32', t, t), I('v_fmac_f32', X[e], d[e], t)])
        return ch
    ost = lambda r, v, n, e: mc(I('buffer_store_dword', r, v, sO, so[n][e >> 1], mods=f'offen offset:{2304 * (e & 1)}' + o['om']), 2, 's', need=0, soft=1, chain=1, back=2000)
    n0 = len(y)
    for i in range(2):
        for a in range(2): y.extend(skip(accs[6 + i][a], xf[i][a], a, i))
    y[n0].ready = gX + 10; y[-1].dead = gS - 2
    y.extend(skip(Y4, xf4, 2, 2)); y.extend(inter(gate(D4, Y4, xf4, 2))); y.extend([ost(xf4[e], vo8, 2, e) for e in range(o.get('n8', 4))])
    W.queue(z, 9, 'fin'); W.queue(y, 8, 'pre'); W.queue(qd, 41, 'chk')
    if not o.get('bst'):
        for k, g in enumerate([gA] + gI[1:] + [gC, g2, g3]): st.at(W, g, 10 + k)
    else:
        for e in range(1, len(bar)): st.at(W, bar[e] + 1, 21 + e + (e > 18))
        assert len(bar) < 40
        print("; BARS", bar[1:] + [gE])
    sc.emit(spacing, lambda g: o['softA'] if g < gA else o['soft'])
    p.extend(sc.bar0); p.extend(st.t(9))
    body = W.build()
    sc.report()
    for n, g in warm.items(): assert hlast[int(n)].gap < g
    print(f"; gaps A {gA} I {gI} C {gC} 2 {g2} P {gP} 3 {g3} E {gE} | sent {sentl.gap} eI {bar[eI]} agst {agst.gap} cbr {brc.gap} agld {lda[0].gap}-{lda[-1].gap} agbr {bra.gap} hs {hsl.gap} "
          f"pub {[pb[n].gap for n in pb]} chk {[br[n].gap for n in br]} hld {hl.gap} H {[hlast[k].gap for k in hlast]} eh {bar[eh]} sp {slast.gap} d8 {d8.gap} pl8 {pl8.gap} dp {[x.gap for x in dst_]} X {gX} S {gS} D {gD} ld {[x[1].gap for x in ldd]} y {y[-1].gap} qd {qd[-1].gap}")
    if o.get('vx'): print("; X", " ".join(f"{x.gap}{x.q[:2]}{mcls(x)[1]}" for x in body if x.kind == 'X'))
    pendv = None
    for x in body:
        if x.kind != 'P' and x.d and x.ops[0] == 'vcc': assert pendv in (None, x.q), (x.op, x.gap); pendv = x.q
        if x.op == 's_cbranch_vccnz': pendv = None
    p.extend(body)
    p.extend(st.t(17))
    verify('d2', lambda: pld(2), lambda: pck(2) + [I('s_nop', 0)], None, p)
    p.extend(st.t(18))
    r = addp(accd, pd[2]); p.extend([r[0], r[2], r[1], r[3]])
    for a in range(2):
        p.extend(inter(gate(accd[6][a], accs[6][a], xf[0][a], a) + gate(accd[7][a], accs[7][a], xf[1][a], a)))
        for e in range(4): p('v_permlane16_swap_b32', xf[0][a][e], xf[1][a][e])
        for e in range(4): p.extend([ost(xf[i][a][e], vo[i], a, e) for i in range(2)])
        p.extend(st.t(19 + a))
    p.extend(st.t(21))
    if st.on and o.get('fw'): p('s_waitcnt', mods='vmcnt(0)')
    if st.on: p('v_writelane_b32', st.v, rc, 40)
    st.flush(p, sS, v0); p.append(KEEP(wid))
    p.append(LABEL('L_end')); p('s_endpgm')
    lines, peak, prog = finish(p)
    for nm_, par in (('cold', {}), ('warm', dict(Lc=600, fc=0))):
        stl = sim.report(prog, bar[1:] + [gE], nm_, par)
        if o.get('simv') and nm_ == 'cold': print("; stalls", [(g, k[0], int(x)) for g, k, x in stl if x > 60])
    for name, loads, check in stubs:
        rt = [LABEL(f'L_r{name}')] + loads() + [I('s_waitcnt', mods='vmcnt(0)')] + check() + \
             [I('s_sub_u32', rc, rc, 1), I('s_cbranch_scc1', f'L_x{name}'), I('s_cbranch_vccnz', f'L_r{name}'), I('s_branch', f'L_b{name}'),
              LABEL(f'L_x{name}'), I('s_mov_b32', rc, 0), I('s_branch', f'L_b{name}')]
        for ins in rt: lines.append(ins.name + ':' if ins.op == 'LABEL' else ins.text())
    lines += ['  s_endpgm', 'L_fin:']
    print("; instr", len(lines))
    return lines, st.peak(peak)

if __name__ == '__main__':
    import sys, json
    opt = json.loads(sys.argv[2]) if len(sys.argv) > 2 else {}
    lst = opt.pop('list', 1)
    label = 'x_kernel' if lst else NAME + '_kernel'
    l, pk = gen_y(label, opt)
    s = f"; @launch {'kernel=' + label + ' ' if lst else ''}grid=(256,1,1) block=(256,1,1) lds=163840\n"
    s += '.amdgcn_target "amdgcn-amd-amdhsa--gfx950"\n.text\n' + kernel_text(label, l) + '.section .rodata,"a"\n' + kernel_desc(label, pk['v'], pk['a'])
    open(sys.argv[1], 'w').write(s)
```

```python
from asmlib import *
NBLK = 36

class Unit:
    def __init__(s, name, nblk, dma=None, brk=None):
        s.name, s.nblk, s.dma, s.brk = name, nblk, dma, brk
        s.addr = None; s.epoch = None; s.fu = None; s.done = -9; s.at = None; s.pre = False; s.early = -9; s.pin = None
class Frag:
    def __init__(s, dst, unit, n, fn, grp, rate=1, lat=6):
        s.dst, s.unit, s.n, s.fn, s.grp, s.rate, s.lat = dst, unit, n, fn, grp, rate, lat
        s.fu = None
class M:
    def __init__(s, ins, *frags, tiny=False): s.ins, s.frags, s.tiny = ins, frags, tiny

class Sched:
    def __init__(s, cap=2):
        s.W = Weave(cap); s.frags = []; s.units = []; s.tiny = set(); s.res = 0; s.extra = []
    def feed(s, ml):
        for m in ml:
            g = s.W.mfma(m.ins); m.ins.gap = g
            if m.tiny: s.tiny.add(g); s.W.reserve(g, m.tiny - 1)
            for f in m.frags:
                if f.fu is None:
                    f.fu = g; s.frags.append(f)
                    if f.unit.fu is None: f.unit.fu = g; s.units.append(f.unit)
    def plan(s, target, maxblk, tail=0):
        e = -1; start = 0; blk = 0
        for u in s.units:
            new = e < 0 or u.brk is True or (u.brk is None and (u.fu - start >= target(u.fu) or blk + u.nblk > maxblk(u.fu)))
            if new: e += 1; start = u.fu; blk = 0
            u.epoch = e; blk += u.nblk
        s.ne = e + 1
        gi = -1; prev = object(); s.gfu = []
        for f in s.frags:
            if f.grp != prev: gi += 1; prev = f.grp; s.gfu.append(f.fu)
            f.gi = gi
        first = {}
        for k, f in enumerate(s.frags): first.setdefault(f.unit.epoch, k)
        used = {}; nrd = {}
        s.bar = [None] * s.ne
        nxt = 1 << 30; lb = None
        s.xvm = [[] for _ in range(s.ne)]; s.xlg = [[] for _ in range(s.ne)]
        for k in range(len(s.frags) - 1, -1, -1):
            f = s.frags[k]; f.pos = [None] * f.n
            dn = s.gfu[f.gi] - 1
            if tail and lb is not None and dn >= s.bar[lb] > 0 and f.unit.done < s.bar[lb]:
                nxt = min(nxt, s.bar[lb] - tail); dn = s.bar[lb] - 1; s.xlg[lb].append(f'g{f.gi}')
            for r in range(f.n - 1, -1, -1):
                p = min(s.gfu[f.gi] - 1 - f.lat, nxt)
                while p >= 0 and (nrd.get(p, 0) >= f.rate or used.get(p, 0) >= s.W.capat(p)): p -= 1
                p = max(p, -1)
                f.pos[r] = p; nxt = p; nrd[p] = nrd.get(p, 0) + 1; used[p] = used.get(p, 0) + 1
            f.unit.done = max(f.unit.done, dn)
            if first[f.unit.epoch] == k:
                b = nxt - 1
                while b >= 0 and (b in s.tiny or used.get(b, 0) > 0) and nxt - b < 3: b -= 1
                b = max(b, -2)
                s.bar[f.unit.epoch] = b; used[b] = 9; nxt = max(b - 1, -1); lb = f.unit.epoch
        assert all(s.bar[i] < s.bar[i + 1] for i in range(s.ne - 1)), s.bar
        assert s.bar[0] == -2 and s.bar[1] >= 0, s.bar[:3]
    def _alloc(s, u):
        al = 4 if u.nblk >= 3 else u.nblk
        c = [a for a in range(0, NBLK - u.nblk + 1, al) if all(s.free[a:a + u.nblk])]
        if not c: return False
        c.sort(key=lambda a: (sum(s.free[a & ~3:(a & ~3) + 4]), a))
        a = c[0]
        for k in range(u.nblk): s.free[a + k] = False
        u.addr = a * 1024; s.live.append(u); return True
    def allocate(s, p0max, spacing):
        s.free = [True] * (NBLK - s.res) + [False] * s.res; s.live = []
        for u in s.units + s.extra:
            if u.pin is not None: u.at = s.barafter(u.pin)
        pend = [u for u in s.units if u.dma and u.pin is None]; ds = [u for u in s.units if not u.dma]
        for u in ds:
            if u.pre: assert s._alloc(u); u.at = -1
        s.p0 = []
        while pend and p0max >= pend[0].nblk and s._alloc(pend[0]):
            u = pend.pop(0); u.at = -1; s.p0.append(u); p0max -= u.nblk
        for e in range(s.ne):
            for u in list(s.live):
                if u.done < s.bar[e] and u.epoch < e:
                    s.live.remove(u)
                    for k in range(u.nblk): s.free[u.addr // 1024 + k] = True
            for u in ds:
                if u.epoch == e + 1 and not u.pre: assert s._alloc(u), ("no room for", u.name); u.at = e
            room = ((s.bar[e + 1] if e + 1 < s.ne else len(s.W.m)) - max(s.bar[e], 0)) // spacing(max(s.bar[e], 0))
            while pend and room > 0 and pend[0].early <= s.bar[e] and s._alloc(pend[0]):
                u = pend.pop(0); u.at = e; room -= u.nblk
                assert u.epoch > e, ("late unit", u.name, u.epoch, e)
        assert not pend, [u.name for u in pend]
    def barafter(s, g):
        for e in range(s.ne):
            if s.bar[e] >= g: return e
        raise RuntimeError(f"no barrier after {g}")
    def emit(s, spacing, soft, minlat=20):
        W = s.W
        for k, f in enumerate(s.frags):
            r = f.fn(f.unit.addr); assert len(r) == f.n
            for x, p in zip(r, f.pos): x.tag = f'g{f.gi}'; W.at(p, x)
        for gi, g in enumerate(s.gfu):
            w = WAIT(lgkm=f'g{gi}'); w.last = True; W.at(g - 1, w)
        s.bar0 = None
        for e in range(s.ne):
            w = WAIT(vm=[f'E{e}'] + s.xvm[e], lgkm=s.xlg[e] or None); b = I('s_barrier'); w.last = b.last = True
            if e == 0: s.bar0 = [w, b]
            else: W.at(s.bar[e], w, b)
        q = []; prev = None; s.dmas = []
        for u in sorted([u for u in s.units + s.extra if u.dma and u.at >= 0], key=lambda u: (u.at, u.pin is not None)):
            if u.pin is not None: u.epoch = u.at + s.pl
            its = u.dma(u.addr, f'E{u.epoch}'); sal = None
            for x in its:
                x.ready = s.bar[u.at] + 1
                if x.kind == 'X':
                    x.deps = ([(prev, spacing(x.ready))] if prev else []) + ([(sal, 1)] if sal else [])
                    x.dead = max(s.bar[u.epoch] - minlat, x.ready); x.need = s.bar[u.epoch]; prev = x; sal = None; s.dmas.append((x, u)); x.soft = soft(x.ready)
                else: sal = x
            q += its
        W.queue(q, prio=50, name='dma')
    def report(s):
        sl = {}
        for x, u in s.dmas: sl[u.epoch] = min(sl.get(u.epoch, 1 << 30), s.bar[u.epoch] - x.gap)
        print("; bars", s.bar)
        print("; units", " ".join(f"{u.name}:{u.addr//1024}@{u.at}>{u.epoch}-{u.done}" for u in s.units))
        print("; dma slack per epoch", [sl.get(e) for e in range(s.ne)])
        ld = s.W.load[1:]
        seg = [sum(max(0, x - 2) for x in ld[a:b]) for a, b in zip([0] + s.bar[1:], s.bar[1:] + [len(ld)])]
        print("; overflow per epoch", seg)
        fr = [sum(max(0, 2 - x) for x in ld[a:b]) for a, b in zip([0] + s.bar[1:], s.bar[1:] + [len(ld)])]
        print("; free per epoch", fr)
```

```python
from common import *
from sched import *
import math, sim
import numpy as np
QS = 40960; MISC = 36864
CST = MISC; RGO = MISC + 2560; STR = MISC + 3584; STM = QS + MISC + 3584
AG_OFF = 0; AR_OFF = 0x20000; FL_OFF = 0x50000; HF_OFF = 0x100000; HR_OFF = 0x500000; PX_OFF = 0x600000; H_OFF = 0x1B00000
P8_OFF = 0x1300000; SRC = 5120; FIN = 4 * SRC; PW = 12288
TINY = 'v_mfma_f32_4x4x4_16b_bf16'
DM = ' row_mask:0xf bank_mask:0xf'
DPP8 = 'row_ror:8' + DM
BIG = 0x7ff00000
LOG2E = math.log2(math.e)

def inter(lists):
    out = []
    for k in range(max(len(x) for x in lists)):
        for x in lists:
            if k < len(x): out.append(x[k])
    return out
def SR(n=1, name=None, phys=None): return VR('s', n, name, phys)
class Q(P):
    def s(s, op, *ops, name=None):
        d = SR(1, name); s.append(I(op, d, *ops)); return d
def mc(x, n, c, **k):
    x.mc = (n, c)
    for a, b in k.items(): setattr(x, a, b)
    return x

def gen_y(label, opt=None):
    o = dict(S=3, SE=3, stamp=False, p0max=9, xa=56, ep=64, sp=3, vgap=2, edge=3, lat=6, agld=700, aglat=50, cng=570,
             pub1=250, chk=50, lat1=60, pub2=130, pub3=60, d0=40, d1=4, rc=20000, plan='23:X0,405:X2,830:Da+D8+K0,980:C0', eI=8,
             softA=1, soft=2, rate2=1, tail=5, sp2=3, back=300, backf=60, seed=600, sentg=70, nsent=8, nt=0, om=' sc1', tlb=0, hst=60,
             loc=1, f2b=2, lat11=45, lat12=45, lat13=45, chk1=90, chk3=90, zsp=16, k=55, k8=1, xs=-1, hp=3, pfp=9, snake=7)
    o.update(opt or {})
    plan = [(int(x.split(':')[0]), x.split(':')[1].replace('+', ' ')) for x in o['plan'].split(',')]
    p = Q(); v0 = VR('v', 1, 'tid', phys=0)
    LOC = o.get('loc', 0); SRC = 16384 if LOC & 16 else 5120; FIN = 4 * SRC; WSB = 0x8000000
    def mlS(q):
        ml = q.s('s_and_b32', mt, 7); S = q.s('s_and_b32', mt, 8); S = q.s('s_lshl_b32', S, 10)
        return ml, (q.s('s_xor_b32', S, 0x2000) if o.get('par2') else S)
    def fix(q, x, name=None): t = q.s('s_lshr_b32', x, 8); t = q.s('s_and_b32', t, 0x2000); return q.s('s_xor_b32', x, t, name=name)
    st = ST(o['stamp'], 0, 255)
    ka = SR(2, 'ka', 0); wid = SR(1, 'wid', 2)
    p('s_cmp_ge_u32', wid, 256); p('s_cbranch_scc1', 'L_end')
    p.extend(st.rt(0) + st.t(1))
    p('s_load_dwordx16', 's[4:19]', ka, 0); p('s_load_dwordx16', 's[20:35]', ka, 64)
    sX, sB, sC, sO, sK, sW, sD, sG, sS = [SR(4, n, b) for n, b in zip('XBCOKWDGS', range(4, 40, 4))]
    def tail_(q, r, n): q('s_mov_b32', r[2], n); q('s_mov_b32', r[3], 0x20000)
    NT = lambda b: ' nt' if o['nt'] & b else ''
    sI = SR(4, 'I', 40)
    p('s_getpc_b64', sI[0:2]); p.append(LABEL('L_pc')); tail_(p, sI, 'L_fin-L_pc')
    pfd = V(1, 'pfd'); p.append(DEF(pfd))
    def pf(v, srd, so, off, nl, md='', c='c'):
        x = I('buffer_load_dword', pfd, v, srd, so, mods=f'offen offset:{off}' + md); x.d = []; x.soft = 1; return mc(x, nl, c)
    t = p.s('s_lshl_b32', wid, 4); t = p.s('s_and_b32', t, 31 * 128); t = p.v('v_lshl_add_u32', v0, 12, t)
    p.append(pf(t, sI, 0, 0, 3.5))
    wv = p.v('v_lshrrev_b32', 6, v0); l = p.v('v_and_b32', 63, v0, name='lane')
    w = SR(1, 'w'); p('v_readfirstlane_b32', w, wv)
    HB = o.get('hb', 2)
    jg = p.s('s_and_b32', wid, 3, name='jg') if HB == 2 else p.s('s_bfe_u32', wid, (2 << 16) | 1, name='jg')
    jq = p.s('s_bfe_u32', wid, (2 << 16) | 3, name='jq')
    t = p.s('s_bfe_u32', wid, (1 << 16) | HB); t2 = p.s('s_lshr_b32', wid, 5)
    if o.get('swp') == 1: t = p.s('s_xor_b32', t, 1)
    if o.get('swp') == 2: mt = p.s('s_lshl1_add_u32', t2, t, name='mt')
    else: mt = p.s('s_lshl3_add_u32', t, t2, name='mt')
    fw = p.s('s_and_b32', w, 1, name='fw'); tw = p.s('s_lshr_b32', w, 1, name='tw')
    j = p.s('s_lshl2_add_u32', jg, jq, name='j'); je = p.s('s_and_b32', jq, 1, name='je'); Tr = p.s('s_lshr_b32', jq, 1, name='Tr')
    sl = p.v('v_and_b32', 7, l); hi = p.v('v_lshrrev_b32', 5, l); q = p.v('v_lshrrev_b32', 4, l, name='q')
    r83 = p.v('v_bfe_u32', l, 3, 2)
    cx = p.v('v_xor_b32', sl, q); cx = p.v('v_lshlrev_b32', 4, cx, name='cx')
    tokl = p.v('v_lshl_add_u32', hi, 4, r83, name='tokl')
    t = p.s('s_lshl_b32', tw, 6); tk0 = p.s('s_lshl3_add_u32', fw, t, name='tk0')
    t = p.s('s_lshl_b32', mt, 7); t = p.s('s_add_u32', t, tk0); xb = p.s('s_mul_i32', t, 1152, name='xb')
    t = p.v('v_mul_u32_u24', 1152, tokl); vX0 = p.v('v_add_u32', t, cx)
    je6 = p.s('s_lshl_b32', je, 6, name='je6'); t1 = p.s('s_mul_i32', je, 36864); t2 = p.s('s_mul_i32', Tr, 4608)
    a = p.v('v_xor_b32', je6, vX0); b = p.v('v_xor_b32', 64, a)
    a = p.v('v_add_u32', t1, a); t1 = p.s('s_sub_u32', 36864, t1); b = p.v('v_add_u32', t1, b)
    vX = [p.v('v_add_u32', t2, a), p.v('v_add_u32', t2, b)]
    t2 = p.s('s_sub_u32', 4608, t2); vX += [p.v('v_add_u32', t2, a), p.v('v_add_u32', t2, b)]
    Gn = p.s('s_lshl1_add_u32', j, fw, name='Gn')
    t = p.s('s_lshl2_add_u32', jg, Tr); t = p.s('s_lshl_b32', t, 2); chr_ = p.s('s_add_u32', t, 512, name='chr')
    t = p.v('v_and_b32', 4, l); cho = p.v('v_add_u32', t, sl)
    t = p.s('s_lshl_b32', Gn, 4); t = p.v('v_lshl_add_u32', q, 2, t)
    t2 = p.v('v_mul_u32_u24', chr_, hi); t = p.v('v_max_u32', t, t2)
    vL = p.v('v_add_lshl_u32', t, cho, 1)
    t = p.s('s_lshr_b32', wid, 3); n2 = p.s('s_lshl1_add_u32', t, tw, name='n2')
    t0 = p.s('s_lshl_b32', jg, 6); t0 = p.s('s_add_u32', t0, n2); t0 = p.s('s_mul_i32', t0, 2304)
    HP = o.get('hp', 0)
    if HP: hf = p.s('s_bfe_u32', wid, (1 << 16) | HB); hf = p.s('s_mul_i32', hf, 1152)
    if HP & 2: t0 = p.s('s_add_u32', t0, hf)
    t = p.v('v_min_u32', 8 if HP & 2 else 17, l); t = p.v('v_lshl_add_u32', t, 7, t0)
    t0 = p.s('s_mul_i32', n2, 3); t0 = p.s('s_sub_u32', t0, 32); t2 = p.v('v_min_u32', 34, l); t2 = p.v('v_add_u32', t0, t2); t2 = p.v('v_min_u32', 143, t2)
    t0 = p.s('s_mul_i32', jg, 18432); t0 = p.s('s_add_u32', t0, 512 * 1152); t2 = p.v('v_lshl_add_u32', t2, 7, t0)
    p('v_cmp_gt_u32', 'vcc', 32, l); vPB = p.v('v_cndmask_b32', t2, t, 'vcc')
    l8 = p.v('v_min_u32', 8, l, name='l8'); vPW = p.v('v_mul_u32_u24', 9216, l8, name='vPW')
    t0 = p.s('s_mul_i32', n2, 9 * 9216); t1 = p.s('s_mul_i32', jg, 2304); sPW = p.s('s_add_u32', t0, t1, name='sPW')
    row = p.v('v_bfe_u32', l, 2, 3, name='row'); r2 = p.v('v_bfe_u32', l, 4, 1)
    b1 = p.v('v_bfe_u32', l, 1, 1); pp = p.v('v_xor_b32', b1, r2); b0 = p.v('v_and_b32', 1, l)
    c32 = p.v('v_lshlrev_b32', 5, pp); c32 = p.v('v_lshl_add_u32', b0, 4, c32)
    c64 = p.v('v_lshl_add_u32', hi, 6, c32, name='c64')
    rm = p.v('v_lshl_add_u32', r2, 2, row); t0 = p.s('s_lshl_b32', tw, 2); rm = p.v('v_add_u32', t0, rm)
    t = p.v('v_lshl_add_u32', hi, 4, rm); t = p.v('v_mul_u32_u24', 9216, t); vH0 = p.v('v_add_u32', t, c32, name='vH0')
    vH = [vH0, p.v('v_add_u32', 32 * 9216 - 1024, vH0, name='vH1')]
    t = p.v('v_lshl_add_u32', hi, 3, r83); t = p.v('v_mul_u32_u24', 1152, t)
    t0 = p.s('s_lshl_b32', fw, 6); vB0 = p.v('v_xad_u32', cx, t0, t, name='vB0')
    vB = [vB0, p.v('v_add_u32', 4608 - 1024, vB0, name='vB1')]
    p.append(WAIT(lgkm=0)); p.append(KEEP(ka))
    p.extend(st.t(2))
    raw = [V(1) for _ in range(3)]
    lre_ = SR(2, 'lre'); p('s_mov_b64', lre_, 's[6:7]')
    tail_(p, sX, 2048 * 1152)
    xr = [[V(4, f'xr{g}_{s}') for s in range(9)] for g in range(4)]
    xld = [mc(I('buffer_load_dwordx4', xr[g][s], vX[g], sX, xb, mods=f'offen offset:{128*s}' + NT(8 if g else 1)), 8, 'h' if g else 'x') for g in range(4) for s in range(9)]
    vm = [[x] for x in xld[9:]]
    for x, s_ in zip(raw, (lre_, 's[8:9]', 's[18:19]')): mc(p('global_load_ushort', x, vL, s_), 1, 'c')
    if o.get('pfp', -1) >= 0: p.extend(xld[:9])
    p('s_cmp_eq_u32', fw, 0)
    p('s_cselect_b64', sB[0:2], 's[10:11]', 's[12:13]'); p('s_cselect_b64', sC[0:2], 's[14:15]', 's[16:17]')
    p('s_cselect_b64', sW[0:2], 's[24:25]', 's[26:27]')
    p('s_mov_b64', sO[0:2], 's[30:31]'); p('s_mov_b64', sS[0:2], 's[34:35]')
    for r, sz in ((sB, 576 * 1152), (sW, 576 * 9216), (sS, WSB), (sC, 576 * 1152), (sK, 1152), (sD, 4608 * 1152), (sO, 2048 * 2304), (sG, 256)):
        tail_(p, r, sz)
    t = [pf(vPB, sB, 0, 0, 12 if HP & 2 else 21, NT(128)), pf(vPW, sW, sPW, 128 * 4, 9, NT(128)), pf(vPW, sW, sPW, 128 * 13, 9, NT(128))]
    if HP & 1: t[1:] = [pf(vPW, sW, p.s('s_add_u32', sPW, hf), 128 * 4, 9, NT(128))]
    if o.get('pfp', -1) < 0: p.extend(t + xld[:9])
    elif o['pfp'] == 0: p.extend(t)
    else: vm[o['pfp'] - 1] += t
    p.extend(st.t(3))
    sQ = p.s('s_mul_i32', w, QS, name='Q')
    t0 = p.s('s_mul_i32', j, 576); fb = p.s('s_add_u32', t0, je6, name='fb')
    t1 = p.s('s_lshl_b32', je, 9); t0 = p.s('s_add_u32', t0, 512); hb = p.s('s_sub_u32', t0, t1, name='hb')
    t0 = p.s('s_lshl1_add_u32', j, tw); Bb = p.s('s_mul_i32', t0, 18432, name='Bb')
    Rc = p.s('s_mul_i32', chr_, 1152, name='Rc'); t1 = p.s('s_lshl_b32', tw, 7); Rb = p.s('s_add_u32', Rc, t1, name='Rb')
    def dma(v, srd, so, off, tag): return mc(I('buffer_load_dwordx4', v, srd, so, mods=f'offen offset:{off}' + NT({'W': 2, 'H': 4, 'B': 4, 'C': 16, 'D': 32, 'E': 32, 'X': 0}[v.name[1]]) + ' lds', tag=tag), {'vH': 17, 'vW': 8.75, 'vCl': 32, 'vCm': 8, 'vXs': 16}.get(v.name[:-1], 8), 'h')
    def mkdma(vs, srd, base, add, sq=sQ):
        def f(addr, tag):
            so = SR(1, 'T')
            return [I('s_add_u32', 'm0', sq, addr), I('s_add_u32', so, base, add)] + [dma(v, srd, so, 1024 * b, tag) for b, v in enumerate(vs)]
        return f
    vW = [V(1, f'vW{b}') for b in range(4)]; vC = [V(1, f'vC{b}') for b in range(2)]; vD = [V(1, f'vD{b}') for b in range(4)]
    vT = [[V(1, f'vT{a}{k}') for k in range(3)] for a in range(2)]; vU = [[V(1, f'vU{a}{k}') for k in range(3)] for a in range(2)]
    vTh = [V(1, f'vTh{k}') for k in range(3)]
    vXr = [[V(1, f'vXr{a}{k}') for k in range(2)] for a in range(2)]; vXm = [V(1, f'vXm{a}') for a in range(2)]
    vBq = [[V(1, f'vBq{a}{k}') for k in range(2)] for a in range(2)]; vBr = [V(1, f'vBr{a}') for a in range(2)]
    vCr = [V(1, f'vCr{c}') for c in range(5)]
    def trd(bases, qa, qb, extra):
        def mk(dst):
            def f(addr):
                r = []
                for h, qq in enumerate((qa, qb)):
                    A_ = qq * QS + addr + extra
                    r.append(I('ds_read_b64_tr_b16', dst[2*h:2*h+2], bases[A_ >> 16], mods=f'offset:{A_ & 0xffff}'))
                return r
            return f
        return mk
    def tfrag(unit, bases, sel, extra, grp, rate=1, lat=None):
        d = A(4, 'f' + unit.name); return Frag(d, unit, 2, trd(bases, sel, sel + 2, extra)(d), grp, rate, lat or o['lat'])
    def bfrag(d, unit, base, extra, grp, lat=None):
        return Frag(d, unit, 1, lambda addr: [I('ds_read_b128', d, base, mods=f'offset:{addr + extra}')], grp, 1, lat or o['lat'])
    sc = Sched(); W = sc.W; W.vgap = o['vgap']; W.back = o['back']; W.backf = o['backf']; W.seed = o['seed']; W.par = o.get('par'); W.urg = o.get('urg', 100)
    NS = o['S']; pre = lambda g: NS if g == 3 else o['SE']
    Xf = [[(A if 4 * k + tt < o['xa'] else V)(4, f'X{k}_{tt}') for tt in range(4)] for k in range(18)]
    uX = [Unit(f'X{s}', 4, None, True) for s in range(9)]
    for s in range(NS): uX[s].pre = True
    uB = [Unit(f'B{s}', 2, mkdma(vB, sB, Bb, 128 * s), False) for s in range(9)]
    uH = [Unit(f'H{s}', 2, mkdma(vH, sW, hb, 64 * 9216 * s), False) for s in range(9)]
    uR = [Unit(f'R{n}', 1, mkdma(vB[:1], sB, Rb if n < 4 else Rc, 256 * n), False) for n in range(5)]
    accb = [[V(4, f'b{u}_{tt}') for tt in range(4)] for u in range(2)]; accm = V(4, 'bm')
    acch = [[V(4, f'h{m}_{tt}') for tt in range(4)] for m in range(2)]
    idn = V(2, 'idn'); Cm = [V(4, f'Cm{g}') for g in range(4)]
    def center(g, s):
        T = [V(4, 'T0'), V(4, 'T1')]
        ti = [I(TINY, T[h], idn, xr[g][s][2*h:2*h+2], Cm[g]) for h in range(2)]
        cv = [I('v_cvt_pk_bf16_f32', xr[g][s][e], T[e >> 1][2*(e&1)], T[e >> 1][2*(e&1)+1]) for e in range(4)]
        return ti, cv
    vXw = [V(1, f'vXw{g}') for g in range(4)]
    def xwrite(g, s): return I('ds_write_b128', vXw[g], xr[g][s], mods=f'offset:{uX[s].addr}', tag=f'xw{s}')
    ctr = {}
    for s in range(9):
        ml = []
        for kp in range(2):
            k = 2 * s + kp; z = lambda a: 0 if k == 0 else a
            fx = [bfrag(Xf[k][tt], uX[s], vXr[kp][tt >> 1], (tt & 1) * 2048, ('a', k)) for tt in range(4)]
            fbs = [bfrag(A(4, 'fb'), uB[s], vBr[kp], u * 1024, ('a', k)) for u in range(2)]
            for u in range(2):
                for tt in (range(3, -1, -1) if u and k < 17 and o.get('snake', 0) & 4 else range(4)): ml.append(M(I(MF, accb[u][tt], Xf[k][tt], fbs[u].dst, z(accb[u][tt])), fx[tt], fbs[u]))
            fm = bfrag(A(4, 'fxm'), uX[s], vXm[kp], 0, ('b', k)); fr = bfrag(A(4, 'fbm'), uR[s >> 1], vBq[kp][s & 1], 0, ('b', k))
            ml.append(M(I(MF, accm, fm.dst, fr.dst, z(accm)), fm, fr))
            for m in range(2):
                f = tfrag(uH[s], vTh, m, kp * 1024, ('b', k))
                for tt in (range(3, -1, -1) if m and k < 17 and o.get('snake', 0) & 4 else range(4)): ml.append(M(I(MF, acch[m][tt], f.dst, Xf[k][tt], z(acch[m][tt])), f))
        for g in range(3, -1, -1):
            if pre(g) <= s + 2 < 9:
                ti, cv = center(g, s + 2); ctr[(g, s + 2)] = (ti, cv)
                ml[5 + 8 * g:5 + 8 * g] = [M(ti[0], tiny=2), M(ti[1], tiny=1)]
        sc.feed(ml)
    gA = len(W.m)
    E = o['edge']
    order = [(0, k) for k in range(E)] + [(1, k) for k in range(E)] + [(t, k) for k in range(E, 18 - E) for t in range(2)] + \
            [(0, k) for k in range(18 - E, 18)] + [(1, k) for k in range(18 - E, 18)]
    acc1 = []; gI = []; last1 = {}; first1 = {}
    for it in range(4):
        gI.append(len(W.m))
        uW = [Unit(f'W{it}_{s}', 4, mkdma(vW, sW, fb, 128 * it + 64 * 9216 * s), True if (it, s) == (0, 0) else None) for s in range(9)]
        for u in uW: u.early = max(g for g, its in plan if any(x in its.upper() for x in (f'W{it}', f'Q{it}', f'Y{it}', f'Y{it-1}', f'Z{it+1}', f'F{it}', f'X{it}', f'X{it-1}', f'P{it}'))) + (gA - 354 if it else 0) + 30
        ac = [[[V(4, f'g{it}{m}{t}{tt}') for tt in range(4)] for t in range(2)] for m in range(2)]; acc1.append(ac)
        for n, (t, k) in enumerate(order):
            ml = []
            for m in range(2):
                f = tfrag(uW[k >> 1], vT[t], m, (k & 1) * 2048, ('w', it, n >> 1))
                for tt in (range(3, -1, -1) if m and 0 < k < 17 and o.get('snake', 0) & 1 else range(4)): ml.append(M(I(MF, ac[m][t][tt], f.dst, Xf[k][tt], 0 if k == 0 else ac[m][t][tt]), f))
            if k == 0: first1[(it, t)] = len(W.m)
            if o.get('snake', 0) & 8 and E <= k < 18 - E:
                if t == 0: held = ml; continue
                fs = [x.frags[0] for x in (held + ml)[::4]]; ml = []
                for tt in range(4):
                    for c in (range(3, -1, -1) if tt & 1 else range(4)): ml.append(M(I(MF, ac[c & 1][c >> 1][tt], fs[c].dst, Xf[k][tt], ac[c & 1][c >> 1][tt]), fs[c]))
            sc.feed(ml)
            if k == 17: last1[(it, t)] = len(W.m) - 1
    gC = len(W.m); G = lambda g: g + gA - 354
    hq = [[A(4, f'hq{k}_{t}') for t in range(2)] for k in range(9)]
    Ca = [[SR(1, f'Ca{g}{L}') for L in range(2)] for g in range(3)]; Cb = SR(1, 'Cb')
    sQc = [SR(1, 'Qa'), SR(1, 'Qb')]
    two = lambda b: (lambda addr, tag: mkdma(vC, sC, b, 0, sQc[0])(addr, tag) + mkdma(vC, sC, b, 2 * 18432, sQc[1])(addr, tag))
    uC = [[Unit(f'C{g}{L}', 4 if g < 2 else 1, two(Ca[g][L]) if g < 2 else mkdma(vC[:1], sC, Ca[g][L], 0),
                (True if L == 0 and g < 2 else False)) for L in range(2)] for g in range(3)]
    vCl = [V(1, 'vCl0'), V(1, 'vCl1'), V(1, 'vCm2')]; vE = [V(1, f'vE{b}') for b in range(2)]
    uCl = Unit('Cl', 3, mkdma(vCl, sC, Cb, 0), False)
    accs = [[V(4, f's{t}_{a}') for a in range(2)] for t in range(9)]; lastS = {}
    for t in range(9):
        ml = []
        for k in range(9):
            if k < 8: f = bfrag(A(4, 'fc'), uC[t >> 2][k >> 2], vCr[k & 3], (t & 3) * 1024, ('c', t, k // 3))
            else: f = bfrag(A(4, 'fc'), uCl, vCr[4], t * 256, ('c', t, k // 3))
            for a in range(2): ml.append(M(I(MF, accs[t][a], hq[k][a], f.dst, 0 if k == 0 else accs[t][a]), f))
        sc.feed(ml); lastS[t] = len(W.m) - 1
    g2 = len(W.m)
    Hh = [V(8, f'Hh{x}') for x in range(4)]
    Hq = [[[(V if x == 3 and kl < 4 else A)(4, f'Hq{x}{kl}{a}') for a in range(2)] for kl in range(8)] + [[Hh[x][0:4], Hh[x][4:8]]] for x in range(4)]
    accd = [[V(4, f'd{t}_{a}') for a in range(2)] for t in range(12)]; seen = set(); lastD = {}; useH = {}
    Pf, Ph, Pl, Pm, Hp = [[SR(1, f'{n}{x}') for x in range(4)] for n in ('Pf', 'Ph', 'Pl', 'Pm', 'Hp')]; L8 = SR(1, 'L8'); L8h = SR(1, 'L8h')
    uD = [[Unit(f'D{x}{it}', 4, mkdma(vD, sD, Pf[x], it * 64 * 1152)) for it in range(4)] + [Unit(f'D{x}h', 2, mkdma(vD[:2], sD, Ph[x], 0))] for x in range(4)]
    uL = [Unit(f'L{it}', 2, mkdma(vD[:2], sD, L8, it * 64 * 1152)) for it in range(4)] + [Unit('Lh', 2, mkdma(vD[:2], sD, L8h, 0))]
    uD[0][4].brk = True
    uE = [[Unit(f'E{x}{L}', 4, mkdma(vD[:2] + vE, sD, (Pl, Pm)[L][x], 128 * 1152), f'{x}{L}' in o.get('ebrk', '10 11')) for L in range(2)] for x in range(4)]
    gcnt = [0]
    hold = []; F4 = o.get('snake', 0) & 16
    def dstep(x, kl, t, four=0):
        it, kk = kl >> 1, kl & 1
        if x and it in (2, 3): f = tfrag(uE[x][t >> 2], vU[t & 1], kk, (it - 2) * 2048 + ((t >> 1) & 1) * 512, ('d', gcnt[0] >> 2), o['rate2'])
        elif t < 8: f = tfrag(uD[x][it], vU[t & 1], t >> 2, kk * 2048 + ((t >> 1) & 1) * 512, ('d', gcnt[0] >> 2), o['rate2'])
        else: f = tfrag(uL[it], vU[t & 1], kk, ((t >> 1) & 1) * 512, ('d', gcnt[0] >> 2), o['rate2'])
        gcnt[0] += 1
        useH.setdefault((x, kl), len(W.m))
        ml = [M(I(MF, accd[t][a], Hq[x][kl][a], f.dst, accd[t][a] if t in seen else 0), f) for a in ((1, 0) if t & (4 if four else 1) and o.get('snake', 0) & 2 else (0, 1))]
        seen.add(t)
        if four:
            hold.append((t, ml))
            if len(hold) < 4: return
            sc.feed([x[0] for _, x in hold])
            for t, x in hold[::-1]: sc.feed([x[1]]); lastD[t] = len(W.m) - 1
            hold.clear(); return
        sc.feed(ml); lastD[t] = len(W.m) - 1
    for kl in (8, 0, 1, 2, 3, 4, 5, 6, 7):
        for t in (range(12) if kl != 7 else (8, 9, 10, 11, 0, 1, 2, 3, 4, 5, 6, 7)): dstep(0, kl, t, F4)
    gP = len(W.m)
    earlyH = [(x, kl) for x in (1, 2, 3) for kl in (8, 0, 1, 2, 3)]
    for x, kl in earlyH:
        for t in range(8): dstep(x, kl, t, F4)
    g3 = len(W.m)
    lateH = [(x, kl) for x in (1, 2, 3) for kl in range(4, 8)]
    pr = [A(4, f'pr{b}') for b in range(5)]; ps = [[V(4, f'ps{r}{i}') for i in range(2)] for r in range(3)]; pd = [[V(4, f'pd{r}{i}') for i in range(2)] for r in range(3)]
    xv = [V(4, f'xv{n}') for n in range(3)]; xf = [[V(4, f'xf{i}{a}') for a in range(2)] for i in range(2)]; xf4 = V(4, 'xf4'); Y4 = V(4, 'Y4'); D4 = V(4, 'D4')
    sel = V(4, 'sel'); idm = [V(4, 'id0'), V(4, 'id1')]; sA_ = V(8, 'selA'); selA = [sA_[2:6], sA_[0:4]]
    addp = lambda ac, src: [I(MF, ac[6 + i][a], selA[a], src[i], ac[6 + i][a]) for i in range(2) for a in range(2)]
    for ts in o.get('late', [[0, 1], [2, 3], [4], [5], [6], [7]]):
        for x, kl in lateH:
            for t in ts: dstep(x, kl, t)
        if t == o.get('t4', 3):
            gX = len(W.m)
            sc.feed([M(x) for x in inter([[I(MF, D4, sel, pr[1 + k], D4 if k else 0) for k in range(4)], [I(MF, xf[i][a], xv[a], idm[i], 0) for i in range(2) for a in range(2)]]) +
                     [I(MF, xf4, xv[2], idm[0], 0), I(MF, Y4, sel, pr[0], 0)]])
        if t == 5: gS = len(W.m); sc.feed([M(x) for r in range(3) for x in addp(accs, ps[r])])
    gD = len(W.m); sc.feed([M(x) for r in range(2) for x in addp(accd, pd[r])])
    gE = len(W.m)
    gSetC = gI[3] + o.get('setc', 40); gSetD = gI[3] + o.get('setd', 100)
    for u in sum(uC, []) + [uCl]: u.early = gSetC
    for u in sum(uD, []) + uL: u.early = gSetD
    sc.plan(lambda g: o['ep'], lambda g: 99, o['tail'])
    spacing = lambda g: o['sp'] if g < gSetC else o['sp2']
    XS, CS = o.get('xs'), o.get('cs'); sc.res = o.get('res', 3 * bool(XS) + 3 * bool(CS)); sc.pl = o.get('pl', 3)
    def xadr(z, nm):
        t0 = z.s('s_lshr_b32', jg, 1); t0 = z.s('s_lshl2_add_u32', t0, w); t1 = z.s('s_and_b32', jg, 1); t0 = z.s('s_lshl1_add_u32', t0, t1); tb = z.s('s_lshl_b32', t0, 3, name='tb')
        t1 = z.s('s_lshl_b32', mt, 7); t0 = z.s('s_add_u32', t1, tb); t0 = z.s('s_mul_i32', t0, 1152)
        kc = z.s('s_lshl2_add_u32', jq, jg); kc = z.s('s_lshl_b32', kc, 6); k8 = z.s('s_lshl_b32', jq, 5); k8 = z.s('s_add_u32', k8, 1024); x8 = z.s('s_add_u32', t0, k8)
        t1 = z.s('s_add_u32', t1, tk0); t1 = z.s('s_mul_i32', t1, 1152); xc = [z.s('s_add_u32', t1, kc)]; xc.append(z.s('s_add_u32', xc[0], 4608))
        t = z.v('v_lshrrev_b32', 3, col); c3 = z.v('v_and_b32', 3, col); ae = z.v('v_lshl_add_u32', t, 2, c3, name='ae'); q1 = z.v('v_and_b32', 1, q); c4 = z.v('v_lshrrev_b32', 2, col)
        vx = vx8 = None
        if nm:
            t = z.v('v_mul_u32_u24', 1152, ae); vx8 = z.v('v_lshl_add_u32', q1, 4, t, name='vXt0')
            t = z.v('v_lshl_add_u32', c4, 4, c3); t = z.v('v_mul_u32_u24', 1152, t); vx = z.v('v_lshl_add_u32', q, 4, t, name='vXs0')
        return tb, kc, k8, x8, xc, c3, ae, q1, c4, vx, vx8
    def clpat(qs, u1):
        t = qs.v('v_lshrrev_b32', 1, col); t = qs.v('v_mul_u32_u24', 1152, t); t2 = qs.v('v_and_b32', 16, l16); t = qs.v('v_add3_u32', t, t2, u1)
        u0 = qs.s('s_lshl_b32', jx, 1); t2 = qs.v('v_xor_b32', u0, q); t3 = qs.v('v_xor_b32', 4, t2); t2 = qs.v('v_mul_u32_u24', 18432, t2); t3 = qs.v('v_mul_u32_u24', 18432, t3)
        t2 = qs.v('v_add_u32', 1024, t2); qs('v_add_u32', vCl[0], t, t2); qs('v_add_u32', vCl[1], t, t3)
        u0 = qs.s('s_mul_i32', jq, 7 * 18432); u0 = qs.s('s_sub_u32', 32 * 18432 - 1024, u0); t2 = qs.v('v_lshlrev_b32', 24, q); qs('v_add3_u32', vCl[2], u0, t, t2)
    if XS:
        def xdma(addr, tag):
            z = Q(); r = xr0[0] if xr0 else xadr(z, 1)
            for n in range(3): z('s_add_u32', 'm0', sQ, addr + 1024 * n); z.append(dma(r[9 + n // 2], sX, (r[4] + [r[3]])[n], 0, tag))
            return list(z)
        uXs = Unit('Xs', 3, xdma); uXs.pin = XS; uXs.addr = 33 * 1024; xr0 = []
        if XS > 0: sc.extra.append(uXs)
    if CS:
        def cdma(addr, tag, f=uCl.dma):
            z = Q(); u0 = z.s('s_mul_i32', jq, 8 * 18432); u2 = z.s('s_lshl_b32', jg, 5); z('s_add_u32', Cb, u0, u2); clpat(z, z.s('s_mul_i32', tw, 8 * 1152))
            return list(z) + f(addr, tag)
        uCl.dma = cdma; uCl.pin = G(CS); uCl.addr = (30 if XS else 33) * 1024
    sc.allocate(o['p0max'], spacing)
    bar = sc.bar
    col = p.v('v_and_b32', 15, l, name='col'); l16 = p.v('v_lshlrev_b32', 4, l, name='l16')
    big = p.v('v_mov_b32', BIG); p('v_cmp_ne_u32', 'vcc', 0, v0); vM0 = p.v('v_cndmask_b32', 0, big, 'vcc', name='vM0')
    t = p.v('v_mul_u32_u24', 9216, rm); p('v_add_u32', vW[0], t, c64)
    for b in (1, 2, 3): p('v_add_u32', vW[b], b * (16 * 9216 - 1024), vW[0])
    for u in sc.p0:
        d_ = u.dma(u.addr, f'E{u.epoch}'); vm += [d_[:3]] + [[x] for x in d_[3:]]
    if XS and o.get('xp', 1): xr0.append(xadr(p, 1))
    if XS and XS < 0: d_ = xdma(uXs.addr, 'E3'); vm += [d_[0:2], d_[2:4], d_[4:6]]
    if LOC & 24: ml, S = mlS(p)
    t0 = p.s('s_lshl2_add_u32', ml if LOC & 16 else mt, jq); t1 = p.s('s_lshl2_add_u32', t0, w); t1 = p.s('s_lshl2_add_u32', t1, jg); t1 = p.s('s_mul_i32', t1, SRC)
    if LOC & 16: t1 = fix(p, p.s('s_add_u32', t1, S))
    Pb = p.s('s_add_u32', t1, 0x6800000 if LOC & 16 else P8_OFF, name='Pb')
    if LOC & 24 in (8, 16): t0 = p.s('s_lshl2_add_u32', ml if LOC & 8 else mt, jq)
    jx = p.s('s_xor_b32', jg, 3, name='jx'); t0 = p.s('s_lshl2_add_u32', t0, jx); Pp = []
    PXo = (0x7000000, 0x7001000, 0x7004000)
    if LOC & 8:
        t1 = p.s('s_lshl2_add_u32', t0, w); t1 = p.s('s_lshl_b32', t1, 15); t1 = fix(p, p.s('s_add_u32', t1, S))
        for r in range(3): Pp.append(p.s('s_xor_b32', t1, PXo[r] + (r << 17), name=f'Pp{r}'))
    for r in range(0 if LOC & 8 else 3):
        t1 = p.s('s_xor_b32', t0, r); t1 = p.s('s_lshl2_add_u32', t1, w); t1 = p.s('s_mul_i32', t1, PW); Pp.append(p.s('s_add_u32', t1, PX_OFF + 4096 * r, name=f'Pp{r}'))
    mw = p.s('s_lshl2_add_u32', mt, w, name='mw')
    dmy = SR(1, 'dmy')
    def touches():
        p.append(DEF(dmy))
        def touch(srd, so):
            x = p('s_buffer_load_dword', dmy, srd, so); x.kind = 'K'; x.d = []
        p('s_cmp_ge_u32', wid, o.get('tn', 8)); p('s_cbranch_scc1', 'L_nt')
        t0 = p.s('s_lshl_b32', w, 21); T = o['tlb']
        if T & 1: touch(sC, 0); touch(sK, 0); touch(sD, t0)
        if T & 2: touch(sG, 0); touch(sO, t0)
        if T & 4:
            for k in range(6): touch(sS, p.s('s_add_u32', t0, k << 23))
        p.append(LABEL('L_nt'))
    if o['tlb'] and not o.get('tp'): touches()
    t = p.v('v_lshlrev_b32', 6, row); l3 = p.v('v_and_b32', 3, l); t = p.v('v_lshl_add_u32', l3, 3, t); tp0 = p.v('v_lshl_add_u32', r2, 5, t)
    f9 = p.s('s_lshl_b32', fw, 9, name='f9'); t = p.v('v_lshl_add_u32', hi, 10, tp0); p('v_add_u32', vT[0][0], f9, t); p('v_xor_b32', vT[1][0], 32, vT[0][0])
    t0 = p.s('s_lshl_b32', fw, 5); t = p.v('v_lshl_add_u32', hi, 9, tp0); p('v_xor_b32', vTh[0], t0, t)
    for r in (vT[0], vT[1], vTh):
        for k in (1, 2): p('v_add_u32', r[k], 65536 * k, r[0])
    ih = p.v('v_bfe_u32', l, 3, 1); i1 = p.v('v_bfe_u32', l, 1, 3); t = p.v('v_xor_b32', q, i1); t = p.v('v_lshlrev_b32', 4, t); L0 = p.v('v_lshl_add_u32', sl, 7, t)
    LX = p.v('v_lshl_add_u32', ih, 10, L0)
    t0 = p.s('s_mul_i32', tw, 2 * QS); p('v_add_u32', vXr[0][0], t0, LX); p('v_add_u32', vXr[0][1], QS, vXr[0][0])
    t0 = p.s('s_lshl1_add_u32', je, tw); t0 = p.s('s_mul_i32', t0, QS); t0 = p.s('s_lshl2_add_u32', f9, t0); p('v_add_u32', vXm[0], t0, LX)
    t = p.v('v_mul_u32_u24', QS, ih); p('v_add_u32', vBq[0][0], t, L0); p('v_add_u32', vBq[0][1], 2 * QS, vBq[0][0])
    t0 = p.s('s_mul_i32', fw, 2 * QS); p('v_add_u32', vBr[0], t0, vBq[0][0])
    for a, b in ((vXr[1][0], vXr[0][0]), (vXr[1][1], vXr[0][1]), (vXm[1], vXm[0]), (vBq[1][0], vBq[0][0]), (vBq[1][1], vBq[0][1]), (vBr[1], vBr[0])): p('v_xor_b32', a, 64, b)
    vQ = p.v('v_add_u32', sQ, l16, name='vQ')
    t0 = p.s('s_lshl_b32', jq, 10); p('v_add_u32', vXw[0], t0, vQ)
    for g in (1, 2, 3): p('v_xor_b32', vXw[g], g * 1024, vXw[0])
    t = p.v('v_lshlrev_b32', 4, b0); c_ = p.v('v_mov_b32', 0x3f80); one = p.v('v_lshlrev_b32', t, c_)
    p('v_cmp_eq_u32', 'vcc', 0, b1); p('v_cndmask_b32', idn[0], 0, one, 'vcc'); p('v_xor_b32', idn[1], idn[0], one)
    asum = V(4, 'asum'); t = p.v('v_bfe_u32', l, 2, 2); c_ = p.v('v_mov_b32', 0x3f803f80); p('v_cmp_eq_u32', 'vcc', t, q)
    for e in range(4): p('v_cndmask_b32', asum[e], 0, c_, 'vcc')
    kb0 = SR(2, 'kb0'); kb1 = SR(2, 'kb1')
    p('v_cmp_ne_u32', kb0, 0, b0); p('v_cmp_ne_u32', kb1, 0, b1)
    rc = p.s('s_mov_b32', o['rc'], name='rc')
    p.extend(st.t(4))
    c = P()
    sgn = c.v('v_lshlrev_b32', 31, ih)
    vKw = c.v('v_lshl_add_u32', l, 3, sQ)
    lre, lim, ldt = [c.v('v_lshlrev_b32', 16, x) for x in raw]
    t = c.v('v_mul_f32', LOG2E, ldt); dt = c.v('v_exp_f32', t)
    den = c.v('v_mul_f32', lre, lre); c('v_fmac_f32', den, lim, lim); rd = c.v('v_rcp_f32', den)
    dt = c.v('v_cvt_pk_bf16_f32', dt, dt); dt = c.v('v_and_b32', 0xffff0000, dt)
    xr_ = c.v('v_mul_f32', dt, lre); xi = c.v('v_mul_f32', dt, lim)
    t = c.v('v_mul_f32', LOG2E, xr_); mag = c.v('v_exp_f32', t)
    t = c.v('v_mul_f32', 1 / (2 * math.pi), xi); t = c.v('v_fract_f32', t)
    cs = c.v('v_cos_f32', t); sn = c.v('v_sin_f32', t)
    rd = c.v('v_add_f32', rd, rd)
    k1 = V(2); c('v_mul_f32', k1[0], mag, cs); b = c.v('v_mul_f32', mag, sn)
    am = c.v('v_add_f32', -1.0, k1[0])
    cr = c.v('v_mul_f32', am, lre); c('v_fmac_f32', cr, b, lim)
    ci = c.v('v_mul_f32', b, lre); ci = c.v('v_fma_f32', Neg(am), lim, ci)
    k0 = V(2); cr = c.v('v_mul_f32', cr, rd); c('v_mul_f32_e64', k0[1], Neg(ci), rd); c('v_xor_b32', k0[0], sgn, cr)
    c('v_xor_b32', k1[1], sgn, b)
    CI = {'cf': 0, 'l1': 1, 'l16': 2, 'l64': 3, 'l512': 4}
    def kput(nm, r): c('ds_write_b64', vKw, r, mods=f'offset:{CST + 512 * CI[nm]}')
    kput('cf', k0); kput('l1', k1); cur = k1
    for n in range(1, 10):
        nx = V(2); a2 = c.v('v_mul_f32', cur[0], cur[0]); t = c.v('v_add_f32', cur[0], cur[0])
        c('v_fma_f32', nx[0], Neg(cur[1]), cur[1], a2); c('v_mul_f32', nx[1], t, cur[1]); cur = nx
        if n in (4, 6, 9): kput(f'l{1<<n}', cur)
    cst = list(c)
    sS_ = [V(4, f'sum{g}') for g in range(4)]; sQ_ = [V(4, f'sq{g}') for g in range(4)]; nmean = []; qsum = []
    def post(g):
        r = P(); a = sS_[g][0]
        for m in ('quad_perm:[1,0,3,2]', 'quad_perm:[2,3,0,1]', 'row_half_mirror'): a = r.v('v_add_f32_dpp', a, a, mods=m + DM)
        a = r.v('v_mul_f32', -1.0 / 576, a); nmean.append(a); t = r.v('v_cvt_pk_bf16_f32', a, a)
        for e in range(4): r('v_and_b32', Cm[g][e], 0xffff0000, t)
        r2_ = P(); b = r2_.v('v_mov_b32_dpp', sQ_[g][0], mods='quad_perm:[0,0,0,0]' + DM)
        for e in (1, 2, 3): b = r2_.v('v_add_f32_dpp', sQ_[g][e], b, mods=f'quad_perm:[{e},{e},{e},{e}]' + DM)
        b = r2_.v('v_add_f32_dpp', b, b, mods='row_half_mirror' + DM); qsum.append(b)
        out = inter([r, r2_]); prev = None
        for s in range(pre(g)):
            ti, cv = center(g, s); out += ti
            if prev: out += prev
            prev = cv + ([xwrite(g, s)] if s < NS else [])
        return out + prev
    pend = []
    if o.get('cst0', 2) == 2: p.extend(cst[:8] + (st.t(15) if o.get('bst') else []) + cst[8:]); cst = []
    if o['tlb'] and o.get('tp'): touches()
    for _ in range(o.get('xa1', 9)): p.extend(vm.pop(0))
    for g in range(4):
        per = -(-len(pend) // 9)
        for s in range(9):
            x = xr[g][s]; f = pend[:per]; pend = pend[per:]
            p(TINY, sQ_[g], x[0:2], x[0:2], 0 if s == 0 else sQ_[g]); p(MF, sS_[g], asum, x, 0 if s == 0 else sS_[g])
            if g == 0 and s == o.get('s16', 0) and o.get('bst'): p.extend(st.t(16))
            if vm: p.extend(vm.pop(0))
            p.extend(f[:2]); p(TINY, sQ_[g], x[2:4], x[2:4], sQ_[g]); p.extend(f[2:])
        p.extend(st.t(5 + g))
        pend = post(g)
        if g == 0 and o.get('cst0', 2) == 1: p.extend(cst); cst = []
    k = max(1, len(pend) // (len(vm) + 1))
    while pend or vm:
        p.extend(pend[:k]); pend = pend[k:]
        if vm: p.extend(vm.pop(0))
    if o['tlb']: p.append(WAIT(lgkm=0)); p.append(KEEP(dmy))
    sc.xlg[0].append(f'xw{NS-1}')
    qc = []; qw = []
    for s in range(NS, 9):
        e = uX[s].epoch
        for g in range(4):
            x = xwrite(g, s); x.ready = bar[uX[s].at] + 1; x.dead = bar[e] - 9 + 2 * g; qw.append(x)
            if (g, s) in ctr:
                ti, cv = ctr[(g, s)]; cv[0].deps = [(ti[1], 2)]; cv[-1].dead = ti[1].gap + 7; qc += cv; x.deps = [(cv[-1], 0)]
        sc.xlg[e].append(f'xw{s}')
    W.queue(qc, 45, 'ctr'); W.queue(qw, 46, 'xw')
    e1 = sc.barafter(gI[2] + o['pub1']); sc.xvm[e1] += ['hs', 'H0', 'H1']
    eh = sc.barafter(gI[3] + 130); sc.xvm[eh] += ['H2']
    e2 = sc.barafter(gC + o['pub2']); sc.xvm[e2] += ['H3', 'sp']
    e3 = sc.barafter(lastD[11] + o['pub3']); sc.xvm[e3] += ['d8']
    qe = P(); qt = Q()
    if LOC & 2:
        ml, S = mlS(qt); t0 = qt.s('s_lshl2_add_u32', ml, tw); t0 = qt.s('s_lshl_b32', t0, 5); t0 = qt.s('s_add_u32', t0, j); t0 = qt.s('s_lshl_b32', t0, 15)
        t0 = qt.s('s_add_u32', t0, S); e0 = qt.s('s_lshl1_add_u32', f9, t0); Hs = qt.s('s_lshl1_add_u32', f9, e0, name='Hs')
        es = [qt.s('s_xor_b32', e0, 0x4202000 + k * 0x80000) for k in range(2)]
    else:
        t0 = qt.s('s_lshl1_add_u32', mt, tw); t0 = qt.s('s_mul_i32', t0, 288); t1 = qt.s('s_mul_i32', j, 9); t0 = qt.s('s_add_u32', t0, t1)
        t0 = qt.s('s_lshl1_add_u32', t0, fw); t0 = qt.s('s_lshl_b32', t0, 10); e0 = qt.s('s_add_u32', t0, H_OFF + 16384)
        Hs = qt.s('s_lshl1_add_u32', f9, e0, name='Hs')
        es = [e0, qt.s('s_add_u32', e0, 144 * 2048)]
    qt[0].ready = gA - 60
    def epi(g, u, dst, ready):
        n0 = len(qe)
        for e in range(4): qe('v_mul_f32', g[e], g[e], u[e])
        for e in range(2): qe('v_cvt_pk_bf16_f32', dst[e], g[2 * e], g[2 * e + 1])
        qe[n0].ready = ready
    def hst(r, so, off, tag, g0):
        x = qt('buffer_store_dwordx4', r, l16, sS, so, mods=f'offen offset:{off} sc1', tag=tag)
        x.deps = [(qe[-1], 1)]; x.need = g0; x.dead = min(g0 + o['hst'], gE + 9); x.soft = 1; qe[-1].dead = min(getattr(qe[-1], 'dead', 1 << 30), x.dead - 2); return x
    for a in range(2):
        r = V(4, 'Hh')
        for k in range(2): epi(acch[0][2*a+k], acch[1][2*a+k], r[2*k:2*k+2], gA - 4 + 2*a + k + 3)
        if a: qe[-1].dead = first1[(0, 1)] + 4
        hl8 = hst(r, es[a], 0, 'H0', gA + 20)
    hlast = {8: hl8}
    for it in range(4):
        Hf = [V(4, f'Hf{tt}') for tt in range(4)]; ac = acc1[it]
        es = [qt.s('s_xor_b32', Hs, 0x4000000 + (it >> 1) * 16384 + (it & 1) * 4096 + k * 0x80000) if LOC & 2 else qt.s('s_add_u32', Hs, it * 4096 - 16384 + k * 144 * 2048) for k in range(2)]; qt[-2].ready = last1[(it, 1)] - 10
        for t in range(2):
            for tt in range(4):
                epi(ac[0][t][tt], ac[1][t][tt], Hf[tt][2*t:2*t+2], last1[(it, t)] + tt)
                if it < 3: qe[-1].dead = first1[(it + 1, t)] + tt - 1
                if t == 1: hlast[it] = hst(Hf[tt], es[tt >> 1], (tt & 1) * 1024, f'H{it}', last1[(it, 1)] + 10 + 10 * tt)
    def part(ac, so, off, ready, tag):
        r = V(4, 'pk'); n0 = len(qe)
        for e in range(4): qe('v_cvt_pk_bf16_f32', r[e], ac[e >> 1][2*(e&1)], ac[e >> 1][2*(e&1)+1])
        qe[n0].ready = ready + 3
        return hst(r, so, off, tag, ready + 10)
    for t in (0, 1, 2, 3, 4, 5, 8): slast = part(accs[t], Pp[t >> 1] if t < 8 else Pb, (t & 1) * 1024, lastS[t], 'sp' if t < 8 else 'd8')
    t0 = qt.s('s_mul_i32', jq, 4 * FIN - 1024); P8 = qt.s('s_sub_u32', Pb, t0); t1 = qt.s('s_and_b32', jx, 1); t1 = qt.s('s_lshl_b32', t1, 1)
    for u in range(4):
        e0 = qt.s('s_xor_b32', t1, u); e0 = qt.s('s_mul_i32', e0, 4 * FIN); e0 = qt.s('s_add_u32', e0, P8); d8 = part(accd[8 + u], e0, 1024, lastD[8 + u], 'd8')
    d8.dead = min(d8.dead, bar[e3] - 20)
    dst_ = []
    for t in range(6):
        dst_.append(part(accd[t], Pp[t >> 1], 2048 + (t & 1) * 1024, lastD[t], 'dp')); dst_[-1].back = 2000; dst_[-1].need = 0; dst_[-1].chain = 1
    W.queue(qe, 40, 'epi'); W.queue(qt, 47, 'st')
    qs = Q()
    x0 = qs.s('s_and_b32', jx, 1, name='x0'); x1 = qs.s('s_lshr_b32', jx, 1, name='x1'); fx = qs.s('s_xor_b32', fw, x1, name='fx')
    u0 = qs.s('s_mul_i32', jq, 8 * 18432); u1 = qs.s('s_lshl1_add_u32', jg, Tr); u1 = qs.s('s_lshl_b32', u1, 7); u4 = qs.s('s_add_u32', u0, u1)
    u2 = qs.s('s_mul_i32', x1, 4 * 18432); qs('s_add_u32', Ca[0][0], u4, u2); u2 = qs.s('s_sub_u32', 4 * 18432, u2); qs('s_add_u32', Ca[1][0], u4, u2)
    if not CS: u2 = qs.s('s_lshl_b32', jg, 5); qs('s_add_u32', Cb, u0, u2)
    u0 = qs.s('s_lshl_b32', x0, 11); qs('s_add_u32', sQc[0], sQ, u0); qs('s_xor_b32', sQc[1], 2048, sQc[0])
    u0 = qs.s('s_mul_i32', jq, 18432); u0 = qs.s('s_add_u32', u0, 32 * 18432); qs('s_add_u32', Ca[2][0], u0, u1)
    for g in range(3): qs('s_xor_b32', Ca[g][1], 128, Ca[g][0])
    if LOC & 2: ml, S = mlS(qs); u3 = qs.s('s_lshl3_add_u32', ml, w); u3 = qs.s('s_lshl_b32', u3, 19); u3 = qs.s('s_add_u32', u3, S); u3 = qs.s('s_xor_b32', u3, 0x4000000)
    else: u3 = qs.s('s_mul_i32', mw, 144 * 2048); u3 = qs.s('s_add_u32', u3, H_OFF)
    u2 = qs.s('s_mul_i32', fw, 36864); t0 = qs.s('s_lshl_b32', fx, 7); u2 = qs.s('s_sub_u32', u2, t0)
    t0 = qs.s('s_lshl_b32', x1, 7); u5 = qs.s('s_add_u32', u2, t0); t0 = qs.s('s_xor_b32', t0, 128); u6 = qs.s('s_add_u32', u2, t0)
    for x in range(4):
        u0 = qs.s('s_add_u32', jq, x); u0 = qs.s('s_and_b32', u0, 3); u1 = qs.s('s_and_b32', u0, 1); u0 = qs.s('s_lshl2_add_u32', jg, u0)
        t0 = qs.s('s_mul_i32', u0, 32768 if LOC & 2 else 18432); qs('s_add_u32', Hp[x], t0, u3)
        u0 = qs.s('s_mul_i32', u0, 9); t0 = qs.s('s_add_u32', u0, u1); qs('s_mul_i32', Pf[x], t0, 36864)
        u1 = qs.s('s_xor_b32', u1, 1); u0 = qs.s('s_lshl3_add_u32', u1, u0); qs('s_mul_i32', Ph[x], u0, 36864)
        if x: qs('s_add_u32', Pl[x], Pf[x], u5); qs('s_add_u32', Pm[x], Pf[x], u6)
    u0 = qs.s('s_lshl_b32', jq, 8); u0 = qs.s('s_sub_u32', 1024, u0); u0 = qs.s('s_add_u32', u0, u2)
    qs('s_add_u32', L8, Pf[0], u0); qs('s_add_u32', L8h, Ph[0], u0)
    qs[0].ready = gI[2] + 20; qs[-1].dead = gI[3] - 70; sdone = qs[-1]
    n0 = len(qs)
    t = qs.v('v_and_b32', 7, col); t = qs.v('v_xor_b32', t, q); t2 = qs.v('v_lshlrev_b32', 4, t)
    u0 = qs.s('s_lshl_b32', tw, 6); u1 = qs.s('s_mul_i32', tw, 8 * 1152)
    t = qs.v('v_lshrrev_b32', 7, l16); t = qs.v('v_mul_u32_u24', 1152, t); t = qs.v('v_xad_u32', t2, u0, t); qs('v_add_u32', vC[0], u1, t); qs('v_add_u32', vC[1], 18432 - 1024, vC[0])
    if not CS: clpat(qs, u1)
    qs[n0].ready = gSetC - 100; qs[-1].dead = gSetC - 1
    u0 = qs.s('s_lshl1_add_u32', jq, fx); u0 = qs.s('s_lshl_b32', u0, 7); u1 = qs.s('s_mul_i32', tw, 16 * 1152); u0 = qs.s('s_add_u32', u0, u1)
    t = qs.v('v_bfe_u32', l16, 6, 3); t = qs.v('v_mul_u32_u24', 1152, t); t2 = qs.v('v_and_b32', 127, vW[0]); u1 = qs.s('s_lshl_b32', x0, 6); t = qs.v('v_xad_u32', t2, u1, t); qs('v_add_u32', vD[0], u0, t)
    for b, k in ((1, 8192), (2, 36864 - 2048), (3, 46080 - 3072)): qs('v_add_u32', vD[b], k, vD[0])
    qs[-1].dead = gSetD - 1
    t = qs.v('v_bfe_u32', col, 1, 3); t4 = qs.v('v_and_b32', 1, q); t = qs.v('v_xor_b32', t, t4); t = qs.v('v_lshlrev_b32', 4, t)
    t5 = qs.v('v_and_b32', 7, col); t = qs.v('v_lshl_add_u32', t5, 7, t)
    t2 = qs.v('v_lshrrev_b32', 3, col); t3 = qs.v('v_lshrrev_b32', 1, q); t2 = qs.v('v_lshl_add_u32', t2, 1, t3); t2 = qs.v('v_mul_u32_u24', QS, t2)
    u0 = qs.s('s_lshl_b32', je, 6); qs('v_xad_u32', vCr[0], t, u0, t2)
    for k in (1, 2, 3): qs('v_xor_b32', vCr[k], 32 * k, vCr[0])
    t = qs.v('v_lshl_add_u32', t5, 1, t4); qs('v_lshl_add_u32', vCr[4], t, 4, t2)
    qs[-1].dead = gC - 40
    n0 = len(qs)
    for a in range(2):
        for k in range(3): qs('v_subrev_u32', vU[a][k], f9, vT[a][k])
    qs('v_add_u32', vE[0], 73728 - 2048, vD[0]); qs('v_add_u32', vE[1], 73728 + 9216 - 3072, vD[0])
    qs[n0].ready = gC; qs[-1].dead = g2 - 70
    W.queue(qs, 5, 'setup')
    qp = Q(); pfl = []; warm = {}
    def pfs(xs, g):
        for x in xs: x.need = g; x.ready = g
        if o.get('pfb', 1):
            for x in xs[1:]: x.chain = 1; x.back = 1e9; x.need = -9
        pfl.append((g, xs))
    vP9 = V(1, 'vP9'); a_ = Q()
    t0 = a_.s('s_lshl_b32', jg, 6); t0 = a_.s('s_add_u32', t0, n2); t0 = a_.s('s_lshl1_add_u32', t0, fw); sPD = a_.s('s_mul_i32', t0, 9 * 1152)
    sPC = a_.s('s_mul_i32', n2, 9 * 1152); t0 = a_.s('s_lshl_b32', jg, 8); sPC2 = a_.s('s_add_u32', sPC, t0); a_('v_lshrrev_b32', vP9, 3, vPW)
    g0 = min(g for g, its in plan if any(c_ in its.upper() for c_ in ('D', 'C', 'E', 'N8'))); a_[0].ready = G(g0) - 30; pfl.append((G(g0) - 30, list(a_)))
    for g, its in plan:
        xs = []; a_ = Q()
        def alt(base, step, second):
            t0 = a_.s('s_bfe_u32', wid, (1 << 16) | HB)
            if second ^ o.get('flip', 0): t0 = a_.s('s_xor_b32', t0, 1)
            t0 = a_.s('s_mul_i32', t0, step); return a_.s('s_add_u32', base, t0)
        def lag(base, a, b):
            t0 = a_.s('s_bfe_u32', wid, (1 << 16) | HB); a, b = [BIG if x is None else x for x in ((b, a) if o.get('near', 0) else (a, b))]
            t0 = a_.s('s_mul_i32', t0, (b - a) & 0xffffffff); t0 = a_.s('s_add_u32', base, t0); return a_.s('s_add_u32', t0, a) if a else t0
        for c_, n in its.split():
            n0 = len(xs); low = c_.islower(); c_ = c_.upper()
            if c_ == 'Z': n = int(n); so = lag(sPW, 128 * n if n < 4 else None, 128 * n - 128 if n else None); xs += [pf(vPW, sW, so, 128 * k, 9, '', 'm' if n == 4 else 'c') for k in (0, 5, 9, 14)]
            elif c_ == 'E': n = int(n); so = lag(sPD, 512 * n if n < 2 else None, 512 * n - 512 if n else None); xs += [pf(vP9, sD, so, 128 * k, 9, '', 'm' if n == 2 else 'c') for k in range(4)]
            elif c_ in 'NF':
                ab = (0, None) if c_ == 'N' else (None, 0); cl_ = 'c' if c_ == 'N' else 'm'
                if n in '0123': so = lag(sPW, *ab); xs += [pf(vPW, sW, so, 128 * (k + int(n)), 9, '', cl_) for k in (0, 5, 9, 14)]
                elif n == '8': xs += [pf(vP9, sD, lag(sPD, *ab), 1024, 9, '', cl_)]
                else: s1 = lag(sPC2, *ab); s2 = lag(sPC, *ab); xs += [pf(vP9, sC, s1, 0, 9, '', cl_), pf(vP9, sC, s1, 128, 9, '', cl_), pf(vP9, sC, s2, 1024, 9, '', cl_)]
            elif c_ in 'WXY': so = sPW if c_ == 'W' else alt(sPW, 128, c_ == 'Y'); xs += [pf(vPW, sW, so, 128 * (k + int(n)), 9, '', 'm' if c_ == 'Y' else 'c') for k in (0, 5, 9, 14)]
            elif c_ in 'PQ': so = alt(sPW, 1152, c_ == 'Q'); xs += [pf(vPW, sW, so, 128 * (k + int(n)), 9, '', 'm' if c_ == 'Q' else 'c') for k in (0, 5)]
            elif c_ == 'D' and n in 'ab': so = alt(sPD, 512, n == 'b'); xs += [pf(vP9, sD, so, 128 * k, 9, '', 'm' if n == 'b' else 'c') for k in range(4)]
            elif c_ == 'D': xs += [pf(vP9, sD, sPD, 128 * k, 9) for k in {'l': range(4), 'h': range(4, 8), '8': [8]}[n]]
            elif c_ == 'K': t = a_.v('v_lshlrev_b32', 3, l16); xs += [pf(t, sK, 0, 0, 2.25)]
            elif c_ == 'H':
                assert not LOC & 2; e = sc.barafter(G(g) - 8); assert bar[e] < G(g), (bar[e], g); sc.xvm[e].append('H0' if n == '8' else 'H' + n); warm[n] = bar[e]
                t = a_.v('v_and_b32', 1, q); t = a_.v('v_mul_u32_u24', 144 * 2048, t); t = a_.v('v_lshl_add_u32', col, 7, t); t2 = a_.v('v_lshrrev_b32', 9, l16)
                if n == '8': t3 = a_.v('v_and_b32', 8, col); t2 = a_.v('v_add_u32', t2, t3); so = a_.s('s_lshl_b32', fw, 10); so = a_.s('s_sub_u32', Hs, so)
                else: so = a_.s('s_add_u32', Hs, int(n) * 4096 - 16384)
                t = a_.v('v_lshl_add_u32', t2, 27, t); xs += [pf(t, sS, so, 0, 16 if n == '8' else 32, ' sc1', 'm')]
            elif c_ == 'L':
                t0 = a_.s('s_lshl1_add_u32', n2, fw); t1 = a_.s('s_lshr_b32', t0, 5); t0 = a_.s('s_and_b32', t0, 31); t2 = a_.s('s_and_b32', t1, 1); t0 = a_.s('s_lshl3_add_u32', t2, t0)
                t1 = a_.s('s_lshl2_add_u32', jg, t1); t1 = a_.s('s_mul_i32', t1, 72); t0 = a_.s('s_add_u32', t0, t1); t0 = a_.s('s_add_u32', t0, 32); so = a_.s('s_mul_i32', t0, 4608)
                t = a_.v('v_min_u32', 35 * 16, l16); t = a_.v('v_lshlrev_b32', 3, t); xs += [pf(t, sD, so, 0, 36, '', n)]
            elif c_ == 'T':
                t = a_.v('v_lshlrev_b32', 24, l16); tl = []
                if n in 'as':
                    t0 = a_.s('s_mul_i32', mw, 144); t1 = a_.s('s_mul_i32', j, 9); t0 = a_.s('s_add_u32', t0, t1); t0 = a_.s('s_lshl_b32', t0, 11); tl.append((sS, a_.s('s_add_u32', t0, H_OFF)))
                    t0 = a_.s('s_lshl4_add_u32', mw, j); t0 = a_.s('s_lshl_b32', t0, 12); tl.append((sS, a_.s('s_add_u32', t0, HF_OFF)))
                    tl += [(sS, Pp[0]), (sS, Pp[2]), (sS, Pb)]
                if n in 'ai':
                    t0 = a_.s('s_lshl2_add_u32', jg, w); tl += [(sD, a_.s('s_mul_i32', t0, 288 * 1152)), (sC, 0), (sK, 0), (sO, a_.s('s_mul_i32', mw, 32 * 2304))]
                xs += [pf(t, r, so, 0, 1) for r, so in tl]
            elif n in 'ab': xs += [pf(vP9, sC, alt(sPC2, 128, n == 'b'), 0, 9, '', 'm' if n == 'b' else 'c')]
            elif n == '8': xs += [pf(vP9, sC, sPC, 1024, 9, '', 'm')]
            elif n == 't':
                t0 = a_.s('s_and_b32', wid, 7); t0 = a_.s('s_mul_i32', t0, 1152); t0 = a_.s('s_add_u32', t0, sPC); t = a_.v('v_min_u32', 1152, vP9); xs += [pf(t, sC, t0, 1024, 2)]
            else: xs += [pf(vP9, sC, sPC2, 0, 9), pf(vP9, sC, sPC2, 128, 9), pf(vP9, sC, sPC, 1024, 9)][:3 if n == '0' else 2]
            if low:
                for x in xs[n0:]: x.mods += o.get('pm', ' nt'); x.mc = (x.mc[0], o.get('lc', x.mc[1]))
        g = G(g) if g > 100 else g
        if a_: a_[0].ready = g - 20; pfl.append((g - .5, list(a_)))
        pfs(xs, g)
    for g in o.get('pcode', []):
        a_ = Q(); t0 = a_.s('s_lshl_b32', wid, 4); t0 = a_.s('s_and_b32', t0, 31 * 128); t1 = a_.s('s_lshl_b32', w, 18); t0 = a_.s('s_add_u32', t0, t1)
        t = a_.v('v_lshl_add_u32', l16, 8, t0); a_[0].ready = G(g) - 10; x = pf(t, sI, 0, 0, 3.5, c='m'); x.need = -9; x.back = 1e9; x.chain = 1; pfl.append((G(g), list(a_) + [x]))
    for g, xs in sorted(pfl, key=lambda x: x[0]): qp.extend(xs)
    qp.append(KEEP(pfd)); qp[-1].ready = max([gC] + o.get('pcode', []) + [g for g, _ in plan]) + 100
    W.queue(qp, 48, 'pf')
    RS = 7 if o.get('k', 0) & 32 else 6
    qi = Q(); eI = o['eI']; sc.xvm[eI].append('init')
    t0 = qi.s('s_lshl1_add_u32', mt, tw); t0 = qi.s('s_sub_u32', 31, t0); t1 = qi.s('s_lshl_b32', Gn, 5); t0 = qi.s('s_add_u32', t0, t1); a0 = qi.s('s_lshl_b32', t0, 7, name='a0')
    t0 = qi.s('s_lshl1_add_u32', mt, je); t0 = qi.s('s_sub_u32', 31 + (AR_OFF >> RS), t0); t1 = qi.s('s_lshl1_add_u32', jg, Tr); t1 = qi.s('s_lshl_b32', t1, 5); t0 = qi.s('s_add_u32', t0, t1)
    a2 = qi.s('s_lshl_b32', t0, RS, name='a2')
    FS = o.get('fs', 2)
    if FS > 2: t0 = qi.s('s_and_b32', mt, 4); t1 = qi.s('s_and_b32', mt, 7); t0 = qi.s('s_add_u32', t0, t1); t0 = qi.s('s_lshl_b32', t0, 11)
    elif o.get('f1l'): assert LOC & 1; t0 = qi.s('s_and_b32', mt, 7); t0 = qi.s('s_lshl_b32', t0, 10)
    else: t0 = qi.s('s_lshl_b32', mt, 7)
    def own(q, x): t = q.s('s_lshl_b32', jg, 7); return q.s('s_add_u32', t, x)
    if LOC & 1: t0 = qi.s('s_add_u32', t0, mlS(qi)[1])
    Fr = qi.s('s_add_u32', t0, FL_OFF, name='Fr'); t0 = qi.s('s_lshl_b32', j, FS); Fl = qi.s('s_add_u32', t0, Fr, name='Fl')
    mm = V(4, 'mm'); vA8 = qi.v('v_lshlrev_b32', 3, col, name='vA8'); vBp = qi.v('v_lshlrev_b32', 2, col, name='vBp'); zz = qi.v('v_mov_b32', 0)
    for e in range(4): qi('v_mov_b32', mm[e], -1)
    qi[0].ready = o['sentg'] - 30
    xs = [mc(I('buffer_store_dwordx4', mm, l16, sS, Pp[n >> 1], mods=f'offen offset:{2048 + (n & 1) * 1024} sc1'), 8, 's') for n in range(6)]
    xs = xs[:o.get('ns', 6)]
    if o.get('sl'):
        qn = Q(); sc.xvm[e3].append('mark')
        for g, k in o['sl']:
            m2 = V(4, 'm2')
            for e in range(4): qn('v_mov_b32', m2[e], -1)
            qn[-4].ready = g - 4
            for _ in range(k):
                x = xs.pop(0); x.ops[0] = ref(m2); x.tag = 'mark'; mc(x, 8, 's', soft=1, need=0, chain=1, back=o.get('slb', 300)); qn.append(x)
        W.queue(qn, 44, 'mark')
    K = o.get('k', 0)
    def only(q, c, x): t = q.s('s_min_u32', c, 1); t = q.s('s_lshl_b32', t, 28); return q.s('s_add_u32', t, x)
    if K & 1:
        t = qi.v('v_lshrrev_b32', 7, l16); t8 = qi.v('v_lshl_add_u32', t, 28, l16); t = qi.v('v_lshrrev_b32', 6, l16); t4 = qi.v('v_lshl_add_u32', t, 27, l16)
        xs[1:1] = [mc(I('buffer_store_dwordx4', mm, t8, sS, a0, mods='offen sc1'), 1, 's'), mc(I('buffer_store_dwordx4', mm, t8 if K & 32 else t4, sS, only(qi, w, a2), mods='offen sc1'), .25, 's'),
                   mc(I('buffer_store_dwordx4', mm, t8 if K & 16 else t4, sS, only(qi, qi.s('s_or_b32', j, w), Fr), mods='offen sc1'), .25, 's')]
    else: xs[1:1] = [mc(I('buffer_store_dwordx2', mm[0:2], vA8, sS, a0, mods='offen sc1'), 1, 's'), mc(I('buffer_store_dword', mm[0], vBp, sS, a2, mods='offen sc1'), 1, 's'),
               mc(I('buffer_store_dword', zz, vM0, sS, Fl, mods='offen sc1'), .25, 's')] + \
              ([mc(I('buffer_store_dword', zz, vM0, sS, own(qi, Fl), mods='offen offset:128 sc1'), .25, 's')] if o.get('f1l') else [])
    for x in xs: x.tag = 'init'; x.soft = 1; x.ready = o['sentg']; x.need = o.get('sentn', bar[eI] - 100)
    qi.extend(xs); qi[-1].dead = bar[eI] - 30; sentl = qi[-1]
    o1 = qi.v('v_mov_b32', 1); t0 = qi.s('s_and_b32', wid, 1); t0 = qi.s('s_lshl_b32', t0, 7)
    mc(qi('buffer_atomic_add', o1, vM0, sG, t0, mods='offen sc1'), .25, 's', ready=bar[eI] + 1, soft=1, need=0)
    W.queue(qi, 12, 'init')
    m = Q(); stubs = []
    def verify(name, loads, check, dep, q):
        c = check()
        if dep: c[0].deps = [dep]
        br = I('s_cbranch_vccnz', f'L_r{name}'); br.deps = [(c[-1], 1)]
        keep = {r.vr.id: r.vr for x in loads() + check() for r in x.refs(x.u + x.d)}
        q.extend(c); q.extend([br, LABEL(f'L_b{name}'), KEEP(rc, *keep.values())])
        if st.on and o.get('bst') and name in ('c', 'a', 'f1', 'f2', 'f3'): q('v_writelane_b32', st.v, rc, 10 + ('c', 'a', 'f1', 'f2', 'f3').index(name))
        stubs.append((name, loads, check)); return br
    m.extend(cst)
    def pick(x):
        a = m.v('v_cndmask_b32', x[0], x[1], kb0); b = m.v('v_cndmask_b32', x[2], x[3], kb0); return m.v('v_cndmask_b32', a, b, kb1)
    def rbf(x): t = m.v('v_cvt_pk_bf16_f32', x, x); return m.v('v_and_b32', 0xffff0000, t)
    nm = pick(nmean); qq = pick(qsum)
    t = m.v('v_mul_f32', nm, nm); c_ = m.v('v_mov_b32', 1.0 / 576); var = m.v('v_fma_f32', qq, c_, Neg(t)); var = m.v('v_max_f32', 0, var)
    nm = rbf(nm); var = rbf(var); var = rbf(m.v('v_add_f32', 1e-5, var)); t = m.v('v_sqrt_f32', var)
    g_ = m.v('v_bfe_u32', l16, 4, 2); g_ = m.v('v_xor_b32', jq, g_)
    sd = rbf(t); rr = m.v('v_rcp_f32', sd)
    t = m.v('v_and_b32', 1, g_); t = m.v('v_lshl_add_u32', t, 5, tokl); t2 = m.v('v_and_b32', 2, g_); t = m.v('v_lshl_add_u32', t2, 1, t)
    t = m.v('v_add_lshl_u32', tk0, t, 2); t2 = m.v('v_add_u32', STM - STR, t)
    m('ds_write_b32', t, rr, mods=f'offset:{STR}', tag='stat'); m('ds_write_b32', t2, nm, mods=f'offset:{STR}', tag='stat')
    eS = 6; m[-1].dead = bar[eS] - 4; sc.xlg[eS].append('stat')
    n0 = len(m)
    t0 = m.s('s_lshl_b32', tw, 8); vRr = m.v('v_lshl_add_u32', q, 6, t0)
    t0 = m.s('s_lshl4_add_u32', je, w); t0 = m.s('s_lshl_b32', t0, 4); vRm = m.v('v_lshl_add_u32', q, 6, t0)
    vK = m.v('v_lshl_add_u32', col, 3, sQ, name='vK')
    vRg = [m.v('v_add_u32', RGO + 2 * QS * k, l16) for k in range(2)]
    m[n0].ready = gA - 40; assert bar[eS] < gA - 40
    rq = [V(4, f'rq{k}') for k in range(5)]
    for k in range(4): m('ds_read_b128', rq[k], vRr, mods=f'offset:{STR + 16 * k}')
    m('ds_read_b128', rq[4], vRm, mods=f'offset:{STR}')
    def getc(u, nm_):
        r = V(2, f'{nm_}{u}'); m('ds_read_b64', r, vK, mods=f'offset:{CST + 512 * CI[nm_] + 128 * u}'); return r
    l1 = [getc(u, 'l1') for u in range(3)]
    n0 = len(m)
    for e in range(4): m('v_mul_f32', accm[e], accm[e], rq[4][e])
    m[n0].ready = gA - 5
    eR = sc.barafter(gA + 10)
    m('ds_write_b128', vQ, accm, mods=f'offset:{RGO}', tag='rg'); m[-1].dead = bar[eR] - 4; sc.xlg[eR].append('rg')
    for u in range(2):
        for tt in range(4):
            for e in range(4): m('v_mul_f32', accb[u][tt][e], accb[u][tt][e], rq[tt][e])
    um = [V(4, f'um{tt}') for tt in range(4)]
    n0 = len(m)
    for tt in range(4): m('ds_read_b128', um[tt], vRg[tt >> 1], mods=f'offset:{(tt & 1) * QS}')
    m[n0].ready = bar[eR] + 1; lr = m[-1]
    U = [accb[0], accb[1], um]
    cf = [getc(u, 'cf') for u in range(3)]; l16c = [getc(u, 'l16') for u in range(3)]
    def horner(z, c, u, neg=False):
        d = V(1); return d, [I('v_fma_f32', d, c[0], z, u), I('v_fmac_f32_dpp', d, z, Neg(c[1]) if neg else c[1], mods=DPP8)]
    def coef(d, u, x): return [I('v_mul_f32', d, cf[u][0], x), I('v_fmac_f32_dpp', d, x, cf[u][1], mods=DPP8)]
    ch = []; ee = []
    for u in range(3):
        z = U[u][0][0]; c = []
        for k in range(1, 16):
            z, ins = horner(z, l1[u], U[u][k >> 2][k & 3], True); c += ins
        d = V(1); c += coef(d, u, z)
        ch.append(c); ee.append(d)
    c = inter(ch); c[0].deps = [(lr, 5)]; m.extend(c[:-40])
    vCn = m.v('v_lshlrev_b32', 3, l16); vCn = m.v('v_and_b32', 128, vCn, name='vCn'); cn = V(1, 'cn')
    cnl = lambda: [mc(I('buffer_load_dword', cn, vCn, sG, 0, mods='offen sc1'), 2, 'm', need=0, soft=1, back=2000)]
    cnc = lambda: [I('v_cmp_gt_u32', 'vcc', 128, cn)]
    m.extend(c[-40:])
    eb = [V(4, f'eb{u}') for u in range(3)]
    for u in range(3):
        for k in range(4): m('ds_bpermute_b32', eb[u][k], vBp, ee[u], mods=f'offset:{64*k}')
    lastbp = m[-1]
    ch = []; z01 = V(2, 'z01'); z2 = V(1, 'z2')
    for u in range(3):
        z = eb[u][0]; c = []
        for k in range(1, 4):
            z, ins = horner(z, l16c[u], eb[u][k]); c += ins
        c.append(I('v_min_u32', z01[u] if u < 2 else z2, -2, z))
        ch.append(c)
    c = inter(ch); c[0].deps = [(lastbp, 5)]; m.extend(c)
    tA, tB, a2m = (m.v('v_lshl_add_u32', q, 28, vA8), m.v('v_lshl_add_u32', q, 28, vBp), only(m, w, a2)) if K & 2 else (vA8, vBp, a2)
    mc(m('buffer_store_dwordx2', z01, tA, sS, a0, mods='offen sc1'), 1, 's', need=0, soft=1, back=2000)
    agst = mc(m('buffer_store_dword', z2, tB, sS, a2m, mods='offen sc1'), 1, 's', need=0, soft=1, back=2000)
    Z = [[V(4, f'z{u}_{tt}') for tt in range(4)] for u in range(3)]
    zc = [inter([coef(Z[u][tt][e], u, U[u][tt][e]) for e in range(4)]) for u in range(3) for tt in range(4)]
    ldc = cnl(); ldc[0].ready = G(o['cng']); m.extend(ldc)
    for x in zc[:o.get('zc', 8)]: m.extend(x)
    vAl = m.v('v_lshl_add_u32', q, 10, vA8, name='vAl'); vAr = m.v('v_lshl_add_u32', q, RS + 3, vBp, name='vAr')
    sA = SR(4, 'A'); sR = SR(4, 'R')
    for r, a_, k in ((sA, a0, 4095), (sR, a2, (32 << RS) - 1)):
        m('s_mov_b64', r[0:2], sS[0:2]); t0 = m.s('s_or_b32', a_, k); m('s_add_u32', r[2], t0, 1); m('s_mov_b32', r[3], 0x20000)
    brc = verify('c', cnl, cnc, (ldc[0], 50), m)
    ag2 = [V(2, f'ag{k}') for k in range(8)]; ag1 = [V(1, f'ar{k}') for k in range(8)]; mx = V(1, 'mx')
    ag = [[ag2[7 - k][0] for k in range(8)], [ag2[7 - k][1] for k in range(8)], ag1[::-1]]
    agl = lambda: inter([[mc(I('buffer_load_dwordx2', ag2[k], vAl, sA, a0, mods=f'offen offset:{128*k+128} sc1'), 3, 'q', need=0, soft=1) for k in range(8)],
                         [mc(I('buffer_load_dword', ag1[k], vAr, sR, a2, mods=f'offen offset:{k + 1 << RS} sc1'), 3, 'q', need=0, soft=1) for k in range(8)]])
    def agc():
        al = [ag[u][k] for k in range(7, -1, -1) for u in range(3)]
        r = [I('v_max3_u32', mx, al[0], al[1], al[2])]
        for k in range(3, 23, 2): r.append(I('v_max3_u32', mx, mx, al[k], al[k + 1]))
        return r + [I('v_max_u32', mx, mx, al[23]), I('v_cmp_eq_u32', 'vcc', -1, mx)]
    lda = agl(); lda[0].ready = G(o['agld']); zr = sum(zc[o.get('zc', 8):], [])
    for k, x in enumerate(lda): m.append(x); m.extend(zr[2 * k:2 * k + 2])
    m.extend(zr[32:])
    l64 = [getc(u, 'l64') for u in range(3)]
    bra = verify('a', agl, agc, (lda[-1], o['aglat']), m)
    ch = []; sq_ = []
    for u in range(3):
        z = ag[u][0]; c = []
        for k in range(1, 8):
            z, ins = horner(z, l64[u], ag[u][k]); c += ins
        ch.append(c); sq_.append(z)
    m.extend(inter(ch))
    l512 = [getc(u, 'l512') for u in range(3)]; l16c = [getc(u, 'l16') for u in range(3)]; l1 = [getc(u, 'l1') for u in range(3)]
    sb_ = [V(4, f'sb{u}') for u in range(3)]
    for u in range(3):
        for k in range(4): m('ds_bpermute_b32', sb_[u][k], vBp, sq_[u], mods=f'offset:{64*k}')
    lastbp = m[-1]
    kq = [SR(2, f'kq{k}') for k in range(3)]
    for k in range(3): m('v_cmp_lt_u32', kq[k], k, q)
    t = m.v('v_mul_u32_u24', 144, col); t = m.v('v_lshl_add_u32', q, 5, t); vHw = m.v('v_add_u32', sQ, t)
    t = m.v('v_lshrrev_b32', 6, l16); t = m.v('v_mul_u32_u24', 144, t); t2 = m.v('v_and_b32', 3, col); t = m.v('v_lshl_add_u32', t2, 5, t)
    vHr = m.v('v_add_u32', sQ, t); t0 = m.s('s_lshl_b32', w, 3); vHm = m.v('v_add_u32', t0, vHr)
    zs = lambda u, k: Z[u][k >> 2][k & 3]
    ch = []; pk = [[V(4), V(4)] for u in range(3)]
    for u in range(3):
        z = sb_[u][3]; c = []
        for k in (2, 1, 0):
            z, ins = horner(z, l512[u], sb_[u][k]); c += ins
        for k in range(3):
            z2, ins = horner(z, l16c[u], eb[u][k]); c += ins
            z3 = V(1); c.append(I('v_cndmask_b32', z3, z, z2, kq[k])); z = z3
        for k in range(16):
            c += [I('v_fmac_f32', zs(u, k), l1[u][0], z), I('v_fmac_f32_dpp', zs(u, k), z, l1[u][1], mods=DPP8)]; z = zs(u, k)
            if k == 9 or k == 15:
                h = k // 10
                for e in range(4): c.append(I('v_cvt_pk_bf16_f32', pk[u][h][e], zs(u, 8*h + 2*e), zs(u, 8*h + 2*e + 1)))
        ch.append(c)
    c = inter(ch); c[0].deps = [(lastbp, 5)]; m.extend(c)
    hf = [V(4, f'hf{tt}') for tt in range(4)]; hm4 = V(4 if K & 8 else 2, 'hm'); hm = hm4[0:2]
    for u in range(3):
        for h in range(2): m('ds_write_b128', vHw, pk[u][h], mods=f'offset:{MISC + 16*h}')
        if u < 2:
            for tt in range(4): m('ds_read_b64_tr_b16', hf[tt][2*u:2*u+2], vHr, mods=f'offset:{MISC + 8*tt}')
        else: m('ds_read_b64_tr_b16', hm, vHm, mods=f'offset:{MISC}')
    lastrd = m[-1]
    if LOC & 4:
        ml, S = mlS(m); t0 = m.s('s_lshl1_add_u32', ml, tw); t1 = m.s('s_and_b32', Gn, 28); t1 = m.s('s_add_u32', t1, Gn); t0 = m.s('s_lshl_b32', t0, 7); t0 = m.s('s_add_u32', t0, t1)
        t0 = m.s('s_lshl_b32', t0, 11); t0 = fix(m, m.s('s_add_u32', t0, S)); hs_ = [m.s('s_add_u32', t0, 0x6000000 + k * 131072) for k in range(2)]
        t0 = m.s('s_lshl1_add_u32', ml, je); t0 = m.s('s_lshl1_add_u32', t0, tw); t0 = m.s('s_lshl3_add_u32', t0, jg)
    else:
        t0 = m.s('s_lshl1_add_u32', mt, tw); t0 = m.s('s_lshl_b32', t0, 6); t0 = m.s('s_add_u32', t0, Gn); t0 = m.s('s_lshl_b32', t0, 11)
        hs_ = [m.s('s_add_u32', t0, HF_OFF + k * 65536) for k in range(2)]
        t0 = m.s('s_lshl1_add_u32', mt, je); t0 = m.s('s_lshl1_add_u32', t0, tw); t0 = m.s('s_lshl2_add_u32', t0, jg)
    t0 = m.s('s_lshl1_add_u32', t0, fw); t0 = m.s('s_lshl_b32', t0, 10); t1 = m.s('s_lshl_b32', Tr, 9 if K & 12 else 3); t0 = m.s('s_add_u32', t1, t0); t0 = m.s('s_add_u32', t0, HR_OFF)
    if K & 12: l8w = m.v('v_lshrrev_b32', 1, l16)
    if K & 8: t = m.v('v_and_b32', 16, l16); l8w = m.v('v_lshl_add_u32', t, 24, l8w)
    if LOC & 4: t0 = m.s('s_add_u32', t0, S)
    n0 = len(m)
    for tt in range(4): mc(m('buffer_store_dwordx4', hf[tt], l16, sS, hs_[tt >> 1], mods=f'offen offset:{(tt & 1) * 1024} sc1', tag='hs'), 8, 's', need=0, soft=1, chain=o.get('hsc', 1))
    if K & 8:
        m[n0 + 1:n0 + 1] = [I('v_mov_b32_dpp', hm4[2 + e], hm4[e], mods='quad_perm:[1,1,3,3]' + DM) for e in range(2)]
        mc(m('buffer_store_dwordx4', hm4, l8w, sS, t0, mods='offen sc1', tag='hs'), 4, 's', need=0, soft=1, chain=o.get('hsc', 1))
    else: mc(m('buffer_store_dwordx2', hm, l8w if K & 4 else l16, sS, t0, mods='offen sc1', tag='hs'), 4 if K & 4 else 8, 's', need=0, soft=1, chain=o.get('hsc', 1))
    m[n0].deps = [(lastrd, 5)]; hsl = m[-1]; hsl.dead = bar[e1] - 30
    W.queue(m, 10, 'scan')
    qf = Q(); fl = V(1, 'fl'); kg = SR(2, 'kg')
    vF = [vBp]
    fll = lambda: [mc(I('buffer_load_dword', fl, vF[0], sS, Fr, mods='offen sc1'), 1, 'm', need=0, soft=1, back=2000)]
    t0 = qf.s('s_lshl_b32', jg, 2); qf('s_lshl_b32', kg[0], 15, t0); qf('s_mov_b32', kg[1], 0); qf[0].ready = bar[e1] - 20
    pb = {}; br = {}
    for n, e in ((1, e1), (2, e2), (3, e3)):
        t = qf.v('v_mov_b32', n); qf[-1].ready = bar[e] - 6
        a, b, of = (own(qf, Fl), own(qf, Fr), 128) if n == 1 and o.get('f1l') else (Fl, Fr, 0)
        pb[n] = mc(qf('buffer_store_dword', t, vM0, sS, a, mods=f'offen offset:{of} sc1'), .25, 's', need=0, soft=1, back=2000, ready=bar[e] + 1)
        fll = lambda b=b, of=of: [mc(I('buffer_load_dword', fl, vBp, sS, b, mods=f'offen offset:{of} sc1'), 1, 'm', need=0, soft=1, back=2000)]
        if n == 2 and o.get('f2b', 1) == 2:
            t0 = qf.s('s_lshl_b32', 0x1111, jq); qf('s_or_b32', kg[0], kg[0], t0)
        if FS > 2:
            assert LOC & 1 and o.get('f2b') == 2
            t = qf.v('v_lshlrev_b32', FS, col)
            if n < 3: t = qf.v('v_cndmask_b32', -16, t, kg)
            fll = lambda t=t: [mc(I('buffer_load_dword', fl, t, sS, Fr, mods='offen sc1'), 1, 'm', need=0, soft=1, back=2000)]
        ld = fll(); ld[0].deps = [(pb[n], o.get(f'chk{n}', o['chk']))]; qf.extend(ld)
        if n == 2 and o.get('f2b', 1) == 2: ld[0].ready = gP + o.get('f2g', -60)
        br[n] = verify(f'f{n}', fll, lambda n=n: [I('v_cmp_gt_i32', 'vcc', n, fl)] + ([I('s_nop', 3), I('s_and_b64', 'vcc', 'vcc', kg)] if n < 3 else []), (ld[0], o.get(f'lat1{n}', o['lat1'])), qf)
        if n == 2 and o.get('f2b', 1) == 2: br[4] = br[2]
        elif n == 2 and o.get('f2b', 1):
            qf('s_lshl_b32', kg[0], 0x1111, jq); ld = fll(); ld[0].ready = gP + o.get('f2g', -60); qf.extend(ld)
            br[4] = verify('f4', fll, lambda: [I('v_cmp_gt_i32', 'vcc', 2, fl), I('s_nop', 3), I('s_and_b64', 'vcc', 'vcc', kg)], (ld[0], 45), qf)
    W.queue(qf, 49, 'flag')
    qa = Q(); qb = Q(); qx = P(); nld = [0]
    def gld(q, d, so, off, use, c):
        x = mc(q('buffer_load_dwordx4', d, l16, sS, so, mods=f'offen offset:{off} sc1' + NT(64 if c == 'h' else 0)), 8, c, dead=use - o.get('gdead', 40), need=use - o.get('gneed', 45), soft=1)
        if ref(d).vr.cls == 'a' and nld[0] < o['xa']:
            x.ready = gI[3] + 16 * max(nld[0] // 4 + 1, E) + 2; nld[0] += 1
        elif ref(d).vr.cls == 'v': x.ready = gC + o.get('vld', 30)
        else: x.ready = g2
        return x
    def Hld(q, x, kls, after=None, dep=None, need=None):
        for kl in kls:
            if kl & 1 == 0:
                so = q.s('s_xor_b32', Hp[x], (0, 4096, 16384, 20480, 0x202000)[kl >> 1]) if LOC & 2 else q.s('s_add_u32', Hp[x], kl * 2048)
                if kl == kls[0]:
                    q[-1].deps = [(sdone, 1)] + ([(dep, 1)] if dep else [])
                    if after is not None: q[-1].ready = bar[after] + 1
            r = [gld(q, Hq[x][kl][a], so, (kl & 1) * 2048 + a * 1024, useH[(x, kl)], 'h' if x or str(kl if kl == 8 else kl >> 1) in warm else 'm') for a in range(2)]
            if need is not None:
                for y in r: y.need = need
            if kl == 8:
                for e in range(2): qx('v_swap_b32', Hh[x][2 + e], Hh[x][4 + e])
                qx[-2].deps = [(r[1], 35)]; qx[-1].dead = useH[(x, kl)] - 3
    if LOC & 4:
        ml, S = mlS(qa); t2 = qa.s('s_lshl2_add_u32', ml, w); t0 = qa.s('s_lshl2_add_u32', t2, jg); t0 = qa.s('s_lshl1_add_u32', t0, Tr); t0 = qa.s('s_lshl2_add_u32', t0, je); t0 = qa.s('s_lshl_b32', t0, 12)
        t0 = fix(qa, qa.s('s_add_u32', t0, S)); h0 = qa.s('s_add_u32', t0, 0x6000000, name='h0'); t0 = qa.s('s_lshl3_add_u32', t2, jg); t0 = qa.s('s_lshl_b32', t0, 11); t0 = qa.s('s_add_u32', t0, S)
    else:
        t0 = qa.s('s_lshl2_add_u32', mw, jg); t1 = qa.s('s_lshl2_add_u32', t0, jq); t1 = qa.s('s_lshl_b32', t1, 12); h0 = qa.s('s_add_u32', t1, HF_OFF, name='h0'); t0 = qa.s('s_lshl_b32', t0, 11)
    h8 = qa.s('s_add_u32', t0, HR_OFF, name='h8'); qa[0].ready = bar[e1] - 10; qa[-1].ready = bar[e1] + 1; hdone = qa[-1]
    for k in range(2):
        for a in range(2): gld(qa, hq[k][a], h0, k * 2048 + a * 1024, gC + 10, 'm').need = 0
    Hld(qa, 0, (0, 1, 2, 3), need=1)
    for k in ((8, 2, 3, 4, 5, 6, 7) if o.get('k8') else range(2, 9)):
        if k % 2 == 0 and k < 8: so = qb.s('s_xor_b32', h0, (0, 4096, 16384, 20480)[k >> 1] if LOC & 4 else k * 2048)
        if k == 8 and K & 12: l8r = qb.v('v_lshrrev_b32', 1, l16)
        qb[0].deps = [(br[1], 1), (hdone, 1)]
        for a in range(2):
            hl = gld(qb, hq[k][a], so if k < 8 else h8, (k & 1) * 2048 + a * 1024, gC + 10, 'h' if k < 8 else 'q')
            if k == 8 and K & 12:
                qb.pop(); x = hl
                for h in range(2): hl = mc(qb('buffer_load_dwordx2', hq[k][a][2*h:2*h+2], l8r, sS, h8, mods=f'offen offset:{a * 1024 + h * 512} sc1'), 4, 'q', dead=x.dead, need=x.need, soft=1, ready=x.ready)
    Hld(qa, 0, (4, 5), after=eh, need=gC - 20)
    Hld(qb, 1, (0, 1, 2, 3)); Hld(qb, 2, (0, 1, 2, 3))
    Hld(qa, 0, (8,), need=gC); Hld(qa, 0, (6, 7), after=e2, need=2)
    q8 = Q(); Hld(q8, 1, (8,), dep=br[1]); Hld(q8, 2, (8,)); Hld(q8, 3, (8,)); Hld(qb, 3, (0, 1, 2, 3))
    for x in (1, 2, 3): Hld(qb, x, (4, 5, 6, 7), dep=br[2])
    W.queue(qx, 20, 'swap'); W.queue(qa, 30, 'own'); W.queue(qb, 29, 'par'); W.queue(q8, 28, 'p8')
    z = Q(); y = Q()
    t = z.v('v_mul_u32_u24', SRC, q); vPl = z.v('v_lshl_add_u32', col, 4, t, name='vPl');
    if LOC & 24: ml, S = mlS(z)
    t0 = z.s('s_lshl2_add_u32', ml if LOC & 8 else mt, jq); t0 = z.s('s_lshl2_add_u32', t0, jg); t2 = z.s('s_lshl2_add_u32', t0, w); t2 = z.s('s_mul_i32', t2, 32768 if LOC & 8 else PW)
    if LOC & 8: t2 = fix(z, z.s('s_add_u32', t2, S))
    Pd = [z.s('s_add_u32', t2, PXo[r] if LOC & 8 else PX_OFF + 4096 * r) for r in range(3)]
    if LOC & 24 in (8, 16): t0 = z.s('s_lshl2_add_u32', ml if LOC & 16 else mt, jq); t0 = z.s('s_lshl2_add_u32', t0, jg)
    t0 = z.s('s_mul_i32', t0, FIN); t1 = z.s('s_lshl_b32', w, 8); t0 = z.s('s_add_u32', t0, t1)
    if LOC & 16: t0 = fix(z, z.s('s_add_u32', t0, S))
    Pc = [z.s('s_add_u32', t0, (0x6800000 if LOC & 16 else P8_OFF) + 1024 * k) for k in range(2)]
    tb, kc, k8, x8, xc, c3, ae, q1, c4, vx, vx8 = xadr(z, not XS); vk = z.v('v_lshlrev_b32', 1, col); zdone = z[-1]
    kv = [V(1, f'kv{n}') for n in range(3)]; fl_ = dict(soft=1, chain=o.get('prc', 1))
    z[0].ready = gP + o.get('zb', -60) - 30; zl = []
    for n in range(3): mc(z('buffer_load_ushort', kv[n], vk, sK, kc if n < 2 else k8, mods=f'offen offset:{32 * (n & 1)}'), 1, 'm', need=0, **fl_)
    for n in range(0 if XS else 3): zl.append(mc(z('buffer_load_dwordx4', xv[n], vx if n < 2 else vx8, sX, xc[n] if n < 2 else x8, mods='offen'), 16 if n < 2 else 8, 'm', deps=[]))
    def lps():
        for r in range(3):
            for i in range(2): zl.append(mc(z('buffer_load_dwordx4', ps[r][i], l16, sS, Pd[r], mods=f'offen offset:{i * 1024} sc1' + NT(256)), 8, 'm', dead=gS - 40, deps=[(br.get(4, br[3]), 1)]))
    if 4 in br: lps()
    for b in (1, 2, 3, 4, 0): zl.append(mc(z('buffer_load_dwordx4', pr[b], vPl, sS, Pc[b > 0], mods=f'offen offset:{max(b - 1, 0) * 1024} sc1' + NT(256)), 8, 'm', dead=gX - 40, deps=[(br[3], 1)]))
    if 4 not in br: lps()
    for k, x in enumerate(zl):
        mc(x, *x.mc, need=0, back=o.get('zback', 2000), **fl_)
        if k: x.deps.append((zl[k - 1], o.get('zsp', 20)))
    pl8 = zl[-1]
    pld = lambda r: [mc(I('buffer_load_dwordx4', pd[r][i], l16, sS, Pd[r], mods=f'offen offset:{2048 + i * 1024} sc1'), 8, 'm', need=0, back=2000, **fl_) for i in range(2)]
    mxd = V(1, 'mxd')
    def pck(r):
        a, b = pd[r]
        return [I('v_max3_u32', mxd, a[0], a[1], a[2]), I('v_max3_u32', mxd, mxd, a[3], b[0]), I('v_max3_u32', mxd, mxd, b[1], b[2]), I('v_max_u32', mxd, mxd, b[3]), I('v_cmp_eq_u32', 'vcc', -1, mxd)]
    qd = Q(); ldd = []
    for r in range(3):
        ldd.append(pld(r)); ldd[r][0].deps = [(dst_[2 * r + 1], o.get(f'dl{r}', o.get('dl', 36))), (zdone, 1)]; ldd[r][1].dead = gE - 1
        z.extend(ldd[r])
        if r < 2: verify(f'd{r}', lambda r=r: pld(r), lambda r=r: pck(r), (ldd[r][1], 30), qd); qd[-1].dead = gD - 2
    t = y.v('v_and_b32', 16, l16); c_ = y.v('v_mov_b32', 0x3f80); one = y.v('v_lshlrev_b32', t, c_); y[0].deps = [(zdone, 1)]; y[0].ready = g3 - o.get('ybeg', 60)
    def onehot(idx, rs):
        ks = [SR(2) for _ in rs]
        for k in range(len(rs) + 2):
            if k < len(rs): y('v_cmp_eq_u32', ks[k], k, idx)
            if k >= 2: y('v_cndmask_b32', rs[k - 2], 0, one, ks[k - 2])
    t = y.v('v_lshrrev_b32', 1, ae); t2 = y.v('v_and_b32', 4, col); t = y.v('v_add_u32', t2, t); onehot(t, [sel[k] for k in range(4)])
    t = y.v('v_lshrrev_b32', 3, col); t = y.v('v_xor_b32', t, q); t2 = y.v('v_bfe_u32', col, 1, 2); t3 = y.v('v_lshl_add_u32', t, 1, t2); t = y.v('v_and_b32', 1, t); t = y.v('v_lshl_add_u32', t, 4, t3)
    onehot(t, [idm[k >> 2][k & 3] for k in range(8)])
    t = y.v('v_xor_b32', c4, q); t2 = y.v('v_lshrrev_b32', 1, c3); t = y.v('v_lshl_add_u32', t, 1, t2)
    for k in (0, 1, 4, 5): y('v_mov_b32', sA_[k], 0)
    onehot(t, [sA_[2], sA_[3]]); y[-1].dead = gX - 3
    if XS:
        t = y.v('v_add_u32', sQ, l16)
        for n in range(3): y('ds_read_b128', xv[n], t, mods=f'offset:{uXs.addr + 1024 * n}')
        y[-1].dead = gX - 6
    hi_ = y.v('v_lshrrev_b32', 1, q); rr = [V(4, f'rr{n}') for n in range(3)]; nm = [V(4, f'nm{n}') for n in range(3)]
    t0 = y.s('s_lshl_b32', tb, 2); t8 = y.v('v_lshl_add_u32', hi_, 4, t0); t0 = y.s('s_lshl_b32', tk0, 2); t = y.v('v_lshl_add_u32', q, 6, t0)
    t9 = y.v('v_add_u32', STM - STR, t8); t2 = y.v('v_add_u32', STM - STR, t)
    for n in range(3): y('ds_read_b128', rr[n], t if n < 2 else t8, mods=f'offset:{STR + 16 * (n & 1)}'); y('ds_read_b128', nm[n], t2 if n < 2 else t9, mods=f'offset:{STR + 16 * (n & 1)}')
    lr = y[-1]
    t = y.v('v_bfe_u32', l16, 2, 7); t2 = y.v('v_mul_u32_u24', 4 * 2304, hi_); vo8 = y.v('v_add_u32', t, t2); vo8 = y.v('v_lshl_add_u32', q1, 30, vo8)
    vo = [y.v('v_lshl_add_u32', t2, 3, t)]; vo.append(y.v('v_add_u32', 16 * 2304, vo[0]))
    so = [[y.s('s_lshl_b32', x, 1), y.s('s_lshl1_add_u32', x, 4608)] for x in xc + [x8]]
    cl = y.s('s_mov_b32', int(np.float32(-LOG2E).view(np.uint32))); ce = [V(4, f'ce{n}') for n in range(3)]
    n0 = len(y)
    for n in range(3):
        for e in range(4): y('v_mul_f32', nm[n][e], nm[n][e], rr[n][e]); y('v_mul_f32', ce[n][e], cl, rr[n][e])
        for e in range(4): y('v_mul_f32', ce[n][e], ce[n][e], rr[n][e])
        y('v_lshlrev_b32', kv[n], 16, kv[n])
    y[n0].deps = [(lr, 4)]; y[n0 + 12].ready = gX - 30
    def skip(S, X, n, k):
        ch = []
        for e in range(4): t = V(1); ch.append([I('v_fma_f32', t, X[e], rr[n][e], nm[n][e]), I('v_fmac_f32', S[e], t, kv[k])])
        return inter(ch)
    def gate(d, S, X, n):
        ch = []
        for e in range(4):
            t = V(1); ch.append([I('v_mul_f32', d[e], ce[n][e], d[e]), I('v_exp_f32', t, d[e]), I('v_mul_f32', d[e], d[e], S[e]), I('v_fma_f32', t, t, cl, cl), I('v_rcp_f32', t, t), I('v_fmac_f32', X[e], d[e], t)])
        return ch
    ost = lambda r, v, n, e: mc(I('buffer_store_dword', r, v, sO, so[n][e >> 1], mods=f'offen offset:{2304 * (e & 1)}' + o['om']), 2, 's', need=0, soft=1, chain=1, back=2000)
    n0 = len(y)
    for i in range(2):
        for a in range(2): y.extend(skip(accs[6 + i][a], xf[i][a], a, i))
    y[n0].ready = gX + 10; y[-1].dead = gS - 2
    y.extend(skip(Y4, xf4, 2, 2)); y.extend(inter(gate(D4, Y4, xf4, 2))); y.extend([ost(xf4[e], vo8, 2, e) for e in range(o.get('n8', 4))])
    W.queue(z, 9, 'fin'); W.queue(y, 8, 'pre'); W.queue(qd, 41, 'chk')
    if not o.get('bst'):
        for k, g in enumerate([gA] + gI[1:] + [gC, g2, g3]): st.at(W, g, 10 + k)
    else:
        for e in range(1, len(bar)): st.at(W, bar[e] + 1, 21 + e + (e > 18))
        assert len(bar) < 40
        print("; BARS", bar[1:] + [gE])
    sc.emit(spacing, lambda g: o['softA'] if g < gA else o['soft'])
    p.extend(sc.bar0); p.extend(st.t(9))
    body = W.build()
    sc.report()
    for n, g in warm.items(): assert hlast[int(n)].gap < g
    print(f"; gaps A {gA} I {gI} C {gC} 2 {g2} P {gP} 3 {g3} E {gE} | sent {sentl.gap} eI {bar[eI]} agst {agst.gap} cbr {brc.gap} agld {lda[0].gap}-{lda[-1].gap} agbr {bra.gap} hs {hsl.gap} "
          f"pub {[pb[n].gap for n in pb]} chk {[br[n].gap for n in br]} hld {hl.gap} H {[hlast[k].gap for k in hlast]} eh {bar[eh]} sp {slast.gap} d8 {d8.gap} pl8 {pl8.gap} dp {[x.gap for x in dst_]} X {gX} S {gS} D {gD} ld {[x[1].gap for x in ldd]} y {y[-1].gap} qd {qd[-1].gap}")
    if o.get('vx'): print("; X", " ".join(f"{x.gap}{x.q[:2]}{mcls(x)[1]}" for x in body if x.kind == 'X'))
    pendv = None
    for x in body:
        if x.kind != 'P' and x.d and x.ops[0] == 'vcc': assert pendv in (None, x.q), (x.op, x.gap); pendv = x.q
        if x.op == 's_cbranch_vccnz': pendv = None
    p.extend(body)
    p.extend(st.t(17))
    verify('d2', lambda: pld(2), lambda: pck(2) + [I('s_nop', 0)], None, p)
    p.extend(st.t(18))
    r = addp(accd, pd[2]); p.extend([r[0], r[2], r[1], r[3]])
    for a in range(2):
        p.extend(inter(gate(accd[6][a], accs[6][a], xf[0][a], a) + gate(accd[7][a], accs[7][a], xf[1][a], a)))
        for e in range(4): p('v_permlane16_swap_b32', xf[0][a][e], xf[1][a][e])
        for e in range(4): p.extend([ost(xf[i][a][e], vo[i], a, e) for i in range(2)])
        p.extend(st.t(19 + a))
    p.extend(st.t(21))
    if st.on and o.get('fw'): p('s_waitcnt', mods='vmcnt(0)')
    if st.on: p('v_writelane_b32', st.v, rc, 40)
    st.flush(p, sS, v0); p.append(KEEP(wid))
    p.append(LABEL('L_end')); p('s_endpgm')
    lines, peak, prog = finish(p)
    for nm_, par in (('cold', {}), ('warm', dict(Lc=600, fc=0))):
        stl = sim.report(prog, bar[1:] + [gE], nm_, par)
        if o.get('simv') and nm_ == 'cold': print("; stalls", [(g, k[0], int(x)) for g, k, x in stl if x > 60])
    for name, loads, check in stubs:
        rt = [LABEL(f'L_r{name}')] + loads() + [I('s_waitcnt', mods='vmcnt(0)')] + check() + \
             [I('s_sub_u32', rc, rc, 1), I('s_cbranch_scc1', f'L_x{name}'), I('s_cbranch_vccnz', f'L_r{name}'), I('s_branch', f'L_b{name}'),
              LABEL(f'L_x{name}'), I('s_mov_b32', rc, 0), I('s_branch', f'L_b{name}')]
        for ins in rt: lines.append(ins.name + ':' if ins.op == 'LABEL' else ins.text())
    lines += ['  s_endpgm', 'L_fin:']
    print("; instr", len(lines))
    return lines, st.peak(peak)

if __name__ == '__main__':
    import sys, json
    opt = json.loads(sys.argv[2]) if len(sys.argv) > 2 else {}
    lst = opt.pop('list', 1)
    label = 'x_kernel' if lst else NAME + '_kernel'
    l, pk = gen_y(label, opt)
    s = f"; @launch {'kernel=' + label + ' ' if lst else ''}grid=(256,1,1) block=(256,1,1) lds=163840\n"
    s += '.amdgcn_target "amdgcn-amd-amdhsa--gfx950"\n.text\n' + kernel_text(label, l) + '.section .rodata,"a"\n' + kernel_desc(label, pk['v'], pk['a'])
    al = opt.get('al')
    if al:
        from align import align
        s = align(s, *al)
    open(sys.argv[1], 'w').write(s)
```

```python
from common import *
from sched import *
import math, sim
import numpy as np
QS = 40960; MISC = 36864
CST = MISC; RGO = MISC + 2560; STR = MISC + 3584; STM = QS + MISC + 3584
AG_OFF = 0; AR_OFF = 0x20000; FL_OFF = 0x50000; HF_OFF = 0x100000; HR_OFF = 0x500000; PX_OFF = 0x600000; H_OFF = 0x1B00000
P8_OFF = 0x1300000; SRC = 5120; FIN = 4 * SRC; PW = 12288
TINY = 'v_mfma_f32_4x4x4_16b_bf16'
DM = ' row_mask:0xf bank_mask:0xf'
DPP8 = 'row_ror:8' + DM
BIG = 0x7ff00000
LOG2E = math.log2(math.e)

def inter(lists):
    out = []
    for k in range(max(len(x) for x in lists)):
        for x in lists:
            if k < len(x): out.append(x[k])
    return out
def SR(n=1, name=None, phys=None): return VR('s', n, name, phys)
class Q(P):
    def s(s, op, *ops, name=None):
        d = SR(1, name); s.append(I(op, d, *ops)); return d
def mc(x, n, c, **k):
    x.mc = (n, c)
    for a, b in k.items(): setattr(x, a, b)
    return x

def gen_y(label, opt=None):
    o = dict(S=3, SE=3, stamp=False, p0max=13, xa=56, ep=64, sp=3, vgap=2, edge=3, lat=6, agld=700, aglat=50, cng=570,
             pub1=250, chk=50, lat1=60, pub2=130, pub3=60, d0=40, d1=4, rc=20000, plan='45:P0,345:P1,470:X2,821:Da+D8+K0,981:C0', eI=8,
             softA=1, soft=2, rate2=1, tail=5, sp2=3, back=300, backf=60, seed=600, sentg=150, nsent=8, nt=0, om=' sc1', tlb=0, hst=60,
             loc=1, f2b=2, lat11=45, lat12=45, lat13=45, chk1=90, chk3=90, zsp=16, k=55, k8=1, xs=-1, hp=3, pfp=1, xa1=1, snake=7)
    o.update(opt or {})
    plan = [(int(x.split(':')[0]), x.split(':')[1].replace('+', ' ')) for x in o['plan'].split(',')]
    p = Q(); v0 = VR('v', 1, 'tid', phys=0)
    LOC = o.get('loc', 0); SRC = 16384 if LOC & 16 else 5120; FIN = 4 * SRC; WSB = 0x8000000
    def mlS(q):
        ml = q.s('s_and_b32', mt, 7); S = q.s('s_and_b32', mt, 8); S = q.s('s_lshl_b32', S, 10)
        return ml, (q.s('s_xor_b32', S, 0x2000) if o.get('par2') else S)
    def fix(q, x, name=None): t = q.s('s_lshr_b32', x, 8); t = q.s('s_and_b32', t, 0x2000); return q.s('s_xor_b32', x, t, name=name)
    st = ST(o['stamp'], 0, 255)
    ka = SR(2, 'ka', 0); wid = SR(1, 'wid', 2)
    p('s_cmp_ge_u32', wid, 256); p('s_cbranch_scc1', 'L_end')
    p.extend(st.rt(0) + st.t(1))
    p('s_load_dwordx16', 's[4:19]', ka, 0); p('s_load_dwordx16', 's[20:35]', ka, 64)
    sX, sB, sC, sO, sK, sW, sD, sG, sS = [SR(4, n, b) for n, b in zip('XBCOKWDGS', range(4, 40, 4))]
    def tail_(q, r, n): q('s_mov_b32', r[2], n); q('s_mov_b32', r[3], 0x20000)
    NT = lambda b: ' nt' if o['nt'] & b else ''
    sI = SR(4, 'I', 40)
    p('s_getpc_b64', sI[0:2]); p.append(LABEL('L_pc')); tail_(p, sI, 'L_fin-L_pc')
    pfd = V(1, 'pfd'); p.append(DEF(pfd))
    def pf(v, srd, so, off, nl, md='', c='c'):
        x = I('buffer_load_dword', pfd, v, srd, so, mods=f'offen offset:{off}' + md); x.d = []; x.soft = 1; return mc(x, nl, c)
    t = p.s('s_lshl_b32', wid, 4); t = p.s('s_and_b32', t, 31 * 128); t = p.v('v_lshl_add_u32', v0, 12, t)
    p.append(pf(t, sI, 0, 0, 3.5))
    wv = p.v('v_lshrrev_b32', 6, v0); l = p.v('v_and_b32', 63, v0, name='lane')
    w = SR(1, 'w'); p('v_readfirstlane_b32', w, wv)
    HB = o.get('hb', 2)
    jg = p.s('s_and_b32', wid, 3, name='jg') if HB == 2 else p.s('s_bfe_u32', wid, (2 << 16) | 1, name='jg')
    JB = o.get('jb', 0)
    jq = p.s('s_bfe_u32', wid, (2 << 16) | (6 if JB == 1 else 3), name='jq')
    t = p.s('s_bfe_u32', wid, (1 << 16) | HB); t2 = p.s('s_bfe_u32', wid, (3 << 16) | 3) if JB == 1 else p.s('s_lshr_b32', wid, 5)
    if JB == 2: p('s_xor_b32', jq, jq, jg)
    if JB == 3: p('s_xor_b32', jq, jq, 3)
    if o.get('swp') == 1: t = p.s('s_xor_b32', t, 1)
    if o.get('swp') == 2: mt = p.s('s_lshl1_add_u32', t2, t, name='mt')
    else: mt = p.s('s_lshl3_add_u32', t, t2, name='mt')
    fw = p.s('s_and_b32', w, 1, name='fw'); tw = p.s('s_lshr_b32', w, 1, name='tw')
    j = p.s('s_lshl2_add_u32', jg, jq, name='j'); je = p.s('s_and_b32', jq, 1, name='je'); Tr = p.s('s_lshr_b32', jq, 1, name='Tr')
    sl = p.v('v_and_b32', 7, l); hi = p.v('v_lshrrev_b32', 5, l); q = p.v('v_lshrrev_b32', 4, l, name='q')
    r83 = p.v('v_bfe_u32', l, 3, 2)
    cx = p.v('v_xor_b32', sl, q); cx = p.v('v_lshlrev_b32', 4, cx, name='cx')
    tokl = p.v('v_lshl_add_u32', hi, 4, r83, name='tokl')
    t = p.s('s_lshl_b32', tw, 6); tk0 = p.s('s_lshl3_add_u32', fw, t, name='tk0')
    t = p.s('s_lshl_b32', mt, 7); t = p.s('s_add_u32', t, tk0); xb = p.s('s_mul_i32', t, 1152, name='xb')
    t = p.v('v_mul_u32_u24', 1152, tokl); vX0 = p.v('v_add_u32', t, cx)
    je6 = p.s('s_lshl_b32', je, 6, name='je6'); t1 = p.s('s_mul_i32', je, 36864); t2 = p.s('s_mul_i32', Tr, 4608)
    a = p.v('v_xor_b32', je6, vX0); b = p.v('v_xor_b32', 64, a)
    a = p.v('v_add_u32', t1, a); t1 = p.s('s_sub_u32', 36864, t1); b = p.v('v_add_u32', t1, b)
    vX = [p.v('v_add_u32', t2, a), p.v('v_add_u32', t2, b)]
    t2 = p.s('s_sub_u32', 4608, t2); vX += [p.v('v_add_u32', t2, a), p.v('v_add_u32', t2, b)]
    Gn = p.s('s_lshl1_add_u32', j, fw, name='Gn')
    t = p.s('s_lshl2_add_u32', jg, Tr); t = p.s('s_lshl_b32', t, 2); chr_ = p.s('s_add_u32', t, 512, name='chr')
    t = p.v('v_and_b32', 4, l); cho = p.v('v_add_u32', t, sl)
    t = p.s('s_lshl_b32', Gn, 4); t = p.v('v_lshl_add_u32', q, 2, t)
    t2 = p.v('v_mul_u32_u24', chr_, hi); t = p.v('v_max_u32', t, t2)
    vL = p.v('v_add_lshl_u32', t, cho, 1)
    t = p.s('s_lshr_b32', wid, 3); n2 = p.s('s_lshl1_add_u32', t, tw, name='n2')
    t0 = p.s('s_lshl_b32', jg, 6); t0 = p.s('s_add_u32', t0, n2); t0 = p.s('s_mul_i32', t0, 2304)
    HP = o.get('hp', 0)
    if HP: hf = p.s('s_bfe_u32', wid, (1 << 16) | HB); hf = p.s('s_mul_i32', hf, 1152)
    if HP & 2: t0 = p.s('s_add_u32', t0, hf)
    NE = o.get('ne', 3); sB0 = t0
    lE = p.v('v_min_u32', NE - 1 if HP & 4 else 8 if HP & 2 else 17, l); t = p.v('v_lshl_add_u32', lE, 7, t0)
    if HP & 4:
        vPE = p.v('v_mul_u32_u24', 9216, lE); t1 = p.s('s_mul_i32', jg, 2304); t1 = p.s('s_add_u32', t1, hf); t0 = p.s('s_mul_i32', n2, NE * 9216); sPE = p.s('s_add_u32', t0, t1)
        t0 = p.s('s_mul_i32', n2, (9 - NE) * 9216); t0 = p.s('s_add_u32', t0, 64 * NE * 9216); sPL = p.s('s_add_u32', t0, t1)
    t0 = p.s('s_mul_i32', n2, 3); t0 = p.s('s_sub_u32', t0, 32); t2 = p.v('v_min_u32', 34, l); t2 = p.v('v_add_u32', t0, t2); t2 = p.v('v_min_u32', 143, t2)
    t0 = p.s('s_mul_i32', jg, 18432); t0 = p.s('s_add_u32', t0, 512 * 1152); t2 = p.v('v_lshl_add_u32', t2, 7, t0)
    p('v_cmp_gt_u32', 'vcc', 32, l); vPB = p.v('v_cndmask_b32', t2, t, 'vcc')
    l8 = p.v('v_min_u32', 8, l, name='l8'); vPW = p.v('v_mul_u32_u24', 9216, l8, name='vPW')
    t0 = p.s('s_mul_i32', n2, 9 * 9216); t1 = p.s('s_mul_i32', jg, 2304); sPW = p.s('s_add_u32', t0, t1, name='sPW')
    row = p.v('v_bfe_u32', l, 2, 3, name='row'); r2 = p.v('v_bfe_u32', l, 4, 1)
    b1 = p.v('v_bfe_u32', l, 1, 1); pp = p.v('v_xor_b32', b1, r2); b0 = p.v('v_and_b32', 1, l)
    c32 = p.v('v_lshlrev_b32', 5, pp); c32 = p.v('v_lshl_add_u32', b0, 4, c32)
    c64 = p.v('v_lshl_add_u32', hi, 6, c32, name='c64')
    rm = p.v('v_lshl_add_u32', r2, 2, row); t0 = p.s('s_lshl_b32', tw, 2); rm = p.v('v_add_u32', t0, rm)
    t = p.v('v_lshl_add_u32', hi, 4, rm); t = p.v('v_mul_u32_u24', 9216, t); vH0 = p.v('v_add_u32', t, c32, name='vH0')
    vH = [vH0, p.v('v_add_u32', 32 * 9216 - 1024, vH0, name='vH1')]
    t = p.v('v_lshl_add_u32', hi, 3, r83); t = p.v('v_mul_u32_u24', 1152, t)
    t0 = p.s('s_lshl_b32', fw, 6); vB0 = p.v('v_xad_u32', cx, t0, t, name='vB0')
    vB = [vB0, p.v('v_add_u32', 4608 - 1024, vB0, name='vB1')]
    p.append(WAIT(lgkm=0)); p.append(KEEP(ka))
    p.extend(st.t(2))
    raw = [V(1) for _ in range(3)]
    lre_ = SR(2, 'lre'); p('s_mov_b64', lre_, 's[6:7]')
    tail_(p, sX, 2048 * 1152)
    xr = [[V(4, f'xr{g}_{s}') for s in range(9)] for g in range(4)]
    xld = [mc(I('buffer_load_dwordx4', xr[g][s], vX[g], sX, xb, mods=f'offen offset:{128*s}' + NT(8 if g else 1)), 8, 'h' if g else 'x') for g in range(4) for s in range(9)]
    vm = [[x] for x in xld[9:]]
    for x, s_ in zip(raw, (lre_, 's[8:9]', 's[18:19]')): mc(p('global_load_ushort', x, vL, s_), 1, 'c')
    if o.get('pfp', -1) >= 0: p.extend(xld[:9])
    p('s_cmp_eq_u32', fw, 0)
    p('s_cselect_b64', sB[0:2], 's[10:11]', 's[12:13]'); p('s_cselect_b64', sC[0:2], 's[14:15]', 's[16:17]')
    p('s_cselect_b64', sW[0:2], 's[24:25]', 's[26:27]')
    p('s_mov_b64', sO[0:2], 's[30:31]'); p('s_mov_b64', sS[0:2], 's[34:35]')
    for r, sz in ((sB, 576 * 1152), (sW, 576 * 9216), (sS, WSB), (sC, 576 * 1152), (sK, 1152), (sD, 4608 * 1152), (sO, 2048 * 2304), (sG, 256)):
        tail_(p, r, sz)
    t = [pf(vPB, sB, 0, 0, 12 if HP & 2 else 21, NT(128)), pf(vPW, sW, sPW, 128 * 4, 9, NT(128)), pf(vPW, sW, sPW, 128 * 13, 9, NT(128))]
    if HP & 1: t[1:] = [pf(vPW, sW, p.s('s_add_u32', sPW, hf), 128 * 4, 9, NT(128))]
    if HP & 4: t = [pf(vPB, sB, 0, 0, 3 + NE), pf(vPE, sW, sPE, 128 * 4, NE)]
    if o.get('pfp', -1) < 0: p.extend(t + xld[:9])
    elif o['pfp'] == 0: p.extend(t)
    else: vm[o['pfp'] - 1] += t
    p.extend(st.t(3))
    sQ = p.s('s_mul_i32', w, QS, name='Q')
    t0 = p.s('s_mul_i32', j, 576); fb = p.s('s_add_u32', t0, je6, name='fb')
    t1 = p.s('s_lshl_b32', je, 9); t0 = p.s('s_add_u32', t0, 512); hb = p.s('s_sub_u32', t0, t1, name='hb')
    t0 = p.s('s_lshl1_add_u32', j, tw); Bb = p.s('s_mul_i32', t0, 18432, name='Bb')
    Rc = p.s('s_mul_i32', chr_, 1152, name='Rc'); t1 = p.s('s_lshl_b32', tw, 7); Rb = p.s('s_add_u32', Rc, t1, name='Rb')
    def dma(v, srd, so, off, tag): return mc(I('buffer_load_dwordx4', v, srd, so, mods=f'offen offset:{off}' + NT({'W': 2, 'H': 4, 'B': 4, 'C': 16, 'D': 32, 'E': 32, 'X': 0}[v.name[1]]) + ' lds', tag=tag), {'vH': 17, 'vW': 8.75, 'vCl': 32, 'vCm': 8, 'vXs': 16}.get(v.name[:-1], 8), 'h')
    def mkdma(vs, srd, base, add, sq=sQ):
        def f(addr, tag):
            so = SR(1, 'T')
            return [I('s_add_u32', 'm0', sq, addr), I('s_add_u32', so, base, add)] + [dma(v, srd, so, 1024 * b, tag) for b, v in enumerate(vs)]
        return f
    vW = [V(1, f'vW{b}') for b in range(4)]; vC = [V(1, f'vC{b}') for b in range(2)]; vD = [V(1, f'vD{b}') for b in range(4)]
    vT = [[V(1, f'vT{a}{k}') for k in range(3)] for a in range(2)]; vU = [[V(1, f'vU{a}{k}') for k in range(3)] for a in range(2)]
    vTh = [V(1, f'vTh{k}') for k in range(3)]
    vXr = [[V(1, f'vXr{a}{k}') for k in range(2)] for a in range(2)]; vXm = [V(1, f'vXm{a}') for a in range(2)]
    vBq = [[V(1, f'vBq{a}{k}') for k in range(2)] for a in range(2)]; vBr = [V(1, f'vBr{a}') for a in range(2)]
    vCr = [V(1, f'vCr{c}') for c in range(5)]
    def trd(bases, qa, qb, extra):
        def mk(dst):
            def f(addr):
                r = []
                for h, qq in enumerate((qa, qb)):
                    A_ = qq * QS + addr + extra
                    r.append(I('ds_read_b64_tr_b16', dst[2*h:2*h+2], bases[A_ >> 16], mods=f'offset:{A_ & 0xffff}'))
                return r
            return f
        return mk
    def tfrag(unit, bases, sel, extra, grp, rate=1, lat=None):
        d = A(4, 'f' + unit.name); return Frag(d, unit, 2, trd(bases, sel, sel + 2, extra)(d), grp, rate, lat or o['lat'])
    def bfrag(d, unit, base, extra, grp, lat=None):
        return Frag(d, unit, 1, lambda addr: [I('ds_read_b128', d, base, mods=f'offset:{addr + extra}')], grp, 1, lat or o['lat'])
    sc = Sched(); W = sc.W; W.vgap = o['vgap']; W.back = o['back']; W.backf = o['backf']; W.seed = o['seed']; W.par = o.get('par'); W.urg = o.get('urg', 100)
    NS = o['S']; pre = lambda g: NS if g == 3 else o['SE']
    Xf = [[(A if 4 * k + tt < o['xa'] else V)(4, f'X{k}_{tt}') for tt in range(4)] for k in range(18)]
    uX = [Unit(f'X{s}', 4, None, True) for s in range(9)]
    for s in range(NS): uX[s].pre = True
    uB = [Unit(f'B{s}', 2, mkdma(vB, sB, Bb, 128 * s), False) for s in range(9)]
    uH = [Unit(f'H{s}', 2, mkdma(vH, sW, hb, 64 * 9216 * s), False) for s in range(9)]
    uR = [Unit(f'R{n}', 1, mkdma(vB[:1], sB, Rb if n < 4 else Rc, 256 * n), False) for n in range(5)]
    accb = [[V(4, f'b{u}_{tt}') for tt in range(4)] for u in range(2)]; accm = V(4, 'bm')
    acch = [[V(4, f'h{m}_{tt}') for tt in range(4)] for m in range(2)]
    idn = V(2, 'idn'); Cm = [V(4, f'Cm{g}') for g in range(4)]
    def center(g, s):
        T = [V(4, 'T0'), V(4, 'T1')]
        ti = [I(TINY, T[h], idn, xr[g][s][2*h:2*h+2], Cm[g]) for h in range(2)]
        cv = [I('v_cvt_pk_bf16_f32', xr[g][s][e], T[e >> 1][2*(e&1)], T[e >> 1][2*(e&1)+1]) for e in range(4)]
        return ti, cv
    vXw = [V(1, f'vXw{g}') for g in range(4)]
    def xwrite(g, s): return I('ds_write_b128', vXw[g], xr[g][s], mods=f'offset:{uX[s].addr}', tag=f'xw{s}')
    ctr = {}
    for s in range(9):
        ml = []
        for kp in range(2):
            k = 2 * s + kp; z = lambda a: 0 if k == 0 else a
            fx = [bfrag(Xf[k][tt], uX[s], vXr[kp][tt >> 1], (tt & 1) * 2048, ('a', k)) for tt in range(4)]
            fbs = [bfrag(A(4, 'fb'), uB[s], vBr[kp], u * 1024, ('a', k)) for u in range(2)]
            for u in range(2):
                for tt in (range(3, -1, -1) if u and k < 17 and o.get('snake', 0) & 4 else range(4)): ml.append(M(I(MF, accb[u][tt], Xf[k][tt], fbs[u].dst, z(accb[u][tt])), fx[tt], fbs[u]))
            fm = bfrag(A(4, 'fxm'), uX[s], vXm[kp], 0, ('b', k)); fr = bfrag(A(4, 'fbm'), uR[s >> 1], vBq[kp][s & 1], 0, ('b', k))
            ml.append(M(I(MF, accm, fm.dst, fr.dst, z(accm)), fm, fr))
            for m in range(2):
                f = tfrag(uH[s], vTh, m, kp * 1024, ('b', k))
                for tt in (range(3, -1, -1) if m and k < 17 and o.get('snake', 0) & 4 else range(4)): ml.append(M(I(MF, acch[m][tt], f.dst, Xf[k][tt], z(acch[m][tt])), f))
        for g in range(3, -1, -1):
            if pre(g) <= s + 2 < 9:
                ti, cv = center(g, s + 2); ctr[(g, s + 2)] = (ti, cv)
                ml[5 + 8 * g:5 + 8 * g] = [M(ti[0], tiny=2), M(ti[1], tiny=1)]
        sc.feed(ml)
    gA = len(W.m)
    E = o['edge']
    order = [(0, k) for k in range(E)] + [(1, k) for k in range(E)] + [(t, k) for k in range(E, 18 - E) for t in range(2)] + \
            [(0, k) for k in range(18 - E, 18)] + [(1, k) for k in range(18 - E, 18)]
    acc1 = []; gI = []; last1 = {}; first1 = {}
    for it in range(4):
        gI.append(len(W.m))
        uW = [Unit(f'W{it}_{s}', 4, mkdma(vW, sW, fb, 128 * it + 64 * 9216 * s), True if (it, s) == (0, 0) else None) for s in range(9)]
        for u in uW: u.early = max(g for g, its in plan if any(x in its.upper() for x in (f'W{it}', f'Q{it}', f'Y{it}', f'Y{it-1}', f'Z{it+1}', f'F{it}', f'X{it}', f'X{it-1}', f'P{it}'))) + (gA - 354 if it else 0) + 30
        ac = [[[V(4, f'g{it}{m}{t}{tt}') for tt in range(4)] for t in range(2)] for m in range(2)]; acc1.append(ac)
        for n, (t, k) in enumerate(order):
            ml = []
            for m in range(2):
                f = tfrag(uW[k >> 1], vT[t], m, (k & 1) * 2048, ('w', it, n >> 1))
                for tt in (range(3, -1, -1) if m and 0 < k < 17 and o.get('snake', 0) & 1 else range(4)): ml.append(M(I(MF, ac[m][t][tt], f.dst, Xf[k][tt], 0 if k == 0 else ac[m][t][tt]), f))
            if k == 0: first1[(it, t)] = len(W.m)
            if o.get('snake', 0) & 8 and E <= k < 18 - E:
                if t == 0: held = ml; continue
                fs = [x.frags[0] for x in (held + ml)[::4]]; ml = []
                for tt in range(4):
                    for c in (range(3, -1, -1) if tt & 1 else range(4)): ml.append(M(I(MF, ac[c & 1][c >> 1][tt], fs[c].dst, Xf[k][tt], ac[c & 1][c >> 1][tt]), fs[c]))
            sc.feed(ml)
            if k == 17: last1[(it, t)] = len(W.m) - 1
    gC = len(W.m); G = lambda g: g + gA - 354
    hq = [[A(4, f'hq{k}_{t}') for t in range(2)] for k in range(9)]
    Ca = [[SR(1, f'Ca{g}{L}') for L in range(2)] for g in range(3)]; Cb = SR(1, 'Cb')
    sQc = [SR(1, 'Qa'), SR(1, 'Qb')]
    two = lambda b: (lambda addr, tag: mkdma(vC, sC, b, 0, sQc[0])(addr, tag) + mkdma(vC, sC, b, 2 * 18432, sQc[1])(addr, tag))
    uC = [[Unit(f'C{g}{L}', 4 if g < 2 else 1, two(Ca[g][L]) if g < 2 else mkdma(vC[:1], sC, Ca[g][L], 0),
                (True if L == 0 and g < 2 else False)) for L in range(2)] for g in range(3)]
    vCl = [V(1, 'vCl0'), V(1, 'vCl1'), V(1, 'vCm2')]; vE = [V(1, f'vE{b}') for b in range(2)]
    uCl = Unit('Cl', 3, mkdma(vCl, sC, Cb, 0), False)
    accs = [[V(4, f's{t}_{a}') for a in range(2)] for t in range(9)]; lastS = {}
    for t in range(9):
        ml = []
        for k in range(9):
            if k < 8: f = bfrag(A(4, 'fc'), uC[t >> 2][k >> 2], vCr[k & 3], (t & 3) * 1024, ('c', t, k // 3))
            else: f = bfrag(A(4, 'fc'), uCl, vCr[4], t * 256, ('c', t, k // 3))
            for a in range(2): ml.append(M(I(MF, accs[t][a], hq[k][a], f.dst, 0 if k == 0 else accs[t][a]), f))
        sc.feed(ml); lastS[t] = len(W.m) - 1
    g2 = len(W.m)
    Hh = [V(8, f'Hh{x}') for x in range(4)]
    Hq = [[[(V if x == 3 and kl < 4 else A)(4, f'Hq{x}{kl}{a}') for a in range(2)] for kl in range(8)] + [[Hh[x][0:4], Hh[x][4:8]]] for x in range(4)]
    accd = [[V(4, f'd{t}_{a}') for a in range(2)] for t in range(12)]; seen = set(); lastD = {}; useH = {}
    Pf, Ph, Pl, Pm, Hp = [[SR(1, f'{n}{x}') for x in range(4)] for n in ('Pf', 'Ph', 'Pl', 'Pm', 'Hp')]; L8 = SR(1, 'L8'); L8h = SR(1, 'L8h')
    uD = [[Unit(f'D{x}{it}', 4, mkdma(vD, sD, Pf[x], it * 64 * 1152)) for it in range(4)] + [Unit(f'D{x}h', 2, mkdma(vD[:2], sD, Ph[x], 0))] for x in range(4)]
    uL = [Unit(f'L{it}', 2, mkdma(vD[:2], sD, L8, it * 64 * 1152)) for it in range(4)] + [Unit('Lh', 2, mkdma(vD[:2], sD, L8h, 0))]
    uD[0][4].brk = True
    uE = [[Unit(f'E{x}{L}', 4, mkdma(vD[:2] + vE, sD, (Pl, Pm)[L][x], 128 * 1152), f'{x}{L}' in o.get('ebrk', '10 11')) for L in range(2)] for x in range(4)]
    gcnt = [0]
    hold = []; F4 = o.get('snake', 0) & 16
    def dstep(x, kl, t, four=0):
        it, kk = kl >> 1, kl & 1
        if x and it in (2, 3): f = tfrag(uE[x][t >> 2], vU[t & 1], kk, (it - 2) * 2048 + ((t >> 1) & 1) * 512, ('d', gcnt[0] >> 2), o['rate2'])
        elif t < 8: f = tfrag(uD[x][it], vU[t & 1], t >> 2, kk * 2048 + ((t >> 1) & 1) * 512, ('d', gcnt[0] >> 2), o['rate2'])
        else: f = tfrag(uL[it], vU[t & 1], kk, ((t >> 1) & 1) * 512, ('d', gcnt[0] >> 2), o['rate2'])
        gcnt[0] += 1
        useH.setdefault((x, kl), len(W.m))
        ml = [M(I(MF, accd[t][a], Hq[x][kl][a], f.dst, accd[t][a] if t in seen else 0), f) for a in ((1, 0) if t & (4 if four else 1) and o.get('snake', 0) & 2 else (0, 1))]
        seen.add(t)
        if four:
            hold.append((t, ml))
            if len(hold) < 4: return
            sc.feed([x[0] for _, x in hold])
            for t, x in hold[::-1]: sc.feed([x[1]]); lastD[t] = len(W.m) - 1
            hold.clear(); return
        sc.feed(ml); lastD[t] = len(W.m) - 1
    for kl in (8, 0, 1, 2, 3, 4, 5, 6, 7):
        for t in (range(12) if kl != 7 else (8, 9, 10, 11, 0, 1, 2, 3, 4, 5, 6, 7)): dstep(0, kl, t, F4)
    gP = len(W.m)
    earlyH = [(x, kl) for x in (1, 2, 3) for kl in (8, 0, 1, 2, 3)]
    for x, kl in earlyH:
        for t in range(8): dstep(x, kl, t, F4)
    g3 = len(W.m)
    lateH = [(x, kl) for x in (1, 2, 3) for kl in range(4, 8)]
    pr = [A(4, f'pr{b}') for b in range(5)]; ps = [[V(4, f'ps{r}{i}') for i in range(2)] for r in range(3)]; pd = [[V(4, f'pd{r}{i}') for i in range(2)] for r in range(3)]
    xv = [V(4, f'xv{n}') for n in range(3)]; xf = [[V(4, f'xf{i}{a}') for a in range(2)] for i in range(2)]; xf4 = V(4, 'xf4'); Y4 = V(4, 'Y4'); D4 = V(4, 'D4')
    sel = V(4, 'sel'); idm = [V(4, 'id0'), V(4, 'id1')]; sA_ = V(8, 'selA'); selA = [sA_[2:6], sA_[0:4]]
    addp = lambda ac, src: [I(MF, ac[6 + i][a], selA[a], src[i], ac[6 + i][a]) for i in range(2) for a in range(2)]
    for ts in o.get('late', [[0, 1], [2, 3], [4], [5], [6], [7]]):
        for x, kl in lateH:
            for t in ts: dstep(x, kl, t)
        if t == o.get('t4', 3):
            gX = len(W.m)
            sc.feed([M(x) for x in inter([[I(MF, D4, sel, pr[1 + k], D4 if k else 0) for k in range(4)], [I(MF, xf[i][a], xv[a], idm[i], 0) for i in range(2) for a in range(2)]]) +
                     [I(MF, xf4, xv[2], idm[0], 0), I(MF, Y4, sel, pr[0], 0)]])
        if t == 5: gS = len(W.m); sc.feed([M(x) for r in range(3) for x in addp(accs, ps[r])])
    gD = len(W.m); sc.feed([M(x) for r in range(2) for x in addp(accd, pd[r])])
    gE = len(W.m)
    gSetC = gI[3] + o.get('setc', 40); gSetD = gI[3] + o.get('setd', 100)
    for u in sum(uC, []) + [uCl]: u.early = gSetC
    for u in sum(uD, []) + uL: u.early = gSetD
    sc.plan(lambda g: o['ep'], lambda g: 99, o['tail'])
    spacing = lambda g: o['sp'] if g < gSetC else o['sp2']
    XS, CS = o.get('xs'), o.get('cs'); sc.res = o.get('res', 3 * bool(XS) + 3 * bool(CS)); sc.pl = o.get('pl', 3)
    def xadr(z, nm):
        t0 = z.s('s_lshr_b32', jg, 1); t0 = z.s('s_lshl2_add_u32', t0, w); t1 = z.s('s_and_b32', jg, 1); t0 = z.s('s_lshl1_add_u32', t0, t1); tb = z.s('s_lshl_b32', t0, 3, name='tb')
        t1 = z.s('s_lshl_b32', mt, 7); t0 = z.s('s_add_u32', t1, tb); t0 = z.s('s_mul_i32', t0, 1152)
        kc = z.s('s_lshl2_add_u32', jq, jg); kc = z.s('s_lshl_b32', kc, 6); k8 = z.s('s_lshl_b32', jq, 5); k8 = z.s('s_add_u32', k8, 1024); x8 = z.s('s_add_u32', t0, k8)
        t1 = z.s('s_add_u32', t1, tk0); t1 = z.s('s_mul_i32', t1, 1152); xc = [z.s('s_add_u32', t1, kc)]; xc.append(z.s('s_add_u32', xc[0], 4608))
        t = z.v('v_lshrrev_b32', 3, col); c3 = z.v('v_and_b32', 3, col); ae = z.v('v_lshl_add_u32', t, 2, c3, name='ae'); q1 = z.v('v_and_b32', 1, q); c4 = z.v('v_lshrrev_b32', 2, col)
        vx = vx8 = None
        if nm:
            t = z.v('v_mul_u32_u24', 1152, ae); vx8 = z.v('v_lshl_add_u32', q1, 4, t, name='vXt0')
            t = z.v('v_lshl_add_u32', c4, 4, c3); t = z.v('v_mul_u32_u24', 1152, t); vx = z.v('v_lshl_add_u32', q, 4, t, name='vXs0')
        return tb, kc, k8, x8, xc, c3, ae, q1, c4, vx, vx8
    def clpat(qs, u1):
        t = qs.v('v_lshrrev_b32', 1, col); t = qs.v('v_mul_u32_u24', 1152, t); t2 = qs.v('v_and_b32', 16, l16); t = qs.v('v_add3_u32', t, t2, u1)
        u0 = qs.s('s_lshl_b32', jx, 1); t2 = qs.v('v_xor_b32', u0, q); t3 = qs.v('v_xor_b32', 4, t2); t2 = qs.v('v_mul_u32_u24', 18432, t2); t3 = qs.v('v_mul_u32_u24', 18432, t3)
        t2 = qs.v('v_add_u32', 1024, t2); qs('v_add_u32', vCl[0], t, t2); qs('v_add_u32', vCl[1], t, t3)
        u0 = qs.s('s_mul_i32', jq, 7 * 18432); u0 = qs.s('s_sub_u32', 32 * 18432 - 1024, u0); t2 = qs.v('v_lshlrev_b32', 24, q); qs('v_add3_u32', vCl[2], u0, t, t2)
    if XS:
        def xdma(addr, tag):
            z = Q(); r = xr0[0] if xr0 else xadr(z, 1)
            for n in range(3): z('s_add_u32', 'm0', sQ, addr + 1024 * n); z.append(dma(r[9 + n // 2], sX, (r[4] + [r[3]])[n], 0, tag))
            return list(z)
        uXs = Unit('Xs', 3, xdma); uXs.pin = XS; uXs.addr = 33 * 1024; xr0 = []
        if XS > 0: sc.extra.append(uXs)
    if CS:
        def cdma(addr, tag, f=uCl.dma):
            z = Q(); u0 = z.s('s_mul_i32', jq, 8 * 18432); u2 = z.s('s_lshl_b32', jg, 5); z('s_add_u32', Cb, u0, u2); clpat(z, z.s('s_mul_i32', tw, 8 * 1152))
            return list(z) + f(addr, tag)
        uCl.dma = cdma; uCl.pin = G(CS); uCl.addr = (30 if XS else 33) * 1024
    sc.allocate(o['p0max'], spacing)
    bar = sc.bar
    col = p.v('v_and_b32', 15, l, name='col'); l16 = p.v('v_lshlrev_b32', 4, l, name='l16')
    big = p.v('v_mov_b32', BIG); p('v_cmp_ne_u32', 'vcc', 0, v0); vM0 = p.v('v_cndmask_b32', 0, big, 'vcc', name='vM0')
    t = p.v('v_mul_u32_u24', 9216, rm); p('v_add_u32', vW[0], t, c64)
    for b in (1, 2, 3): p('v_add_u32', vW[b], b * (16 * 9216 - 1024), vW[0])
    for u in sc.p0:
        d_ = u.dma(u.addr, f'E{u.epoch}'); vm += [d_[:3]] + [[x] for x in d_[3:]]
    if HP & 4:
        z = Q(); t = z.v('v_min_u32', (8 - NE) * 16, l16); t2 = z.v('v_lshlrev_b32', 3, t); t = z.v('v_mul_u32_u24', 576, t)
        k = len(vm) - o.get('pl2', 0); vm[k:k] = [list(z) + [pf(t2, sB, sB0, 128 * NE, 9 - NE)], [pf(t, sW, sPL, 128 * 4, 9 - NE)]]
    if XS and o.get('xp', 1): xr0.append(xadr(p, 1))
    if XS and XS < 0: d_ = xdma(uXs.addr, 'E3'); vm += [d_[0:2], d_[2:4], d_[4:6]]
    if LOC & 24: ml, S = mlS(p)
    t0 = p.s('s_lshl2_add_u32', ml if LOC & 16 else mt, jq); t1 = p.s('s_lshl2_add_u32', t0, w); t1 = p.s('s_lshl2_add_u32', t1, jg); t1 = p.s('s_mul_i32', t1, SRC)
    if LOC & 16: t1 = fix(p, p.s('s_add_u32', t1, S))
    Pb = p.s('s_add_u32', t1, 0x6800000 if LOC & 16 else P8_OFF, name='Pb')
    if LOC & 24 in (8, 16): t0 = p.s('s_lshl2_add_u32', ml if LOC & 8 else mt, jq)
    jx = p.s('s_xor_b32', jg, 3, name='jx'); t0 = p.s('s_lshl2_add_u32', t0, jx); Pp = []
    PXo = (0x7000000, 0x7001000, 0x7004000)
    if LOC & 8:
        t1 = p.s('s_lshl2_add_u32', t0, w); t1 = p.s('s_lshl_b32', t1, 15); t1 = fix(p, p.s('s_add_u32', t1, S))
        for r in range(3): Pp.append(p.s('s_xor_b32', t1, PXo[r] + (r << 17), name=f'Pp{r}'))
    for r in range(0 if LOC & 8 else 3):
        t1 = p.s('s_xor_b32', t0, r); t1 = p.s('s_lshl2_add_u32', t1, w); t1 = p.s('s_mul_i32', t1, PW); Pp.append(p.s('s_add_u32', t1, PX_OFF + 4096 * r, name=f'Pp{r}'))
    mw = p.s('s_lshl2_add_u32', mt, w, name='mw')
    dmy = SR(1, 'dmy')
    def touches():
        p.append(DEF(dmy))
        def touch(srd, so):
            x = p('s_buffer_load_dword', dmy, srd, so); x.kind = 'K'; x.d = []
        p('s_cmp_ge_u32', wid, o.get('tn', 8)); p('s_cbranch_scc1', 'L_nt')
        t0 = p.s('s_lshl_b32', w, 21); T = o['tlb']
        if T & 1: touch(sC, 0); touch(sK, 0); touch(sD, t0)
        if T & 2: touch(sG, 0); touch(sO, t0)
        if T & 4:
            for k in range(6): touch(sS, p.s('s_add_u32', t0, k << 23))
        p.append(LABEL('L_nt'))
    if o['tlb'] and not o.get('tp'): touches()
    t = p.v('v_lshlrev_b32', 6, row); l3 = p.v('v_and_b32', 3, l); t = p.v('v_lshl_add_u32', l3, 3, t); tp0 = p.v('v_lshl_add_u32', r2, 5, t)
    f9 = p.s('s_lshl_b32', fw, 9, name='f9'); t = p.v('v_lshl_add_u32', hi, 10, tp0); p('v_add_u32', vT[0][0], f9, t); p('v_xor_b32', vT[1][0], 32, vT[0][0])
    t0 = p.s('s_lshl_b32', fw, 5); t = p.v('v_lshl_add_u32', hi, 9, tp0); p('v_xor_b32', vTh[0], t0, t)
    for r in (vT[0], vT[1], vTh):
        for k in (1, 2): p('v_add_u32', r[k], 65536 * k, r[0])
    ih = p.v('v_bfe_u32', l, 3, 1); i1 = p.v('v_bfe_u32', l, 1, 3); t = p.v('v_xor_b32', q, i1); t = p.v('v_lshlrev_b32', 4, t); L0 = p.v('v_lshl_add_u32', sl, 7, t)
    LX = p.v('v_lshl_add_u32', ih, 10, L0)
    t0 = p.s('s_mul_i32', tw, 2 * QS); p('v_add_u32', vXr[0][0], t0, LX); p('v_add_u32', vXr[0][1], QS, vXr[0][0])
    t0 = p.s('s_lshl1_add_u32', je, tw); t0 = p.s('s_mul_i32', t0, QS); t0 = p.s('s_lshl2_add_u32', f9, t0); p('v_add_u32', vXm[0], t0, LX)
    t = p.v('v_mul_u32_u24', QS, ih); p('v_add_u32', vBq[0][0], t, L0); p('v_add_u32', vBq[0][1], 2 * QS, vBq[0][0])
    t0 = p.s('s_mul_i32', fw, 2 * QS); p('v_add_u32', vBr[0], t0, vBq[0][0])
    for a, b in ((vXr[1][0], vXr[0][0]), (vXr[1][1], vXr[0][1]), (vXm[1], vXm[0]), (vBq[1][0], vBq[0][0]), (vBq[1][1], vBq[0][1]), (vBr[1], vBr[0])): p('v_xor_b32', a, 64, b)
    vQ = p.v('v_add_u32', sQ, l16, name='vQ')
    t0 = p.s('s_lshl_b32', jq, 10); p('v_add_u32', vXw[0], t0, vQ)
    for g in (1, 2, 3): p('v_xor_b32', vXw[g], g * 1024, vXw[0])
    t = p.v('v_lshlrev_b32', 4, b0); c_ = p.v('v_mov_b32', 0x3f80); one = p.v('v_lshlrev_b32', t, c_)
    p('v_cmp_eq_u32', 'vcc', 0, b1); p('v_cndmask_b32', idn[0], 0, one, 'vcc'); p('v_xor_b32', idn[1], idn[0], one)
    asum = V(4, 'asum'); t = p.v('v_bfe_u32', l, 2, 2); c_ = p.v('v_mov_b32', 0x3f803f80); p('v_cmp_eq_u32', 'vcc', t, q)
    for e in range(4): p('v_cndmask_b32', asum[e], 0, c_, 'vcc')
    kb0 = SR(2, 'kb0'); kb1 = SR(2, 'kb1')
    p('v_cmp_ne_u32', kb0, 0, b0); p('v_cmp_ne_u32', kb1, 0, b1)
    rc = p.s('s_mov_b32', o['rc'], name='rc')
    p.extend(st.t(4))
    c = P()
    sgn = c.v('v_lshlrev_b32', 31, ih)
    vKw = c.v('v_lshl_add_u32', l, 3, sQ)
    lre, lim, ldt = [c.v('v_lshlrev_b32', 16, x) for x in raw]
    t = c.v('v_mul_f32', LOG2E, ldt); dt = c.v('v_exp_f32', t)
    den = c.v('v_mul_f32', lre, lre); c('v_fmac_f32', den, lim, lim); rd = c.v('v_rcp_f32', den)
    dt = c.v('v_cvt_pk_bf16_f32', dt, dt); dt = c.v('v_and_b32', 0xffff0000, dt)
    xr_ = c.v('v_mul_f32', dt, lre); xi = c.v('v_mul_f32', dt, lim)
    t = c.v('v_mul_f32', LOG2E, xr_); mag = c.v('v_exp_f32', t)
    t = c.v('v_mul_f32', 1 / (2 * math.pi), xi); t = c.v('v_fract_f32', t)
    cs = c.v('v_cos_f32', t); sn = c.v('v_sin_f32', t)
    rd = c.v('v_add_f32', rd, rd)
    k1 = V(2); c('v_mul_f32', k1[0], mag, cs); b = c.v('v_mul_f32', mag, sn)
    am = c.v('v_add_f32', -1.0, k1[0])
    cr = c.v('v_mul_f32', am, lre); c('v_fmac_f32', cr, b, lim)
    ci = c.v('v_mul_f32', b, lre); ci = c.v('v_fma_f32', Neg(am), lim, ci)
    k0 = V(2); cr = c.v('v_mul_f32', cr, rd); c('v_mul_f32_e64', k0[1], Neg(ci), rd); c('v_xor_b32', k0[0], sgn, cr)
    c('v_xor_b32', k1[1], sgn, b)
    CI = {'cf': 0, 'l1': 1, 'l16': 2, 'l64': 3, 'l512': 4}
    def kput(nm, r): c('ds_write_b64', vKw, r, mods=f'offset:{CST + 512 * CI[nm]}')
    kput('cf', k0); kput('l1', k1); cur = k1
    for n in range(1, 10):
        nx = V(2); a2 = c.v('v_mul_f32', cur[0], cur[0]); t = c.v('v_add_f32', cur[0], cur[0])
        c('v_fma_f32', nx[0], Neg(cur[1]), cur[1], a2); c('v_mul_f32', nx[1], t, cur[1]); cur = nx
        if n in (4, 6, 9): kput(f'l{1<<n}', cur)
    cst = list(c)
    sS_ = [V(4, f'sum{g}') for g in range(4)]; sQ_ = [V(4, f'sq{g}') for g in range(4)]; nmean = []; qsum = []
    def post(g):
        r = P(); a = sS_[g][0]
        for m in ('quad_perm:[1,0,3,2]', 'quad_perm:[2,3,0,1]', 'row_half_mirror'): a = r.v('v_add_f32_dpp', a, a, mods=m + DM)
        a = r.v('v_mul_f32', -1.0 / 576, a); nmean.append(a); t = r.v('v_cvt_pk_bf16_f32', a, a)
        for e in range(4): r('v_and_b32', Cm[g][e], 0xffff0000, t)
        r2_ = P(); b = r2_.v('v_mov_b32_dpp', sQ_[g][0], mods='quad_perm:[0,0,0,0]' + DM)
        for e in (1, 2, 3): b = r2_.v('v_add_f32_dpp', sQ_[g][e], b, mods=f'quad_perm:[{e},{e},{e},{e}]' + DM)
        b = r2_.v('v_add_f32_dpp', b, b, mods='row_half_mirror' + DM); qsum.append(b)
        out = inter([r, r2_]); prev = None
        for s in range(pre(g)):
            ti, cv = center(g, s); out += ti
            if prev: out += prev
            prev = cv + ([xwrite(g, s)] if s < NS else [])
        return out + prev
    pend = []
    if o.get('cst0', 2) == 2: p.extend(cst[:8] + (st.t(15) if o.get('bst') else []) + cst[8:]); cst = []
    if o['tlb'] and o.get('tp'): touches()
    for _ in range(o.get('xa1', 9)): p.extend(vm.pop(0))
    for g in range(4):
        per = -(-len(pend) // 9)
        for s in range(9):
            x = xr[g][s]; f = pend[:per]; pend = pend[per:]
            p(TINY, sQ_[g], x[0:2], x[0:2], 0 if s == 0 else sQ_[g]); p(MF, sS_[g], asum, x, 0 if s == 0 else sS_[g])
            if g == 0 and s == o.get('s16', 0) and o.get('bst'): p.extend(st.t(16))
            if vm: p.extend(vm.pop(0))
            p.extend(f[:2]); p(TINY, sQ_[g], x[2:4], x[2:4], sQ_[g]); p.extend(f[2:])
        p.extend(st.t(5 + g))
        pend = post(g)
        if g == 0 and o.get('cst0', 2) == 1: p.extend(cst); cst = []
    k = max(1, len(pend) // (len(vm) + 1))
    while pend or vm:
        p.extend(pend[:k]); pend = pend[k:]
        if vm: p.extend(vm.pop(0))
    if o['tlb']: p.append(WAIT(lgkm=0)); p.append(KEEP(dmy))
    sc.xlg[0].append(f'xw{NS-1}')
    qc = []; qw = []
    for s in range(NS, 9):
        e = uX[s].epoch
        for g in range(4):
            x = xwrite(g, s); x.ready = bar[uX[s].at] + 1; x.dead = bar[e] - 9 + 2 * g; qw.append(x)
            if (g, s) in ctr:
                ti, cv = ctr[(g, s)]; cv[0].deps = [(ti[1], 2)]; cv[-1].dead = ti[1].gap + 7; qc += cv; x.deps = [(cv[-1], 0)]
        sc.xlg[e].append(f'xw{s}')
    W.queue(qc, 45, 'ctr'); W.queue(qw, 46, 'xw')
    e1 = sc.barafter(gI[2] + o['pub1']); sc.xvm[e1] += ['hs', 'H0', 'H1']
    eh = sc.barafter(gI[3] + 130); sc.xvm[eh] += ['H2']
    e2 = sc.barafter(gC + o['pub2']); sc.xvm[e2] += ['H3', 'sp']
    e3 = sc.barafter(lastD[11] + o['pub3']); sc.xvm[e3] += ['d8']
    qe = P(); qt = Q()
    if LOC & 2:
        ml, S = mlS(qt); t0 = qt.s('s_lshl2_add_u32', ml, tw); t0 = qt.s('s_lshl_b32', t0, 5); t0 = qt.s('s_add_u32', t0, j); t0 = qt.s('s_lshl_b32', t0, 15)
        t0 = qt.s('s_add_u32', t0, S); e0 = qt.s('s_lshl1_add_u32', f9, t0); Hs = qt.s('s_lshl1_add_u32', f9, e0, name='Hs')
        es = [qt.s('s_xor_b32', e0, 0x4202000 + k * 0x80000) for k in range(2)]
    else:
        t0 = qt.s('s_lshl1_add_u32', mt, tw); t0 = qt.s('s_mul_i32', t0, 288); t1 = qt.s('s_mul_i32', j, 9); t0 = qt.s('s_add_u32', t0, t1)
        t0 = qt.s('s_lshl1_add_u32', t0, fw); t0 = qt.s('s_lshl_b32', t0, 10); e0 = qt.s('s_add_u32', t0, H_OFF + 16384)
        Hs = qt.s('s_lshl1_add_u32', f9, e0, name='Hs')
        es = [e0, qt.s('s_add_u32', e0, 144 * 2048)]
    qt[0].ready = gA - 60
    def epi(g, u, dst, ready):
        n0 = len(qe)
        for e in range(4): qe('v_mul_f32', g[e], g[e], u[e])
        for e in range(2): qe('v_cvt_pk_bf16_f32', dst[e], g[2 * e], g[2 * e + 1])
        qe[n0].ready = ready
    def hst(r, so, off, tag, g0):
        x = qt('buffer_store_dwordx4', r, l16, sS, so, mods=f'offen offset:{off} sc1', tag=tag)
        x.deps = [(qe[-1], 1)]; x.need = g0; x.dead = min(g0 + o['hst'], gE + 9); x.soft = 1; qe[-1].dead = min(getattr(qe[-1], 'dead', 1 << 30), x.dead - 2); return x
    for a in range(2):
        r = V(4, 'Hh')
        for k in range(2): epi(acch[0][2*a+k], acch[1][2*a+k], r[2*k:2*k+2], gA - 4 + 2*a + k + 3)
        if a: qe[-1].dead = first1[(0, 1)] + 4
        hl8 = hst(r, es[a], 0, 'H0', gA + 20)
    hlast = {8: hl8}
    for it in range(4):
        Hf = [V(4, f'Hf{tt}') for tt in range(4)]; ac = acc1[it]
        es = [qt.s('s_xor_b32', Hs, 0x4000000 + (it >> 1) * 16384 + (it & 1) * 4096 + k * 0x80000) if LOC & 2 else qt.s('s_add_u32', Hs, it * 4096 - 16384 + k * 144 * 2048) for k in range(2)]; qt[-2].ready = last1[(it, 1)] - 10
        for t in range(2):
            for tt in range(4):
                epi(ac[0][t][tt], ac[1][t][tt], Hf[tt][2*t:2*t+2], last1[(it, t)] + tt)
                if it < 3: qe[-1].dead = first1[(it + 1, t)] + tt - 1
                if t == 1: hlast[it] = hst(Hf[tt], es[tt >> 1], (tt & 1) * 1024, f'H{it}', last1[(it, 1)] + 10 + 10 * tt)
    def part(ac, so, off, ready, tag):
        r = V(4, 'pk'); n0 = len(qe)
        for e in range(4): qe('v_cvt_pk_bf16_f32', r[e], ac[e >> 1][2*(e&1)], ac[e >> 1][2*(e&1)+1])
        qe[n0].ready = ready + 3
        return hst(r, so, off, tag, ready + 10)
    for t in (0, 1, 2, 3, 4, 5, 8): slast = part(accs[t], Pp[t >> 1] if t < 8 else Pb, (t & 1) * 1024, lastS[t], 'sp' if t < 8 else 'd8')
    t0 = qt.s('s_mul_i32', jq, 4 * FIN - 1024); P8 = qt.s('s_sub_u32', Pb, t0); t1 = qt.s('s_and_b32', jx, 1); t1 = qt.s('s_lshl_b32', t1, 1)
    for u in range(4):
        e0 = qt.s('s_xor_b32', t1, u); e0 = qt.s('s_mul_i32', e0, 4 * FIN); e0 = qt.s('s_add_u32', e0, P8); d8 = part(accd[8 + u], e0, 1024, lastD[8 + u], 'd8')
    d8.dead = min(d8.dead, bar[e3] - 20)
    dst_ = []
    for t in range(6):
        dst_.append(part(accd[t], Pp[t >> 1], 2048 + (t & 1) * 1024, lastD[t], 'dp')); dst_[-1].back = 2000; dst_[-1].need = 0; dst_[-1].chain = 1
    W.queue(qe, 40, 'epi'); W.queue(qt, 47, 'st')
    qs = Q()
    x0 = qs.s('s_and_b32', jx, 1, name='x0'); x1 = qs.s('s_lshr_b32', jx, 1, name='x1'); fx = qs.s('s_xor_b32', fw, x1, name='fx')
    u0 = qs.s('s_mul_i32', jq, 8 * 18432); u1 = qs.s('s_lshl1_add_u32', jg, Tr); u1 = qs.s('s_lshl_b32', u1, 7); u4 = qs.s('s_add_u32', u0, u1)
    u2 = qs.s('s_mul_i32', x1, 4 * 18432); qs('s_add_u32', Ca[0][0], u4, u2); u2 = qs.s('s_sub_u32', 4 * 18432, u2); qs('s_add_u32', Ca[1][0], u4, u2)
    if not CS: u2 = qs.s('s_lshl_b32', jg, 5); qs('s_add_u32', Cb, u0, u2)
    u0 = qs.s('s_lshl_b32', x0, 11); qs('s_add_u32', sQc[0], sQ, u0); qs('s_xor_b32', sQc[1], 2048, sQc[0])
    u0 = qs.s('s_mul_i32', jq, 18432); u0 = qs.s('s_add_u32', u0, 32 * 18432); qs('s_add_u32', Ca[2][0], u0, u1)
    for g in range(3): qs('s_xor_b32', Ca[g][1], 128, Ca[g][0])
    if LOC & 2: ml, S = mlS(qs); u3 = qs.s('s_lshl3_add_u32', ml, w); u3 = qs.s('s_lshl_b32', u3, 19); u3 = qs.s('s_add_u32', u3, S); u3 = qs.s('s_xor_b32', u3, 0x4000000)
    else: u3 = qs.s('s_mul_i32', mw, 144 * 2048); u3 = qs.s('s_add_u32', u3, H_OFF)
    u2 = qs.s('s_mul_i32', fw, 36864); t0 = qs.s('s_lshl_b32', fx, 7); u2 = qs.s('s_sub_u32', u2, t0)
    t0 = qs.s('s_lshl_b32', x1, 7); u5 = qs.s('s_add_u32', u2, t0); t0 = qs.s('s_xor_b32', t0, 128); u6 = qs.s('s_add_u32', u2, t0)
    for x in range(4):
        u0 = qs.s('s_add_u32', jq, x); u0 = qs.s('s_and_b32', u0, 3); u1 = qs.s('s_and_b32', u0, 1); u0 = qs.s('s_lshl2_add_u32', jg, u0)
        t0 = qs.s('s_mul_i32', u0, 32768 if LOC & 2 else 18432); qs('s_add_u32', Hp[x], t0, u3)
        u0 = qs.s('s_mul_i32', u0, 9); t0 = qs.s('s_add_u32', u0, u1); qs('s_mul_i32', Pf[x], t0, 36864)
        u1 = qs.s('s_xor_b32', u1, 1); u0 = qs.s('s_lshl3_add_u32', u1, u0); qs('s_mul_i32', Ph[x], u0, 36864)
        if x: qs('s_add_u32', Pl[x], Pf[x], u5); qs('s_add_u32', Pm[x], Pf[x], u6)
    u0 = qs.s('s_lshl_b32', jq, 8); u0 = qs.s('s_sub_u32', 1024, u0); u0 = qs.s('s_add_u32', u0, u2)
    qs('s_add_u32', L8, Pf[0], u0); qs('s_add_u32', L8h, Ph[0], u0)
    qs[0].ready = gI[2] + 20; qs[-1].dead = gI[3] - 70; sdone = qs[-1]
    n0 = len(qs)
    t = qs.v('v_and_b32', 7, col); t = qs.v('v_xor_b32', t, q); t2 = qs.v('v_lshlrev_b32', 4, t)
    u0 = qs.s('s_lshl_b32', tw, 6); u1 = qs.s('s_mul_i32', tw, 8 * 1152)
    t = qs.v('v_lshrrev_b32', 7, l16); t = qs.v('v_mul_u32_u24', 1152, t); t = qs.v('v_xad_u32', t2, u0, t); qs('v_add_u32', vC[0], u1, t); qs('v_add_u32', vC[1], 18432 - 1024, vC[0])
    if not CS: clpat(qs, u1)
    qs[n0].ready = gSetC - 100; qs[-1].dead = gSetC - 1
    u0 = qs.s('s_lshl1_add_u32', jq, fx); u0 = qs.s('s_lshl_b32', u0, 7); u1 = qs.s('s_mul_i32', tw, 16 * 1152); u0 = qs.s('s_add_u32', u0, u1)
    t = qs.v('v_bfe_u32', l16, 6, 3); t = qs.v('v_mul_u32_u24', 1152, t); t2 = qs.v('v_and_b32', 127, vW[0]); u1 = qs.s('s_lshl_b32', x0, 6); t = qs.v('v_xad_u32', t2, u1, t); qs('v_add_u32', vD[0], u0, t)
    for b, k in ((1, 8192), (2, 36864 - 2048), (3, 46080 - 3072)): qs('v_add_u32', vD[b], k, vD[0])
    qs[-1].dead = gSetD - 1
    t = qs.v('v_bfe_u32', col, 1, 3); t4 = qs.v('v_and_b32', 1, q); t = qs.v('v_xor_b32', t, t4); t = qs.v('v_lshlrev_b32', 4, t)
    t5 = qs.v('v_and_b32', 7, col); t = qs.v('v_lshl_add_u32', t5, 7, t)
    t2 = qs.v('v_lshrrev_b32', 3, col); t3 = qs.v('v_lshrrev_b32', 1, q); t2 = qs.v('v_lshl_add_u32', t2, 1, t3); t2 = qs.v('v_mul_u32_u24', QS, t2)
    u0 = qs.s('s_lshl_b32', je, 6); qs('v_xad_u32', vCr[0], t, u0, t2)
    for k in (1, 2, 3): qs('v_xor_b32', vCr[k], 32 * k, vCr[0])
    t = qs.v('v_lshl_add_u32', t5, 1, t4); qs('v_lshl_add_u32', vCr[4], t, 4, t2)
    qs[-1].dead = gC - 40
    n0 = len(qs)
    for a in range(2):
        for k in range(3): qs('v_subrev_u32', vU[a][k], f9, vT[a][k])
    qs('v_add_u32', vE[0], 73728 - 2048, vD[0]); qs('v_add_u32', vE[1], 73728 + 9216 - 3072, vD[0])
    qs[n0].ready = gC; qs[-1].dead = g2 - 70
    W.queue(qs, 5, 'setup')
    qp = Q(); pfl = []; warm = {}
    def pfs(xs, g):
        for x in xs: x.need = g; x.ready = g
        if o.get('pfb', 1):
            for x in xs[1:]: x.chain = 1; x.back = 1e9; x.need = -9
        pfl.append((g, xs))
    vP9 = V(1, 'vP9'); a_ = Q()
    t0 = a_.s('s_lshl_b32', jg, 6); t0 = a_.s('s_add_u32', t0, n2); t0 = a_.s('s_lshl1_add_u32', t0, fw); sPD = a_.s('s_mul_i32', t0, 9 * 1152)
    sPC = a_.s('s_mul_i32', n2, 9 * 1152); t0 = a_.s('s_lshl_b32', jg, 8); sPC2 = a_.s('s_add_u32', sPC, t0); a_('v_lshrrev_b32', vP9, 3, vPW)
    g0 = min(g for g, its in plan if any(c_ in its.upper() for c_ in ('D', 'C', 'E', 'N8'))); a_[0].ready = G(g0) - 30; pfl.append((G(g0) - 30, list(a_)))
    for g, its in plan:
        xs = []; a_ = Q()
        def alt(base, step, second):
            t0 = a_.s('s_bfe_u32', wid, (1 << 16) | HB)
            if second ^ o.get('flip', 0): t0 = a_.s('s_xor_b32', t0, 1)
            t0 = a_.s('s_mul_i32', t0, step); return a_.s('s_add_u32', base, t0)
        def lag(base, a, b):
            t0 = a_.s('s_bfe_u32', wid, (1 << 16) | HB); a, b = [BIG if x is None else x for x in ((b, a) if o.get('near', 0) else (a, b))]
            t0 = a_.s('s_mul_i32', t0, (b - a) & 0xffffffff); t0 = a_.s('s_add_u32', base, t0); return a_.s('s_add_u32', t0, a) if a else t0
        for c_, n in its.split():
            n0 = len(xs); low = c_.islower(); c_ = c_.upper()
            if c_ == 'Z': n = int(n); so = lag(sPW, 128 * n if n < 4 else None, 128 * n - 128 if n else None); xs += [pf(vPW, sW, so, 128 * k, 9, '', 'm' if n == 4 else 'c') for k in (0, 5, 9, 14)]
            elif c_ == 'E': n = int(n); so = lag(sPD, 512 * n if n < 2 else None, 512 * n - 512 if n else None); xs += [pf(vP9, sD, so, 128 * k, 9, '', 'm' if n == 2 else 'c') for k in range(4)]
            elif c_ in 'NF':
                ab = (0, None) if c_ == 'N' else (None, 0); cl_ = 'c' if c_ == 'N' else 'm'
                if n in '0123': so = lag(sPW, *ab); xs += [pf(vPW, sW, so, 128 * (k + int(n)), 9, '', cl_) for k in (0, 5, 9, 14)]
                elif n == '8': xs += [pf(vP9, sD, lag(sPD, *ab), 1024, 9, '', cl_)]
                else: s1 = lag(sPC2, *ab); s2 = lag(sPC, *ab); xs += [pf(vP9, sC, s1, 0, 9, '', cl_), pf(vP9, sC, s1, 128, 9, '', cl_), pf(vP9, sC, s2, 1024, 9, '', cl_)]
            elif c_ in 'WXY': so = sPW if c_ == 'W' else alt(sPW, 128, c_ == 'Y'); xs += [pf(vPW, sW, so, 128 * (k + int(n)), 9, '', 'm' if c_ == 'Y' else 'c') for k in (0, 5, 9, 14)]
            elif c_ in 'PQ': so = alt(sPW, 1152, c_ == 'Q'); xs += [pf(vPW, sW, so, 128 * (k + int(n)), 9, '', 'm' if c_ == 'Q' else 'c') for k in (0, 5)]
            elif c_ == 'D' and n in 'cd': so = alt(sPD, 512, False); xs += [pf(vP9, sD, so, 128 * k, 9) for k in ((0, 1) if n == 'c' else (2, 3))]
            elif c_ == 'D' and n in 'ab': so = alt(sPD, 512, n == 'b'); xs += [pf(vP9, sD, so, 128 * k, 9, '', 'm' if n == 'b' else 'c') for k in range(4)]
            elif c_ == 'D': xs += [pf(vP9, sD, sPD, 128 * k, 9) for k in {'l': range(4), 'h': range(4, 8), '8': [8]}[n]]
            elif c_ == 'K': t = a_.v('v_lshlrev_b32', 3, l16); xs += [pf(t, sK, 0, 0, 2.25)]
            elif c_ == 'H':
                assert not LOC & 2; e = sc.barafter(G(g) - 8); assert bar[e] < G(g), (bar[e], g); sc.xvm[e].append('H0' if n == '8' else 'H' + n); warm[n] = bar[e]
                t = a_.v('v_and_b32', 1, q); t = a_.v('v_mul_u32_u24', 144 * 2048, t); t = a_.v('v_lshl_add_u32', col, 7, t); t2 = a_.v('v_lshrrev_b32', 9, l16)
                if n == '8': t3 = a_.v('v_and_b32', 8, col); t2 = a_.v('v_add_u32', t2, t3); so = a_.s('s_lshl_b32', fw, 10); so = a_.s('s_sub_u32', Hs, so)
                else: so = a_.s('s_add_u32', Hs, int(n) * 4096 - 16384)
                t = a_.v('v_lshl_add_u32', t2, 27, t); xs += [pf(t, sS, so, 0, 16 if n == '8' else 32, ' sc1', 'm')]
            elif c_ == 'L':
                t0 = a_.s('s_lshl1_add_u32', n2, fw); t1 = a_.s('s_lshr_b32', t0, 5); t0 = a_.s('s_and_b32', t0, 31); t2 = a_.s('s_and_b32', t1, 1); t0 = a_.s('s_lshl3_add_u32', t2, t0)
                t1 = a_.s('s_lshl2_add_u32', jg, t1); t1 = a_.s('s_mul_i32', t1, 72); t0 = a_.s('s_add_u32', t0, t1); t0 = a_.s('s_add_u32', t0, 32); so = a_.s('s_mul_i32', t0, 4608)
                t = a_.v('v_min_u32', 35 * 16, l16); t = a_.v('v_lshlrev_b32', 3, t); xs += [pf(t, sD, so, 0, 36, '', n)]
            elif c_ == 'T':
                t = a_.v('v_lshlrev_b32', 24, l16); tl = []
                if n in 'as':
                    t0 = a_.s('s_mul_i32', mw, 144); t1 = a_.s('s_mul_i32', j, 9); t0 = a_.s('s_add_u32', t0, t1); t0 = a_.s('s_lshl_b32', t0, 11); tl.append((sS, a_.s('s_add_u32', t0, H_OFF)))
                    t0 = a_.s('s_lshl4_add_u32', mw, j); t0 = a_.s('s_lshl_b32', t0, 12); tl.append((sS, a_.s('s_add_u32', t0, HF_OFF)))
                    tl += [(sS, Pp[0]), (sS, Pp[2]), (sS, Pb)]
                if n in 'ai':
                    t0 = a_.s('s_lshl2_add_u32', jg, w); tl += [(sD, a_.s('s_mul_i32', t0, 288 * 1152)), (sC, 0), (sK, 0), (sO, a_.s('s_mul_i32', mw, 32 * 2304))]
                xs += [pf(t, r, so, 0, 1) for r, so in tl]
            elif n in 'ab': xs += [pf(vP9, sC, alt(sPC2, 128, n == 'b'), 0, 9, '', 'm' if n == 'b' else 'c')]
            elif n == '8': xs += [pf(vP9, sC, sPC, 1024, 9, '', 'm')]
            elif n == 't':
                t0 = a_.s('s_and_b32', wid, 7); t0 = a_.s('s_mul_i32', t0, 1152); t0 = a_.s('s_add_u32', t0, sPC); t = a_.v('v_min_u32', 1152, vP9); xs += [pf(t, sC, t0, 1024, 2)]
            else: xs += [pf(vP9, sC, sPC2, 0, 9), pf(vP9, sC, sPC2, 128, 9), pf(vP9, sC, sPC, 1024, 9)][:3 if n == '0' else 2]
            if low:
                for x in xs[n0:]: x.mods += o.get('pm', ' nt'); x.mc = (x.mc[0], o.get('lc', x.mc[1]))
        g = G(g) if g > 100 else g
        if a_: a_[0].ready = g - 20; pfl.append((g - .5, list(a_)))
        pfs(xs, g)
    for g in o.get('pcode', []):
        a_ = Q(); t0 = a_.s('s_lshl_b32', wid, 4); t0 = a_.s('s_and_b32', t0, 31 * 128); t1 = a_.s('s_lshl_b32', w, 18); t0 = a_.s('s_add_u32', t0, t1)
        t = a_.v('v_lshl_add_u32', l16, 8, t0); a_[0].ready = G(g) - 10; x = pf(t, sI, 0, 0, 3.5, c='m'); x.need = -9; x.back = 1e9; x.chain = 1; pfl.append((G(g), list(a_) + [x]))
    for g, xs in sorted(pfl, key=lambda x: x[0]): qp.extend(xs)
    qp.append(KEEP(pfd)); qp[-1].ready = max([gC] + o.get('pcode', []) + [g for g, _ in plan]) + 100
    W.queue(qp, 48, 'pf')
    RS = 7 if o.get('k', 0) & 32 else 6
    qi = Q(); eI = o['eI']; sc.xvm[eI].append('init')
    t0 = qi.s('s_lshl1_add_u32', mt, tw); t0 = qi.s('s_sub_u32', 31, t0); t1 = qi.s('s_lshl_b32', Gn, 5); t0 = qi.s('s_add_u32', t0, t1); a0 = qi.s('s_lshl_b32', t0, 7, name='a0')
    t0 = qi.s('s_lshl1_add_u32', mt, je); t0 = qi.s('s_sub_u32', 31 + (AR_OFF >> RS), t0); t1 = qi.s('s_lshl1_add_u32', jg, Tr); t1 = qi.s('s_lshl_b32', t1, 5); t0 = qi.s('s_add_u32', t0, t1)
    a2 = qi.s('s_lshl_b32', t0, RS, name='a2')
    FS = o.get('fs', 2)
    if FS > 2: t0 = qi.s('s_and_b32', mt, 4); t1 = qi.s('s_and_b32', mt, 7); t0 = qi.s('s_add_u32', t0, t1); t0 = qi.s('s_lshl_b32', t0, 11)
    elif o.get('f1l'): assert LOC & 1; t0 = qi.s('s_and_b32', mt, 7); t0 = qi.s('s_lshl_b32', t0, 10)
    else: t0 = qi.s('s_lshl_b32', mt, 7)
    def own(q, x): t = q.s('s_lshl_b32', jg, 7); return q.s('s_add_u32', t, x)
    if LOC & 1: t0 = qi.s('s_add_u32', t0, mlS(qi)[1])
    Fr = qi.s('s_add_u32', t0, FL_OFF, name='Fr'); t0 = qi.s('s_lshl_b32', j, FS); Fl = qi.s('s_add_u32', t0, Fr, name='Fl')
    mm = V(4, 'mm'); vA8 = qi.v('v_lshlrev_b32', 3, col, name='vA8'); vBp = qi.v('v_lshlrev_b32', 2, col, name='vBp'); zz = qi.v('v_mov_b32', 0)
    for e in range(4): qi('v_mov_b32', mm[e], -1)
    qi[0].ready = o['sentg'] - 30
    xs = [mc(I('buffer_store_dwordx4', mm, l16, sS, Pp[n >> 1], mods=f'offen offset:{2048 + (n & 1) * 1024} sc1'), 8, 's') for n in range(6)]
    xs = xs[:o.get('ns', 6)]
    if o.get('sl'):
        qn = Q(); sc.xvm[e3].append('mark')
        for g, k in o['sl']:
            m2 = V(4, 'm2')
            for e in range(4): qn('v_mov_b32', m2[e], -1)
            qn[-4].ready = g - 4
            for _ in range(k):
                x = xs.pop(0); x.ops[0] = ref(m2); x.tag = 'mark'; mc(x, 8, 's', soft=1, need=0, chain=1, back=o.get('slb', 300)); qn.append(x)
        W.queue(qn, 44, 'mark')
    K = o.get('k', 0)
    def only(q, c, x): t = q.s('s_min_u32', c, 1); t = q.s('s_lshl_b32', t, 28); return q.s('s_add_u32', t, x)
    if K & 1:
        t = qi.v('v_lshrrev_b32', 7, l16); t8 = qi.v('v_lshl_add_u32', t, 28, l16); t = qi.v('v_lshrrev_b32', 6, l16); t4 = qi.v('v_lshl_add_u32', t, 27, l16)
        xs[1:1] = [mc(I('buffer_store_dwordx4', mm, t8, sS, a0, mods='offen sc1'), 1, 's'), mc(I('buffer_store_dwordx4', mm, t8 if K & 32 else t4, sS, only(qi, w, a2), mods='offen sc1'), .25, 's'),
                   mc(I('buffer_store_dwordx4', mm, t8 if K & 16 else t4, sS, only(qi, qi.s('s_or_b32', j, w), Fr), mods='offen sc1'), .25, 's')]
    else: xs[1:1] = [mc(I('buffer_store_dwordx2', mm[0:2], vA8, sS, a0, mods='offen sc1'), 1, 's'), mc(I('buffer_store_dword', mm[0], vBp, sS, a2, mods='offen sc1'), 1, 's'),
               mc(I('buffer_store_dword', zz, vM0, sS, Fl, mods='offen sc1'), .25, 's')] + \
              ([mc(I('buffer_store_dword', zz, vM0, sS, own(qi, Fl), mods='offen offset:128 sc1'), .25, 's')] if o.get('f1l') else [])
    for x in xs: x.tag = 'init'; x.soft = 1; x.ready = o['sentg']; x.need = o.get('sentn', bar[eI] - 100)
    qi.extend(xs); qi[-1].dead = bar[eI] - 30; sentl = qi[-1]
    o1 = qi.v('v_mov_b32', 1); t0 = qi.s('s_and_b32', wid, 1); t0 = qi.s('s_lshl_b32', t0, 7)
    mc(qi('buffer_atomic_add', o1, vM0, sG, t0, mods='offen sc1'), .25, 's', ready=bar[eI] + 1, soft=1, need=0)
    W.queue(qi, 12, 'init')
    m = Q(); stubs = []
    def verify(name, loads, check, dep, q):
        c = check()
        if dep: c[0].deps = [dep]
        br = I('s_cbranch_vccnz', f'L_r{name}'); br.deps = [(c[-1], 1)]
        keep = {r.vr.id: r.vr for x in loads() + check() for r in x.refs(x.u + x.d)}
        q.extend(c); q.extend([br, LABEL(f'L_b{name}'), KEEP(rc, *keep.values())])
        if st.on and o.get('bst') and name in ('c', 'a', 'f1', 'f2', 'f3'): q('v_writelane_b32', st.v, rc, 10 + ('c', 'a', 'f1', 'f2', 'f3').index(name))
        stubs.append((name, loads, check)); return br
    m.extend(cst)
    def pick(x):
        a = m.v('v_cndmask_b32', x[0], x[1], kb0); b = m.v('v_cndmask_b32', x[2], x[3], kb0); return m.v('v_cndmask_b32', a, b, kb1)
    def rbf(x): t = m.v('v_cvt_pk_bf16_f32', x, x); return m.v('v_and_b32', 0xffff0000, t)
    nm = pick(nmean); qq = pick(qsum)
    t = m.v('v_mul_f32', nm, nm); c_ = m.v('v_mov_b32', 1.0 / 576); var = m.v('v_fma_f32', qq, c_, Neg(t)); var = m.v('v_max_f32', 0, var)
    nm = rbf(nm); var = rbf(var); var = rbf(m.v('v_add_f32', 1e-5, var)); t = m.v('v_sqrt_f32', var)
    g_ = m.v('v_bfe_u32', l16, 4, 2); g_ = m.v('v_xor_b32', jq, g_)
    sd = rbf(t); rr = m.v('v_rcp_f32', sd)
    t = m.v('v_and_b32', 1, g_); t = m.v('v_lshl_add_u32', t, 5, tokl); t2 = m.v('v_and_b32', 2, g_); t = m.v('v_lshl_add_u32', t2, 1, t)
    t = m.v('v_add_lshl_u32', tk0, t, 2); t2 = m.v('v_add_u32', STM - STR, t)
    m('ds_write_b32', t, rr, mods=f'offset:{STR}', tag='stat'); m('ds_write_b32', t2, nm, mods=f'offset:{STR}', tag='stat')
    eS = 6; m[-1].dead = bar[eS] - 4; sc.xlg[eS].append('stat')
    n0 = len(m)
    t0 = m.s('s_lshl_b32', tw, 8); vRr = m.v('v_lshl_add_u32', q, 6, t0)
    t0 = m.s('s_lshl4_add_u32', je, w); t0 = m.s('s_lshl_b32', t0, 4); vRm = m.v('v_lshl_add_u32', q, 6, t0)
    vK = m.v('v_lshl_add_u32', col, 3, sQ, name='vK')
    vRg = [m.v('v_add_u32', RGO + 2 * QS * k, l16) for k in range(2)]
    m[n0].ready = gA - 40; assert bar[eS] < gA - 40
    rq = [V(4, f'rq{k}') for k in range(5)]
    for k in range(4): m('ds_read_b128', rq[k], vRr, mods=f'offset:{STR + 16 * k}')
    m('ds_read_b128', rq[4], vRm, mods=f'offset:{STR}')
    def getc(u, nm_):
        r = V(2, f'{nm_}{u}'); m('ds_read_b64', r, vK, mods=f'offset:{CST + 512 * CI[nm_] + 128 * u}'); return r
    l1 = [getc(u, 'l1') for u in range(3)]
    n0 = len(m)
    for e in range(4): m('v_mul_f32', accm[e], accm[e], rq[4][e])
    m[n0].ready = gA - 5
    eR = sc.barafter(gA + 10)
    m('ds_write_b128', vQ, accm, mods=f'offset:{RGO}', tag='rg'); m[-1].dead = bar[eR] - 4; sc.xlg[eR].append('rg')
    for u in range(2):
        for tt in range(4):
            for e in range(4): m('v_mul_f32', accb[u][tt][e], accb[u][tt][e], rq[tt][e])
    um = [V(4, f'um{tt}') for tt in range(4)]
    n0 = len(m)
    for tt in range(4): m('ds_read_b128', um[tt], vRg[tt >> 1], mods=f'offset:{(tt & 1) * QS}')
    m[n0].ready = bar[eR] + 1; lr = m[-1]
    U = [accb[0], accb[1], um]
    cf = [getc(u, 'cf') for u in range(3)]; l16c = [getc(u, 'l16') for u in range(3)]
    def horner(z, c, u, neg=False):
        d = V(1); return d, [I('v_fma_f32', d, c[0], z, u), I('v_fmac_f32_dpp', d, z, Neg(c[1]) if neg else c[1], mods=DPP8)]
    def coef(d, u, x): return [I('v_mul_f32', d, cf[u][0], x), I('v_fmac_f32_dpp', d, x, cf[u][1], mods=DPP8)]
    ch = []; ee = []
    for u in range(3):
        z = U[u][0][0]; c = []
        for k in range(1, 16):
            z, ins = horner(z, l1[u], U[u][k >> 2][k & 3], True); c += ins
        d = V(1); c += coef(d, u, z)
        ch.append(c); ee.append(d)
    c = inter(ch); c[0].deps = [(lr, 5)]; m.extend(c[:-40])
    vCn = m.v('v_lshlrev_b32', 3, l16); vCn = m.v('v_and_b32', 128, vCn, name='vCn'); cn = V(1, 'cn')
    cnl = lambda: [mc(I('buffer_load_dword', cn, vCn, sG, 0, mods='offen sc1'), 2, 'm', need=0, soft=1, back=2000)]
    cnc = lambda: [I('v_cmp_gt_u32', 'vcc', 128, cn)]
    m.extend(c[-40:])
    eb = [V(4, f'eb{u}') for u in range(3)]
    for u in range(3):
        for k in range(4): m('ds_bpermute_b32', eb[u][k], vBp, ee[u], mods=f'offset:{64*k}')
    lastbp = m[-1]
    ch = []; z01 = V(2, 'z01'); z2 = V(1, 'z2')
    for u in range(3):
        z = eb[u][0]; c = []
        for k in range(1, 4):
            z, ins = horner(z, l16c[u], eb[u][k]); c += ins
        c.append(I('v_min_u32', z01[u] if u < 2 else z2, -2, z))
        ch.append(c)
    c = inter(ch); c[0].deps = [(lastbp, 5)]; m.extend(c)
    tA, tB, a2m = (m.v('v_lshl_add_u32', q, 28, vA8), m.v('v_lshl_add_u32', q, 28, vBp), only(m, w, a2)) if K & 2 else (vA8, vBp, a2)
    mc(m('buffer_store_dwordx2', z01, tA, sS, a0, mods='offen sc1'), 1, 's', need=0, soft=1, back=2000)
    agst = mc(m('buffer_store_dword', z2, tB, sS, a2m, mods='offen sc1'), 1, 's', need=0, soft=1, back=2000)
    Z = [[V(4, f'z{u}_{tt}') for tt in range(4)] for u in range(3)]
    zc = [inter([coef(Z[u][tt][e], u, U[u][tt][e]) for e in range(4)]) for u in range(3) for tt in range(4)]
    ldc = cnl(); ldc[0].ready = G(o['cng']); m.extend(ldc)
    for x in zc[:o.get('zc', 8)]: m.extend(x)
    vAl = m.v('v_lshl_add_u32', q, 10, vA8, name='vAl'); vAr = m.v('v_lshl_add_u32', q, RS + 3, vBp, name='vAr')
    sA = SR(4, 'A'); sR = SR(4, 'R')
    for r, a_, k in ((sA, a0, 4095), (sR, a2, (32 << RS) - 1)):
        m('s_mov_b64', r[0:2], sS[0:2]); t0 = m.s('s_or_b32', a_, k); m('s_add_u32', r[2], t0, 1); m('s_mov_b32', r[3], 0x20000)
    brc = verify('c', cnl, cnc, (ldc[0], 50), m)
    ag2 = [V(2, f'ag{k}') for k in range(8)]; ag1 = [V(1, f'ar{k}') for k in range(8)]; mx = V(1, 'mx')
    ag = [[ag2[7 - k][0] for k in range(8)], [ag2[7 - k][1] for k in range(8)], ag1[::-1]]
    agl = lambda: inter([[mc(I('buffer_load_dwordx2', ag2[k], vAl, sA, a0, mods=f'offen offset:{128*k+128} sc1'), 3, 'q', need=0, soft=1) for k in range(8)],
                         [mc(I('buffer_load_dword', ag1[k], vAr, sR, a2, mods=f'offen offset:{k + 1 << RS} sc1'), 3, 'q', need=0, soft=1) for k in range(8)]])
    def agc():
        al = [ag[u][k] for k in range(7, -1, -1) for u in range(3)]
        r = [I('v_max3_u32', mx, al[0], al[1], al[2])]
        for k in range(3, 23, 2): r.append(I('v_max3_u32', mx, mx, al[k], al[k + 1]))
        return r + [I('v_max_u32', mx, mx, al[23]), I('v_cmp_eq_u32', 'vcc', -1, mx)]
    lda = agl(); lda[0].ready = G(o['agld']); zr = sum(zc[o.get('zc', 8):], [])
    for k, x in enumerate(lda): m.append(x); m.extend(zr[2 * k:2 * k + 2])
    m.extend(zr[32:])
    l64 = [getc(u, 'l64') for u in range(3)]
    bra = verify('a', agl, agc, (lda[-1], o['aglat']), m)
    ch = []; sq_ = []
    for u in range(3):
        z = ag[u][0]; c = []
        for k in range(1, 8):
            z, ins = horner(z, l64[u], ag[u][k]); c += ins
        ch.append(c); sq_.append(z)
    m.extend(inter(ch))
    l512 = [getc(u, 'l512') for u in range(3)]; l16c = [getc(u, 'l16') for u in range(3)]; l1 = [getc(u, 'l1') for u in range(3)]
    sb_ = [V(4, f'sb{u}') for u in range(3)]
    for u in range(3):
        for k in range(4): m('ds_bpermute_b32', sb_[u][k], vBp, sq_[u], mods=f'offset:{64*k}')
    lastbp = m[-1]
    kq = [SR(2, f'kq{k}') for k in range(3)]
    for k in range(3): m('v_cmp_lt_u32', kq[k], k, q)
    t = m.v('v_mul_u32_u24', 144, col); t = m.v('v_lshl_add_u32', q, 5, t); vHw = m.v('v_add_u32', sQ, t)
    t = m.v('v_lshrrev_b32', 6, l16); t = m.v('v_mul_u32_u24', 144, t); t2 = m.v('v_and_b32', 3, col); t = m.v('v_lshl_add_u32', t2, 5, t)
    vHr = m.v('v_add_u32', sQ, t); t0 = m.s('s_lshl_b32', w, 3); vHm = m.v('v_add_u32', t0, vHr)
    zs = lambda u, k: Z[u][k >> 2][k & 3]
    ch = []; pk = [[V(4), V(4)] for u in range(3)]
    for u in range(3):
        z = sb_[u][3]; c = []
        for k in (2, 1, 0):
            z, ins = horner(z, l512[u], sb_[u][k]); c += ins
        for k in range(3):
            z2, ins = horner(z, l16c[u], eb[u][k]); c += ins
            z3 = V(1); c.append(I('v_cndmask_b32', z3, z, z2, kq[k])); z = z3
        for k in range(16):
            c += [I('v_fmac_f32', zs(u, k), l1[u][0], z), I('v_fmac_f32_dpp', zs(u, k), z, l1[u][1], mods=DPP8)]; z = zs(u, k)
            if k == 9 or k == 15:
                h = k // 10
                for e in range(4): c.append(I('v_cvt_pk_bf16_f32', pk[u][h][e], zs(u, 8*h + 2*e), zs(u, 8*h + 2*e + 1)))
        ch.append(c)
    c = inter(ch); c[0].deps = [(lastbp, 5)]; m.extend(c)
    hf = [V(4, f'hf{tt}') for tt in range(4)]; hm4 = V(4 if K & 8 else 2, 'hm'); hm = hm4[0:2]
    for u in range(3):
        for h in range(2): m('ds_write_b128', vHw, pk[u][h], mods=f'offset:{MISC + 16*h}')
        if u < 2:
            for tt in range(4): m('ds_read_b64_tr_b16', hf[tt][2*u:2*u+2], vHr, mods=f'offset:{MISC + 8*tt}')
        else: m('ds_read_b64_tr_b16', hm, vHm, mods=f'offset:{MISC}')
    lastrd = m[-1]
    if LOC & 4:
        ml, S = mlS(m); t0 = m.s('s_lshl1_add_u32', ml, tw); t1 = m.s('s_and_b32', Gn, 28); t1 = m.s('s_add_u32', t1, Gn); t0 = m.s('s_lshl_b32', t0, 7); t0 = m.s('s_add_u32', t0, t1)
        t0 = m.s('s_lshl_b32', t0, 11); t0 = fix(m, m.s('s_add_u32', t0, S)); hs_ = [m.s('s_add_u32', t0, 0x6000000 + k * 131072) for k in range(2)]
        t0 = m.s('s_lshl1_add_u32', ml, je); t0 = m.s('s_lshl1_add_u32', t0, tw); t0 = m.s('s_lshl3_add_u32', t0, jg)
    else:
        t0 = m.s('s_lshl1_add_u32', mt, tw); t0 = m.s('s_lshl_b32', t0, 6); t0 = m.s('s_add_u32', t0, Gn); t0 = m.s('s_lshl_b32', t0, 11)
        hs_ = [m.s('s_add_u32', t0, HF_OFF + k * 65536) for k in range(2)]
        t0 = m.s('s_lshl1_add_u32', mt, je); t0 = m.s('s_lshl1_add_u32', t0, tw); t0 = m.s('s_lshl2_add_u32', t0, jg)
    t0 = m.s('s_lshl1_add_u32', t0, fw); t0 = m.s('s_lshl_b32', t0, 10); t1 = m.s('s_lshl_b32', Tr, 9 if K & 12 else 3); t0 = m.s('s_add_u32', t1, t0); t0 = m.s('s_add_u32', t0, HR_OFF)
    if K & 12: l8w = m.v('v_lshrrev_b32', 1, l16)
    if K & 8: t = m.v('v_and_b32', 16, l16); l8w = m.v('v_lshl_add_u32', t, 24, l8w)
    if LOC & 4: t0 = m.s('s_add_u32', t0, S)
    n0 = len(m)
    for tt in range(4): mc(m('buffer_store_dwordx4', hf[tt], l16, sS, hs_[tt >> 1], mods=f'offen offset:{(tt & 1) * 1024} sc1', tag='hs'), 8, 's', need=0, soft=1, chain=o.get('hsc', 1))
    if K & 8:
        m[n0 + 1:n0 + 1] = [I('v_mov_b32_dpp', hm4[2 + e], hm4[e], mods='quad_perm:[1,1,3,3]' + DM) for e in range(2)]
        mc(m('buffer_store_dwordx4', hm4, l8w, sS, t0, mods='offen sc1', tag='hs'), 4, 's', need=0, soft=1, chain=o.get('hsc', 1))
    else: mc(m('buffer_store_dwordx2', hm, l8w if K & 4 else l16, sS, t0, mods='offen sc1', tag='hs'), 4 if K & 4 else 8, 's', need=0, soft=1, chain=o.get('hsc', 1))
    m[n0].deps = [(lastrd, 5)]; hsl = m[-1]; hsl.dead = bar[e1] - 30
    W.queue(m, 10, 'scan')
    qf = Q(); fl = V(1, 'fl'); kg = SR(2, 'kg')
    vF = [vBp]
    fll = lambda: [mc(I('buffer_load_dword', fl, vF[0], sS, Fr, mods='offen sc1'), 1, 'm', need=0, soft=1, back=2000)]
    t0 = qf.s('s_lshl_b32', jg, 2); qf('s_lshl_b32', kg[0], 15, t0); qf('s_mov_b32', kg[1], 0); qf[0].ready = bar[e1] - 20
    pb = {}; br = {}
    for n, e in ((1, e1), (2, e2), (3, e3)):
        t = qf.v('v_mov_b32', n); qf[-1].ready = bar[e] - 6
        a, b, of = (own(qf, Fl), own(qf, Fr), 128) if n == 1 and o.get('f1l') else (Fl, Fr, 0)
        pb[n] = mc(qf('buffer_store_dword', t, vM0, sS, a, mods=f'offen offset:{of} sc1'), .25, 's', need=0, soft=1, back=2000, ready=bar[e] + 1)
        fll = lambda b=b, of=of: [mc(I('buffer_load_dword', fl, vBp, sS, b, mods=f'offen offset:{of} sc1'), 1, 'm', need=0, soft=1, back=2000)]
        if n == 2 and o.get('f2b', 1) == 2:
            t0 = qf.s('s_lshl_b32', 0x1111, jq); qf('s_or_b32', kg[0], kg[0], t0)
        if FS > 2:
            assert LOC & 1 and o.get('f2b') == 2
            t = qf.v('v_lshlrev_b32', FS, col)
            if n < 3: t = qf.v('v_cndmask_b32', -16, t, kg)
            fll = lambda t=t: [mc(I('buffer_load_dword', fl, t, sS, Fr, mods='offen sc1'), 1, 'm', need=0, soft=1, back=2000)]
        ld = fll(); ld[0].deps = [(pb[n], o.get(f'chk{n}', o['chk']))]; qf.extend(ld)
        if n == 2 and o.get('f2b', 1) == 2: ld[0].ready = gP + o.get('f2g', -60)
        br[n] = verify(f'f{n}', fll, lambda n=n: [I('v_cmp_gt_i32', 'vcc', n, fl)] + ([I('s_nop', 3), I('s_and_b64', 'vcc', 'vcc', kg)] if n < 3 else []), (ld[0], o.get(f'lat1{n}', o['lat1'])), qf)
        if n == 2 and o.get('f2b', 1) == 2: br[4] = br[2]
        elif n == 2 and o.get('f2b', 1):
            qf('s_lshl_b32', kg[0], 0x1111, jq); ld = fll(); ld[0].ready = gP + o.get('f2g', -60); qf.extend(ld)
            br[4] = verify('f4', fll, lambda: [I('v_cmp_gt_i32', 'vcc', 2, fl), I('s_nop', 3), I('s_and_b64', 'vcc', 'vcc', kg)], (ld[0], 45), qf)
    W.queue(qf, 49, 'flag')
    qa = Q(); qb = Q(); qx = P(); nld = [0]
    def gld(q, d, so, off, use, c):
        x = mc(q('buffer_load_dwordx4', d, l16, sS, so, mods=f'offen offset:{off} sc1' + NT(64 if c == 'h' else 0)), 8, c, dead=use - o.get('gdead', 40), need=use - o.get('gneed', 45), soft=1)
        if ref(d).vr.cls == 'a' and nld[0] < o['xa']:
            x.ready = gI[3] + 16 * max(nld[0] // 4 + 1, E) + 2; nld[0] += 1
        elif ref(d).vr.cls == 'v': x.ready = gC + o.get('vld', 30)
        else: x.ready = g2
        return x
    def Hld(q, x, kls, after=None, dep=None, need=None):
        for kl in kls:
            if kl & 1 == 0:
                so = q.s('s_xor_b32', Hp[x], (0, 4096, 16384, 20480, 0x202000)[kl >> 1]) if LOC & 2 else q.s('s_add_u32', Hp[x], kl * 2048)
                if kl == kls[0]:
                    q[-1].deps = [(sdone, 1)] + ([(dep, 1)] if dep else [])
                    if after is not None: q[-1].ready = bar[after] + 1
            r = [gld(q, Hq[x][kl][a], so, (kl & 1) * 2048 + a * 1024, useH[(x, kl)], 'h' if x or str(kl if kl == 8 else kl >> 1) in warm else 'm') for a in range(2)]
            if need is not None:
                for y in r: y.need = need
            if kl == 8:
                for e in range(2): qx('v_swap_b32', Hh[x][2 + e], Hh[x][4 + e])
                qx[-2].deps = [(r[1], 35)]; qx[-1].dead = useH[(x, kl)] - 3
    if LOC & 4:
        ml, S = mlS(qa); t2 = qa.s('s_lshl2_add_u32', ml, w); t0 = qa.s('s_lshl2_add_u32', t2, jg); t0 = qa.s('s_lshl1_add_u32', t0, Tr); t0 = qa.s('s_lshl2_add_u32', t0, je); t0 = qa.s('s_lshl_b32', t0, 12)
        t0 = fix(qa, qa.s('s_add_u32', t0, S)); h0 = qa.s('s_add_u32', t0, 0x6000000, name='h0'); t0 = qa.s('s_lshl3_add_u32', t2, jg); t0 = qa.s('s_lshl_b32', t0, 11); t0 = qa.s('s_add_u32', t0, S)
    else:
        t0 = qa.s('s_lshl2_add_u32', mw, jg); t1 = qa.s('s_lshl2_add_u32', t0, jq); t1 = qa.s('s_lshl_b32', t1, 12); h0 = qa.s('s_add_u32', t1, HF_OFF, name='h0'); t0 = qa.s('s_lshl_b32', t0, 11)
    h8 = qa.s('s_add_u32', t0, HR_OFF, name='h8'); qa[0].ready = bar[e1] - 10; qa[-1].ready = bar[e1] + 1; hdone = qa[-1]
    for k in range(2):
        for a in range(2): gld(qa, hq[k][a], h0, k * 2048 + a * 1024, gC + 10, 'm').need = 0
    Hld(qa, 0, (0, 1, 2, 3), need=1)
    for k in ((8, 2, 3, 4, 5, 6, 7) if o.get('k8') else range(2, 9)):
        if k % 2 == 0 and k < 8: so = qb.s('s_xor_b32', h0, (0, 4096, 16384, 20480)[k >> 1] if LOC & 4 else k * 2048)
        if k == 8 and K & 12: l8r = qb.v('v_lshrrev_b32', 1, l16)
        qb[0].deps = [(br[1], 1), (hdone, 1)]
        for a in range(2):
            hl = gld(qb, hq[k][a], so if k < 8 else h8, (k & 1) * 2048 + a * 1024, gC + 10, 'h' if k < 8 else 'q')
            if k == 8 and K & 12:
                qb.pop(); x = hl
                for h in range(2): hl = mc(qb('buffer_load_dwordx2', hq[k][a][2*h:2*h+2], l8r, sS, h8, mods=f'offen offset:{a * 1024 + h * 512} sc1'), 4, 'q', dead=x.dead, need=x.need, soft=1, ready=x.ready)
    Hld(qa, 0, (4, 5), after=eh, need=gC - 20)
    Hld(qb, 1, (0, 1, 2, 3)); Hld(qb, 2, (0, 1, 2, 3))
    Hld(qa, 0, (8,), need=gC); Hld(qa, 0, (6, 7), after=e2, need=2)
    q8 = Q(); Hld(q8, 1, (8,), dep=br[1]); Hld(q8, 2, (8,)); Hld(q8, 3, (8,)); Hld(qb, 3, (0, 1, 2, 3))
    for x in (1, 2, 3): Hld(qb, x, (4, 5, 6, 7), dep=br[2])
    W.queue(qx, 20, 'swap'); W.queue(qa, 30, 'own'); W.queue(qb, 29, 'par'); W.queue(q8, 28, 'p8')
    z = Q(); y = Q()
    t = z.v('v_mul_u32_u24', SRC, q); vPl = z.v('v_lshl_add_u32', col, 4, t, name='vPl');
    if LOC & 24: ml, S = mlS(z)
    t0 = z.s('s_lshl2_add_u32', ml if LOC & 8 else mt, jq); t0 = z.s('s_lshl2_add_u32', t0, jg); t2 = z.s('s_lshl2_add_u32', t0, w); t2 = z.s('s_mul_i32', t2, 32768 if LOC & 8 else PW)
    if LOC & 8: t2 = fix(z, z.s('s_add_u32', t2, S))
    Pd = [z.s('s_add_u32', t2, PXo[r] if LOC & 8 else PX_OFF + 4096 * r) for r in range(3)]
    if LOC & 24 in (8, 16): t0 = z.s('s_lshl2_add_u32', ml if LOC & 16 else mt, jq); t0 = z.s('s_lshl2_add_u32', t0, jg)
    t0 = z.s('s_mul_i32', t0, FIN); t1 = z.s('s_lshl_b32', w, 8); t0 = z.s('s_add_u32', t0, t1)
    if LOC & 16: t0 = fix(z, z.s('s_add_u32', t0, S))
    Pc = [z.s('s_add_u32', t0, (0x6800000 if LOC & 16 else P8_OFF) + 1024 * k) for k in range(2)]
    tb, kc, k8, x8, xc, c3, ae, q1, c4, vx, vx8 = xadr(z, not XS); vk = z.v('v_lshlrev_b32', 1, col); zdone = z[-1]
    kv = [V(1, f'kv{n}') for n in range(3)]; fl_ = dict(soft=1, chain=o.get('prc', 1))
    z[0].ready = gP + o.get('zb', -60) - 30; zl = []
    for n in range(3): mc(z('buffer_load_ushort', kv[n], vk, sK, kc if n < 2 else k8, mods=f'offen offset:{32 * (n & 1)}'), 1, 'm', need=0, **fl_)
    for n in range(0 if XS else 3): zl.append(mc(z('buffer_load_dwordx4', xv[n], vx if n < 2 else vx8, sX, xc[n] if n < 2 else x8, mods='offen'), 16 if n < 2 else 8, 'm', deps=[]))
    def lps():
        for r in range(3):
            for i in range(2): zl.append(mc(z('buffer_load_dwordx4', ps[r][i], l16, sS, Pd[r], mods=f'offen offset:{i * 1024} sc1' + NT(256)), 8, 'm', dead=gS - 40, deps=[(br.get(4, br[3]), 1)]))
    if 4 in br: lps()
    for b in (1, 2, 3, 4, 0): zl.append(mc(z('buffer_load_dwordx4', pr[b], vPl, sS, Pc[b > 0], mods=f'offen offset:{max(b - 1, 0) * 1024} sc1' + NT(256)), 8, 'm', dead=gX - 40, deps=[(br[3], 1)]))
    if 4 not in br: lps()
    for k, x in enumerate(zl):
        mc(x, *x.mc, need=0, back=o.get('zback', 2000), **fl_)
        if k: x.deps.append((zl[k - 1], o.get('zsp', 20)))
    pl8 = zl[-1]
    pld = lambda r: [mc(I('buffer_load_dwordx4', pd[r][i], l16, sS, Pd[r], mods=f'offen offset:{2048 + i * 1024} sc1'), 8, 'm', need=0, back=2000, **fl_) for i in range(2)]
    mxd = V(1, 'mxd')
    def pck(r):
        a, b = pd[r]
        return [I('v_max3_u32', mxd, a[0], a[1], a[2]), I('v_max3_u32', mxd, mxd, a[3], b[0]), I('v_max3_u32', mxd, mxd, b[1], b[2]), I('v_max_u32', mxd, mxd, b[3]), I('v_cmp_eq_u32', 'vcc', -1, mxd)]
    qd = Q(); ldd = []
    for r in range(3):
        ldd.append(pld(r)); ldd[r][0].deps = [(dst_[2 * r + 1], o.get(f'dl{r}', o.get('dl', 36))), (zdone, 1)]; ldd[r][1].dead = gE - 1
        z.extend(ldd[r])
        if r < 2: verify(f'd{r}', lambda r=r: pld(r), lambda r=r: pck(r), (ldd[r][1], 30), qd); qd[-1].dead = gD - 2
    t = y.v('v_and_b32', 16, l16); c_ = y.v('v_mov_b32', 0x3f80); one = y.v('v_lshlrev_b32', t, c_); y[0].deps = [(zdone, 1)]; y[0].ready = g3 - o.get('ybeg', 60)
    def onehot(idx, rs):
        ks = [SR(2) for _ in rs]
        for k in range(len(rs) + 2):
            if k < len(rs): y('v_cmp_eq_u32', ks[k], k, idx)
            if k >= 2: y('v_cndmask_b32', rs[k - 2], 0, one, ks[k - 2])
    t = y.v('v_lshrrev_b32', 1, ae); t2 = y.v('v_and_b32', 4, col); t = y.v('v_add_u32', t2, t); onehot(t, [sel[k] for k in range(4)])
    t = y.v('v_lshrrev_b32', 3, col); t = y.v('v_xor_b32', t, q); t2 = y.v('v_bfe_u32', col, 1, 2); t3 = y.v('v_lshl_add_u32', t, 1, t2); t = y.v('v_and_b32', 1, t); t = y.v('v_lshl_add_u32', t, 4, t3)
    onehot(t, [idm[k >> 2][k & 3] for k in range(8)])
    t = y.v('v_xor_b32', c4, q); t2 = y.v('v_lshrrev_b32', 1, c3); t = y.v('v_lshl_add_u32', t, 1, t2)
    for k in (0, 1, 4, 5): y('v_mov_b32', sA_[k], 0)
    onehot(t, [sA_[2], sA_[3]]); y[-1].dead = gX - 3
    if XS:
        t = y.v('v_add_u32', sQ, l16)
        for n in range(3): y('ds_read_b128', xv[n], t, mods=f'offset:{uXs.addr + 1024 * n}')
        y[-1].dead = gX - 6
    hi_ = y.v('v_lshrrev_b32', 1, q); rr = [V(4, f'rr{n}') for n in range(3)]; nm = [V(4, f'nm{n}') for n in range(3)]
    t0 = y.s('s_lshl_b32', tb, 2); t8 = y.v('v_lshl_add_u32', hi_, 4, t0); t0 = y.s('s_lshl_b32', tk0, 2); t = y.v('v_lshl_add_u32', q, 6, t0)
    t9 = y.v('v_add_u32', STM - STR, t8); t2 = y.v('v_add_u32', STM - STR, t)
    for n in range(3): y('ds_read_b128', rr[n], t if n < 2 else t8, mods=f'offset:{STR + 16 * (n & 1)}'); y('ds_read_b128', nm[n], t2 if n < 2 else t9, mods=f'offset:{STR + 16 * (n & 1)}')
    lr = y[-1]
    t = y.v('v_bfe_u32', l16, 2, 7); t2 = y.v('v_mul_u32_u24', 4 * 2304, hi_); vo8 = y.v('v_add_u32', t, t2); vo8 = y.v('v_lshl_add_u32', q1, 30, vo8)
    vo = [y.v('v_lshl_add_u32', t2, 3, t)]; vo.append(y.v('v_add_u32', 16 * 2304, vo[0]))
    so = [[y.s('s_lshl_b32', x, 1), y.s('s_lshl1_add_u32', x, 4608)] for x in xc + [x8]]
    cl = y.s('s_mov_b32', int(np.float32(-LOG2E).view(np.uint32))); ce = [V(4, f'ce{n}') for n in range(3)]
    cl2 = V(2, 'cl2')
    if o.get('pk', 0): y('v_mov_b32', cl2[0], cl); y('v_mov_b32', cl2[1], cl)
    n0 = len(y)
    for n in range(3):
        for e in range(4): y('v_mul_f32', nm[n][e], nm[n][e], rr[n][e]); y('v_mul_f32', ce[n][e], cl, rr[n][e])
        for e in range(4): y('v_mul_f32', ce[n][e], ce[n][e], rr[n][e])
        y('v_lshlrev_b32', kv[n], 16, kv[n])
    y[n0].deps = [(lr, 4)]; y[n0 + 12].ready = gX - 30
    def skip(S, X, n, k):
        ch = []
        for e in range(4): t = V(1); ch.append([I('v_fma_f32', t, X[e], rr[n][e], nm[n][e]), I('v_fmac_f32', S[e], t, kv[k])])
        return inter(ch)
    def gate(d, S, X, n):
        ch = []
        for e in range(4):
            t = V(1); ch.append([I('v_mul_f32', d[e], ce[n][e], d[e]), I('v_exp_f32', t, d[e]), I('v_mul_f32', d[e], d[e], S[e]), I('v_fma_f32', t, t, cl, cl), I('v_rcp_f32', t, t), I('v_fmac_f32', X[e], d[e], t)])
        return ch
    ost = lambda r, v, n, e: mc(I('buffer_store_dword', r, v, sO, so[n][e >> 1], mods=f'offen offset:{2304 * (e & 1)}' + o['om']), 2, 's', need=0, soft=1, chain=1, back=2000)
    n0 = len(y)
    for i in range(2):
        for a in range(2): y.extend(skip(accs[6 + i][a], xf[i][a], a, i))
    y[n0].ready = gX + 10; y[-1].dead = gS - 2
    y.extend(skip(Y4, xf4, 2, 2)); y.extend(inter(gate(D4, Y4, xf4, 2))); y.extend([ost(xf4[e], vo8, 2, e) for e in range(o.get('n8', 4))])
    W.queue(z, 9, 'fin'); W.queue(y, 8, 'pre'); W.queue(qd, 41, 'chk')
    if not o.get('bst'):
        for k, g in enumerate([gA] + gI[1:] + [gC, g2, g3]): st.at(W, g, 10 + k)
    else:
        for e in range(1, len(bar)): st.at(W, bar[e] + 1, 21 + e + (e > 18))
        assert len(bar) < 40
        print("; BARS", bar[1:] + [gE])
    sc.emit(spacing, lambda g: o['softA'] if g < gA else o['soft'])
    p.extend(sc.bar0); p.extend(st.t(9))
    body = W.build()
    sc.report()
    for n, g in warm.items(): assert hlast[int(n)].gap < g
    print(f"; gaps A {gA} I {gI} C {gC} 2 {g2} P {gP} 3 {g3} E {gE} | sent {sentl.gap} eI {bar[eI]} agst {agst.gap} cbr {brc.gap} agld {lda[0].gap}-{lda[-1].gap} agbr {bra.gap} hs {hsl.gap} "
          f"pub {[pb[n].gap for n in pb]} chk {[br[n].gap for n in br]} hld {hl.gap} H {[hlast[k].gap for k in hlast]} eh {bar[eh]} sp {slast.gap} d8 {d8.gap} pl8 {pl8.gap} dp {[x.gap for x in dst_]} X {gX} S {gS} D {gD} ld {[x[1].gap for x in ldd]} y {y[-1].gap} qd {qd[-1].gap}")
    if o.get('vx'): print("; X", " ".join(f"{x.gap}{x.q[:2]}{mcls(x)[1]}" for x in body if x.kind == 'X'))
    pendv = None
    for x in body:
        if x.kind != 'P' and x.d and x.ops[0] == 'vcc': assert pendv in (None, x.q), (x.op, x.gap); pendv = x.q
        if x.op == 's_cbranch_vccnz': pendv = None
    p.extend(body)
    p.extend(st.t(17))
    verify('d2', lambda: pld(2), lambda: pck(2) + [I('s_nop', 0)], None, p)
    p.extend(st.t(18))
    r = addp(accd, pd[2]); p.extend([r[0], r[2], r[1], r[3]])
    if o.get('pk', 0):
        def stage(a, h):
            sl = slice(2 * h, 2 * h + 2); T = [V(2, 't'), V(2, 't')]; es = (2 * h, 2 * h + 1); d = [accd[6 + i][a] for i in range(2)]
            A_ = [I('v_pk_mul_f32', d[i][sl], ce[a][sl], d[i][sl]) for i in range(2)] + [I('v_exp_f32', T[i][e & 1], d[i][e]) for i in range(2) for e in es]
            B_ = [I('v_pk_mul_f32', d[i][sl], d[i][sl], accs[6 + i][a][sl]) for i in range(2)] + [I('v_pk_fma_f32', T[i], T[i], cl2, cl2) for i in range(2)] + \
                 [I('v_rcp_f32', T[i][e], T[i][e]) for i in range(2) for e in range(2)]
            C_ = [I('v_pk_fma_f32', xf[i][a][sl], d[i][sl], T[i], xf[i][a][sl]) for i in range(2)]
            D_ = [I('v_permlane16_swap_b32', xf[0][a][e], xf[1][a][e]) for e in es]
            E_ = [ost(xf[i][a][e], vo[i], a, e) for e in es for i in range(2)]
            return A_, B_, C_, D_, E_
        sg = [stage(a, h) for a in range(2) for h in range(2)]
        def mix(v, x):
            out = []
            for k, i_ in enumerate(v):
                out.append(i_)
                if x and k % 2 == 1: out.append(x.pop(0))
            return out + x
        p.extend(sg[0][0] + sg[1][0] + sg[0][1] + sg[2][0][:2] + sg[0][2] + sg[2][0][2:4] + sg[0][3])
        p.extend(mix(sg[2][0][4:] + sg[1][1], sg[0][4]) + sg[3][0][:2] + sg[1][2] + sg[3][0][2:4] + sg[1][3]); p.extend(st.t(19))
        p.extend(mix(sg[3][0][4:] + sg[2][1], sg[1][4]) + sg[3][1][:2] + sg[2][2] + sg[3][1][2:4] + sg[2][3])
        p.extend(mix(sg[3][1][4:], sg[2][4][:2]) + sg[2][4][2:3] + sg[3][2] + sg[2][4][3:] + sg[3][3] + sg[3][4]); p.extend(st.t(20))
    for a in range(0 if o.get('pk', 0) else 2):
        p.extend(inter(gate(accd[6][a], accs[6][a], xf[0][a], a) + gate(accd[7][a], accs[7][a], xf[1][a], a)))
        for e in range(4): p('v_permlane16_swap_b32', xf[0][a][e], xf[1][a][e])
        for e in range(4): p.extend([ost(xf[i][a][e], vo[i], a, e) for i in range(2)])
        p.extend(st.t(19 + a))
    p.extend(st.t(21))
    if st.on and o.get('fw'): p('s_waitcnt', mods='vmcnt(0)')
    if st.on: p('v_writelane_b32', st.v, rc, 40)
    st.flush(p, sS, v0); p.append(KEEP(wid))
    p.append(LABEL('L_end')); p('s_endpgm')
    lines, peak, prog = finish(p)
    for nm_, par in (('cold', {}), ('warm', dict(Lc=600, fc=0))):
        stl = sim.report(prog, bar[1:] + [gE], nm_, par)
        if o.get('simv') and nm_ == 'cold': print("; stalls", [(g, k[0], int(x)) for g, k, x in stl if x > 60])
    for name, loads, check in stubs:
        rt = [LABEL(f'L_r{name}')] + loads() + [I('s_waitcnt', mods='vmcnt(0)')] + check() + \
             [I('s_sub_u32', rc, rc, 1), I('s_cbranch_scc1', f'L_x{name}'), I('s_cbranch_vccnz', f'L_r{name}'), I('s_branch', f'L_b{name}'),
              LABEL(f'L_x{name}'), I('s_mov_b32', rc, 0), I('s_branch', f'L_b{name}')]
        for ins in rt: lines.append(ins.name + ':' if ins.op == 'LABEL' else ins.text())
    lines += ['  s_endpgm', 'L_fin:']
    print("; instr", len(lines))
    return lines, st.peak(peak)

if __name__ == '__main__':
    import sys, json
    opt = json.loads(sys.argv[2]) if len(sys.argv) > 2 else {}
    lst = opt.pop('list', 1)
    label = 'x_kernel' if lst else NAME + '_kernel'
    l, pk = gen_y(label, opt)
    s = f"; @launch {'kernel=' + label + ' ' if lst else ''}grid=(256,1,1) block=(256,1,1) lds=163840\n"
    s += '.amdgcn_target "amdgcn-amd-amdhsa--gfx950"\n.text\n' + kernel_text(label, l) + '.section .rodata,"a"\n' + kernel_desc(label, pk['v'], pk['a'])
    al = opt.get('al')
    if al:
        from align import align
        s = align(s, *al)
    open(sys.argv[1], 'w').write(s)
```

```python
from common import *
from sched import *
import math, sim
import numpy as np
QS = 40960; MISC = 36864
CST = MISC; RGO = MISC + 2560; STR = MISC + 3584; STM = QS + MISC + 3584
AG_OFF = 0; AR_OFF = 0x20000; FL_OFF = 0x50000; HF_OFF = 0x100000; HR_OFF = 0x500000; PX_OFF = 0x600000; H_OFF = 0x1B00000
P8_OFF = 0x1300000; SRC = 5120; FIN = 4 * SRC; PW = 12288
TINY = 'v_mfma_f32_4x4x4_16b_bf16'
DM = ' row_mask:0xf bank_mask:0xf'
DPP8 = 'row_ror:8' + DM
BIG = 0x7ff00000
LOG2E = math.log2(math.e)

def inter(lists):
    out = []
    for k in range(max(len(x) for x in lists)):
        for x in lists:
            if k < len(x): out.append(x[k])
    return out
def SR(n=1, name=None, phys=None): return VR('s', n, name, phys)
class Q(P):
    def s(s, op, *ops, name=None):
        d = SR(1, name); s.append(I(op, d, *ops)); return d
def mc(x, n, c, **k):
    x.mc = (n, c)
    for a, b in k.items(): setattr(x, a, b)
    return x

def gen_y(label, opt=None):
    o = dict(S=3, SE=3, stamp=False, p0max=13, xa=56, ep=64, sp=3, vgap=2, edge=3, lat=6, agld=700, aglat=50, cng=570,
             pub1=250, chk=50, lat1=60, pub2=130, pub3=60, d0=40, d1=4, rc=20000, plan='45:P0,345:P1,470:X2,821:Da+D8+K0,981:C0', eI=8,
             softA=1, soft=2, rate2=1, tail=5, sp2=3, back=300, backf=60, seed=600, sentg=130, nsent=8, nt=0, om=' sc1', tlb=0, hst=60,
             loc=1, f2b=2, lat11=45, lat12=45, lat13=45, chk1=90, chk3=90, zsp=16, k=55, k8=1, xs=-1, hp=3, pfp=1, xa1=1, cst0=1, snake=7)
    o.update(opt or {})
    plan = [(int(x.split(':')[0]), x.split(':')[1].replace('+', ' ')) for x in o['plan'].split(',')]
    p = Q(); v0 = VR('v', 1, 'tid', phys=0)
    LOC = o.get('loc', 0); SRC = 16384 if LOC & 16 else 5120; FIN = 4 * SRC; WSB = 0x8000000
    def mlS(q):
        ml = q.s('s_and_b32', mt, 7); S = q.s('s_and_b32', mt, 8); S = q.s('s_lshl_b32', S, 10)
        return ml, (q.s('s_xor_b32', S, 0x2000) if o.get('par2') else S)
    def fix(q, x, name=None): t = q.s('s_lshr_b32', x, 8); t = q.s('s_and_b32', t, 0x2000); return q.s('s_xor_b32', x, t, name=name)
    st = ST(o['stamp'], 0, 255)
    if o.get('np0'): t_ = st.t; st.t = lambda k: [] if k in (3, 4, 5, 6, 7, 8, 15, 16) else t_(k)
    ka = SR(2, 'ka', 0); wid = SR(1, 'wid', 2)
    p('s_cmp_ge_u32', wid, 256); p('s_cbranch_scc1', 'L_end')
    p.extend(st.rt(0) + st.t(1))
    p('s_load_dwordx16', 's[4:19]', ka, 0); p('s_load_dwordx16', 's[20:35]', ka, 64)
    sX, sB, sC, sO, sK, sW, sD, sG, sS = [SR(4, n, b) for n, b in zip('XBCOKWDGS', range(4, 40, 4))]
    def tail_(q, r, n): q('s_mov_b32', r[2], n); q('s_mov_b32', r[3], 0x20000)
    NT = lambda b: ' nt' if o['nt'] & b else ''
    sI = SR(4, 'I', 40)
    p('s_getpc_b64', sI[0:2]); p.append(LABEL('L_pc')); tail_(p, sI, 'L_fin-L_pc')
    pfd = V(1, 'pfd'); p.append(DEF(pfd))
    def pf(v, srd, so, off, nl, md='', c='c'):
        x = I('buffer_load_dword', pfd, v, srd, so, mods=f'offen offset:{off}' + md); x.d = []; x.soft = 1; return mc(x, nl, c)
    t = p.s('s_lshl_b32', wid, 4); t = p.s('s_and_b32', t, 31 * 128); t = p.v('v_lshl_add_u32', v0, 12, t)
    p.append(pf(t, sI, 0, 0, 3.5))
    wv = p.v('v_lshrrev_b32', 6, v0); l = p.v('v_and_b32', 63, v0, name='lane')
    w = SR(1, 'w'); p('v_readfirstlane_b32', w, wv)
    HB = o.get('hb', 2)
    jg = p.s('s_and_b32', wid, 3, name='jg') if HB == 2 else p.s('s_bfe_u32', wid, (2 << 16) | 1, name='jg')
    JB = o.get('jb', 0)
    jq = p.s('s_bfe_u32', wid, (2 << 16) | (6 if JB == 1 else 3), name='jq')
    t = p.s('s_bfe_u32', wid, (1 << 16) | HB); t2 = p.s('s_bfe_u32', wid, (3 << 16) | 3) if JB == 1 else p.s('s_lshr_b32', wid, 5)
    if JB == 2: p('s_xor_b32', jq, jq, jg)
    if JB == 3: p('s_xor_b32', jq, jq, 3)
    if o.get('swp') == 1: t = p.s('s_xor_b32', t, 1)
    if o.get('swp') == 2: mt = p.s('s_lshl1_add_u32', t2, t, name='mt')
    else: mt = p.s('s_lshl3_add_u32', t, t2, name='mt')
    fw = p.s('s_and_b32', w, 1, name='fw'); tw = p.s('s_lshr_b32', w, 1, name='tw')
    j = p.s('s_lshl2_add_u32', jg, jq, name='j'); je = p.s('s_and_b32', jq, 1, name='je'); Tr = p.s('s_lshr_b32', jq, 1, name='Tr')
    sl = p.v('v_and_b32', 7, l); hi = p.v('v_lshrrev_b32', 5, l); q = p.v('v_lshrrev_b32', 4, l, name='q')
    r83 = p.v('v_bfe_u32', l, 3, 2)
    cx = p.v('v_xor_b32', sl, q); cx = p.v('v_lshlrev_b32', 4, cx, name='cx')
    tokl = p.v('v_lshl_add_u32', hi, 4, r83, name='tokl')
    t = p.s('s_lshl_b32', tw, 6); tk0 = p.s('s_lshl3_add_u32', fw, t, name='tk0')
    t = p.s('s_lshl_b32', mt, 7); t = p.s('s_add_u32', t, tk0); xb = p.s('s_mul_i32', t, 1152, name='xb')
    t = p.v('v_mul_u32_u24', 1152, tokl); vX0 = p.v('v_add_u32', t, cx)
    je6 = p.s('s_lshl_b32', je, 6, name='je6'); t1 = p.s('s_mul_i32', je, 36864); t2 = p.s('s_mul_i32', Tr, 4608)
    a = p.v('v_xor_b32', je6, vX0); b = p.v('v_xor_b32', 64, a)
    a = p.v('v_add_u32', t1, a); t1 = p.s('s_sub_u32', 36864, t1); b = p.v('v_add_u32', t1, b)
    vX = [p.v('v_add_u32', t2, a), p.v('v_add_u32', t2, b)]
    t2 = p.s('s_sub_u32', 4608, t2); vX += [p.v('v_add_u32', t2, a), p.v('v_add_u32', t2, b)]
    Gn = p.s('s_lshl1_add_u32', j, fw, name='Gn')
    t = p.s('s_lshl2_add_u32', jg, Tr); t = p.s('s_lshl_b32', t, 2); chr_ = p.s('s_add_u32', t, 512, name='chr')
    t = p.v('v_and_b32', 4, l); cho = p.v('v_add_u32', t, sl)
    t = p.s('s_lshl_b32', Gn, 4); t = p.v('v_lshl_add_u32', q, 2, t)
    t2 = p.v('v_mul_u32_u24', chr_, hi); t = p.v('v_max_u32', t, t2)
    vL = p.v('v_add_lshl_u32', t, cho, 1)
    t = p.s('s_lshr_b32', wid, 3); n2 = p.s('s_lshl1_add_u32', t, tw, name='n2')
    t0 = p.s('s_lshl_b32', jg, 6); t0 = p.s('s_add_u32', t0, n2); t0 = p.s('s_mul_i32', t0, 2304)
    HP = o.get('hp', 0)
    if HP: hf = p.s('s_bfe_u32', wid, (1 << 16) | HB); hf = p.s('s_mul_i32', hf, 1152)
    if HP & 2: t0 = p.s('s_add_u32', t0, hf)
    NE = o.get('ne', 3); sB0 = t0
    lE = p.v('v_min_u32', NE - 1 if HP & 4 else 8 if HP & 2 else 17, l); t = p.v('v_lshl_add_u32', lE, 7, t0)
    if HP & 4:
        vPE = p.v('v_mul_u32_u24', 9216, lE); t1 = p.s('s_mul_i32', jg, 2304); t1 = p.s('s_add_u32', t1, hf); t0 = p.s('s_mul_i32', n2, NE * 9216); sPE = p.s('s_add_u32', t0, t1)
        t0 = p.s('s_mul_i32', n2, (9 - NE) * 9216); t0 = p.s('s_add_u32', t0, 64 * NE * 9216); sPL = p.s('s_add_u32', t0, t1)
    t0 = p.s('s_mul_i32', n2, 3); t0 = p.s('s_sub_u32', t0, 32); t2 = p.v('v_min_u32', 34, l); t2 = p.v('v_add_u32', t0, t2); t2 = p.v('v_min_u32', 143, t2)
    t0 = p.s('s_mul_i32', jg, 18432); t0 = p.s('s_add_u32', t0, 512 * 1152); t2 = p.v('v_lshl_add_u32', t2, 7, t0)
    p('v_cmp_gt_u32', 'vcc', 32, l); vPB = p.v('v_cndmask_b32', t2, t, 'vcc')
    l8 = p.v('v_min_u32', 8, l, name='l8'); vPW = p.v('v_mul_u32_u24', 9216, l8, name='vPW')
    t0 = p.s('s_mul_i32', n2, 9 * 9216); t1 = p.s('s_mul_i32', jg, 2304); sPW = p.s('s_add_u32', t0, t1, name='sPW')
    row = p.v('v_bfe_u32', l, 2, 3, name='row'); r2 = p.v('v_bfe_u32', l, 4, 1)
    b1 = p.v('v_bfe_u32', l, 1, 1); pp = p.v('v_xor_b32', b1, r2); b0 = p.v('v_and_b32', 1, l)
    c32 = p.v('v_lshlrev_b32', 5, pp); c32 = p.v('v_lshl_add_u32', b0, 4, c32)
    c64 = p.v('v_lshl_add_u32', hi, 6, c32, name='c64')
    rm = p.v('v_lshl_add_u32', r2, 2, row); t0 = p.s('s_lshl_b32', tw, 2); rm = p.v('v_add_u32', t0, rm)
    t = p.v('v_lshl_add_u32', hi, 4, rm); t = p.v('v_mul_u32_u24', 9216, t); vH0 = p.v('v_add_u32', t, c32, name='vH0')
    vH = [vH0, p.v('v_add_u32', 32 * 9216 - 1024, vH0, name='vH1')]
    t = p.v('v_lshl_add_u32', hi, 3, r83); t = p.v('v_mul_u32_u24', 1152, t)
    t0 = p.s('s_lshl_b32', fw, 6); vB0 = p.v('v_xad_u32', cx, t0, t, name='vB0')
    vB = [vB0, p.v('v_add_u32', 4608 - 1024, vB0, name='vB1')]
    p.append(WAIT(lgkm=0)); p.append(KEEP(ka))
    p.extend(st.t(2))
    raw = [V(1) for _ in range(3)]
    lre_ = SR(2, 'lre'); p('s_mov_b64', lre_, 's[6:7]')
    tail_(p, sX, 2048 * 1152)
    xr = [[V(4, f'xr{g}_{s}') for s in range(9)] for g in range(4)]
    xld = [mc(I('buffer_load_dwordx4', xr[g][s], vX[g], sX, xb, mods=f'offen offset:{128*s}' + NT(8 if g else 1)), 8, 'h' if g else 'x') for g in range(4) for s in range(9)]
    vm = [[x] for x in xld[9:]]
    if o.get('rawp'): p.extend(xld[:9])
    for x, s_ in zip(raw, (lre_, 's[8:9]', 's[18:19]')): mc(p('global_load_ushort', x, vL, s_), 1, 'c')
    if o.get('pfp', -1) >= 0 and not o.get('rawp'): p.extend(xld[:9])
    p('s_cmp_eq_u32', fw, 0)
    p('s_cselect_b64', sB[0:2], 's[10:11]', 's[12:13]'); p('s_cselect_b64', sC[0:2], 's[14:15]', 's[16:17]')
    p('s_cselect_b64', sW[0:2], 's[24:25]', 's[26:27]')
    p('s_mov_b64', sO[0:2], 's[30:31]'); p('s_mov_b64', sS[0:2], 's[34:35]')
    for r, sz in ((sB, 576 * 1152), (sW, 576 * 9216), (sS, WSB), (sC, 576 * 1152), (sK, 1152), (sD, 4608 * 1152), (sO, 2048 * 2304), (sG, 256)):
        tail_(p, r, sz)
    t = [pf(vPB, sB, 0, 0, 12 if HP & 2 else 21, NT(128)), pf(vPW, sW, sPW, 128 * 4, 9, NT(128)), pf(vPW, sW, sPW, 128 * 13, 9, NT(128))]
    if HP & 1: t[1:] = [pf(vPW, sW, p.s('s_add_u32', sPW, hf), 128 * 4, 9, NT(128))]
    if HP & 4: t = [pf(vPB, sB, 0, 0, 3 + NE), pf(vPE, sW, sPE, 128 * 4, NE)]
    sl_ = []; dm2 = SR(2, 'dm2')
    if HP & 8:
        p.append(DEF(dm2)); t0 = p.s('s_min_u32', n2, 47); t0 = p.s('s_mul_i32', t0, 384); t1 = p.s('s_mul_i32', jg, 18432); t0 = p.s('s_add_u32', t0, t1); t1 = p.s('s_add_u32', sPW, hf)
        H1 = o.get('s1', 0)
        for srd, so, off in inter([[(sB, sB0, 128 * k) for k in range(9)], [(sW, t1, 512 + 9216 * k) for k in range(9)], [(sB, t0, 512 * 1152 + 128 * k) for k in range(3)]]):
            x = I('s_buffer_load_dword' + ('' if H1 else 'x2'), dm2[0] if H1 else dm2, srd, so, mods=f'offset:{off + 60}'); x.kind = 'K'; x.d = []; sl_.append(x)
        t = []; NB = o.get('nb', 7); p.extend(sl_[:NB])
    if o.get('pfp', -1) < 0: p.extend(t + xld[:9])
    elif o['pfp'] == 0: p.extend(t)
    else: vm[o['pfp'] - 1] += t
    p.extend(st.t(3))
    sQ = p.s('s_mul_i32', w, QS, name='Q')
    t0 = p.s('s_mul_i32', j, 576); fb = p.s('s_add_u32', t0, je6, name='fb')
    t1 = p.s('s_lshl_b32', je, 9); t0 = p.s('s_add_u32', t0, 512); hb = p.s('s_sub_u32', t0, t1, name='hb')
    t0 = p.s('s_lshl1_add_u32', j, tw); Bb = p.s('s_mul_i32', t0, 18432, name='Bb')
    Rc = p.s('s_mul_i32', chr_, 1152, name='Rc'); t1 = p.s('s_lshl_b32', tw, 7); Rb = p.s('s_add_u32', Rc, t1, name='Rb')
    if o.get('skip', 1): t1 = p.s('s_lshl_b32', tw, 30); Rc = p.s('s_add_u32', Rc, t1, name='Rc')
    def dma(v, srd, so, off, tag): return mc(I('buffer_load_dwordx4', v, srd, so, mods=f'offen offset:{off}' + NT({'W': 2, 'H': 4, 'B': 4, 'C': 16, 'D': 32, 'E': 32, 'X': 0}[v.name[1]]) + ' lds', tag=tag), {'vH': 17, 'vW': 8.75, 'vCl': 32, 'vCm': 8, 'vXs': 16}.get(v.name[:-1], 8), 'h')
    def mkdma(vs, srd, base, add, sq=sQ):
        def f(addr, tag):
            so = SR(1, 'T')
            return [I('s_add_u32', 'm0', sq, addr), I('s_add_u32', so, base, add)] + [dma(v, srd, so, 1024 * b, tag) for b, v in enumerate(vs)]
        return f
    vW = [V(1, f'vW{b}') for b in range(4)]; vC = [V(1, f'vC{b}') for b in range(2)]; vD = [V(1, f'vD{b}') for b in range(4)]
    vT = [[V(1, f'vT{a}{k}') for k in range(3)] for a in range(2)]; vU = [[V(1, f'vU{a}{k}') for k in range(3)] for a in range(2)]
    vTh = [V(1, f'vTh{k}') for k in range(3)]
    vXr = [[V(1, f'vXr{a}{k}') for k in range(2)] for a in range(2)]; vXm = [V(1, f'vXm{a}') for a in range(2)]
    vBq = [[V(1, f'vBq{a}{k}') for k in range(2)] for a in range(2)]; vBr = [V(1, f'vBr{a}') for a in range(2)]
    vCr = [V(1, f'vCr{c}') for c in range(5)]
    def trd(bases, qa, qb, extra):
        def mk(dst):
            def f(addr):
                r = []
                for h, qq in enumerate((qa, qb)):
                    A_ = qq * QS + addr + extra
                    r.append(I('ds_read_b64_tr_b16', dst[2*h:2*h+2], bases[A_ >> 16], mods=f'offset:{A_ & 0xffff}'))
                return r
            return f
        return mk
    def tfrag(unit, bases, sel, extra, grp, rate=1, lat=None):
        d = A(4, 'f' + unit.name); return Frag(d, unit, 2, trd(bases, sel, sel + 2, extra)(d), grp, rate, lat or o['lat'])
    def bfrag(d, unit, base, extra, grp, lat=None):
        return Frag(d, unit, 1, lambda addr: [I('ds_read_b128', d, base, mods=f'offset:{addr + extra}')], grp, 1, lat or o['lat'])
    sc = Sched(); W = sc.W; W.vgap = o['vgap']; W.back = o['back']; W.backf = o['backf']; W.seed = o['seed']; W.par = o.get('par'); W.urg = o.get('urg', 100)
    NS = o['S']; pre = lambda g: NS if g == 3 else o['SE']
    Xf = [[(A if 4 * k + tt < o['xa'] else V)(4, f'X{k}_{tt}') for tt in range(4)] for k in range(18)]
    uX = [Unit(f'X{s}', 4, None, True) for s in range(9)]
    for s in range(NS): uX[s].pre = True
    uB = [Unit(f'B{s}', 2, mkdma(vB, sB, Bb, 128 * s), False) for s in range(9)]
    uH = [Unit(f'H{s}', 2, mkdma(vH, sW, hb, 64 * 9216 * s), False) for s in range(9)]
    uR = [Unit(f'R{n}', 1, mkdma(vB[:1], sB, Rb if n < 4 else Rc, 256 * n), False) for n in range(5)]
    accb = [[V(4, f'b{u}_{tt}') for tt in range(4)] for u in range(2)]; accm = V(4, 'bm')
    acch = [[V(4, f'h{m}_{tt}') for tt in range(4)] for m in range(2)]
    idn = V(2, 'idn'); Cm = [V(4, f'Cm{g}') for g in range(4)]
    def center(g, s):
        T = [V(4, 'T0'), V(4, 'T1')]
        ti = [I(TINY, T[h], idn, xr[g][s][2*h:2*h+2], Cm[g]) for h in range(2)]
        cv = [I('v_cvt_pk_bf16_f32', xr[g][s][e], T[e >> 1][2*(e&1)], T[e >> 1][2*(e&1)+1]) for e in range(4)]
        return ti, cv
    vXw = [V(1, f'vXw{g}') for g in range(4)]
    def xwrite(g, s): return I('ds_write_b128', vXw[g], xr[g][s], mods=f'offset:{uX[s].addr}', tag=f'xw{s}')
    ctr = {}
    for s in range(9):
        ml = []
        for kp in range(2):
            k = 2 * s + kp; z = lambda a: 0 if k == 0 else a
            fx = [bfrag(Xf[k][tt], uX[s], vXr[kp][tt >> 1], (tt & 1) * 2048, ('a', k)) for tt in range(4)]
            fbs = [bfrag(A(4, 'fb'), uB[s], vBr[kp], u * 1024, ('a', k)) for u in range(2)]
            for u in range(2):
                for tt in (range(3, -1, -1) if u and k < 17 and o.get('snake', 0) & 4 else range(4)): ml.append(M(I(MF, accb[u][tt], Xf[k][tt], fbs[u].dst, z(accb[u][tt])), fx[tt], fbs[u]))
            fm = bfrag(A(4, 'fxm'), uX[s], vXm[kp], 0, ('b', k)); fr = bfrag(A(4, 'fbm'), uR[s >> 1], vBq[kp][s & 1], 0, ('b', k))
            ml.append(M(I(MF, accm, fm.dst, fr.dst, z(accm)), fm, fr))
            for m in range(2):
                f = tfrag(uH[s], vTh, m, kp * 1024, ('b', k))
                for tt in (range(3, -1, -1) if m and k < 17 and o.get('snake', 0) & 4 else range(4)): ml.append(M(I(MF, acch[m][tt], f.dst, Xf[k][tt], z(acch[m][tt])), f))
        for g in range(3, -1, -1):
            if pre(g) <= s + 2 < 9:
                ti, cv = center(g, s + 2); ctr[(g, s + 2)] = (ti, cv)
                ml[5 + 8 * g:5 + 8 * g] = [M(ti[0], tiny=2), M(ti[1], tiny=1)]
        sc.feed(ml)
    gA = len(W.m)
    E = o['edge']
    order = [(0, k) for k in range(E)] + [(1, k) for k in range(E)] + [(t, k) for k in range(E, 18 - E) for t in range(2)] + \
            [(0, k) for k in range(18 - E, 18)] + [(1, k) for k in range(18 - E, 18)]
    acc1 = []; gI = []; last1 = {}; first1 = {}
    for it in range(4):
        gI.append(len(W.m))
        uW = [Unit(f'W{it}_{s}', 4, mkdma(vW, sW, fb, 128 * it + 64 * 9216 * s), True if (it, s) == (0, 0) else None) for s in range(9)]
        for u in uW: u.early = max(g for g, its in plan if any(x in its.upper() for x in (f'W{it}', f'Q{it}', f'Y{it}', f'Y{it-1}', f'Z{it+1}', f'F{it}', f'X{it}', f'X{it-1}', f'P{it}'))) + (gA - 354 if it else 0) + 30
        ac = [[[V(4, f'g{it}{m}{t}{tt}') for tt in range(4)] for t in range(2)] for m in range(2)]; acc1.append(ac)
        for n, (t, k) in enumerate(order):
            ml = []
            for m in range(2):
                f = tfrag(uW[k >> 1], vT[t], m, (k & 1) * 2048, ('w', it, n >> 1))
                for tt in (range(3, -1, -1) if m and 0 < k < 17 and o.get('snake', 0) & 1 else range(4)): ml.append(M(I(MF, ac[m][t][tt], f.dst, Xf[k][tt], 0 if k == 0 else ac[m][t][tt]), f))
            if k == 0: first1[(it, t)] = len(W.m)
            if o.get('snake', 0) & 8 and E <= k < 18 - E:
                if t == 0: held = ml; continue
                fs = [x.frags[0] for x in (held + ml)[::4]]; ml = []
                for tt in range(4):
                    for c in (range(3, -1, -1) if tt & 1 else range(4)): ml.append(M(I(MF, ac[c & 1][c >> 1][tt], fs[c].dst, Xf[k][tt], ac[c & 1][c >> 1][tt]), fs[c]))
            sc.feed(ml)
            if k == 17: last1[(it, t)] = len(W.m) - 1
    gC = len(W.m); G = lambda g: g + gA - 354
    hq = [[A(4, f'hq{k}_{t}') for t in range(2)] for k in range(9)]
    Ca = [[SR(1, f'Ca{g}{L}') for L in range(2)] for g in range(3)]; Cb = SR(1, 'Cb')
    sQc = [SR(1, 'Qa'), SR(1, 'Qb')]
    two = lambda b: (lambda addr, tag: mkdma(vC, sC, b, 0, sQc[0])(addr, tag) + mkdma(vC, sC, b, 2 * 18432, sQc[1])(addr, tag))
    uC = [[Unit(f'C{g}{L}', 4 if g < 2 else 1, two(Ca[g][L]) if g < 2 else mkdma(vC[:1], sC, Ca[g][L], 0),
                (True if L == 0 and g < 2 else False)) for L in range(2)] for g in range(3)]
    vCl = [V(1, 'vCl0'), V(1, 'vCl1'), V(1, 'vCm2')]; vE = [V(1, f'vE{b}') for b in range(2)]
    uCl = Unit('Cl', 3, mkdma(vCl, sC, Cb, 0), False)
    accs = [[V(4, f's{t}_{a}') for a in range(2)] for t in range(9)]; lastS = {}
    for t in range(9):
        ml = []
        for k in range(9):
            if k < 8: f = bfrag(A(4, 'fc'), uC[t >> 2][k >> 2], vCr[k & 3], (t & 3) * 1024, ('c', t, k // 3))
            else: f = bfrag(A(4, 'fc'), uCl, vCr[4], t * 256, ('c', t, k // 3))
            for a in range(2): ml.append(M(I(MF, accs[t][a], hq[k][a], f.dst, 0 if k == 0 else accs[t][a]), f))
        sc.feed(ml); lastS[t] = len(W.m) - 1
    g2 = len(W.m)
    Hh = [V(8, f'Hh{x}') for x in range(4)]
    Hq = [[[(V if x == 3 and kl < 4 else A)(4, f'Hq{x}{kl}{a}') for a in range(2)] for kl in range(8)] + [[Hh[x][0:4], Hh[x][4:8]]] for x in range(4)]
    accd = [[V(4, f'd{t}_{a}') for a in range(2)] for t in range(12)]; seen = set(); lastD = {}; useH = {}
    Pf, Ph, Pl, Pm, Hp = [[SR(1, f'{n}{x}') for x in range(4)] for n in ('Pf', 'Ph', 'Pl', 'Pm', 'Hp')]; L8 = SR(1, 'L8'); L8h = SR(1, 'L8h')
    uD = [[Unit(f'D{x}{it}', 4, mkdma(vD, sD, Pf[x], it * 64 * 1152)) for it in range(4)] + [Unit(f'D{x}h', 2, mkdma(vD[:2], sD, Ph[x], 0))] for x in range(4)]
    uL = [Unit(f'L{it}', 2, mkdma(vD[:2], sD, L8, it * 64 * 1152)) for it in range(4)] + [Unit('Lh', 2, mkdma(vD[:2], sD, L8h, 0))]
    uD[0][4].brk = True
    uE = [[Unit(f'E{x}{L}', 4, mkdma(vD[:2] + vE, sD, (Pl, Pm)[L][x], 128 * 1152), f'{x}{L}' in o.get('ebrk', '10 11')) for L in range(2)] for x in range(4)]
    gcnt = [0]
    hold = []; F4 = o.get('snake', 0) & 16
    def dstep(x, kl, t, four=0):
        it, kk = kl >> 1, kl & 1
        if x and it in (2, 3): f = tfrag(uE[x][t >> 2], vU[t & 1], kk, (it - 2) * 2048 + ((t >> 1) & 1) * 512, ('d', gcnt[0] >> 2), o['rate2'])
        elif t < 8: f = tfrag(uD[x][it], vU[t & 1], t >> 2, kk * 2048 + ((t >> 1) & 1) * 512, ('d', gcnt[0] >> 2), o['rate2'])
        else: f = tfrag(uL[it], vU[t & 1], kk, ((t >> 1) & 1) * 512, ('d', gcnt[0] >> 2), o['rate2'])
        gcnt[0] += 1
        useH.setdefault((x, kl), len(W.m))
        ml = [M(I(MF, accd[t][a], Hq[x][kl][a], f.dst, accd[t][a] if t in seen else 0), f) for a in ((1, 0) if t & (4 if four else 1) and o.get('snake', 0) & 2 else (0, 1))]
        seen.add(t)
        if four:
            hold.append((t, ml))
            if len(hold) < 4: return
            sc.feed([x[0] for _, x in hold])
            for t, x in hold[::-1]: sc.feed([x[1]]); lastD[t] = len(W.m) - 1
            hold.clear(); return
        sc.feed(ml); lastD[t] = len(W.m) - 1
    for kl in (8, 0, 1, 2, 3, 4, 5, 6, 7):
        for t in (range(12) if kl != 7 else (8, 9, 10, 11, 0, 1, 2, 3, 4, 5, 6, 7)): dstep(0, kl, t, F4)
    gP = len(W.m)
    earlyH = [(x, kl) for x in (1, 2, 3) for kl in (8, 0, 1, 2, 3)]
    for x, kl in earlyH:
        for t in range(8): dstep(x, kl, t, F4)
    g3 = len(W.m)
    lateH = [(x, kl) for x in (1, 2, 3) for kl in range(4, 8)]
    pr = [A(4, f'pr{b}') for b in range(5)]; ps = [[V(4, f'ps{r}{i}') for i in range(2)] for r in range(3)]; pd = [[V(4, f'pd{r}{i}') for i in range(2)] for r in range(3)]
    xv = [V(4, f'xv{n}') for n in range(3)]; xf = [[V(4, f'xf{i}{a}') for a in range(2)] for i in range(2)]; xf4 = V(4, 'xf4'); Y4 = V(4, 'Y4'); D4 = V(4, 'D4')
    sel = V(4, 'sel'); idm = [V(4, 'id0'), V(4, 'id1')]; sA_ = V(8, 'selA'); selA = [sA_[2:6], sA_[0:4]]
    addp = lambda ac, src: [I(MF, ac[6 + i][a], selA[a], src[i], ac[6 + i][a]) for i in range(2) for a in range(2)]
    for ts in o.get('late', [[0, 1], [2, 3], [4], [5], [6], [7]]):
        for x, kl in lateH:
            for t in ts: dstep(x, kl, t)
        if t == o.get('t4', 3):
            gX = len(W.m)
            sc.feed([M(x) for x in inter([[I(MF, D4, sel, pr[1 + k], D4 if k else 0) for k in range(4)], [I(MF, xf[i][a], xv[a], idm[i], 0) for i in range(2) for a in range(2)]]) +
                     [I(MF, xf4, xv[2], idm[0], 0), I(MF, Y4, sel, pr[0], 0)]])
        if t == 5: gS = len(W.m); sc.feed([M(x) for r in range(3) for x in addp(accs, ps[r])])
    gD = len(W.m); sc.feed([M(x) for r in range(2) for x in addp(accd, pd[r])])
    gE = len(W.m)
    gSetC = gI[3] + o.get('setc', 40); gSetD = gI[3] + o.get('setd', 100)
    for u in sum(uC, []) + [uCl]: u.early = gSetC
    for u in sum(uD, []) + uL: u.early = gSetD
    sc.plan(lambda g: o['ep'], lambda g: 99, o['tail'])
    spacing = lambda g: o['sp'] if g < gSetC else o['sp2']
    XS, CS = o.get('xs'), o.get('cs'); sc.res = o.get('res', 3 * bool(XS) + 3 * bool(CS)); sc.pl = o.get('pl', 3)
    def xadr(z, nm):
        t0 = z.s('s_lshr_b32', jg, 1); t0 = z.s('s_lshl2_add_u32', t0, w); t1 = z.s('s_and_b32', jg, 1); t0 = z.s('s_lshl1_add_u32', t0, t1); tb = z.s('s_lshl_b32', t0, 3, name='tb')
        t1 = z.s('s_lshl_b32', mt, 7); t0 = z.s('s_add_u32', t1, tb); t0 = z.s('s_mul_i32', t0, 1152)
        kc = z.s('s_lshl2_add_u32', jq, jg); kc = z.s('s_lshl_b32', kc, 6); k8 = z.s('s_lshl_b32', jq, 5); k8 = z.s('s_add_u32', k8, 1024); x8 = z.s('s_add_u32', t0, k8)
        t1 = z.s('s_add_u32', t1, tk0); t1 = z.s('s_mul_i32', t1, 1152); xc = [z.s('s_add_u32', t1, kc)]; xc.append(z.s('s_add_u32', xc[0], 4608))
        t = z.v('v_lshrrev_b32', 3, col); c3 = z.v('v_and_b32', 3, col); ae = z.v('v_lshl_add_u32', t, 2, c3, name='ae'); q1 = z.v('v_and_b32', 1, q); c4 = z.v('v_lshrrev_b32', 2, col)
        vx = vx8 = None
        if nm:
            t = z.v('v_mul_u32_u24', 1152, ae); vx8 = z.v('v_lshl_add_u32', q1, 4, t, name='vXt0')
            t = z.v('v_lshl_add_u32', c4, 4, c3); t = z.v('v_mul_u32_u24', 1152, t); vx = z.v('v_lshl_add_u32', q, 4, t, name='vXs0')
        return tb, kc, k8, x8, xc, c3, ae, q1, c4, vx, vx8
    def clpat(qs, u1):
        t = qs.v('v_lshrrev_b32', 1, col); t = qs.v('v_mul_u32_u24', 1152, t); t2 = qs.v('v_and_b32', 16, l16); t = qs.v('v_add3_u32', t, t2, u1)
        u0 = qs.s('s_lshl_b32', jx, 1); t2 = qs.v('v_xor_b32', u0, q); t3 = qs.v('v_xor_b32', 4, t2); t2 = qs.v('v_mul_u32_u24', 18432, t2); t3 = qs.v('v_mul_u32_u24', 18432, t3)
        t2 = qs.v('v_add_u32', 1024, t2); qs('v_add_u32', vCl[0], t, t2); qs('v_add_u32', vCl[1], t, t3)
        u0 = qs.s('s_mul_i32', jq, 7 * 18432); u0 = qs.s('s_sub_u32', 32 * 18432 - 1024, u0); t2 = qs.v('v_lshlrev_b32', 24, q); qs('v_add3_u32', vCl[2], u0, t, t2)
    if XS:
        def xdma(addr, tag):
            z = Q(); r = xr0[0] if xr0 else xadr(z, 1)
            for n in range(3): z('s_add_u32', 'm0', sQ, addr + 1024 * n); z.append(dma(r[9 + n // 2], sX, (r[4] + [r[3]])[n], 0, tag))
            return list(z)
        uXs = Unit('Xs', 3, xdma); uXs.pin = XS; uXs.addr = 33 * 1024; xr0 = []
        if XS != -1: sc.extra.append(uXs)
    if CS:
        def cdma(addr, tag, f=uCl.dma):
            z = Q(); u0 = z.s('s_mul_i32', jq, 8 * 18432); u2 = z.s('s_lshl_b32', jg, 5); z('s_add_u32', Cb, u0, u2); clpat(z, z.s('s_mul_i32', tw, 8 * 1152))
            return list(z) + f(addr, tag)
        uCl.dma = cdma; uCl.pin = G(CS); uCl.addr = (30 if XS else 33) * 1024
    sc.allocate(o['p0max'], spacing)
    bar = sc.bar
    col = p.v('v_and_b32', 15, l, name='col'); l16 = p.v('v_lshlrev_b32', 4, l, name='l16')
    big = p.v('v_mov_b32', BIG); p('v_cmp_ne_u32', 'vcc', 0, v0); vM0 = p.v('v_cndmask_b32', 0, big, 'vcc', name='vM0')
    t = p.v('v_mul_u32_u24', 9216, rm); p('v_add_u32', vW[0], t, c64)
    for b in (1, 2, 3): p('v_add_u32', vW[b], b * (16 * 9216 - 1024), vW[0])
    for u in sc.p0:
        d_ = u.dma(u.addr, f'E{u.epoch}'); vm += [d_[:3]] + [[x] for x in d_[3:]]
    if HP & 4:
        z = Q(); t = z.v('v_min_u32', (8 - NE) * 16, l16); t2 = z.v('v_lshlrev_b32', 3, t); t = z.v('v_mul_u32_u24', 576, t)
        k = len(vm) - o.get('pl2', 0); vm[k:k] = [list(z) + [pf(t2, sB, sB0, 128 * NE, 9 - NE)], [pf(t, sW, sPL, 128 * 4, 9 - NE)]]
    if XS and o.get('xp', 1): xr0.append(xadr(p, 1))
    if XS == -1: d_ = xdma(uXs.addr, 'E3'); vm += [d_[0:2], d_[2:4], d_[4:6]]
    if LOC & 24: ml, S = mlS(p)
    t0 = p.s('s_lshl2_add_u32', ml if LOC & 16 else mt, jq); t1 = p.s('s_lshl2_add_u32', t0, w); t1 = p.s('s_lshl2_add_u32', t1, jg); t1 = p.s('s_mul_i32', t1, SRC)
    if LOC & 16: t1 = fix(p, p.s('s_add_u32', t1, S))
    Pb = p.s('s_add_u32', t1, 0x6800000 if LOC & 16 else P8_OFF, name='Pb')
    if LOC & 24 in (8, 16): t0 = p.s('s_lshl2_add_u32', ml if LOC & 8 else mt, jq)
    jx = p.s('s_xor_b32', jg, 3, name='jx'); t0 = p.s('s_lshl2_add_u32', t0, jx); Pp = []
    PXo = (0x7000000, 0x7001000, 0x7004000)
    if LOC & 8:
        t1 = p.s('s_lshl2_add_u32', t0, w); t1 = p.s('s_lshl_b32', t1, 15); t1 = fix(p, p.s('s_add_u32', t1, S))
        for r in range(3): Pp.append(p.s('s_xor_b32', t1, PXo[r] + (r << 17), name=f'Pp{r}'))
    for r in range(0 if LOC & 8 else 3):
        t1 = p.s('s_xor_b32', t0, r); t1 = p.s('s_lshl2_add_u32', t1, w); t1 = p.s('s_mul_i32', t1, PW); Pp.append(p.s('s_add_u32', t1, PX_OFF + 4096 * r, name=f'Pp{r}'))
    mw = p.s('s_lshl2_add_u32', mt, w, name='mw')
    dmy = SR(1, 'dmy')
    def touches():
        p.append(DEF(dmy))
        def touch(srd, so):
            x = p('s_buffer_load_dword', dmy, srd, so); x.kind = 'K'; x.d = []
        p('s_cmp_ge_u32', wid, o.get('tn', 8)); p('s_cbranch_scc1', 'L_nt')
        t0 = p.s('s_lshl_b32', w, 21); T = o['tlb']
        if T & 1: touch(sC, 0); touch(sK, 0); touch(sD, t0)
        if T & 2: touch(sG, 0); touch(sO, t0)
        if T & 4:
            for k in range(6): touch(sS, p.s('s_add_u32', t0, k << 23))
        p.append(LABEL('L_nt'))
    if o['tlb'] and not o.get('tp'): touches()
    t = p.v('v_lshlrev_b32', 6, row); l3 = p.v('v_and_b32', 3, l); t = p.v('v_lshl_add_u32', l3, 3, t); tp0 = p.v('v_lshl_add_u32', r2, 5, t)
    f9 = p.s('s_lshl_b32', fw, 9, name='f9'); t = p.v('v_lshl_add_u32', hi, 10, tp0); p('v_add_u32', vT[0][0], f9, t); p('v_xor_b32', vT[1][0], 32, vT[0][0])
    t0 = p.s('s_lshl_b32', fw, 5); t = p.v('v_lshl_add_u32', hi, 9, tp0); p('v_xor_b32', vTh[0], t0, t)
    for r in (vT[0], vT[1], vTh):
        for k in (1, 2): p('v_add_u32', r[k], 65536 * k, r[0])
    ih = p.v('v_bfe_u32', l, 3, 1); i1 = p.v('v_bfe_u32', l, 1, 3); t = p.v('v_xor_b32', q, i1); t = p.v('v_lshlrev_b32', 4, t); L0 = p.v('v_lshl_add_u32', sl, 7, t)
    LX = p.v('v_lshl_add_u32', ih, 10, L0)
    t0 = p.s('s_mul_i32', tw, 2 * QS); p('v_add_u32', vXr[0][0], t0, LX); p('v_add_u32', vXr[0][1], QS, vXr[0][0])
    t0 = p.s('s_lshl1_add_u32', je, tw); t0 = p.s('s_mul_i32', t0, QS); t0 = p.s('s_lshl2_add_u32', f9, t0); p('v_add_u32', vXm[0], t0, LX)
    t = p.v('v_mul_u32_u24', QS, ih); p('v_add_u32', vBq[0][0], t, L0); p('v_add_u32', vBq[0][1], 2 * QS, vBq[0][0])
    t0 = p.s('s_mul_i32', fw, 2 * QS); p('v_add_u32', vBr[0], t0, vBq[0][0])
    for a, b in ((vXr[1][0], vXr[0][0]), (vXr[1][1], vXr[0][1]), (vXm[1], vXm[0]), (vBq[1][0], vBq[0][0]), (vBq[1][1], vBq[0][1]), (vBr[1], vBr[0])): p('v_xor_b32', a, 64, b)
    vQ = p.v('v_add_u32', sQ, l16, name='vQ')
    t0 = p.s('s_lshl_b32', jq, 10); p('v_add_u32', vXw[0], t0, vQ)
    for g in (1, 2, 3): p('v_xor_b32', vXw[g], g * 1024, vXw[0])
    t = p.v('v_lshlrev_b32', 4, b0); c_ = p.v('v_mov_b32', 0x3f80); one = p.v('v_lshlrev_b32', t, c_)
    p('v_cmp_eq_u32', 'vcc', 0, b1); p('v_cndmask_b32', idn[0], 0, one, 'vcc'); p('v_xor_b32', idn[1], idn[0], one)
    asum = V(4, 'asum'); t = p.v('v_bfe_u32', l, 2, 2); c_ = p.v('v_mov_b32', 0x3f803f80); p('v_cmp_eq_u32', 'vcc', t, q)
    for e in range(4): p('v_cndmask_b32', asum[e], 0, c_, 'vcc')
    kb0 = SR(2, 'kb0'); kb1 = SR(2, 'kb1')
    p('v_cmp_ne_u32', kb0, 0, b0); p('v_cmp_ne_u32', kb1, 0, b1)
    rc = p.s('s_mov_b32', o['rc'], name='rc')
    p.extend(st.t(4))
    c = P()
    sgn = c.v('v_lshlrev_b32', 31, ih)
    vKw = c.v('v_lshl_add_u32', l, 3, sQ)
    lre, lim, ldt = [c.v('v_lshlrev_b32', 16, x) for x in raw]
    t = c.v('v_mul_f32', LOG2E, ldt); dt = c.v('v_exp_f32', t)
    den = c.v('v_mul_f32', lre, lre); c('v_fmac_f32', den, lim, lim); rd = c.v('v_rcp_f32', den)
    dt = c.v('v_cvt_pk_bf16_f32', dt, dt); dt = c.v('v_and_b32', 0xffff0000, dt)
    xr_ = c.v('v_mul_f32', dt, lre); xi = c.v('v_mul_f32', dt, lim)
    t = c.v('v_mul_f32', LOG2E, xr_); mag = c.v('v_exp_f32', t)
    t = c.v('v_mul_f32', 1 / (2 * math.pi), xi); t = c.v('v_fract_f32', t)
    cs = c.v('v_cos_f32', t); sn = c.v('v_sin_f32', t)
    rd = c.v('v_add_f32', rd, rd)
    k1 = V(2); c('v_mul_f32', k1[0], mag, cs); b = c.v('v_mul_f32', mag, sn)
    am = c.v('v_add_f32', -1.0, k1[0])
    cr = c.v('v_mul_f32', am, lre); c('v_fmac_f32', cr, b, lim)
    ci = c.v('v_mul_f32', b, lre); ci = c.v('v_fma_f32', Neg(am), lim, ci)
    k0 = V(2); cr = c.v('v_mul_f32', cr, rd); c('v_mul_f32_e64', k0[1], Neg(ci), rd); c('v_xor_b32', k0[0], sgn, cr)
    c('v_xor_b32', k1[1], sgn, b)
    CI = {'cf': 0, 'l1': 1, 'l16': 2, 'l64': 3, 'l512': 4}
    def kput(nm, r): c('ds_write_b64', vKw, r, mods=f'offset:{CST + 512 * CI[nm]}')
    kput('cf', k0); kput('l1', k1); cur = k1
    for n in range(1, 10):
        nx = V(2); a2 = c.v('v_mul_f32', cur[0], cur[0]); t = c.v('v_add_f32', cur[0], cur[0])
        c('v_fma_f32', nx[0], Neg(cur[1]), cur[1], a2); c('v_mul_f32', nx[1], t, cur[1]); cur = nx
        if n in (4, 6, 9): kput(f'l{1<<n}', cur)
    cst = list(c)
    sS_ = [V(4, f'sum{g}') for g in range(4)]; sQ_ = [V(4, f'sq{g}') for g in range(4)]; nmean = []; qsum = []
    def post(g):
        r = P(); a = sS_[g][0]
        for m in ('quad_perm:[1,0,3,2]', 'quad_perm:[2,3,0,1]', 'row_half_mirror'): a = r.v('v_add_f32_dpp', a, a, mods=m + DM)
        a = r.v('v_mul_f32', -1.0 / 576, a); nmean.append(a); t = r.v('v_cvt_pk_bf16_f32', a, a)
        for e in range(4): r('v_and_b32', Cm[g][e], 0xffff0000, t)
        r2_ = P(); b = r2_.v('v_mov_b32_dpp', sQ_[g][0], mods='quad_perm:[0,0,0,0]' + DM)
        for e in (1, 2, 3): b = r2_.v('v_add_f32_dpp', sQ_[g][e], b, mods=f'quad_perm:[{e},{e},{e},{e}]' + DM)
        b = r2_.v('v_add_f32_dpp', b, b, mods='row_half_mirror' + DM); qsum.append(b)
        out = inter([r, r2_]); prev = None
        for s in range(pre(g)):
            ti, cv = center(g, s); out += ti
            if prev: out += prev
            prev = cv + ([xwrite(g, s)] if s < NS else [])
        return out + prev
    pend = []
    if o.get('cst0', 2) == 2: p.extend(cst[:8] + (st.t(15) if o.get('bst') else []) + cst[8:]); cst = []
    if o['tlb'] and o.get('tp'): touches()
    for _ in range(o.get('xa1', 9)): p.extend(vm.pop(0))
    if sl_: p.extend(sl_[NB:NB + o.get('nb2', NB)])
    for g in range(4):
        per = -(-len(pend) // 9)
        for s in range(9):
            x = xr[g][s]; f = pend[:per]; pend = pend[per:]
            p(TINY, sQ_[g], x[0:2], x[0:2], 0 if s == 0 else sQ_[g]); p(MF, sS_[g], asum, x, 0 if s == 0 else sS_[g])
            if g == 0 and s == o.get('s16', 0) and o.get('bst'): p.extend(st.t(16))
            if vm: p.extend(vm.pop(0))
            p.extend(f[:2]); p(TINY, sQ_[g], x[2:4], x[2:4], sQ_[g]); p.extend(f[2:])
        p.extend(st.t(5 + g))
        pend = post(g)
        if g == 0 and sl_: p.extend(sl_[NB + o.get('nb2', NB):])
        if g == 0 and o.get('cst0', 2) == 1:
            k = o.get('cv', 0); n_ = len(cst) // (k + 1)
            for _ in range(k): p.extend(vm.pop(0)); p.extend(cst[:n_]); cst = cst[n_:]
            p.extend(cst); cst = []
        if g == 0 and o.get('cst0', 2) == 3:
            cst = pend + cst; pend = []; k = o.get('cv', 0); n_ = len(cst) // (k + 1)
            for _ in range(k): p.extend(vm.pop(0)); p.extend(cst[:n_]); cst = cst[n_:]
            p.extend(cst); cst = []
    k = max(1, len(pend) // (len(vm) + 1))
    while pend or vm:
        p.extend(pend[:k]); pend = pend[k:]
        if vm: p.extend(vm.pop(0))
    if o['tlb']: p.append(WAIT(lgkm=0)); p.append(KEEP(dmy))
    if sl_: p.append(WAIT(lgkm=0)); p.append(KEEP(dm2))
    sc.xlg[0].append(f'xw{NS-1}')
    qc = []; qw = []
    for s in range(NS, 9):
        e = uX[s].epoch
        for g in range(4):
            x = xwrite(g, s); x.ready = bar[uX[s].at] + 1; x.dead = bar[e] - 9 + 2 * g; qw.append(x)
            if (g, s) in ctr:
                ti, cv = ctr[(g, s)]; cv[0].deps = [(ti[1], 2)]; cv[-1].dead = ti[1].gap + 7; qc += cv; x.deps = [(cv[-1], 0)]
        sc.xlg[e].append(f'xw{s}')
    W.queue(qc, 45, 'ctr'); W.queue(qw, 46, 'xw')
    e1 = sc.barafter(gI[2] + o['pub1']); sc.xvm[e1] += ['hs', 'H0', 'H1']
    eh = sc.barafter(gI[3] + 130); sc.xvm[eh] += ['H2']
    e2 = sc.barafter(gC + o['pub2']); sc.xvm[e2] += ['H3', 'sp']
    e3 = sc.barafter(lastD[11] + o['pub3']); sc.xvm[e3] += ['d8']
    qe = P(); qt = Q()
    if LOC & 2:
        ml, S = mlS(qt); t0 = qt.s('s_lshl2_add_u32', ml, tw); t0 = qt.s('s_lshl_b32', t0, 5); t0 = qt.s('s_add_u32', t0, j); t0 = qt.s('s_lshl_b32', t0, 15)
        t0 = qt.s('s_add_u32', t0, S); e0 = qt.s('s_lshl1_add_u32', f9, t0); Hs = qt.s('s_lshl1_add_u32', f9, e0, name='Hs')
        es = [qt.s('s_xor_b32', e0, 0x4202000 + k * 0x80000) for k in range(2)]
    else:
        t0 = qt.s('s_lshl1_add_u32', mt, tw); t0 = qt.s('s_mul_i32', t0, 288); t1 = qt.s('s_mul_i32', j, 9); t0 = qt.s('s_add_u32', t0, t1)
        t0 = qt.s('s_lshl1_add_u32', t0, fw); t0 = qt.s('s_lshl_b32', t0, 10); e0 = qt.s('s_add_u32', t0, H_OFF + 16384)
        Hs = qt.s('s_lshl1_add_u32', f9, e0, name='Hs')
        es = [e0, qt.s('s_add_u32', e0, 144 * 2048)]
    qt[0].ready = gA - 60
    def epi(g, u, dst, ready):
        n0 = len(qe)
        for e in range(4): qe('v_mul_f32', g[e], g[e], u[e])
        for e in range(2): qe('v_cvt_pk_bf16_f32', dst[e], g[2 * e], g[2 * e + 1])
        qe[n0].ready = ready
    def hst(r, so, off, tag, g0):
        x = qt('buffer_store_dwordx4', r, l16, sS, so, mods=f'offen offset:{off} sc1', tag=tag)
        x.deps = [(qe[-1], 1)]; x.need = g0; x.dead = min(g0 + o['hst'], gE + 9); x.soft = 1; qe[-1].dead = min(getattr(qe[-1], 'dead', 1 << 30), x.dead - 2); return x
    for a in range(2):
        r = V(4, 'Hh')
        for k in range(2): epi(acch[0][2*a+k], acch[1][2*a+k], r[2*k:2*k+2], gA - 4 + 2*a + k + 3)
        if a: qe[-1].dead = first1[(0, 1)] + 4
        hl8 = hst(r, es[a], 0, 'H0', gA + 20)
    hlast = {8: hl8}
    for it in range(4):
        Hf = [V(4, f'Hf{tt}') for tt in range(4)]; ac = acc1[it]
        es = [qt.s('s_xor_b32', Hs, 0x4000000 + (it >> 1) * 16384 + (it & 1) * 4096 + k * 0x80000) if LOC & 2 else qt.s('s_add_u32', Hs, it * 4096 - 16384 + k * 144 * 2048) for k in range(2)]; qt[-2].ready = last1[(it, 1)] - 10
        for t in range(2):
            for tt in range(4):
                epi(ac[0][t][tt], ac[1][t][tt], Hf[tt][2*t:2*t+2], last1[(it, t)] + tt)
                if it < 3: qe[-1].dead = first1[(it + 1, t)] + tt - 1
                if t == 1: hlast[it] = hst(Hf[tt], es[tt >> 1], (tt & 1) * 1024, f'H{it}', last1[(it, 1)] + 10 + 10 * tt)
    def part(ac, so, off, ready, tag):
        r = V(4, 'pk'); n0 = len(qe)
        for e in range(4): qe('v_cvt_pk_bf16_f32', r[e], ac[e >> 1][2*(e&1)], ac[e >> 1][2*(e&1)+1])
        qe[n0].ready = ready + 3
        return hst(r, so, off, tag, ready + 10)
    for t in (0, 1, 2, 3, 4, 5, 8): slast = part(accs[t], Pp[t >> 1] if t < 8 else Pb, (t & 1) * 1024, lastS[t], 'sp' if t < 8 else 'd8')
    t0 = qt.s('s_mul_i32', jq, 4 * FIN - 1024); P8 = qt.s('s_sub_u32', Pb, t0); t1 = qt.s('s_and_b32', jx, 1); t1 = qt.s('s_lshl_b32', t1, 1)
    for u in range(4):
        e0 = qt.s('s_xor_b32', t1, u); e0 = qt.s('s_mul_i32', e0, 4 * FIN); e0 = qt.s('s_add_u32', e0, P8); d8 = part(accd[8 + u], e0, 1024, lastD[8 + u], 'd8')
    d8.dead = min(d8.dead, bar[e3] - 20)
    dst_ = []
    for t in range(6):
        dst_.append(part(accd[t], Pp[t >> 1], 2048 + (t & 1) * 1024, lastD[t], 'dp')); dst_[-1].back = 2000; dst_[-1].need = 0; dst_[-1].chain = 1
    W.queue(qe, 40, 'epi'); W.queue(qt, 47, 'st')
    qs = Q()
    x0 = qs.s('s_and_b32', jx, 1, name='x0'); x1 = qs.s('s_lshr_b32', jx, 1, name='x1'); fx = qs.s('s_xor_b32', fw, x1, name='fx')
    u0 = qs.s('s_mul_i32', jq, 8 * 18432); u1 = qs.s('s_lshl1_add_u32', jg, Tr); u1 = qs.s('s_lshl_b32', u1, 7); u4 = qs.s('s_add_u32', u0, u1)
    u2 = qs.s('s_mul_i32', x1, 4 * 18432); qs('s_add_u32', Ca[0][0], u4, u2); u2 = qs.s('s_sub_u32', 4 * 18432, u2); qs('s_add_u32', Ca[1][0], u4, u2)
    if not CS: u2 = qs.s('s_lshl_b32', jg, 5); qs('s_add_u32', Cb, u0, u2)
    u0 = qs.s('s_lshl_b32', x0, 11); qs('s_add_u32', sQc[0], sQ, u0); qs('s_xor_b32', sQc[1], 2048, sQc[0])
    u0 = qs.s('s_mul_i32', jq, 18432); u0 = qs.s('s_add_u32', u0, 32 * 18432); qs('s_add_u32', Ca[2][0], u0, u1)
    for g in range(3): qs('s_xor_b32', Ca[g][1], 128, Ca[g][0])
    if LOC & 2: ml, S = mlS(qs); u3 = qs.s('s_lshl3_add_u32', ml, w); u3 = qs.s('s_lshl_b32', u3, 19); u3 = qs.s('s_add_u32', u3, S); u3 = qs.s('s_xor_b32', u3, 0x4000000)
    else: u3 = qs.s('s_mul_i32', mw, 144 * 2048); u3 = qs.s('s_add_u32', u3, H_OFF)
    u2 = qs.s('s_mul_i32', fw, 36864); t0 = qs.s('s_lshl_b32', fx, 7); u2 = qs.s('s_sub_u32', u2, t0)
    t0 = qs.s('s_lshl_b32', x1, 7); u5 = qs.s('s_add_u32', u2, t0); t0 = qs.s('s_xor_b32', t0, 128); u6 = qs.s('s_add_u32', u2, t0)
    for x in range(4):
        u0 = qs.s('s_add_u32', jq, x); u0 = qs.s('s_and_b32', u0, 3); u1 = qs.s('s_and_b32', u0, 1); u0 = qs.s('s_lshl2_add_u32', jg, u0)
        t0 = qs.s('s_mul_i32', u0, 32768 if LOC & 2 else 18432); qs('s_add_u32', Hp[x], t0, u3)
        u0 = qs.s('s_mul_i32', u0, 9); t0 = qs.s('s_add_u32', u0, u1); qs('s_mul_i32', Pf[x], t0, 36864)
        u1 = qs.s('s_xor_b32', u1, 1); u0 = qs.s('s_lshl3_add_u32', u1, u0); qs('s_mul_i32', Ph[x], u0, 36864)
        if x: qs('s_add_u32', Pl[x], Pf[x], u5); qs('s_add_u32', Pm[x], Pf[x], u6)
    u0 = qs.s('s_lshl_b32', jq, 8); u0 = qs.s('s_sub_u32', 1024, u0); u0 = qs.s('s_add_u32', u0, u2)
    qs('s_add_u32', L8, Pf[0], u0)
    if o.get('skip', 1): t0 = qs.s('s_lshl_b32', fw, 30); u0 = qs.s('s_add_u32', u0, t0)
    qs('s_add_u32', L8h, Ph[0], u0)
    qs[0].ready = gI[2] + 20; qs[-1].dead = gI[3] - 70; sdone = qs[-1]
    n0 = len(qs)
    t = qs.v('v_and_b32', 7, col); t = qs.v('v_xor_b32', t, q); t2 = qs.v('v_lshlrev_b32', 4, t)
    u0 = qs.s('s_lshl_b32', tw, 6); u1 = qs.s('s_mul_i32', tw, 8 * 1152)
    t = qs.v('v_lshrrev_b32', 7, l16); t = qs.v('v_mul_u32_u24', 1152, t); t = qs.v('v_xad_u32', t2, u0, t); qs('v_add_u32', vC[0], u1, t); qs('v_add_u32', vC[1], 18432 - 1024, vC[0])
    if not CS: clpat(qs, u1)
    qs[n0].ready = gSetC - 100; qs[-1].dead = gSetC - 1
    u0 = qs.s('s_lshl1_add_u32', jq, fx); u0 = qs.s('s_lshl_b32', u0, 7); u1 = qs.s('s_mul_i32', tw, 16 * 1152); u0 = qs.s('s_add_u32', u0, u1)
    t = qs.v('v_bfe_u32', l16, 6, 3); t = qs.v('v_mul_u32_u24', 1152, t); t2 = qs.v('v_and_b32', 127, vW[0]); u1 = qs.s('s_lshl_b32', x0, 6); t = qs.v('v_xad_u32', t2, u1, t); qs('v_add_u32', vD[0], u0, t)
    for b, k in ((1, 8192), (2, 36864 - 2048), (3, 46080 - 3072)): qs('v_add_u32', vD[b], k, vD[0])
    qs[-1].dead = gSetD - 1
    t = qs.v('v_bfe_u32', col, 1, 3); t4 = qs.v('v_and_b32', 1, q); t = qs.v('v_xor_b32', t, t4); t = qs.v('v_lshlrev_b32', 4, t)
    t5 = qs.v('v_and_b32', 7, col); t = qs.v('v_lshl_add_u32', t5, 7, t)
    t2 = qs.v('v_lshrrev_b32', 3, col); t3 = qs.v('v_lshrrev_b32', 1, q); t2 = qs.v('v_lshl_add_u32', t2, 1, t3); t2 = qs.v('v_mul_u32_u24', QS, t2)
    u0 = qs.s('s_lshl_b32', je, 6); qs('v_xad_u32', vCr[0], t, u0, t2)
    for k in (1, 2, 3): qs('v_xor_b32', vCr[k], 32 * k, vCr[0])
    t = qs.v('v_lshl_add_u32', t5, 1, t4); qs('v_lshl_add_u32', vCr[4], t, 4, t2)
    qs[-1].dead = gC - 40
    n0 = len(qs)
    for a in range(2):
        for k in range(3): qs('v_subrev_u32', vU[a][k], f9, vT[a][k])
    qs('v_add_u32', vE[0], 73728 - 2048, vD[0]); qs('v_add_u32', vE[1], 73728 + 9216 - 3072, vD[0])
    qs[n0].ready = gC; qs[-1].dead = g2 - 70
    W.queue(qs, 5, 'setup')
    qp = Q(); pfl = []; warm = {}
    def pfs(xs, g):
        for x in xs: x.need = g; x.ready = g
        if o.get('pfb', 1):
            for x in xs[1:]: x.chain = 1; x.back = 1e9; x.need = -9
        pfl.append((g, xs))
    vP9 = V(1, 'vP9'); a_ = Q()
    t0 = a_.s('s_lshl_b32', jg, 6); t0 = a_.s('s_add_u32', t0, n2); t0 = a_.s('s_lshl1_add_u32', t0, fw); sPD = a_.s('s_mul_i32', t0, 9 * 1152)
    sPC = a_.s('s_mul_i32', n2, 9 * 1152); t0 = a_.s('s_lshl_b32', jg, 8); sPC2 = a_.s('s_add_u32', sPC, t0); a_('v_lshrrev_b32', vP9, 3, vPW)
    g0 = min(g for g, its in plan if any(c_ in its.upper() for c_ in ('D', 'C', 'E', 'N8'))); a_[0].ready = G(g0) - 30; pfl.append((G(g0) - 30, list(a_)))
    for g, its in plan:
        xs = []; a_ = Q()
        def alt(base, step, second):
            t0 = a_.s('s_bfe_u32', wid, (1 << 16) | HB)
            if second ^ o.get('flip', 0): t0 = a_.s('s_xor_b32', t0, 1)
            t0 = a_.s('s_mul_i32', t0, step); return a_.s('s_add_u32', base, t0)
        def lag(base, a, b):
            t0 = a_.s('s_bfe_u32', wid, (1 << 16) | HB); a, b = [BIG if x is None else x for x in ((b, a) if o.get('near', 0) else (a, b))]
            t0 = a_.s('s_mul_i32', t0, (b - a) & 0xffffffff); t0 = a_.s('s_add_u32', base, t0); return a_.s('s_add_u32', t0, a) if a else t0
        for c_, n in its.split():
            n0 = len(xs); low = c_.islower(); c_ = c_.upper()
            if c_ == 'Z': n = int(n); so = lag(sPW, 128 * n if n < 4 else None, 128 * n - 128 if n else None); xs += [pf(vPW, sW, so, 128 * k, 9, '', 'm' if n == 4 else 'c') for k in (0, 5, 9, 14)]
            elif c_ == 'E': n = int(n); so = lag(sPD, 512 * n if n < 2 else None, 512 * n - 512 if n else None); xs += [pf(vP9, sD, so, 128 * k, 9, '', 'm' if n == 2 else 'c') for k in range(4)]
            elif c_ in 'NF':
                ab = (0, None) if c_ == 'N' else (None, 0); cl_ = 'c' if c_ == 'N' else 'm'
                if n in '0123': so = lag(sPW, *ab); xs += [pf(vPW, sW, so, 128 * (k + int(n)), 9, '', cl_) for k in (0, 5, 9, 14)]
                elif n == '8': xs += [pf(vP9, sD, lag(sPD, *ab), 1024, 9, '', cl_)]
                else: s1 = lag(sPC2, *ab); s2 = lag(sPC, *ab); xs += [pf(vP9, sC, s1, 0, 9, '', cl_), pf(vP9, sC, s1, 128, 9, '', cl_), pf(vP9, sC, s2, 1024, 9, '', cl_)]
            elif c_ in 'WXY': so = sPW if c_ == 'W' else alt(sPW, 128, c_ == 'Y'); xs += [pf(vPW, sW, so, 128 * (k + int(n)), 9, '', 'm' if c_ == 'Y' else 'c') for k in (0, 5, 9, 14)]
            elif c_ in 'PQ': so = alt(sPW, 1152, c_ == 'Q'); xs += [pf(vPW, sW, so, 128 * (k + int(n)), 9, '', 'm' if c_ == 'Q' else 'c') for k in (0, 5)]
            elif c_ == 'D' and n in 'cd': so = alt(sPD, 512, False); xs += [pf(vP9, sD, so, 128 * k, 9) for k in ((0, 1) if n == 'c' else (2, 3))]
            elif c_ == 'D' and n in 'ab': so = alt(sPD, 512, n == 'b'); xs += [pf(vP9, sD, so, 128 * k, 9, '', 'm' if n == 'b' else 'c') for k in range(4)]
            elif c_ == 'D': xs += [pf(vP9, sD, sPD, 128 * k, 9) for k in {'l': range(4), 'h': range(4, 8), '8': [8]}[n]]
            elif c_ == 'K': t = a_.v('v_lshlrev_b32', 3, l16); xs += [pf(t, sK, 0, 0, 2.25)]
            elif c_ == 'H':
                assert not LOC & 2; e = sc.barafter(G(g) - 8); assert bar[e] < G(g), (bar[e], g); sc.xvm[e].append('H0' if n == '8' else 'H' + n); warm[n] = bar[e]
                t = a_.v('v_and_b32', 1, q); t = a_.v('v_mul_u32_u24', 144 * 2048, t); t = a_.v('v_lshl_add_u32', col, 7, t); t2 = a_.v('v_lshrrev_b32', 9, l16)
                if n == '8': t3 = a_.v('v_and_b32', 8, col); t2 = a_.v('v_add_u32', t2, t3); so = a_.s('s_lshl_b32', fw, 10); so = a_.s('s_sub_u32', Hs, so)
                else: so = a_.s('s_add_u32', Hs, int(n) * 4096 - 16384)
                t = a_.v('v_lshl_add_u32', t2, 27, t); xs += [pf(t, sS, so, 0, 16 if n == '8' else 32, ' sc1', 'm')]
            elif c_ == 'L':
                t0 = a_.s('s_lshl1_add_u32', n2, fw); t1 = a_.s('s_lshr_b32', t0, 5); t0 = a_.s('s_and_b32', t0, 31); t2 = a_.s('s_and_b32', t1, 1); t0 = a_.s('s_lshl3_add_u32', t2, t0)
                t1 = a_.s('s_lshl2_add_u32', jg, t1); t1 = a_.s('s_mul_i32', t1, 72); t0 = a_.s('s_add_u32', t0, t1); t0 = a_.s('s_add_u32', t0, 32); so = a_.s('s_mul_i32', t0, 4608)
                t = a_.v('v_min_u32', 35 * 16, l16); t = a_.v('v_lshlrev_b32', 3, t); xs += [pf(t, sD, so, 0, 36, '', n)]
            elif c_ == 'T':
                t = a_.v('v_lshlrev_b32', 24, l16); tl = []
                if n in 'as':
                    t0 = a_.s('s_mul_i32', mw, 144); t1 = a_.s('s_mul_i32', j, 9); t0 = a_.s('s_add_u32', t0, t1); t0 = a_.s('s_lshl_b32', t0, 11); tl.append((sS, a_.s('s_add_u32', t0, H_OFF)))
                    t0 = a_.s('s_lshl4_add_u32', mw, j); t0 = a_.s('s_lshl_b32', t0, 12); tl.append((sS, a_.s('s_add_u32', t0, HF_OFF)))
                    tl += [(sS, Pp[0]), (sS, Pp[2]), (sS, Pb)]
                if n in 'ai':
                    t0 = a_.s('s_lshl2_add_u32', jg, w); tl += [(sD, a_.s('s_mul_i32', t0, 288 * 1152)), (sC, 0), (sK, 0), (sO, a_.s('s_mul_i32', mw, 32 * 2304))]
                xs += [pf(t, r, so, 0, 1) for r, so in tl]
            elif n in 'ab': xs += [pf(vP9, sC, alt(sPC2, 128, n == 'b'), 0, 9, '', 'm' if n == 'b' else 'c')]
            elif n == '8': xs += [pf(vP9, sC, sPC, 1024, 9, '', 'm')]
            elif n == 't':
                t0 = a_.s('s_and_b32', wid, 7); t0 = a_.s('s_mul_i32', t0, 1152); t0 = a_.s('s_add_u32', t0, sPC); t = a_.v('v_min_u32', 1152, vP9); xs += [pf(t, sC, t0, 1024, 2)]
            else: xs += [pf(vP9, sC, sPC2, 0, 9), pf(vP9, sC, sPC2, 128, 9), pf(vP9, sC, sPC, 1024, 9)][:3 if n == '0' else 2]
            if low:
                for x in xs[n0:]: x.mods += o.get('pm', ' nt'); x.mc = (x.mc[0], o.get('lc', x.mc[1]))
        g = G(g) if g > 100 else g
        if a_: a_[0].ready = g - 20; pfl.append((g - .5, list(a_)))
        pfs(xs, g)
    for g in o.get('pcode', []):
        a_ = Q(); t0 = a_.s('s_lshl_b32', wid, 4); t0 = a_.s('s_and_b32', t0, 31 * 128); t1 = a_.s('s_lshl_b32', w, 18); t0 = a_.s('s_add_u32', t0, t1)
        t = a_.v('v_lshl_add_u32', l16, 8, t0); a_[0].ready = G(g) - 10; x = pf(t, sI, 0, 0, 3.5, c='m'); x.need = -9; x.back = 1e9; x.chain = 1; pfl.append((G(g), list(a_) + [x]))
    for g, xs in sorted(pfl, key=lambda x: x[0]): qp.extend(xs)
    qp.append(KEEP(pfd)); qp[-1].ready = max([gC] + o.get('pcode', []) + [g for g, _ in plan]) + 100
    W.queue(qp, 48, 'pf')
    RS = 7 if o.get('k', 0) & 32 else 6
    qi = Q(); eI = o['eI']; sc.xvm[eI].append('init')
    t0 = qi.s('s_lshl1_add_u32', mt, tw); t0 = qi.s('s_sub_u32', 31, t0); t1 = qi.s('s_lshl_b32', Gn, 5); t0 = qi.s('s_add_u32', t0, t1); a0 = qi.s('s_lshl_b32', t0, 7, name='a0')
    t0 = qi.s('s_lshl1_add_u32', mt, je); t0 = qi.s('s_sub_u32', 31 + (AR_OFF >> RS), t0); t1 = qi.s('s_lshl1_add_u32', jg, Tr); t1 = qi.s('s_lshl_b32', t1, 5); t0 = qi.s('s_add_u32', t0, t1)
    a2 = qi.s('s_lshl_b32', t0, RS, name='a2')
    FS = o.get('fs', 2)
    if FS > 2: t0 = qi.s('s_and_b32', mt, 4); t1 = qi.s('s_and_b32', mt, 7); t0 = qi.s('s_add_u32', t0, t1); t0 = qi.s('s_lshl_b32', t0, 11)
    elif o.get('f1l'): assert LOC & 1; t0 = qi.s('s_and_b32', mt, 7); t0 = qi.s('s_lshl_b32', t0, 10)
    else: t0 = qi.s('s_lshl_b32', mt, 7)
    def own(q, x): t = q.s('s_lshl_b32', jg, 7); return q.s('s_add_u32', t, x)
    if LOC & 1: t0 = qi.s('s_add_u32', t0, mlS(qi)[1])
    Fr = qi.s('s_add_u32', t0, FL_OFF, name='Fr'); t0 = qi.s('s_lshl_b32', j, FS); Fl = qi.s('s_add_u32', t0, Fr, name='Fl')
    mm = V(4, 'mm'); vA8 = qi.v('v_lshlrev_b32', 3, col, name='vA8'); vBp = qi.v('v_lshlrev_b32', 2, col, name='vBp'); zz = qi.v('v_mov_b32', 0)
    for e in range(4): qi('v_mov_b32', mm[e], -1)
    qi[0].ready = o['sentg'] - 30
    xs = [mc(I('buffer_store_dwordx4', mm, l16, sS, Pp[n >> 1], mods=f'offen offset:{2048 + (n & 1) * 1024} sc1'), 8, 's') for n in range(6)]
    xs = xs[:o.get('ns', 6)]
    if o.get('sl'):
        qn = Q(); sc.xvm[e3].append('mark')
        for g, k in o['sl']:
            m2 = V(4, 'm2')
            for e in range(4): qn('v_mov_b32', m2[e], -1)
            qn[-4].ready = g - 4
            for _ in range(k):
                x = xs.pop(0); x.ops[0] = ref(m2); x.tag = 'mark'; mc(x, 8, 's', soft=1, need=0, chain=1, back=o.get('slb', 300)); qn.append(x)
        W.queue(qn, 44, 'mark')
    K = o.get('k', 0)
    def only(q, c, x): t = q.s('s_min_u32', c, 1); t = q.s('s_lshl_b32', t, 28); return q.s('s_add_u32', t, x)
    if K & 1:
        t = qi.v('v_lshrrev_b32', 7, l16); t8 = qi.v('v_lshl_add_u32', t, 28, l16); t = qi.v('v_lshrrev_b32', 6, l16); t4 = qi.v('v_lshl_add_u32', t, 27, l16)
        xs[1:1] = [mc(I('buffer_store_dwordx4', mm, t8, sS, a0, mods='offen sc1'), 1, 's'), mc(I('buffer_store_dwordx4', mm, t8 if K & 32 else t4, sS, only(qi, w, a2), mods='offen sc1'), .25, 's'),
                   mc(I('buffer_store_dwordx4', mm, t8 if K & 16 else t4, sS, only(qi, qi.s('s_or_b32', j, w), Fr), mods='offen sc1'), .25, 's')]
    else: xs[1:1] = [mc(I('buffer_store_dwordx2', mm[0:2], vA8, sS, a0, mods='offen sc1'), 1, 's'), mc(I('buffer_store_dword', mm[0], vBp, sS, a2, mods='offen sc1'), 1, 's'),
               mc(I('buffer_store_dword', zz, vM0, sS, Fl, mods='offen sc1'), .25, 's')] + \
              ([mc(I('buffer_store_dword', zz, vM0, sS, own(qi, Fl), mods='offen offset:128 sc1'), .25, 's')] if o.get('f1l') else [])
    for x in xs: x.tag = 'init'; x.soft = 1; x.ready = o['sentg']; x.need = o.get('sentn', bar[eI] - 100)
    qi.extend(xs); qi[-1].dead = bar[eI] - 30; sentl = qi[-1]
    o1 = qi.v('v_mov_b32', 1); t0 = qi.s('s_and_b32', wid, 1); t0 = qi.s('s_lshl_b32', t0, 7)
    mc(qi('buffer_atomic_add', o1, vM0, sG, t0, mods='offen sc1'), .25, 's', ready=bar[eI] + 1, soft=1, need=0)
    W.queue(qi, 12, 'init')
    m = Q(); stubs = []
    def verify(name, loads, check, dep, q):
        c = check()
        if dep: c[0].deps = [dep]
        br = I('s_cbranch_vccnz', f'L_r{name}'); br.deps = [(c[-1], 1)]
        keep = {r.vr.id: r.vr for x in loads() + check() for r in x.refs(x.u + x.d)}
        q.extend(c); q.extend([br, LABEL(f'L_b{name}'), KEEP(rc, *keep.values())])
        if st.on and o.get('bst') and name in ('c', 'a', 'f1', 'f2', 'f3'): q('v_writelane_b32', st.v, rc, 10 + ('c', 'a', 'f1', 'f2', 'f3').index(name))
        stubs.append((name, loads, check)); return br
    m.extend(cst)
    def pick(x):
        a = m.v('v_cndmask_b32', x[0], x[1], kb0); b = m.v('v_cndmask_b32', x[2], x[3], kb0); return m.v('v_cndmask_b32', a, b, kb1)
    def rbf(x): t = m.v('v_cvt_pk_bf16_f32', x, x); return m.v('v_and_b32', 0xffff0000, t)
    nm = pick(nmean); qq = pick(qsum)
    t = m.v('v_mul_f32', nm, nm); c_ = m.v('v_mov_b32', 1.0 / 576); var = m.v('v_fma_f32', qq, c_, Neg(t)); var = m.v('v_max_f32', 0, var)
    nm = rbf(nm); var = rbf(var); var = rbf(m.v('v_add_f32', 1e-5, var)); t = m.v('v_sqrt_f32', var)
    g_ = m.v('v_bfe_u32', l16, 4, 2); g_ = m.v('v_xor_b32', jq, g_)
    sd = rbf(t); rr = m.v('v_rcp_f32', sd)
    t = m.v('v_and_b32', 1, g_); t = m.v('v_lshl_add_u32', t, 5, tokl); t2 = m.v('v_and_b32', 2, g_); t = m.v('v_lshl_add_u32', t2, 1, t)
    t = m.v('v_add_lshl_u32', tk0, t, 2); t2 = m.v('v_add_u32', STM - STR, t)
    m('ds_write_b32', t, rr, mods=f'offset:{STR}', tag='stat'); m('ds_write_b32', t2, nm, mods=f'offset:{STR}', tag='stat')
    eS = 6; m[-1].dead = bar[eS] - 4; sc.xlg[eS].append('stat')
    n0 = len(m)
    t0 = m.s('s_lshl_b32', tw, 8); vRr = m.v('v_lshl_add_u32', q, 6, t0)
    t0 = m.s('s_lshl4_add_u32', je, w); t0 = m.s('s_lshl_b32', t0, 4); vRm = m.v('v_lshl_add_u32', q, 6, t0)
    vK = m.v('v_lshl_add_u32', col, 3, sQ, name='vK')
    vRg = [m.v('v_add_u32', RGO + 2 * QS * k, l16) for k in range(2)]
    m[n0].ready = gA - 40; assert bar[eS] < gA - 40
    rq = [V(4, f'rq{k}') for k in range(5)]
    for k in range(4): m('ds_read_b128', rq[k], vRr, mods=f'offset:{STR + 16 * k}')
    m('ds_read_b128', rq[4], vRm, mods=f'offset:{STR}')
    def getc(u, nm_):
        r = V(2, f'{nm_}{u}'); m('ds_read_b64', r, vK, mods=f'offset:{CST + 512 * CI[nm_] + 128 * u}'); return r
    l1 = [getc(u, 'l1') for u in range(3)]
    n0 = len(m)
    for e in range(4): m('v_mul_f32', accm[e], accm[e], rq[4][e])
    m[n0].ready = gA - 5
    eR = sc.barafter(gA + 10)
    m('ds_write_b128', vQ, accm, mods=f'offset:{RGO}', tag='rg'); m[-1].dead = bar[eR] - 4; sc.xlg[eR].append('rg')
    for u in range(2):
        for tt in range(4):
            for e in range(4): m('v_mul_f32', accb[u][tt][e], accb[u][tt][e], rq[tt][e])
    um = [V(4, f'um{tt}') for tt in range(4)]
    n0 = len(m)
    for tt in range(4): m('ds_read_b128', um[tt], vRg[tt >> 1], mods=f'offset:{(tt & 1) * QS}')
    m[n0].ready = bar[eR] + 1; lr = m[-1]
    U = [accb[0], accb[1], um]
    cf = [getc(u, 'cf') for u in range(3)]; l16c = [getc(u, 'l16') for u in range(3)]
    def horner(z, c, u, neg=False):
        d = V(1); return d, [I('v_fma_f32', d, c[0], z, u), I('v_fmac_f32_dpp', d, z, Neg(c[1]) if neg else c[1], mods=DPP8)]
    def coef(d, u, x): return [I('v_mul_f32', d, cf[u][0], x), I('v_fmac_f32_dpp', d, x, cf[u][1], mods=DPP8)]
    ch = []; ee = []
    for u in range(3):
        z = U[u][0][0]; c = []
        for k in range(1, 16):
            z, ins = horner(z, l1[u], U[u][k >> 2][k & 3], True); c += ins
        d = V(1); c += coef(d, u, z)
        ch.append(c); ee.append(d)
    c = inter(ch); c[0].deps = [(lr, 5)]; m.extend(c[:-40])
    vCn = m.v('v_lshlrev_b32', 3, l16); vCn = m.v('v_and_b32', 128, vCn, name='vCn'); cn = V(1, 'cn')
    cnl = lambda: [mc(I('buffer_load_dword', cn, vCn, sG, 0, mods='offen sc1'), 2, 'm', need=0, soft=1, back=2000)]
    cnc = lambda: [I('v_cmp_gt_u32', 'vcc', 128, cn)]
    m.extend(c[-40:])
    eb = [V(4, f'eb{u}') for u in range(3)]
    for u in range(3):
        for k in range(4): m('ds_bpermute_b32', eb[u][k], vBp, ee[u], mods=f'offset:{64*k}')
    lastbp = m[-1]
    ch = []; z01 = V(2, 'z01'); z2 = V(1, 'z2')
    for u in range(3):
        z = eb[u][0]; c = []
        for k in range(1, 4):
            z, ins = horner(z, l16c[u], eb[u][k]); c += ins
        c.append(I('v_min_u32', z01[u] if u < 2 else z2, -2, z))
        ch.append(c)
    c = inter(ch); c[0].deps = [(lastbp, 5)]; m.extend(c)
    tA, tB, a2m = (m.v('v_lshl_add_u32', q, 28, vA8), m.v('v_lshl_add_u32', q, 28, vBp), only(m, w, a2)) if K & 2 else (vA8, vBp, a2)
    mc(m('buffer_store_dwordx2', z01, tA, sS, a0, mods='offen sc1'), 1, 's', need=0, soft=1, back=2000)
    agst = mc(m('buffer_store_dword', z2, tB, sS, a2m, mods='offen sc1'), 1, 's', need=0, soft=1, back=2000)
    Z = [[V(4, f'z{u}_{tt}') for tt in range(4)] for u in range(3)]
    zc = [inter([coef(Z[u][tt][e], u, U[u][tt][e]) for e in range(4)]) for u in range(3) for tt in range(4)]
    ldc = cnl(); ldc[0].ready = G(o['cng']); m.extend(ldc)
    for x in zc[:o.get('zc', 8)]: m.extend(x)
    vAl = m.v('v_lshl_add_u32', q, 10, vA8, name='vAl'); vAr = m.v('v_lshl_add_u32', q, RS + 3, vBp, name='vAr')
    sA = SR(4, 'A'); sR = SR(4, 'R')
    for r, a_, k in ((sA, a0, 4095), (sR, a2, (32 << RS) - 1)):
        m('s_mov_b64', r[0:2], sS[0:2]); t0 = m.s('s_or_b32', a_, k); m('s_add_u32', r[2], t0, 1); m('s_mov_b32', r[3], 0x20000)
    brc = verify('c', cnl, cnc, (ldc[0], 50), m)
    ag2 = [V(2, f'ag{k}') for k in range(8)]; ag1 = [V(1, f'ar{k}') for k in range(8)]; mx = V(1, 'mx')
    ag = [[ag2[7 - k][0] for k in range(8)], [ag2[7 - k][1] for k in range(8)], ag1[::-1]]
    agl = lambda: inter([[mc(I('buffer_load_dwordx2', ag2[k], vAl, sA, a0, mods=f'offen offset:{128*k+128} sc1'), 3, 'q', need=0, soft=1) for k in range(8)],
                         [mc(I('buffer_load_dword', ag1[k], vAr, sR, a2, mods=f'offen offset:{k + 1 << RS} sc1'), 3, 'q', need=0, soft=1) for k in range(8)]])
    def agc():
        al = [ag[u][k] for k in range(7, -1, -1) for u in range(3)]
        r = [I('v_max3_u32', mx, al[0], al[1], al[2])]
        for k in range(3, 23, 2): r.append(I('v_max3_u32', mx, mx, al[k], al[k + 1]))
        return r + [I('v_max_u32', mx, mx, al[23]), I('v_cmp_eq_u32', 'vcc', -1, mx)]
    lda = agl(); lda[0].ready = G(o['agld']); zr = sum(zc[o.get('zc', 8):], [])
    for k, x in enumerate(lda): m.append(x); m.extend(zr[2 * k:2 * k + 2])
    m.extend(zr[32:])
    l64 = [getc(u, 'l64') for u in range(3)]
    bra = verify('a', agl, agc, (lda[-1], o['aglat']), m)
    ch = []; sq_ = []
    for u in range(3):
        z = ag[u][0]; c = []
        for k in range(1, 8):
            z, ins = horner(z, l64[u], ag[u][k]); c += ins
        ch.append(c); sq_.append(z)
    m.extend(inter(ch))
    l512 = [getc(u, 'l512') for u in range(3)]; l16c = [getc(u, 'l16') for u in range(3)]; l1 = [getc(u, 'l1') for u in range(3)]
    sb_ = [V(4, f'sb{u}') for u in range(3)]
    for u in range(3):
        for k in range(4): m('ds_bpermute_b32', sb_[u][k], vBp, sq_[u], mods=f'offset:{64*k}')
    lastbp = m[-1]
    kq = [SR(2, f'kq{k}') for k in range(3)]
    for k in range(3): m('v_cmp_lt_u32', kq[k], k, q)
    t = m.v('v_mul_u32_u24', 144, col); t = m.v('v_lshl_add_u32', q, 5, t); vHw = m.v('v_add_u32', sQ, t)
    t = m.v('v_lshrrev_b32', 6, l16); t = m.v('v_mul_u32_u24', 144, t); t2 = m.v('v_and_b32', 3, col); t = m.v('v_lshl_add_u32', t2, 5, t)
    vHr = m.v('v_add_u32', sQ, t); t0 = m.s('s_lshl_b32', w, 3); vHm = m.v('v_add_u32', t0, vHr)
    zs = lambda u, k: Z[u][k >> 2][k & 3]
    ch = []; pk = [[V(4), V(4)] for u in range(3)]
    for u in range(3):
        z = sb_[u][3]; c = []
        for k in (2, 1, 0):
            z, ins = horner(z, l512[u], sb_[u][k]); c += ins
        for k in range(3):
            z2, ins = horner(z, l16c[u], eb[u][k]); c += ins
            z3 = V(1); c.append(I('v_cndmask_b32', z3, z, z2, kq[k])); z = z3
        for k in range(16):
            c += [I('v_fmac_f32', zs(u, k), l1[u][0], z), I('v_fmac_f32_dpp', zs(u, k), z, l1[u][1], mods=DPP8)]; z = zs(u, k)
            if k == 9 or k == 15:
                h = k // 10
                for e in range(4): c.append(I('v_cvt_pk_bf16_f32', pk[u][h][e], zs(u, 8*h + 2*e), zs(u, 8*h + 2*e + 1)))
        ch.append(c)
    c = inter(ch); c[0].deps = [(lastbp, 5)]; m.extend(c)
    hf = [V(4, f'hf{tt}') for tt in range(4)]; hm4 = V(4 if K & 8 else 2, 'hm'); hm = hm4[0:2]
    for u in range(3):
        for h in range(2): m('ds_write_b128', vHw, pk[u][h], mods=f'offset:{MISC + 16*h}')
        if u < 2:
            for tt in range(4): m('ds_read_b64_tr_b16', hf[tt][2*u:2*u+2], vHr, mods=f'offset:{MISC + 8*tt}')
        else: m('ds_read_b64_tr_b16', hm, vHm, mods=f'offset:{MISC}')
    lastrd = m[-1]
    if LOC & 4:
        ml, S = mlS(m); t0 = m.s('s_lshl1_add_u32', ml, tw); t1 = m.s('s_and_b32', Gn, 28); t1 = m.s('s_add_u32', t1, Gn); t0 = m.s('s_lshl_b32', t0, 7); t0 = m.s('s_add_u32', t0, t1)
        t0 = m.s('s_lshl_b32', t0, 11); t0 = fix(m, m.s('s_add_u32', t0, S)); hs_ = [m.s('s_add_u32', t0, 0x6000000 + k * 131072) for k in range(2)]
        t0 = m.s('s_lshl1_add_u32', ml, je); t0 = m.s('s_lshl1_add_u32', t0, tw); t0 = m.s('s_lshl3_add_u32', t0, jg)
    else:
        t0 = m.s('s_lshl1_add_u32', mt, tw); t0 = m.s('s_lshl_b32', t0, 6); t0 = m.s('s_add_u32', t0, Gn); t0 = m.s('s_lshl_b32', t0, 11)
        hs_ = [m.s('s_add_u32', t0, HF_OFF + k * 65536) for k in range(2)]
        t0 = m.s('s_lshl1_add_u32', mt, je); t0 = m.s('s_lshl1_add_u32', t0, tw); t0 = m.s('s_lshl2_add_u32', t0, jg)
    t0 = m.s('s_lshl1_add_u32', t0, fw); t0 = m.s('s_lshl_b32', t0, 10); t1 = m.s('s_lshl_b32', Tr, 9 if K & 12 else 3); t0 = m.s('s_add_u32', t1, t0); t0 = m.s('s_add_u32', t0, HR_OFF)
    if K & 12: l8w = m.v('v_lshrrev_b32', 1, l16)
    if K & 8: t = m.v('v_and_b32', 16, l16); l8w = m.v('v_lshl_add_u32', t, 24, l8w)
    if LOC & 4: t0 = m.s('s_add_u32', t0, S)
    n0 = len(m)
    for tt in range(4): mc(m('buffer_store_dwordx4', hf[tt], l16, sS, hs_[tt >> 1], mods=f'offen offset:{(tt & 1) * 1024} sc1', tag='hs'), 8, 's', need=0, soft=1, chain=o.get('hsc', 1))
    if K & 8:
        m[n0 + 1:n0 + 1] = [I('v_mov_b32_dpp', hm4[2 + e], hm4[e], mods='quad_perm:[1,1,3,3]' + DM) for e in range(2)]
        mc(m('buffer_store_dwordx4', hm4, l8w, sS, t0, mods='offen sc1', tag='hs'), 4, 's', need=0, soft=1, chain=o.get('hsc', 1))
    else: mc(m('buffer_store_dwordx2', hm, l8w if K & 4 else l16, sS, t0, mods='offen sc1', tag='hs'), 4 if K & 4 else 8, 's', need=0, soft=1, chain=o.get('hsc', 1))
    m[n0].deps = [(lastrd, 5)]; hsl = m[-1]; hsl.dead = bar[e1] - 30
    W.queue(m, 10, 'scan')
    qf = Q(); fl = V(1, 'fl'); kg = SR(2, 'kg')
    vF = [vBp]
    fll = lambda: [mc(I('buffer_load_dword', fl, vF[0], sS, Fr, mods='offen sc1'), 1, 'm', need=0, soft=1, back=2000)]
    t0 = qf.s('s_lshl_b32', jg, 2); qf('s_lshl_b32', kg[0], 15, t0); qf('s_mov_b32', kg[1], 0); qf[0].ready = bar[e1] - 20
    pb = {}; br = {}
    for n, e in ((1, e1), (2, e2), (3, e3)):
        t = qf.v('v_mov_b32', n); qf[-1].ready = bar[e] - 6
        a, b, of = (own(qf, Fl), own(qf, Fr), 128) if n == 1 and o.get('f1l') else (Fl, Fr, 0)
        pb[n] = mc(qf('buffer_store_dword', t, vM0, sS, a, mods=f'offen offset:{of} sc1'), .25, 's', need=0, soft=1, back=2000, ready=bar[e] + 1)
        fll = lambda b=b, of=of: [mc(I('buffer_load_dword', fl, vBp, sS, b, mods=f'offen offset:{of} sc1'), 1, 'm', need=0, soft=1, back=2000)]
        if n == 2 and o.get('f2b', 1) == 2:
            t0 = qf.s('s_lshl_b32', 0x1111, jq); qf('s_or_b32', kg[0], kg[0], t0)
        if FS > 2:
            assert LOC & 1 and o.get('f2b') == 2
            t = qf.v('v_lshlrev_b32', FS, col)
            if n < 3: t = qf.v('v_cndmask_b32', -16, t, kg)
            fll = lambda t=t: [mc(I('buffer_load_dword', fl, t, sS, Fr, mods='offen sc1'), 1, 'm', need=0, soft=1, back=2000)]
        ld = fll(); ld[0].deps = [(pb[n], o.get(f'chk{n}', o['chk']))]; qf.extend(ld)
        if n == 2 and o.get('f2b', 1) == 2: ld[0].ready = gP + o.get('f2g', -60)
        br[n] = verify(f'f{n}', fll, lambda n=n: [I('v_cmp_gt_i32', 'vcc', n, fl)] + ([I('s_nop', 3), I('s_and_b64', 'vcc', 'vcc', kg)] if n < 3 else []), (ld[0], o.get(f'lat1{n}', o['lat1'])), qf)
        if n == 2 and o.get('f2b', 1) == 2: br[4] = br[2]
        elif n == 2 and o.get('f2b', 1):
            qf('s_lshl_b32', kg[0], 0x1111, jq); ld = fll(); ld[0].ready = gP + o.get('f2g', -60); qf.extend(ld)
            br[4] = verify('f4', fll, lambda: [I('v_cmp_gt_i32', 'vcc', 2, fl), I('s_nop', 3), I('s_and_b64', 'vcc', 'vcc', kg)], (ld[0], 45), qf)
    W.queue(qf, 49, 'flag')
    qa = Q(); qb = Q(); qx = P(); nld = [0]
    def gld(q, d, so, off, use, c):
        x = mc(q('buffer_load_dwordx4', d, l16, sS, so, mods=f'offen offset:{off} sc1' + NT(64 if c == 'h' else 0)), 8, c, dead=use - o.get('gdead', 40), need=use - o.get('gneed', 45), soft=1)
        if ref(d).vr.cls == 'a' and nld[0] < o['xa']:
            x.ready = gI[3] + 16 * max(nld[0] // 4 + 1, E) + 2; nld[0] += 1
        elif ref(d).vr.cls == 'v': x.ready = gC + o.get('vld', 30)
        else: x.ready = g2
        return x
    def Hld(q, x, kls, after=None, dep=None, need=None):
        for kl in kls:
            if kl & 1 == 0:
                so = q.s('s_xor_b32', Hp[x], (0, 4096, 16384, 20480, 0x202000)[kl >> 1]) if LOC & 2 else q.s('s_add_u32', Hp[x], kl * 2048)
                if kl == kls[0]:
                    q[-1].deps = [(sdone, 1)] + ([(dep, 1)] if dep else [])
                    if after is not None: q[-1].ready = bar[after] + 1
            r = [gld(q, Hq[x][kl][a], so, (kl & 1) * 2048 + a * 1024, useH[(x, kl)], 'h' if x or str(kl if kl == 8 else kl >> 1) in warm else 'm') for a in range(2)]
            if need is not None:
                for y in r: y.need = need
            if kl == 8:
                for e in range(2): qx('v_swap_b32', Hh[x][2 + e], Hh[x][4 + e])
                qx[-2].deps = [(r[1], 35)]; qx[-1].dead = useH[(x, kl)] - 3
    if LOC & 4:
        ml, S = mlS(qa); t2 = qa.s('s_lshl2_add_u32', ml, w); t0 = qa.s('s_lshl2_add_u32', t2, jg); t0 = qa.s('s_lshl1_add_u32', t0, Tr); t0 = qa.s('s_lshl2_add_u32', t0, je); t0 = qa.s('s_lshl_b32', t0, 12)
        t0 = fix(qa, qa.s('s_add_u32', t0, S)); h0 = qa.s('s_add_u32', t0, 0x6000000, name='h0'); t0 = qa.s('s_lshl3_add_u32', t2, jg); t0 = qa.s('s_lshl_b32', t0, 11); t0 = qa.s('s_add_u32', t0, S)
    else:
        t0 = qa.s('s_lshl2_add_u32', mw, jg); t1 = qa.s('s_lshl2_add_u32', t0, jq); t1 = qa.s('s_lshl_b32', t1, 12); h0 = qa.s('s_add_u32', t1, HF_OFF, name='h0'); t0 = qa.s('s_lshl_b32', t0, 11)
    h8 = qa.s('s_add_u32', t0, HR_OFF, name='h8'); qa[0].ready = bar[e1] - 10; qa[-1].ready = bar[e1] + 1; hdone = qa[-1]
    for k in range(2):
        for a in range(2): gld(qa, hq[k][a], h0, k * 2048 + a * 1024, gC + 10, 'm').need = 0
    Hld(qa, 0, (0, 1, 2, 3), need=1)
    for k in ((8, 2, 3, 4, 5, 6, 7) if o.get('k8') else range(2, 9)):
        if k % 2 == 0 and k < 8: so = qb.s('s_xor_b32', h0, (0, 4096, 16384, 20480)[k >> 1] if LOC & 4 else k * 2048)
        if k == 8 and K & 12: l8r = qb.v('v_lshrrev_b32', 1, l16)
        qb[0].deps = [(br[1], 1), (hdone, 1)]
        for a in range(2):
            hl = gld(qb, hq[k][a], so if k < 8 else h8, (k & 1) * 2048 + a * 1024, gC + 10, 'h' if k < 8 else 'q')
            if k == 8 and K & 12:
                qb.pop(); x = hl
                for h in range(2): hl = mc(qb('buffer_load_dwordx2', hq[k][a][2*h:2*h+2], l8r, sS, h8, mods=f'offen offset:{a * 1024 + h * 512} sc1'), 4, 'q', dead=x.dead, need=x.need, soft=1, ready=x.ready)
    Hld(qa, 0, (4, 5), after=eh, need=gC - 20)
    Hld(qb, 1, (0, 1, 2, 3)); Hld(qb, 2, (0, 1, 2, 3))
    Hld(qa, 0, (8,), need=gC); Hld(qa, 0, (6, 7), after=e2, need=2)
    q8 = Q(); Hld(q8, 1, (8,), dep=br[1]); Hld(q8, 2, (8,)); Hld(q8, 3, (8,)); Hld(qb, 3, (0, 1, 2, 3))
    for x in (1, 2, 3): Hld(qb, x, (4, 5, 6, 7), dep=br[2])
    W.queue(qx, 20, 'swap'); W.queue(qa, 30, 'own'); W.queue(qb, 29, 'par'); W.queue(q8, 28, 'p8')
    z = Q(); y = Q()
    t = z.v('v_mul_u32_u24', SRC, q); vPl = z.v('v_lshl_add_u32', col, 4, t, name='vPl');
    if LOC & 24: ml, S = mlS(z)
    t0 = z.s('s_lshl2_add_u32', ml if LOC & 8 else mt, jq); t0 = z.s('s_lshl2_add_u32', t0, jg); t2 = z.s('s_lshl2_add_u32', t0, w); t2 = z.s('s_mul_i32', t2, 32768 if LOC & 8 else PW)
    if LOC & 8: t2 = fix(z, z.s('s_add_u32', t2, S))
    Pd = [z.s('s_add_u32', t2, PXo[r] if LOC & 8 else PX_OFF + 4096 * r) for r in range(3)]
    if LOC & 24 in (8, 16): t0 = z.s('s_lshl2_add_u32', ml if LOC & 16 else mt, jq); t0 = z.s('s_lshl2_add_u32', t0, jg)
    t0 = z.s('s_mul_i32', t0, FIN); t1 = z.s('s_lshl_b32', w, 8); t0 = z.s('s_add_u32', t0, t1)
    if LOC & 16: t0 = fix(z, z.s('s_add_u32', t0, S))
    Pc = [z.s('s_add_u32', t0, (0x6800000 if LOC & 16 else P8_OFF) + 1024 * k) for k in range(2)]
    tb, kc, k8, x8, xc, c3, ae, q1, c4, vx, vx8 = xadr(z, not XS); vk = z.v('v_lshlrev_b32', 1, col); zdone = z[-1]
    kv = [V(1, f'kv{n}') for n in range(3)]; fl_ = dict(soft=1, chain=o.get('prc', 1))
    z[0].ready = gP + o.get('zb', -60) - 30; zl = []
    for n in range(3): mc(z('buffer_load_ushort', kv[n], vk, sK, kc if n < 2 else k8, mods=f'offen offset:{32 * (n & 1)}'), 1, 'm', need=0, **fl_)
    for n in range(0 if XS else 3): zl.append(mc(z('buffer_load_dwordx4', xv[n], vx if n < 2 else vx8, sX, xc[n] if n < 2 else x8, mods='offen'), 16 if n < 2 else 8, 'm', deps=[]))
    def lps():
        for r in range(3):
            for i in range(2): zl.append(mc(z('buffer_load_dwordx4', ps[r][i], l16, sS, Pd[r], mods=f'offen offset:{i * 1024} sc1' + NT(256)), 8, 'm', dead=gS - 40, deps=[(br.get(4, br[3]), 1)]))
    if 4 in br: lps()
    for b in (1, 2, 3, 4, 0): zl.append(mc(z('buffer_load_dwordx4', pr[b], vPl, sS, Pc[b > 0], mods=f'offen offset:{max(b - 1, 0) * 1024} sc1' + NT(256)), 8, 'm', dead=gX - 40, deps=[(br[3], 1)]))
    if 4 not in br: lps()
    for k, x in enumerate(zl):
        mc(x, *x.mc, need=0, back=o.get('zback', 2000), **fl_)
        if k: x.deps.append((zl[k - 1], o.get('zsp', 20)))
    pl8 = zl[-1]
    pld = lambda r: [mc(I('buffer_load_dwordx4', pd[r][i], l16, sS, Pd[r], mods=f'offen offset:{2048 + i * 1024} sc1'), 8, 'm', need=0, back=2000, **fl_) for i in range(2)]
    mxd = V(1, 'mxd')
    def pck(r):
        a, b = pd[r]
        return [I('v_max3_u32', mxd, a[0], a[1], a[2]), I('v_max3_u32', mxd, mxd, a[3], b[0]), I('v_max3_u32', mxd, mxd, b[1], b[2]), I('v_max_u32', mxd, mxd, b[3]), I('v_cmp_eq_u32', 'vcc', -1, mxd)]
    qd = Q(); ldd = []
    for r in range(3):
        ldd.append(pld(r)); ldd[r][0].deps = [(dst_[2 * r + 1], o.get(f'dl{r}', o.get('dl', 36))), (zdone, 1)]; ldd[r][1].dead = gE - 1
        z.extend(ldd[r])
        if r < 2: verify(f'd{r}', lambda r=r: pld(r), lambda r=r: pck(r), (ldd[r][1], 30), qd); qd[-1].dead = gD - 2
    t = y.v('v_and_b32', 16, l16); c_ = y.v('v_mov_b32', 0x3f80); one = y.v('v_lshlrev_b32', t, c_); y[0].deps = [(zdone, 1)]; y[0].ready = g3 - o.get('ybeg', 60)
    def onehot(idx, rs):
        ks = [SR(2) for _ in rs]
        for k in range(len(rs) + 2):
            if k < len(rs): y('v_cmp_eq_u32', ks[k], k, idx)
            if k >= 2: y('v_cndmask_b32', rs[k - 2], 0, one, ks[k - 2])
    t = y.v('v_lshrrev_b32', 1, ae); t2 = y.v('v_and_b32', 4, col); t = y.v('v_add_u32', t2, t); onehot(t, [sel[k] for k in range(4)])
    t = y.v('v_lshrrev_b32', 3, col); t = y.v('v_xor_b32', t, q); t2 = y.v('v_bfe_u32', col, 1, 2); t3 = y.v('v_lshl_add_u32', t, 1, t2); t = y.v('v_and_b32', 1, t); t = y.v('v_lshl_add_u32', t, 4, t3)
    onehot(t, [idm[k >> 2][k & 3] for k in range(8)])
    t = y.v('v_xor_b32', c4, q); t2 = y.v('v_lshrrev_b32', 1, c3); t = y.v('v_lshl_add_u32', t, 1, t2)
    for k in (0, 1, 4, 5): y('v_mov_b32', sA_[k], 0)
    onehot(t, [sA_[2], sA_[3]]); y[-1].dead = gX - 3
    if XS:
        t = y.v('v_add_u32', sQ, l16)
        for n in range(3): y('ds_read_b128', xv[n], t, mods=f'offset:{uXs.addr + 1024 * n}')
        y[-1].dead = gX - 6
    hi_ = y.v('v_lshrrev_b32', 1, q); rr = [V(4, f'rr{n}') for n in range(3)]; nm = [V(4, f'nm{n}') for n in range(3)]
    t0 = y.s('s_lshl_b32', tb, 2); t8 = y.v('v_lshl_add_u32', hi_, 4, t0); t0 = y.s('s_lshl_b32', tk0, 2); t = y.v('v_lshl_add_u32', q, 6, t0)
    t9 = y.v('v_add_u32', STM - STR, t8); t2 = y.v('v_add_u32', STM - STR, t)
    for n in range(3): y('ds_read_b128', rr[n], t if n < 2 else t8, mods=f'offset:{STR + 16 * (n & 1)}'); y('ds_read_b128', nm[n], t2 if n < 2 else t9, mods=f'offset:{STR + 16 * (n & 1)}')
    lr = y[-1]
    t = y.v('v_bfe_u32', l16, 2, 7); t2 = y.v('v_mul_u32_u24', 4 * 2304, hi_); vo8 = y.v('v_add_u32', t, t2); vo8 = y.v('v_lshl_add_u32', q1, 30, vo8)
    vo = [y.v('v_lshl_add_u32', t2, 3, t)]; vo.append(y.v('v_add_u32', 16 * 2304, vo[0]))
    so = [[y.s('s_lshl_b32', x, 1), y.s('s_lshl1_add_u32', x, 4608)] for x in xc + [x8]]
    cl = y.s('s_mov_b32', int(np.float32(-LOG2E).view(np.uint32))); ce = [V(4, f'ce{n}') for n in range(3)]
    cl2 = V(2, 'cl2')
    if o.get('pk', 0): y('v_mov_b32', cl2[0], cl); y('v_mov_b32', cl2[1], cl)
    n0 = len(y)
    for n in range(3):
        for e in range(4): y('v_mul_f32', nm[n][e], nm[n][e], rr[n][e]); y('v_mul_f32', ce[n][e], cl, rr[n][e])
        for e in range(4): y('v_mul_f32', ce[n][e], ce[n][e], rr[n][e])
        y('v_lshlrev_b32', kv[n], 16, kv[n])
    y[n0].deps = [(lr, 4)]; y[n0 + 12].ready = gX - 30
    def skip(S, X, n, k):
        ch = []
        for e in range(4): t = V(1); ch.append([I('v_fma_f32', t, X[e], rr[n][e], nm[n][e]), I('v_fmac_f32', S[e], t, kv[k])])
        return inter(ch)
    def gate(d, S, X, n):
        ch = []
        for e in range(4):
            t = V(1); ch.append([I('v_mul_f32', d[e], ce[n][e], d[e]), I('v_exp_f32', t, d[e]), I('v_mul_f32', d[e], d[e], S[e]), I('v_fma_f32', t, t, cl, cl), I('v_rcp_f32', t, t), I('v_fmac_f32', X[e], d[e], t)])
        return ch
    ost = lambda r, v, n, e: mc(I('buffer_store_dword', r, v, sO, so[n][e >> 1], mods=f'offen offset:{2304 * (e & 1)}' + o['om']), 2, 's', need=0, soft=1, chain=1, back=2000)
    n0 = len(y)
    for i in range(2):
        for a in range(2): y.extend(skip(accs[6 + i][a], xf[i][a], a, i))
    y[n0].ready = gX + 10; y[-1].dead = gS - 2
    y.extend(skip(Y4, xf4, 2, 2)); y.extend(inter(gate(D4, Y4, xf4, 2))); y.extend([ost(xf4[e], vo8, 2, e) for e in range(o.get('n8', 4))])
    W.queue(z, 9, 'fin'); W.queue(y, 8, 'pre'); W.queue(qd, 41, 'chk')
    if not o.get('bst'):
        for k, g in enumerate([gA] + gI[1:] + [gC, g2, g3]): st.at(W, g, 10 + k)
    else:
        for e in range(1, len(bar)): st.at(W, bar[e] + 1, 21 + e + (e > 18))
        assert len(bar) < 40
        print("; BARS", bar[1:] + [gE])
    sc.emit(spacing, lambda g: o['softA'] if g < gA else o['soft'])
    p.extend(sc.bar0); p.extend(st.t(9))
    body = W.build()
    sc.report()
    for n, g in warm.items(): assert hlast[int(n)].gap < g
    print(f"; gaps A {gA} I {gI} C {gC} 2 {g2} P {gP} 3 {g3} E {gE} | sent {sentl.gap} eI {bar[eI]} agst {agst.gap} cbr {brc.gap} agld {lda[0].gap}-{lda[-1].gap} agbr {bra.gap} hs {hsl.gap} "
          f"pub {[pb[n].gap for n in pb]} chk {[br[n].gap for n in br]} hld {hl.gap} H {[hlast[k].gap for k in hlast]} eh {bar[eh]} sp {slast.gap} d8 {d8.gap} pl8 {pl8.gap} dp {[x.gap for x in dst_]} X {gX} S {gS} D {gD} ld {[x[1].gap for x in ldd]} y {y[-1].gap} qd {qd[-1].gap}")
    if o.get('vx'): print("; X", " ".join(f"{x.gap}{x.q[:2]}{mcls(x)[1]}" for x in body if x.kind == 'X'))
    pendv = None
    for x in body:
        if x.kind != 'P' and x.d and x.ops[0] == 'vcc': assert pendv in (None, x.q), (x.op, x.gap); pendv = x.q
        if x.op == 's_cbranch_vccnz': pendv = None
    p.extend(body)
    p.extend(st.t(17))
    verify('d2', lambda: pld(2), lambda: pck(2) + [I('s_nop', 0)], None, p)
    p.extend(st.t(18))
    r = addp(accd, pd[2]); p.extend([r[0], r[2], r[1], r[3]])
    if o.get('pk', 0):
        def stage(a, h):
            sl = slice(2 * h, 2 * h + 2); T = [V(2, 't'), V(2, 't')]; es = (2 * h, 2 * h + 1); d = [accd[6 + i][a] for i in range(2)]
            A_ = [I('v_pk_mul_f32', d[i][sl], ce[a][sl], d[i][sl]) for i in range(2)] + [I('v_exp_f32', T[i][e & 1], d[i][e]) for i in range(2) for e in es]
            B_ = [I('v_pk_mul_f32', d[i][sl], d[i][sl], accs[6 + i][a][sl]) for i in range(2)] + [I('v_pk_fma_f32', T[i], T[i], cl2, cl2) for i in range(2)] + \
                 [I('v_rcp_f32', T[i][e], T[i][e]) for i in range(2) for e in range(2)]
            C_ = [I('v_pk_fma_f32', xf[i][a][sl], d[i][sl], T[i], xf[i][a][sl]) for i in range(2)]
            D_ = [I('v_permlane16_swap_b32', xf[0][a][e], xf[1][a][e]) for e in es]
            E_ = [ost(xf[i][a][e], vo[i], a, e) for e in es for i in range(2)]
            return A_, B_, C_, D_, E_
        sg = [stage(a, h) for a in range(2) for h in range(2)]
        def mix(v, x):
            out = []
            for k, i_ in enumerate(v):
                out.append(i_)
                if x and k % 2 == 1: out.append(x.pop(0))
            return out + x
        p.extend(sg[0][0] + sg[1][0] + sg[0][1] + sg[2][0][:2] + sg[0][2] + sg[2][0][2:4] + sg[0][3])
        p.extend(mix(sg[2][0][4:] + sg[1][1], sg[0][4]) + sg[3][0][:2] + sg[1][2] + sg[3][0][2:4] + sg[1][3]); p.extend(st.t(19))
        p.extend(mix(sg[3][0][4:] + sg[2][1], sg[1][4]) + sg[3][1][:2] + sg[2][2] + sg[3][1][2:4] + sg[2][3])
        p.extend(mix(sg[3][1][4:], sg[2][4][:2]) + sg[2][4][2:3] + sg[3][2] + sg[2][4][3:] + sg[3][3] + sg[3][4]); p.extend(st.t(20))
    for a in range(0 if o.get('pk', 0) else 2):
        p.extend(inter(gate(accd[6][a], accs[6][a], xf[0][a], a) + gate(accd[7][a], accs[7][a], xf[1][a], a)))
        for e in range(4): p('v_permlane16_swap_b32', xf[0][a][e], xf[1][a][e])
        for e in range(4): p.extend([ost(xf[i][a][e], vo[i], a, e) for i in range(2)])
        p.extend(st.t(19 + a))
    p.extend(st.t(21))
    if st.on and o.get('fw'): p('s_waitcnt', mods='vmcnt(0)')
    if st.on: p('v_writelane_b32', st.v, rc, 40)
    st.flush(p, sS, v0); p.append(KEEP(wid))
    p.append(LABEL('L_end')); p('s_endpgm')
    lines, peak, prog = finish(p)
    for nm_, par in (('cold', {}), ('warm', dict(Lc=600, fc=0))):
        stl = sim.report(prog, bar[1:] + [gE], nm_, par)
        if o.get('simv') and nm_ == 'cold': print("; stalls", [(g, k[0], int(x)) for g, k, x in stl if x > 60])
    for name, loads, check in stubs:
        rt = [LABEL(f'L_r{name}')] + loads() + [I('s_waitcnt', mods='vmcnt(0)')] + check() + \
             [I('s_sub_u32', rc, rc, 1), I('s_cbranch_scc1', f'L_x{name}'), I('s_cbranch_vccnz', f'L_r{name}'), I('s_branch', f'L_b{name}'),
              LABEL(f'L_x{name}'), I('s_mov_b32', rc, 0), I('s_branch', f'L_b{name}')]
        for ins in rt: lines.append(ins.name + ':' if ins.op == 'LABEL' else ins.text())
    lines += ['  s_endpgm', 'L_fin:']
    print("; instr", len(lines))
    return lines, st.peak(peak)

if __name__ == '__main__':
    import sys, json
    opt = json.loads(sys.argv[2]) if len(sys.argv) > 2 else {}
    lst = opt.pop('list', 1)
    label = 'x_kernel' if lst else NAME + '_kernel'
    l, pk = gen_y(label, opt)
    s = f"; @launch {'kernel=' + label + ' ' if lst else ''}grid=(256,1,1) block=(256,1,1) lds=163840\n"
    s += '.amdgcn_target "amdgcn-amd-amdhsa--gfx950"\n.text\n' + kernel_text(label, l) + '.section .rodata,"a"\n' + kernel_desc(label, pk['v'], pk['a'])
    al = opt.get('al')
    if al:
        from align import align
        s = align(s, *al)
    open(sys.argv[1], 'w').write(s)
```
